```python
import torch

def _softmax(x, axis=-1):
    return torch.softmax(x, dim=axis)
def _gelu(x):
    return torch.nn.functional.gelu(x, approximate="tanh")
def _silu(x):
    return torch.nn.functional.silu(x)
def _sigmoid(x):
    return torch.sigmoid(x)
def _layernorm(x, axis=-1, eps=1e-5):
    m = x.mean(dim=axis, keepdim=True)
    v = x.var(dim=axis, keepdim=True, unbiased=False)
    return (x - m) / torch.sqrt(v + eps)
def _scatter_add(tgt, idx, src, axis=0):
    return tgt.clone().index_add_(axis, idx, src)
def _segment_sum(src, seg, n):
    out = torch.zeros((n,) + src.shape[1:], dtype=src.dtype)
    return out.index_add_(0, seg, src)
def _pad(x, pw):
    flat = tuple(v for pair in reversed(pw) for v in pair)
    return torch.nn.functional.pad(x, flat)

kernel_name = 'sequential_preLN__compressed_kv_cla__glu_gated_geglu__decode'

def setup_inputs():

    _w = (lambda a: (lambda t: t.to(torch.bfloat16) if t.is_floating_point() else t)(torch.as_tensor(a)))
    def _A_setup():
        B, H, Sq, Sk, D, M = 4, 32, 1, 8192, 128, 512
        Dc = 4 * D
        return {
            "x": _w((lambda *s: torch.randn(*s, dtype=torch.bfloat16) * 0.05)(B, Sq, M)),
            "c_kv": _w((lambda *s: torch.randn(*s, dtype=torch.bfloat16) * 0.8)(B, Sk, Dc)),
            "w_q": _w((lambda *s: torch.randn(*s, dtype=torch.bfloat16) * 1.6)(M, H, D) * (M ** -0.5)),
            "w_uk": _w((lambda *s: torch.randn(*s, dtype=torch.bfloat16) * 1.6)(Dc, H, D) * (Dc ** -0.5)),
            "w_uv": _w((lambda *s: torch.randn(*s, dtype=torch.bfloat16) * 0.8)(Dc, H, D) * (Dc ** -0.5)),
            "w_o": _w((lambda *s: torch.randn(*s, dtype=torch.bfloat16) * 0.8)(H, D, M) * ((H * D) ** -0.5)),
        }
    _A_in = _A_setup()

    def _B_setup():
        B, S, Dm, Df = 4, 1, 512, 1376
        return {
            "x": _w((lambda *s: torch.randn(*s, dtype=torch.bfloat16) * 0.05)(B, S, Dm)),
            "w_gate": _w((lambda *s: torch.randn(*s, dtype=torch.bfloat16) * 0.4)(Dm, Df) * (Dm ** -0.5)),
            "w_up": _w((lambda *s: torch.randn(*s, dtype=torch.bfloat16) * 0.4)(Dm, Df) * (Dm ** -0.5)),
            "w_down": _w((lambda *s: torch.randn(*s, dtype=torch.bfloat16) * 0.4)(Df, Dm) * (Df ** -0.5)),
        }
    _B_in = _B_setup()

    return {
        "A_x": _A_in["x"],
        "A_c_kv": _A_in["c_kv"],
        "A_w_q": _A_in["w_q"],
        "A_w_uk": _A_in["w_uk"],
        "A_w_uv": _A_in["w_uv"],
        "A_w_o": _A_in["w_o"],
        "B_x": _B_in["x"],
        "B_w_gate": _B_in["w_gate"],
        "B_w_up": _B_in["w_up"],
        "B_w_down": _B_in["w_down"],
    }

def reference(A_x, A_c_kv, A_w_q, A_w_uk, A_w_uv, A_w_o, B_x, B_w_gate, B_w_up, B_w_down):
    def _A_ref(x, c_kv, w_q, w_uk, w_uv, w_o):
        B, Sq, M = x.shape[0], x.shape[1], x.shape[2]
        Sk = c_kv.shape[1]
        H, D = w_q.shape[1], w_q.shape[2]
        q = torch.einsum("bqm,mhd->bhqd", x, w_q)
        k = torch.einsum("bkc,chd->bhkd", c_kv, w_uk)
        v = torch.einsum("bkc,chd->bhkd", c_kv, w_uv)
        scores = torch.einsum("bhqd,bhkd->bhqk", q, k) * (D ** -0.5)
        off = Sk - Sq
        qi = torch.arange(Sq)[:, None]
        kj = torch.arange(Sk)[None, :]
        cmask = kj <= (qi + off)
        scores = torch.where(cmask[None, None], scores, -1e9)
        p = _softmax(scores, axis=-1)
        ctx = torch.einsum("bhqk,bhkd->bhqd", p, v)
        return torch.einsum("bhqd,hdm->bqm", ctx, w_o)

    def _B_ref(x, w_gate, w_up, w_down):
        g = torch.einsum("bsd,df->bsf", x, w_gate)
        u = torch.einsum("bsd,df->bsf", x, w_up)
        h = _gelu(g) * u
        return torch.einsum("bsf,fd->bsd", h, w_down)

    x = A_x
    h = x + _A_ref(_layernorm(x, axis=-1), A_c_kv, A_w_q, A_w_uk, A_w_uv, A_w_o)
    h2 = h + _B_ref(_layernorm(h, axis=-1), B_w_gate, B_w_up, B_w_down)
    return h2
```

```python
KN = "sequential_preLN__compressed_kv_cla__glu_gated_geglu__decode_kernel"
WS = 268435456
def header(launch_lines):
    return "\n".join(launch_lines) + "\n" + '.amdgcn_target "amdgcn-amd-amdhsa--gfx950"\n.text\n'
def kstart(name):
    return f".globl {name}\n.p2align 8\n.type {name},@function\n{name}:\n"
def kdesc(name, vgpr=256, sgpr=102, accum=256):
    return f""".section .rodata,"a"
.p2align 6
.amdhsa_kernel {name}
  .amdhsa_next_free_vgpr {vgpr}
  .amdhsa_next_free_sgpr {sgpr}
  .amdhsa_accum_offset {accum}
  .amdhsa_group_segment_fixed_size 0
  .amdhsa_kernarg_size 104
  .amdhsa_user_sgpr_count 2
  .amdhsa_user_sgpr_kernarg_segment_ptr 1
  .amdhsa_system_sgpr_workgroup_id_x 1
.end_amdhsa_kernel
.text
"""
```

```python
import sys, math
from gen_common import *

QABS = 0x000000
STAT = 0x040000
OPART = 0x100000
APART = 0x500000
FPART = 0x540000
OOB = 0x40000000
SCALE = (128 ** -0.5) * math.log2(math.e)
import struct
def f2u(x): return struct.unpack("<I", struct.pack("<f", x))[0]

class G:
    def __init__(s, opts):
        s.L = []; s.o = opts; s.uid = 0
    def a(s, x): s.L.append(x)
    def __call__(s, x): s.L.append(x)
    def lab(s, p="L"):
        s.uid += 1; return f"{p}_{s.uid}"
    def nop(s, n):
        while n > 0:
            k = min(n, 16); s.a(f"s_nop {k-1}"); n -= k
    def stamp(s, k):
        if s.o.get("stamps"):
            s.a(f"s_memrealtime s[{80+2*k}:{81+2*k}]")
    def srd(s, d, p, size):
        s.a(f"s_mov_b32 s{d}, s{p}"); s.a(f"s_and_b32 s{d+1}, s{p+1}, 0xffff")
        s.a(f"s_mov_b32 s{d+2}, {size}"); s.a(f"s_mov_b32 s{d+3}, 0x20000")
    def dpp(s, op, v, ctrl):
        s.a("s_nop 1"); s.a(f"{op}_dpp v{v}, v{v}, v{v} {ctrl} row_mask:0xf bank_mask:0xf")
    def allred(s, op, v, t, width=64):
        for c in ("quad_perm:[1,0,3,2]", "quad_perm:[2,3,0,1]", "row_half_mirror", "row_mirror"):
            s.dpp(op, v, c)
        if width >= 32:
            s.a(f"v_mov_b32 v{t}, v{v}"); s.a("s_nop 1"); s.a(f"v_permlane16_swap_b32 v{v}, v{t}"); s.a(f"{op} v{v}, v{v}, v{t}")
        if width >= 64:
            s.a(f"v_mov_b32 v{t}, v{v}"); s.a("s_nop 1"); s.a(f"v_permlane32_swap_b32 v{v}, v{t}"); s.a(f"{op} v{v}, v{v}, v{t}")
    def bf16r(s, d, v):
        s.a(f"v_cvt_pk_bf16_f32 v{d}, v{v}, v{v}"); s.a(f"v_lshlrev_b32 v{d}, 16, v{d}")
    def maxtree(s, d, regs):
        regs = list(regs)
        s.a(f"v_max3_u32 v{d}, v{regs[0]}, v{regs[1]}, v{regs[2]}")
        i = 3
        while i + 1 < len(regs):
            s.a(f"v_max3_u32 v{d}, v{d}, v{regs[i]}, v{regs[i+1]}"); i += 2
        if i < len(regs):
            s.a(f"v_max_u32 v{d}, v{d}, v{regs[i]}")
    def perm8x8(s, R, T, acc=None):
        for t in range(8):
            for p in range(4):
                s.a(f"v_perm_b32 v{T+4*t+p}, v{R+4*(2*p+1)+(t>>1)}, v{R+4*(2*p)+(t>>1)}, s{60+(t&1)}")
        if acc is not None:
            for k in range(32):
                s.a(f"v_accvgpr_write_b32 a{acc+k}, v{T+k}")

def fswz(k):
    return ((k & 3) << 2) | ((k >> 2) & 3)

SPIN = 20000

def cnt_wait(g, off, vt, vo):
    g(f"v_and_b32 v{vo}, 1, v1"); g(f"v_lshlrev_b32 v{vo}, 7, v{vo}")
    g(f"s_mov_b32 s64, {SPIN}")
    l = g.lab("cw"); e = g.lab("cwe")
    g(f"{l}:")
    g(f"buffer_load_dword v{vt}, v{vo}, s[8:11], 0 offen offset:{off} sc1")
    g("s_sub_u32 s64, s64, 1")
    g("s_cmp_eq_u32 s64, 0")
    g(f"s_cbranch_scc1 {e}")
    g("s_waitcnt vmcnt(0)")
    g(f"v_cmp_ne_u32 vcc, 64, v{vt}")
    g(f"s_cbranch_vccnz {l}")
    g(f"{e}:")
    g("s_waitcnt vmcnt(0)")

def cnt_signal(g, off):
    e = g.lab("cs")
    g("s_cmp_lg_u32 s3, 0")
    g(f"s_cbranch_scc1 {e}")
    g("s_and_b32 s64, s42, 1"); g("s_lshl_b32 s64, s64, 7")
    g("v_mov_b32 v30, s64"); g("v_mov_b32 v31, 1")
    g("s_mov_b64 exec, 1")
    g(f"buffer_atomic_add v31, v30, s[8:11], 0 offen offset:{off} sc1")
    g("s_mov_b64 exec, -1")
    g(f"{e}:")

def ffn_weights(g):
    wf = g.o["wflag"]
    g.srd(44, 30, 512*2752); g.srd(48, 32, 512*2752); g.srd(52, 34, 1376*1024); g.srd(56, 16, 4096)
    g(f"v_mul_u32_u24 v4, {4*2752}, v3"); g("v_lshl_add_u32 v4, v2, 2, v4")
    g(f"s_mul_i32 s62, s3, {128*2752}"); g("s_lshl_b32 s63, s66, 6"); g("s_add_u32 s62, s62, s63")
    for ks in range(4):
        for e in range(8):
            g(f"s_add_u32 s63, s62, {(32*ks+16*(e>>2)+(e&3))*2752}")
            g(f"buffer_load_dword v{32+8*ks+e}, v4, s[44:47], s63 offen {wf}")
            g(f"buffer_load_dword v{64+8*ks+e}, v4, s[48:51], s63 offen {wf}")
        if ks == 2: g("s_waitcnt vmcnt(40)")
    g("v_lshlrev_b32 v5, 13, v3"); g("v_lshl_add_u32 v5, v2, 4, v5")
    g("s_lshl_b32 s62, s66, 15"); g("s_lshl_b32 s63, s3, 8"); g("s_add_u32 s62, s62, s63")
    g("s_waitcnt vmcnt(40)")
    for e in range(8):
        g(f"s_add_u32 s63, s62, {e*1024}")
        g(f"buffer_load_dwordx4 v[{96+4*e}:{99+4*e}], v5, s[52:55], s63 offen {wf}")
    g("v_lshlrev_b32 v6, 3, v3")
    g("s_lshl_b32 s62, s67, 10"); g("s_lshl_b32 s63, s3, 8"); g("s_add_u32 s62, s62, s63")
    for t in range(8):
        g(f"buffer_load_dwordx2 v[{8+2*t}:{9+2*t}], v6, s[56:59], s62 offen offset:{32*t}")
    g("s_waitcnt vmcnt(16)")
    for ks in range(4):
        for m, base in ((0, 32), (1, 64)):
            for t in range(2):
                for p in range(4):
                    g(f"v_perm_b32 v{160+16*ks+8*m+4*t+p}, v{base+8*ks+2*p+1}, v{base+8*ks+2*p}, s{60+t}")
    g("s_waitcnt vmcnt(8)")
    g.perm8x8(96, 224)
    g("s_waitcnt vmcnt(0)")
    for t in range(8):
        for q in range(2):
            g(f"v_lshlrev_b32 v{128+4*t+2*q}, 16, v{8+2*t+q}")
            g(f"v_and_b32 v{128+4*t+2*q+1}, 0xffff0000, v{8+2*t+q}")
    for k in range(4): g(f"v_mov_b32 v{24+k}, 0x3f803f80")
    g.nop(2)
    for ks in range(4):
        for t in range(4):
            c = "0" if ks == 0 else f"v[{32+4*t}:{35+4*t}]"
            g(f"v_mfma_f32_16x16x32_bf16 v[{32+4*t}:{35+4*t}], v[24:27], v[{160+16*ks+4*t}:{163+16*ks+4*t}], {c}")
    g.nop(8)
    for t in range(1, 4): g(f"v_mov_b32 v{32+t}, v{32+4*t}")
    g("v_lshlrev_b32 v7, 4, v2"); g("s_lshl_b32 s62, s3, 8"); g(f"v_add_u32 v7, s62, v7")
    g(f"ds_write_b128 v7, v[32:35] offset:{LDS_CS}")
    g("s_waitcnt lgkmcnt(0)")
    g("s_barrier")
    g("v_and_b32 v7, 3, v2"); g("v_lshl_add_u32 v7, v3, 2, v7"); g("v_lshlrev_b32 v7, 4, v7")
    for w in range(4):
        g(f"ds_read_b128 v[{32+4*w}:{35+4*w}], v7 offset:{LDS_CS+256*w}")
    g("s_waitcnt lgkmcnt(0)")
    for k in range(4):
        g(f"v_add_f32 v{32+k}, v{32+k}, v{36+k}"); g(f"v_add_f32 v{40+k}, v{40+k}, v{44+k}")
        g(f"v_add_f32 v{20+k}, v{32+k}, v{40+k}")
    g("v_and_b32 v28, 3, v2")
    for p in range(4):
        g(f"v_cmp_eq_u32 vcc, {p}, v28"); g("s_nop 1"); g(f"v_cndmask_b32 v{16+p}, 0, -1, vcc")

LDS_XN = 0
LDS_QX = 8192
LDS_OT = 16384
LDS_FX = 49152
LDS_CX = 49664
LDS_CS = 51200
LDS_GX = 52224
LDS_SX = 53248

def tile_setup(g):
    g("v_lshlrev_b32 v8, 1, v3"); g("v_xor_b32 v8, v8, v2"); g("v_lshlrev_b32 v8, 4, v8"); g("v_lshl_add_u32 v8, v3, 10, v8")
    g("v_xor_b32 v9, 0x80, v8")
    g("s_lshl_b32 s68, s3, 13"); g(f"s_add_u32 s68, s68, {LDS_OT}")
    g("v_bfe_u32 v11, v1, 2, 2")
    g("v_lshl_add_u32 v10, v3, 3, v11"); g("v_lshlrev_b32 v10, 8, v10")
    g("v_and_b32 v12, 1, v3"); g("v_lshl_add_u32 v12, v12, 2, v11"); g("v_lshlrev_b32 v12, 1, v12")
    g("v_bfe_u32 v13, v1, 1, 1"); g("v_xor_b32 v12, v12, v13")
    g("v_lshl_add_u32 v10, v12, 4, v10")
    g("v_and_b32 v13, 1, v1"); g("v_lshl_add_u32 v10, v13, 3, v10")
    g("v_add_u32 v10, s68, v10")

def tile_dma(g, sbase):
    for n in range(8):
        g(f"s_add_u32 m0, s68, {n*1024}")
        g(f"s_add_u32 s63, s{sbase}, {n*4096}")
        g(f"buffer_load_dwordx4 v{8+((n>>1)&1)}, s[4:7], s63 offen sc1 lds")

def tile_read(g, A):
    for t in range(8):
        g(f"v_xor_b32 v11, {t<<5}, v10")
        g(f"ds_read_b64_tr_b16 v[{A+4*t}:{A+4*t+1}], v11")
        g(f"ds_read_b64_tr_b16 v[{A+4*t+2}:{A+4*t+3}], v11 offset:1024")
        if t == 5: g("s_waitcnt lgkmcnt(6)")
    g("s_waitcnt lgkmcnt(0)")

def ffn_stage(g):
    tile_setup(g)
    g("s_lshl_b32 s69, s67, 15"); g("s_lshl_b32 s63, s3, 8"); g("s_add_u32 s69, s69, s63"); g(f"s_add_u32 s69, s69, {APART}")
    g(f"s_mov_b32 s64, {SPIN}")
    l = g.lab("fp"); e = g.lab("fpe")
    g(f"{l}:")
    tile_dma(g, 69)
    g("s_waitcnt vmcnt(0)")
    tile_read(g, 32)
    for t in range(8):
        g(f"v_mfma_f32_16x16x32_bf16 v[{64+4*t}:{67+4*t}], v[{32+4*t}:{35+4*t}], v[24:27], v[{128+4*t}:{131+4*t}]")
    g.nop(2)
    for t in range(8):
        g(f"v_cvt_pk_bf16_f32 v{96+2*t}, v{64+4*t}, v{65+4*t}")
        g(f"v_cvt_pk_bf16_f32 v{97+2*t}, v{66+4*t}, v{67+4*t}")
    g.nop(2)
    def mm(ks, t):
        A = f"v[{96+4*ks}:{99+4*ks}]"
        B = f"v[{160+16*ks+4*t}:{163+16*ks+4*t}]" if t < 4 else ("v[24:27]" if t == 4 else A)
        c = "0" if ks == 0 else f"v[{32+4*t}:{35+4*t}]"
        g(f"v_mfma_f32_16x16x32_bf16 v[{32+4*t}:{35+4*t}], {A}, {B}, {c}")
    for ks in range(4): mm(ks, 4)
    for ks in range(4): mm(ks, 5)
    g("s_sub_u32 s64, s64, 1"); g("s_cmp_eq_u32 s64, 0"); g(f"s_cbranch_scc1 {e}")
    g.nop(2)
    g("v_cmp_u_f32 vcc, v48, v48")
    g(f"s_cbranch_vccnz {l}")
    g(f"{e}:")
    g.stamp(7)
    for ks in range(4):
        for t in range(4): mm(ks, t)
    sk = g.lab("nh")
    g("s_cmp_lg_u32 s66, 0"); g(f"s_cbranch_scc1 {sk}")
    g(f"s_mul_i32 s62, s67, {44*2048}"); g("s_lshl_b32 s63, s3, 9"); g("s_add_u32 s62, s62, s63"); g(f"s_add_u32 s62, s62, {FPART+43*2048}")
    g("v_lshlrev_b32 v13, 4, v3")
    g("s_mov_b32 s70, 0x00010001"); g("s_mov_b32 s71, 0x00010001"); g("s_mov_b64 exec, s[70:71]")
    for t in range(8):
        g(f"buffer_store_dwordx4 v[{64+4*t}:{67+4*t}], v13, s[4:7], s62 offen offset:{64*t} sc1")
    g("s_mov_b64 exec, -1")
    g(f"{sk}:")
    g("v_lshlrev_b32 v13, 4, v2"); g("s_lshl_b32 s62, s3, 8"); g("v_add_u32 v13, s62, v13")
    g("s_lshl_b32 s62, s3, 3"); g("v_mov_b32 v14, s62")
    g.nop(6)
    for t in range(1, 4): g(f"v_mov_b32 v{32+t}, v{32+4*t}")
    g("v_mov_b32 v49, v52")
    g("s_mov_b64 exec, 0xffff")
    g(f"ds_write_b128 v13, v[32:35] offset:{LDS_GX}")
    g(f"ds_write_b64 v14, v[48:49] offset:{LDS_SX}")
    g("s_mov_b64 exec, -1")
    g("v_mov_b32 v14, 0")
    g("s_waitcnt lgkmcnt(0)")
    g("s_barrier")
    g(f"ds_read_b128 v[56:59], v14 offset:{LDS_SX}")
    g(f"ds_read_b128 v[60:63], v14 offset:{LDS_SX+16}")
    for w in range(4):
        g(f"ds_read_b128 v[{32+4*w}:{35+4*w}], v7 offset:{LDS_GX+256*w}")
    g("s_waitcnt lgkmcnt(4)")
    g("v_add_f32 v56, v56, v58"); g("v_add_f32 v57, v57, v59"); g("v_add_f32 v60, v60, v62"); g("v_add_f32 v61, v61, v63")
    g("v_add_f32 v56, v56, v60"); g("v_add_f32 v57, v57, v61")
    g(f"v_mul_f32 v56, 0x{f2u(1/512):08x}, v56")
    g(f"v_mul_f32 v57, 0x{f2u(1/512):08x}, v57")
    g("v_fma_f32 v57, -v56, v56, v57"); g("v_max_f32 v57, 0, v57")
    g.bf16r(56, 56); g.bf16r(57, 57)
    g(f"v_add_f32 v57, 0x{f2u(1e-5):08x}, v57"); g.bf16r(57, 57)
    g("v_sqrt_f32 v57, v57"); g("s_nop 0"); g.bf16r(57, 57)
    g("v_rcp_f32 v57, v57")
    g("s_waitcnt lgkmcnt(0)")
    for k in range(4):
        g(f"v_add_f32 v{32+k}, v{32+k}, v{36+k}"); g(f"v_add_f32 v{40+k}, v{40+k}, v{44+k}")
    for k in range(4):
        g(f"v_add_f32 v{32+k}, v{32+k}, v{40+k}")
        g(f"v_fma_f32 v{32+k}, -v56, v{20+k}, v{32+k}")
        g(f"v_mul_f32 v{32+k}, v57, v{32+k}")
    g("v_cvt_pk_bf16_f32 v36, v32, v33"); g("v_cvt_pk_bf16_f32 v37, v34, v35")
    g("v_lshlrev_b32 v32, 16, v36"); g("v_and_b32 v33, 0xffff0000, v36")
    g("v_lshlrev_b32 v34, 16, v37"); g("v_and_b32 v35, 0xffff0000, v37")
    c1 = -2 * math.sqrt(2 / math.pi) * math.log2(math.e)
    g(f"s_mov_b32 s62, 0x{f2u(c1*0.044715):08x}"); g(f"v_mov_b32 v40, 0x{f2u(c1):08x}")
    for k in range(2):
        g(f"v_mul_f32 v{38+k}, v{32+k}, v{32+k}")
    for k in range(2):
        g(f"v_fma_f32 v{38+k}, v{38+k}, s62, v40")
    for k in range(2):
        g(f"v_mul_f32 v{38+k}, v{38+k}, v{32+k}")
    for k in range(2):
        g(f"v_exp_f32 v{38+k}, v{38+k}")
    g("s_nop 0")
    for k in range(2):
        g(f"v_add_f32 v{38+k}, 1.0, v{38+k}")
    for k in range(2):
        g(f"v_rcp_f32 v{38+k}, v{38+k}")
    g("s_nop 0")
    for k in range(2):
        g(f"v_mul_f32 v{38+k}, v{38+k}, v{32+k}")
    g("v_cvt_pk_bf16_f32 v36, v38, v39")
    g("v_lshlrev_b32 v38, 16, v36"); g("v_and_b32 v39, 0xffff0000, v36")
    g("v_mul_f32 v38, v38, v34"); g("v_mul_f32 v39, v39, v35")
    g("v_cvt_pk_bf16_f32 v36, v38, v39")
    for p in range(4): g(f"v_and_b32 v{40+p}, v36, v{16+p}")
    g.nop(2)
    for t in range(8):
        g(f"v_mfma_f32_16x16x32_bf16 v[{64+4*t}:{67+4*t}], v[40:43], v[{224+4*t}:{227+4*t}], 0")
    g(f"s_mul_i32 s62, s67, 44"); g("s_add_u32 s62, s62, s66"); g("s_lshl_b32 s62, s62, 11")
    g("s_lshl_b32 s63, s3, 9"); g("s_add_u32 s62, s62, s63"); g(f"s_add_u32 s62, s62, {FPART}")
    g("v_lshlrev_b32 v13, 5, v2"); g("v_lshl_add_u32 v13, v3, 4, v13")
    g("v_cmp_ne_u32 vcc, 0, v3")
    for t in range(8):
        g(f"v_add_f32 v{64+4*t}, v{64+4*t}, v{65+4*t}"); g(f"v_add_f32 v{66+4*t}, v{66+4*t}, v{67+4*t}")
    for t in range(8):
        g(f"v_add_f32 v{64+4*t}, v{64+4*t}, v{66+4*t}")
    for q in range(4):
        g(f"v_cndmask_b32 v{32+q}, v{64+4*q}, v{80+4*q}, vcc")
    g("s_mov_b32 exec_hi, 0")
    g("buffer_store_dwordx4 v[32:35], v13, s[4:7], s62 offen sc1")
    g("s_mov_b64 exec, -1")
    g.stamp(8)

def gen(opts):
    g = G(opts)
    wf = opts["wflag"]; cf = opts["cflag"]
    g("s_cmp_ge_u32 s2, 256"); g("s_cbranch_scc1 L_end")
    g.stamp(0)
    g("s_load_dwordx16 s[16:31], s[0:1], 0")
    g("s_load_dwordx8 s[32:39], s[0:1], 64")
    g("s_load_dwordx2 s[40:41], s[0:1], 96")
    g("v_lshrrev_b32 v2, 6, v0"); g("v_and_b32 v1, 63, v0")
    g("v_readfirstlane_b32 s3, v2")
    g("v_and_b32 v2, 15, v0"); g("v_lshrrev_b32 v3, 4, v1")
    g("s_and_b32 s42, s2, 7"); g("s_lshr_b32 s43, s2, 4"); g("s_lshl_b32 s43, s43, 3"); g("s_or_b32 s42, s42, s43")
    g("s_lshr_b32 s43, s42, 5"); g("s_lshl_b32 s43, s43, 3"); g("s_and_b32 s72, s42, 7"); g("s_or_b32 s72, s72, s43")
    g("s_bfe_u32 s73, s42, 0x20003")
    g("s_mov_b32 s60, 0x05040100"); g("s_mov_b32 s61, 0x07060302")
    if opts.get("stamps"):
        for k in range(82, 102): g(f"s_mov_b32 s{k}, 0")
    g("s_waitcnt lgkmcnt(0)")
    g.srd(4, 40, WS); g.srd(8, 38, 256)
    g("s_bitcmp1_b32 s2, 3")
    g("s_cbranch_scc1 L_A")
    for k in range(4): g(f"v_mov_b32 v{24+k}, -1")
    g("s_lshl_b32 s74, s72, 12"); g("s_lshl_b32 s62, s73, 10"); g("s_add_u32 s74, s74, s62"); g(f"s_add_u32 s74, s74, {QABS}")
    g("v_lshlrev_b32 v28, 2, v0")
    g("buffer_store_dword v24, v28, s[4:7], s74 offen sc1")
    g("s_lshl_b32 s75, s73, 5"); g("s_add_u32 s75, s75, s72")
    g(f"s_mul_i32 s62, s42, 2816"); g(f"s_add_u32 s62, s62, {FPART}")
    g("s_lshl_b32 s63, s75, 10"); g(f"s_add_u32 s63, s63, {APART - 192*16}")
    g("v_lshlrev_b32 v29, 4, v0")
    g("v_add_u32 v30, s62, v29"); g("v_add_u32 v31, s63, v29")
    g(f"v_mov_b32 v5, {OOB}")
    g("v_cmp_gt_u32 vcc, 176, v0"); g("s_nop 1"); g("v_cndmask_b32 v30, v5, v30, vcc")
    g("v_cmp_le_u32 vcc, 192, v0"); g("s_nop 1"); g("v_cndmask_b32 v30, v30, v31, vcc")
    g("buffer_store_dwordx4 v[24:27], v30, s[4:7], 0 offen sc1")
    g("s_lshl_b32 s76, s75, 12"); g(f"s_add_u32 s76, s76, {STAT}")
    g("v_lshlrev_b32 v31, 7, v0")
    g("v_cmp_gt_u32 vcc, 32, v0"); g("s_nop 1"); g("v_cndmask_b32 v31, v5, v31, vcc")
    g("buffer_store_dwordx2 v[24:25], v31, s[4:7], s76 offen sc1")
    g.srd(56, 16, 4096); g.srd(12, 20, 4 << 20); g.srd(44, 22, 4 << 20)
    g("buffer_load_dwordx4 v[8:11], v29, s[56:59], 0 offen")
    g("v_lshlrev_b32 v4, 16, v3"); g("v_lshl_add_u32 v4, v2, 4, v4")
    g("s_lshl_b32 s62, s3, 20"); g("s_lshl_b32 s63, s72, 8"); g("s_add_u32 s62, s62, s63")
    for ks in range(4):
        for e in range(8):
            g(f"s_add_u32 s63, s62, {(32*ks+e)*8192}")
            r = 32 + 32*ks + 4*e
            g(f"buffer_load_dwordx4 v[{r}:{r+3}], v4, s[12:15], s63 offen {wf}")
    g("v_lshlrev_b32 v5, 14, v2"); g("v_lshl_add_u32 v5, v3, 4, v5")
    g("s_lshl_b32 s62, s73, 20"); g("s_lshl_b32 s63, s3, 18"); g("s_add_u32 s62, s62, s63"); g("s_lshl_b32 s63, s72, 8"); g("s_add_u32 s62, s62, s63")
    g("s_add_u32 s63, s62, 8192")
    for tt in range(2):
        for ks in range(4):
            r = 160 + 16*tt + 4*ks
            g(f"buffer_load_dwordx4 v[{r}:{r+3}], v5, s[44:47], s{62+tt} offen offset:{64*ks} {cf}")
    g("s_waitcnt vmcnt(40)")
    for q in range(4):
        g(f"v_lshlrev_b32 v{12+2*q}, 16, v{8+q}"); g(f"v_and_b32 v{13+2*q}, 0xffff0000, v{8+q}")
    g("v_add_f32 v20, v12, v13"); g("v_add_f32 v21, v14, v15"); g("v_add_f32 v22, v16, v17"); g("v_add_f32 v23, v18, v19")
    g("v_add_f32 v20, v20, v21"); g("v_add_f32 v22, v22, v23"); g("v_add_f32 v20, v20, v22")
    g.allred("v_add_f32", 20, 21)
    g(f"v_mul_f32 v20, 0x{f2u(1/512):08x}, v20")
    g("v_sub_f32 v22, v12, v20"); g("v_mul_f32 v21, v22, v22")
    for k in range(1, 8):
        g(f"v_sub_f32 v22, v{12+k}, v20"); g("v_fmac_f32 v21, v22, v22")
    g.allred("v_add_f32", 21, 22)
    g(f"v_mul_f32 v21, 0x{f2u(1/512):08x}, v21")
    g.bf16r(20, 20); g.bf16r(21, 21)
    g(f"v_add_f32 v21, 0x{f2u(1e-5):08x}, v21"); g.bf16r(21, 21)
    g("v_sqrt_f32 v21, v21"); g("s_nop 0"); g.bf16r(21, 21)
    g("v_rcp_f32 v21, v21")
    for k in range(8): g(f"v_sub_f32 v{12+k}, v{12+k}, v20")
    for q in range(4): g(f"v_cvt_pk_bf16_f32 v{8+q}, v{12+2*q}, v{13+2*q}")
    for q in range(4):
        g(f"v_lshlrev_b32 v{12+2*q}, 16, v{8+q}"); g(f"v_and_b32 v{13+2*q}, 0xffff0000, v{8+q}")
    for k in range(8): g(f"v_mul_f32 v{12+k}, v{12+k}, v21")
    for q in range(4): g(f"v_cvt_pk_bf16_f32 v{8+q}, v{12+2*q}, v{13+2*q}")
    g("s_mul_i32 s62, s3, 1040"); g("v_lshlrev_b32 v6, 4, v1"); g("v_add_u32 v6, s62, v6")
    g(f"ds_write_b128 v6, v[8:11] offset:{LDS_XN}")
    g("v_and_b32 v6, 3, v2"); g("v_mul_u32_u24 v6, 1040, v6"); g("v_lshl_add_u32 v6, v3, 4, v6")
    g("s_lshl_b32 s62, s3, 8"); g("v_add_u32 v6, s62, v6")
    g("s_waitcnt lgkmcnt(0)")
    g("s_barrier")
    for ks in range(4):
        g(f"ds_read_b128 v[{8+4*ks}:{11+4*ks}], v6 offset:{LDS_XN+64*ks}")
    cnt_signal(g, 0)
    g.stamp(1)
    for ks in range(4):
        g(f"s_waitcnt vmcnt({8+8*(3-ks)})")
        g.perm8x8(32+32*ks, 192)
        if ks == 0: g("s_waitcnt lgkmcnt(0)")
        for t in range(8):
            c = "0" if ks == 0 else f"v[{224+4*t}:{227+4*t}]"
            g(f"v_mfma_f32_16x16x32_bf16 v[{224+4*t}:{227+4*t}], v[{8+4*ks}:{11+4*ks}], v[{192+4*t}:{195+4*t}], {c}")
    g("s_mul_i32 s62, s3, 272"); g("v_lshlrev_b32 v6, 4, v2"); g("v_add_u32 v6, s62, v6")
    g("v_mul_u32_u24 v7, 272, v2"); g("v_lshl_add_u32 v7, v3, 4, v7")
    g.nop(4)
    for b in range(4):
        for p in range(4):
            g(f"v_cvt_pk_bf16_f32 v{8+4*b+p}, v{224+8*p+b}, v{228+8*p+b}")
    g("s_mov_b64 exec, 0xffff")
    for b in range(4):
        g(f"ds_write_b128 v6, v[{8+4*b}:{11+4*b}] offset:{LDS_QX+4*272*b}")
    g("s_mov_b64 exec, -1")
    g("s_waitcnt lgkmcnt(0)")
    g("s_barrier")
    for ks in range(4):
        g(f"ds_read_b128 v[{8+4*ks}:{11+4*ks}], v7 offset:{LDS_QX+64*ks}")
    g("s_waitcnt vmcnt(0) lgkmcnt(0)")
    for ks in range(4):
        for tt in range(2):
            c = "0" if ks == 0 else f"v[{224+4*tt}:{227+4*tt}]"
            g(f"v_mfma_f32_16x16x32_bf16 v[{224+4*tt}:{227+4*tt}], v[{8+4*ks}:{11+4*ks}], v[{160+16*tt+4*ks}:{163+16*tt+4*ks}], {c}")
    g.nop(8)
    for tt in range(2):
        r = 224 + 4*tt
        g(f"v_add_f32 v{r}, v{r}, v{r+1}"); g(f"v_add_f32 v{r+2}, v{r+2}, v{r+3}")
    for tt in range(2):
        r = 224 + 4*tt
        g(f"v_add_f32 v{r}, v{r}, v{r+2}")
    for tt in range(2):
        r = 224 + 4*tt
        g(f"v_mul_f32 v{r}, 0x{f2u(SCALE):08x}, v{r}")
    g("v_cvt_pk_bf16_f32 v8, v224, v228")
    g("buffer_store_dword v8, v28, s[4:7], s74 offen sc1")
    g.stamp(2)
    g("s_lshl_b32 s77, s75, 15"); g(f"s_add_u32 s77, s77, {OPART}")
    for n in range(8):
        g(f"s_add_u32 s63, s77, {n*4096}")
        g("buffer_store_dwordx4 v[24:27], v29, s[4:7], s63 offen sc1")
    g.srd(12, 24, 4 << 20); g.srd(44, 26, 4 << 20)
    g("v_lshlrev_b32 v4, 15, v3"); g("v_lshl_add_u32 v4, v2, 4, v4")
    g("v_lshlrev_b32 v5, 13, v3"); g("v_lshl_add_u32 v5, v2, 4, v5")
    g("s_lshl_b32 s78, s3, 20"); g("s_lshl_b32 s63, s72, 8"); g("s_add_u32 s78, s78, s63")
    g("s_lshl_b32 s79, s72, 17"); g("s_lshl_b32 s63, s3, 8"); g("s_add_u32 s79, s79, s63")
    def tw_issue(n):
        ks = n & 3
        for e in range(8):
            r = 32 + 32*ks + 4*e
            if n < 4:
                g(f"s_add_u32 s63, s78, {(32*ks+16*(e>>2)+(e&3))*8192}")
                g(f"buffer_load_dwordx4 v[{r}:{r+3}], v4, s[12:15], s63 offen {wf}")
            else:
                g(f"s_add_u32 s63, s79, {(32*ks+e)*1024}")
                g(f"buffer_load_dwordx4 v[{r}:{r+3}], v5, s[44:47], s63 offen {wf}")
    for n in range(4): tw_issue(n)
    for n in range(8):
        rem = min(3, 7 - n)
        g(f"s_waitcnt vmcnt({8*rem})")
        if n == 0:
            g("s_barrier")
            cnt_signal(g, 64)
            g("s_waitcnt vmcnt(24)")
        g.perm8x8(32+32*(n&3), 192, acc=32*n)
        if n + 4 < 8: tw_issue(n+4)
    g.stamp(3)
    cnt_wait(g, 0, 8, 9)
    g("s_mov_b32 s67, s73"); g("s_add_u32 s66, s72, 32")
    g("s_cmp_ge_u32 s72, 11"); g("s_cbranch_scc1 L_T_nofw")
    ffn_weights(g)
    g("L_T_nofw:")
    tile_setup(g)
    g("s_lshl_b32 s63, s3, 8"); g("s_add_u32 s69, s77, s63")
    g("v_and_b32 v13, 31, v1"); g("v_lshlrev_b32 v14, 7, v13")
    g(f"s_mov_b32 s64, {SPIN*4}")
    g("L_T_poll:")
    g("buffer_load_dwordx2 v[32:33], v14, s[4:7], s76 offen sc1")
    g("s_sub_u32 s64, s64, 1"); g("s_cmp_eq_u32 s64, 0"); g("s_cbranch_scc1 L_T_polle")
    g("s_waitcnt vmcnt(0)")
    g("v_max_u32 v34, v32, v33")
    g("v_cmp_eq_u32 vcc, -1, v34")
    g("s_cbranch_vccnz L_T_poll")
    g("L_T_polle:")
    g("s_waitcnt vmcnt(0)")
    g.stamp(4)
    tile_dma(g, 69)
    g("v_mov_b32 v34, v32")
    g.allred("v_max_f32", 34, 35, 32)
    g("v_sub_f32 v34, v32, v34"); g("v_exp_f32 v34, v34"); g("s_nop 0")
    g("v_mul_f32 v36, v34, v33")
    g.allred("v_add_f32", 36, 35, 32)
    g("v_rcp_f32 v36, v36"); g("s_nop 0")
    g("v_mul_f32 v34, v34, v36")
    g.bf16r(35, 34)
    g("v_sub_f32 v35, v34, v35")
    g("v_cvt_pk_bf16_f32 v34, v34, v35")
    g("s_lshl_b32 s62, s3, 7"); g("v_lshlrev_b32 v13, 1, v13"); g("v_add_u32 v13, s62, v13")
    g(f"ds_write_b16 v13, v34 offset:{LDS_FX}")
    g(f"ds_write_b16_d16_hi v13, v34 offset:{LDS_FX+64}")
    g("v_and_b32 v13, 1, v2"); g("v_lshlrev_b32 v13, 6, v13"); g("v_lshl_add_u32 v13, v3, 4, v13"); g("v_add_u32 v13, s62, v13")
    g("s_waitcnt lgkmcnt(0)")
    g(f"ds_read_b128 v[28:31], v13 offset:{LDS_FX}")
    g(f"s_mov_b32 s64, {SPIN}")
    g("s_branch L_T_pay1")
    g("L_T_pay:")
    tile_dma(g, 69)
    g("L_T_pay1:")
    g("s_waitcnt vmcnt(0)")
    tile_read(g, 32)
    g.stamp(5)
    for t in range(8):
        g(f"v_mfma_f32_16x16x32_bf16 v[{64+4*t}:{67+4*t}], v[{32+4*t}:{35+4*t}], v[28:31], 0")
    g.nop(2)
    for t in range(8):
        if t == 7: g.nop(1)
        g(f"v_cvt_pk_bf16_f32 v{96+2*t}, v{64+4*t}, v{65+4*t}")
        g(f"v_cvt_pk_bf16_f32 v{97+2*t}, v{66+4*t}, v{67+4*t}")
    g.nop(2)
    for ks in range(4):
        for t in range(8):
            c = "0" if ks == 0 else f"v[{32+4*t}:{35+4*t}]"
            g(f"v_mfma_f32_16x16x32_bf16 v[{32+4*t}:{35+4*t}], v[{96+4*ks}:{99+4*ks}], a[{32*ks+4*t}:{32*ks+4*t+3}], {c}")
    g("s_mul_i32 s62, s3, 272"); g("v_lshlrev_b32 v13, 4, v2"); g("v_add_u32 v14, s62, v13")
    g("v_and_b32 v15, 3, v2"); g("v_mul_u32_u24 v15, 272, v15"); g("v_lshl_add_u32 v15, v3, 4, v15")
    g("s_sub_u32 s64, s64, 1"); g("s_cmp_eq_u32 s64, 0"); g("s_cbranch_scc1 L_T_paye")
    g("v_cmp_u_f32 vcc, v32, v32")
    g("s_cbranch_vccnz L_T_pay")
    g("L_T_paye:")
    for t in range(8):
        g(f"v_add_f32 v{32+4*t}, v{32+4*t}, v{33+4*t}")
    for p in range(4):
        g(f"v_cvt_pk_bf16_f32 v{64+p}, v{32+8*p}, v{36+8*p}")
    g("s_mov_b64 exec, 0xffff")
    g(f"ds_write_b128 v14, v[64:67] offset:{LDS_CX}")
    g("s_mov_b64 exec, -1")
    g("s_waitcnt lgkmcnt(0)")
    g("s_barrier")
    for ks in range(4):
        g(f"ds_read_b128 v[{96+4*ks}:{99+4*ks}], v15 offset:{LDS_CX+64*ks}")
    g("s_lshl_b32 s62, s75, 10"); g("s_lshl_b32 s63, s3, 8"); g("s_add_u32 s62, s62, s63"); g(f"s_add_u32 s62, s62, {APART}")
    for ks in range(4):
        g(f"s_waitcnt lgkmcnt({3-ks})")
        for t in range(8):
            c = "0" if ks == 0 else f"v[{32+4*t}:{35+4*t}]"
            g(f"v_mfma_f32_16x16x32_bf16 v[{32+4*t}:{35+4*t}], v[{96+4*ks}:{99+4*ks}], a[{128+32*ks+4*t}:{128+32*ks+4*t+3}], {c}")
    g.nop(2)
    for t in range(8):
        g(f"v_add_f32 v{32+4*t}, v{32+4*t}, v{33+4*t}"); g(f"v_add_f32 v{34+4*t}, v{34+4*t}, v{35+4*t}")
    for t in range(8):
        g(f"v_add_f32 v{32+4*t}, v{32+4*t}, v{34+4*t}")
    for p in range(4):
        g(f"v_cvt_pk_bf16_f32 v{64+p}, v{32+8*p}, v{36+8*p}")
    g("s_mov_b64 exec, 0xffff")
    g("buffer_store_dwordx4 v[64:67], v13, s[4:7], s62 offen sc1")
    g("s_mov_b64 exec, -1")
    g.stamp(6)
    g("s_cmp_lt_u32 s72, 11"); g("s_cbranch_scc1 L_FFN")
    g("s_cmp_lt_u32 s72, 16"); g("s_cbranch_scc1 L_fin")
    g("s_cmp_lg_u32 s3, 0"); g("s_cbranch_scc1 L_fin")
    g.srd(12, 36, 4096)
    g("v_lshrrev_b32 v4, 3, v1"); g("v_and_b32 v5, 7, v1")
    g("v_lshlrev_b32 v6, 11, v4"); g("v_lshl_add_u32 v6, v5, 4, v6")
    g(f"v_mov_b32 v7, {OOB}")
    g("v_cmp_gt_u32 vcc, 3, v4"); g("s_nop 1"); g("v_cndmask_b32 v7, v7, v6, vcc")
    g("v_lshlrev_b32 v8, 4, v5")
    g(f"s_mul_i32 s62, s73, {44*2048}"); g("s_sub_u32 s65, s72, 16"); g("s_lshl_b32 s63, s65, 7"); g("s_add_u32 s62, s62, s63"); g(f"s_add_u32 s62, s62, {FPART}")
    g(f"s_mov_b32 s64, {SPIN*4}")
    g("L_R_poll:")
    for n in range(6):
        g(f"s_add_u32 s63, s62, {n*16384}")
        g(f"buffer_load_dwordx4 v[{32+4*n}:{35+4*n}], v{6 if n < 5 else 7}, s[4:7], s63 offen sc1")
    g(f"s_add_u32 s63, s62, {43*2048}")
    g("buffer_load_dwordx4 v[56:59], v8, s[4:7], s63 offen sc1")
    g("s_sub_u32 s64, s64, 1"); g("s_cmp_eq_u32 s64, 0"); g("s_cbranch_scc1 L_R_polle")
    g("s_waitcnt vmcnt(0)")
    g.maxtree(9, range(32, 60))
    g("v_cmp_eq_u32 vcc, -1, v9")
    g("s_cbranch_vccnz L_R_poll")
    g("L_R_polle:")
    g("s_waitcnt vmcnt(0)")
    g.stamp(9)
    for k in range(4):
        g(f"v_add_f32 v{32+k}, v{32+k}, v{36+k}"); g(f"v_add_f32 v{40+k}, v{40+k}, v{44+k}"); g(f"v_add_f32 v{48+k}, v{48+k}, v{52+k}")
    for k in range(4):
        g(f"v_add_f32 v{32+k}, v{32+k}, v{40+k}")
    for k in range(4):
        g(f"v_add_f32 v{32+k}, v{32+k}, v{48+k}")
    g("s_nop 1")
    for k in range(4):
        g(f"v_add_f32_dpp v{32+k}, v{32+k}, v{32+k} row_ror:8 row_mask:0xf bank_mask:0xf")
    for sw in ("v_permlane16_swap_b32", "v_permlane32_swap_b32"):
        for k in range(4): g(f"v_mov_b32 v{36+k}, v{32+k}")
        g("s_nop 1")
        for k in range(4): g(f"{sw} v{32+k}, v{36+k}")
        for k in range(4): g(f"v_add_f32 v{32+k}, v{32+k}, v{36+k}")
    g("v_cvt_pk_bf16_f32 v36, v32, v33"); g("v_cvt_pk_bf16_f32 v37, v34, v35")
    g("v_cvt_pk_bf16_f32 v38, v56, v57"); g("v_cvt_pk_bf16_f32 v39, v58, v59")
    for q in range(2):
        g(f"v_lshlrev_b32 v{32+2*q}, 16, v{36+q}"); g(f"v_and_b32 v{33+2*q}, 0xffff0000, v{36+q}")
        g(f"v_lshlrev_b32 v{40+2*q}, 16, v{38+q}"); g(f"v_and_b32 v{41+2*q}, 0xffff0000, v{38+q}")
    for k in range(4): g(f"v_add_f32 v{32+k}, v{32+k}, v{40+k}")
    g("v_cvt_pk_bf16_f32 v36, v32, v33"); g("v_cvt_pk_bf16_f32 v37, v34, v35")
    g("v_lshlrev_b32 v8, 3, v5")
    g("s_lshl_b32 s62, s73, 10"); g("s_lshl_b32 s63, s65, 6"); g("s_add_u32 s62, s62, s63")
    g("s_mov_b64 exec, 0xff")
    g("buffer_store_dwordx2 v[36:37], v8, s[12:15], s62 offen")
    g("s_mov_b64 exec, -1")
    g.stamp(10)
    g("s_branch L_fin")
    g("L_A:")
    acu(g)
    g("s_mov_b32 s66, s72"); g("s_mov_b32 s67, s73")
    g("s_barrier")
    ffn_weights(g)
    g.stamp(6)
    g("L_FFN:")
    ffn_stage(g)
    g("L_fin:")
    if opts.get("stamps"):
        nst = 11
        g("s_waitcnt lgkmcnt(0)")
        g("s_cmp_lg_u32 s3, 0"); g("s_cbranch_scc1 L_end")
        g("s_mov_b64 exec, 1")
        g(f"s_mul_i32 s62, s2, {nst*8}"); g(f"s_add_u32 s62, s62, {WS - 256*nst*8}")
        g("v_mov_b32 v3, 0")
        for k in range(nst):
            g(f"v_mov_b32 v4, s{80+2*k}"); g(f"v_mov_b32 v5, s{81+2*k}")
            g(f"buffer_store_dwordx2 v[4:5], v3, s[4:7], s62 offen offset:{8*k}")
            g("s_nop 1")
    g("L_end:")
    g("s_endpgm")
    hdr = open("hdr.txt").read()
    return hdr + "; @launch grid=(256,1,1) block=(256,1,1) lds=163840\n" + '.amdgcn_target "amdgcn-amd-amdhsa--gfx950"\n.text\n' + kstart(KN) + "\n".join(g.L) + "\n" + kdesc(KN, vgpr=512, accum=256).replace(".text\n", "")

LQ = 131072
LMX = LQ
LP = LQ + 1024

def acu(g):
    cf = g.o["cflag"]
    g.srd(12, 18, 32 << 20)
    g("s_lshr_b32 s74, s42, 5")
    g("s_and_b32 s75, s42, 31")
    g("s_lshl_b32 s76, s42, 18")
    g("v_lshlrev_b32 v4, 4, v1")
    g("v_and_b32 v5, 31, v1")
    g("v_lshrrev_b32 v6, 5, v1")
    def dma_chunk(ch):
        g("s_lshl_b32 s62, s3, 14")
        g(f"s_add_u32 s65, s76, s62")
        for tl in range(4):
            for r in range(16):
                off = tl*32768 + r*1024
                g(f"s_add_u32 m0, s62, {off}")
                g(f"v_xor_b32 v7, {fswz(r)<<4}, v4")
                g(f"s_add_u32 s63, s65, {ch*131072+off}")
                g(f"buffer_load_dwordx4 v7, s[12:15], s63 offen {cf} lds")
    g("s_cmp_ge_u32 s3, 2"); g("s_cbranch_scc1 L_A_gath")
    dma_chunk(0)
    g("s_branch L_A_q")
    g("L_A_gath:")
    cnt_wait(g, 0, 8, 9)
    g("v_lshrrev_b32 v8, 2, v1"); g("v_lshlrev_b32 v8, 8, v8"); g("v_and_b32 v9, 3, v1"); g("v_lshl_add_u32 v8, v9, 4, v8")
    g("s_sub_u32 s62, s3, 2"); g("s_lshl_b32 s65, s62, 16"); g("s_lshl_b32 s63, s74, 6"); g("s_add_u32 s65, s65, s63"); g(f"s_add_u32 s65, s65, {QABS}")
    g(f"s_mov_b32 s64, {SPIN}")
    g("L_A_gp:")
    for r in range(16):
        g(f"s_add_u32 s63, s65, {r*4096}")
        g(f"buffer_load_dwordx4 v[{160+4*r}:{163+4*r}], v8, s[4:7], s63 offen sc1")
    g("s_sub_u32 s64, s64, 1"); g("s_cmp_eq_u32 s64, 0"); g("s_cbranch_scc1 L_A_gpe")
    g("s_waitcnt vmcnt(0)")
    g.maxtree(9, range(160, 224))
    g("v_cmp_eq_u32 vcc, -1, v9")
    g("s_cbranch_vccnz L_A_gp")
    g("L_A_gpe:")
    g("s_waitcnt vmcnt(0)")
    g("s_lshl_b32 s62, s62, 14"); g(f"s_add_u32 s62, s62, {LQ}")
    g("v_add_u32 v9, s62, v4")
    for r in range(16):
        g(f"v_xor_b32 v7, {fswz(r)<<4}, v9")
        g(f"ds_write_b128 v7, v[{160+4*r}:{163+4*r}] offset:{r*1024}")
    g("s_waitcnt lgkmcnt(0)")
    g("L_A_q:")
    g("v_and_b32 v8, 3, v5"); g("v_lshlrev_b32 v8, 2, v8"); g("v_bfe_u32 v9, v5, 2, 2"); g("v_or_b32 v8, v8, v9"); g("v_xor_b32 v8, v8, v6")
    g("v_lshlrev_b32 v10, 10, v5"); g("v_lshl_add_u32 v10, v8, 4, v10")
    g(f"v_add_u32 v11, {LQ}, v10")
    g("s_lshl_b32 s62, s3, 15"); g("v_add_u32 v10, s62, v10")
    for k in range(8): g(f"v_xor_b32 v{16+k}, {k<<5}, v10")
    g("v_bfe_u32 v8, v1, 2, 2")
    g("v_lshl_add_u32 v9, v6, 2, v8"); g("v_lshlrev_b32 v12, 10, v9")
    g("v_and_b32 v9, 1, v1"); g("v_lshlrev_b32 v9, 1, v9"); g("v_bfe_u32 v13, v1, 4, 1"); g("v_or_b32 v9, v9, v13")
    g("v_lshl_add_u32 v13, v8, 2, v6"); g("v_xor_b32 v9, v9, v13")
    g("v_lshl_add_u32 v12, v9, 4, v12")
    g("v_bfe_u32 v9, v1, 1, 1"); g("v_lshl_add_u32 v12, v9, 3, v12")
    g("s_lshl_b32 s62, s3, 8"); g("v_add_u32 v12, s62, v12")
    for ct in range(4):
        for hv in range(2):
            g(f"v_xor_b32 v{24+2*ct+hv}, {(ct<<6)|(hv<<5)}, v12")
            g(f"v_add_u32 v{32+2*ct+hv}, 0x10000, v{24+2*ct+hv}")
    g("s_barrier")
    g.stamp(1)
    for s in range(32):
        if s % 8 == 0 and s: g("s_waitcnt lgkmcnt(4)")
        g(f"v_xor_b32 v7, {(s&7)<<5}, v11")
        g(f"ds_read_b128 a[{128+4*s}:{131+4*s}], v7 offset:{(s>>3)*256}")
    g("v_lshlrev_b32 v40, 4, v5"); g(f"v_add_u32 v40, {LMX}, v40")
    g("s_lshl_b32 s62, s3, 2"); g("v_add_u32 v41, s62, v40")
    g(f"v_add_u32 v42, {LP}, v4")
    g("s_lshl_b32 s62, s3, 11"); g("v_add_u32 v43, s62, v42")
    g("v_mov_b32 v44, 0xff800000")
    g("v_mov_b32 v45, 0")
    g("v_mov_b32 v46, 0x3f803f80")
    g("s_waitcnt lgkmcnt(0)")
    for ch in range(2):
        if ch == 1:
            g("s_barrier")
            sk = g.lab("nl")
            g("s_cmp_ge_u32 s3, 2"); g(f"s_cbranch_scc1 {sk}")
            dma_chunk(1)
            g(f"{sk}:")
            sk = g.lab("nc")
            g("s_cmp_lg_u32 s3, 2"); g(f"s_cbranch_scc1 {sk}")
            cnt_wait(g, 64, 8, 9)
            g(f"{sk}:")
        g("s_waitcnt vmcnt(0)")
        g("s_barrier")
        g.stamp(2 + 2*ch)
        D = 12
        def rd(s):
            r = 160 + 4*(s % 24)
            g(f"ds_read_b128 v[{r}:{r+3}], v{16+(s&7)} offset:{(s>>3)*256}")
        for s in range(D): rd(s)
        for s in range(32):
            g(f"s_waitcnt lgkmcnt({min(D-1, 31-s)})")
            r = 160 + 4*(s % 24)
            c = "0" if s == 0 else "v[48:63]"
            g(f"v_mfma_f32_32x32x16_bf16 v[48:63], v[{r}:{r+3}], a[{128+4*s}:{131+4*s}], {c}")
            if s + D < 32: rd(s + D)
        g.nop(12)
        g("v_max3_f32 v8, v48, v49, v50")
        for k in range(51, 63, 2): g(f"v_max3_f32 v8, v8, v{k}, v{k+1}")
        g("v_max_f32 v8, v8, v63")
        g("v_mov_b32 v9, v8"); g("s_nop 1"); g("v_permlane32_swap_b32 v8, v9"); g("v_max_f32 v8, v8, v9")
        g("ds_write_b32 v41, v8")
        g("s_waitcnt lgkmcnt(0)")
        g("s_barrier")
        g("ds_read_b128 v[12:15], v40")
        g("s_waitcnt lgkmcnt(0)")
        g("v_max3_f32 v8, v12, v13, v14"); g("v_max3_f32 v8, v8, v15, v44")
        g("v_sub_f32 v47, v44, v8"); g("v_exp_f32 v47, v47"); g("v_mov_b32 v44, v8")
        for k in range(16): g(f"v_sub_f32 v{48+k}, v{48+k}, v8")
        for k in range(16): g(f"v_exp_f32 v{48+k}, v{48+k}")
        g("s_nop 0")
        for k in range(8): g(f"v_cvt_pk_bf16_f32 v{48+k}, v{48+2*k}, v{49+2*k}")
        g("ds_write_b128 v43, v[48:51]"); g("ds_write_b128 v43, v[52:55] offset:1024")
        if ch > 0:
            for k in range(64): g(f"v_mul_f32 v{64+k}, v47, v{64+k}")
            g("v_mul_f32 v45, v47, v45")
        g("s_waitcnt lgkmcnt(0)")
        g("s_barrier")
        for k in range(8): g(f"ds_read_b128 v[{128+4*k}:{131+4*k}], v42 offset:{1024*k}")
        steps = [(kk, ct) for kk in range(8) for ct in range(4)]
        DP = 6
        def rdp(n):
            kk, ct = steps[n]
            r = 160 + 4*(n % 24)
            row = 16*kk
            ab = 24 if row < 64 else 32
            for hv in range(2):
                g(f"ds_read_b64_tr_b16 v[{r+2*hv}:{r+2*hv+1}], v{ab+2*ct+hv} offset:{((row % 64) + 8*hv)*1024}")
        g("s_waitcnt lgkmcnt(2)")
        for n in range(DP): rdp(n)
        for n in range(32):
            kk, ct = steps[n]
            g(f"s_waitcnt lgkmcnt({2*min(DP-1, 31-n)})")
            r = 160 + 4*(n % 24)
            c = "0" if (ch == 0 and kk == 0) else f"v[{64+16*ct}:{79+16*ct}]"
            g(f"v_mfma_f32_32x32x16_bf16 v[{64+16*ct}:{79+16*ct}], v[{r}:{r+3}], v[{128+4*kk}:{131+4*kk}], {c}")
            g(f"v_dot2c_f32_bf16 v45, v{128+n}, v46")
            if n + DP < 32: rdp(n + DP)
        g.stamp(3 + 2*ch)
    g("v_and_b32 v8, 7, v5"); g("v_lshlrev_b32 v9, 1, v6"); g("v_xor_b32 v8, v8, v9")
    g("v_lshlrev_b32 v12, 10, v5"); g("v_lshl_add_u32 v12, v8, 4, v12")
    g("s_lshl_b32 s62, s3, 8"); g("v_add_u32 v12, s62, v12")
    g("v_lshlrev_b32 v13, 10, v3"); g("v_lshl_add_u32 v13, v2, 4, v13"); g("v_add_u32 v13, s62, v13")
    g("v_xor_b32 v14, v2, v3"); g("v_lshlrev_b32 v14, 4, v14"); g("v_lshl_add_u32 v14, v3, 15, v14")
    g("v_xor_b32 v15, 64, v14")
    g("v_mov_b32 v9, v45"); g("s_nop 1"); g("v_permlane32_swap_b32 v45, v9"); g("v_add_f32 v45, v45, v9")
    for ct in range(4):
        for k in range(8):
            g(f"v_cvt_pk_bf16_f32 v{128+8*ct+k}, v{64+16*ct+2*k}, v{65+16*ct+2*k}")
        for q in range(2):
            g(f"v_xor_b32 v7, {(((4*ct)&7)|q)<<4}, v12")
            g(f"ds_write_b128 v7, v[{128+8*ct+4*q}:{131+8*ct+4*q}] offset:{(ct>>1)*128}")
    g("s_lshl_b32 s65, s74, 20"); g("s_lshl_b32 s63, s75, 10"); g("s_add_u32 s65, s65, s63"); g("s_add_u32 s65, s65, s62"); g(f"s_add_u32 s65, s65, {OPART}")
    g("s_waitcnt lgkmcnt(0)")
    for n in range(8):
        g(f"ds_read_b128 v[{160+4*n}:{163+4*n}], v13 offset:{n*4096}")
    for n in range(8):
        g(f"s_add_u32 s63, s65, {n*4*32768}")
        g(f"s_waitcnt lgkmcnt({7-n})")
        g(f"buffer_store_dwordx4 v[{160+4*n}:{163+4*n}], v{14+(n&1)}, s[4:7], s63 offen sc1")
    sk = g.lab("ns")
    g("s_cmp_lg_u32 s3, 3"); g(f"s_cbranch_scc1 {sk}")
    g("v_lshlrev_b32 v8, 12, v5")
    g("s_lshl_b32 s62, s74, 17"); g("s_lshl_b32 s63, s75, 7"); g("s_add_u32 s62, s62, s63"); g(f"s_add_u32 s62, s62, {STAT}")
    g("s_mov_b32 exec_hi, 0")
    g("buffer_store_dwordx2 v[44:45], v8, s[4:7], s62 offen sc1")
    g("s_mov_b64 exec, -1")
    g(f"{sk}:")

if __name__ == "__main__":
    import argparse
    ap = argparse.ArgumentParser()
    ap.add_argument("out"); ap.add_argument("--stamps", action="store_true")
    ap.add_argument("--wflag", default="nt"); ap.add_argument("--cflag", default="nt")
    a = ap.parse_args()
    open(a.out, "w").write(gen(dict(stamps=a.stamps, wflag=a.wflag, cflag=a.cflag)))
```

```python
import sys, math
from gen_common import *

QABS = 0x000000
STAT = 0x040000
OPART = 0x100000
APART = 0x500000
FPART = 0x540000
OOB = 0x40000000
SCALE = (128 ** -0.5) * math.log2(math.e)
import struct
def f2u(x): return struct.unpack("<I", struct.pack("<f", x))[0]

class G:
    def __init__(s, opts):
        s.L = []; s.o = opts; s.uid = 0
    def a(s, x): s.L.append(x)
    def __call__(s, x): s.L.append(x)
    def lab(s, p="L"):
        s.uid += 1; return f"{p}_{s.uid}"
    def nop(s, n):
        while n > 0:
            k = min(n, 16); s.a(f"s_nop {k-1}"); n -= k
    def stamp(s, k):
        if s.o.get("stamps"):
            s.a(f"s_memrealtime s[{80+2*k}:{81+2*k}]")
    def srd(s, d, p, size):
        s.a(f"s_mov_b32 s{d}, s{p}"); s.a(f"s_and_b32 s{d+1}, s{p+1}, 0xffff")
        s.a(f"s_mov_b32 s{d+2}, {size}"); s.a(f"s_mov_b32 s{d+3}, 0x20000")
    def dpp(s, op, v, ctrl):
        s.a("s_nop 1"); s.a(f"{op}_dpp v{v}, v{v}, v{v} {ctrl} row_mask:0xf bank_mask:0xf")
    def allred(s, op, v, t, width=64):
        for c in ("quad_perm:[1,0,3,2]", "quad_perm:[2,3,0,1]", "row_half_mirror", "row_mirror"):
            s.dpp(op, v, c)
        if width >= 32:
            s.a(f"v_mov_b32 v{t}, v{v}"); s.a("s_nop 1"); s.a(f"v_permlane16_swap_b32 v{v}, v{t}"); s.a(f"{op} v{v}, v{v}, v{t}")
        if width >= 64:
            s.a(f"v_mov_b32 v{t}, v{v}"); s.a("s_nop 1"); s.a(f"v_permlane32_swap_b32 v{v}, v{t}"); s.a(f"{op} v{v}, v{v}, v{t}")
    def bf16r(s, d, v):
        s.a(f"v_cvt_pk_bf16_f32 v{d}, v{v}, v{v}"); s.a(f"v_lshlrev_b32 v{d}, 16, v{d}")
    def maxtree(s, d, regs):
        regs = list(regs)
        s.a(f"v_max3_u32 v{d}, v{regs[0]}, v{regs[1]}, v{regs[2]}")
        i = 3
        while i + 1 < len(regs):
            s.a(f"v_max3_u32 v{d}, v{d}, v{regs[i]}, v{regs[i+1]}"); i += 2
        if i < len(regs):
            s.a(f"v_max_u32 v{d}, v{d}, v{regs[i]}")
    def perm8x8(s, R, T, acc=None):
        for t in range(8):
            for p in range(4):
                s.a(f"v_perm_b32 v{T+4*t+p}, v{R+4*(2*p+1)+(t>>1)}, v{R+4*(2*p)+(t>>1)}, s{60+(t&1)}")
        if acc is not None:
            for k in range(32):
                s.a(f"v_accvgpr_write_b32 a{acc+k}, v{T+k}")

def fswz(k):
    return ((k & 3) << 2) | ((k >> 2) & 3)

SPIN = 20000

def cnt_wait(g, off, vt, vo):
    g(f"v_and_b32 v{vo}, 1, v1"); g(f"v_lshlrev_b32 v{vo}, 7, v{vo}")
    g(f"s_mov_b32 s64, {SPIN}")
    l = g.lab("cw"); e = g.lab("cwe")
    g(f"{l}:")
    g(f"buffer_load_dword v{vt}, v{vo}, s[8:11], 0 offen offset:{off} sc1")
    g("s_sub_u32 s64, s64, 1")
    g("s_cmp_eq_u32 s64, 0")
    g(f"s_cbranch_scc1 {e}")
    g("s_waitcnt vmcnt(0)")
    g(f"v_cmp_ne_u32 vcc, 64, v{vt}")
    g(f"s_cbranch_vccnz {l}")
    g(f"{e}:")
    g("s_waitcnt vmcnt(0)")

def cnt_signal(g, off):
    e = g.lab("cs")
    g("s_cmp_lg_u32 s3, 0")
    g(f"s_cbranch_scc1 {e}")
    g("s_and_b32 s64, s42, 1"); g("s_lshl_b32 s64, s64, 7")
    g("v_mov_b32 v30, s64"); g("v_mov_b32 v31, 1")
    g("s_mov_b64 exec, 1")
    g(f"buffer_atomic_add v31, v30, s[8:11], 0 offen offset:{off} sc1")
    g("s_mov_b64 exec, -1")
    g(f"{e}:")

def ffn_weights(g):
    wf = g.o["wflag"]
    g.srd(44, 30, 512*2752); g.srd(48, 32, 512*2752); g.srd(52, 34, 1376*1024); g.srd(56, 16, 4096)
    g(f"v_mul_u32_u24 v4, {4*2752}, v3"); g("v_lshl_add_u32 v4, v2, 2, v4")
    g(f"s_mul_i32 s62, s3, {128*2752}"); g("s_lshl_b32 s63, s66, 6"); g("s_add_u32 s62, s62, s63")
    for ks in range(4):
        for e in range(8):
            g(f"s_add_u32 s63, s62, {(32*ks+16*(e>>2)+(e&3))*2752}")
            g(f"buffer_load_dword v{32+8*ks+e}, v4, s[44:47], s63 offen {wf}")
            g(f"buffer_load_dword v{64+8*ks+e}, v4, s[48:51], s63 offen {wf}")
        if ks == 2: g("s_waitcnt vmcnt(40)")
    g("v_lshlrev_b32 v5, 13, v3"); g("v_lshl_add_u32 v5, v2, 4, v5")
    g("s_lshl_b32 s62, s66, 15"); g("s_lshl_b32 s63, s3, 8"); g("s_add_u32 s62, s62, s63")
    g("s_waitcnt vmcnt(40)")
    for e in range(8):
        g(f"s_add_u32 s63, s62, {e*1024}")
        g(f"buffer_load_dwordx4 v[{96+4*e}:{99+4*e}], v5, s[52:55], s63 offen {wf}")
    g("v_lshlrev_b32 v6, 3, v3")
    g("s_lshl_b32 s62, s67, 10"); g("s_lshl_b32 s63, s3, 8"); g("s_add_u32 s62, s62, s63")
    for t in range(8):
        g(f"buffer_load_dwordx2 v[{8+2*t}:{9+2*t}], v6, s[56:59], s62 offen offset:{32*t}")
    g("s_waitcnt vmcnt(16)")
    for ks in range(4):
        for m, base in ((0, 32), (1, 64)):
            for t in range(2):
                for p in range(4):
                    g(f"v_perm_b32 v{160+16*ks+8*m+4*t+p}, v{base+8*ks+2*p+1}, v{base+8*ks+2*p}, s{60+t}")
    g("s_waitcnt vmcnt(8)")
    g.perm8x8(96, 224)
    g("s_waitcnt vmcnt(0)")
    for t in range(8):
        for q in range(2):
            g(f"v_lshlrev_b32 v{128+4*t+2*q}, 16, v{8+2*t+q}")
            g(f"v_and_b32 v{128+4*t+2*q+1}, 0xffff0000, v{8+2*t+q}")
    for k in range(4): g(f"v_mov_b32 v{24+k}, 0x3f803f80")
    g.nop(2)
    for ks in range(4):
        for t in range(4):
            c = "0" if ks == 0 else f"v[{32+4*t}:{35+4*t}]"
            g(f"v_mfma_f32_16x16x32_bf16 v[{32+4*t}:{35+4*t}], v[24:27], v[{160+16*ks+4*t}:{163+16*ks+4*t}], {c}")
    g.nop(8)
    for t in range(1, 4): g(f"v_mov_b32 v{32+t}, v{32+4*t}")
    g("v_lshlrev_b32 v7, 4, v2"); g("s_lshl_b32 s62, s3, 8"); g(f"v_add_u32 v7, s62, v7")
    g(f"ds_write_b128 v7, v[32:35] offset:{LDS_CS}")
    g("s_waitcnt lgkmcnt(0)")
    g("s_barrier")
    g("v_and_b32 v7, 3, v2"); g("v_lshl_add_u32 v7, v3, 2, v7"); g("v_lshlrev_b32 v7, 4, v7")
    for w in range(4):
        g(f"ds_read_b128 v[{32+4*w}:{35+4*w}], v7 offset:{LDS_CS+256*w}")
    g("s_waitcnt lgkmcnt(0)")
    for k in range(4):
        g(f"v_add_f32 v{32+k}, v{32+k}, v{36+k}"); g(f"v_add_f32 v{40+k}, v{40+k}, v{44+k}")
        g(f"v_add_f32 v{20+k}, v{32+k}, v{40+k}")
    g("v_and_b32 v28, 3, v2")
    for p in range(4):
        g(f"v_cmp_eq_u32 vcc, {p}, v28"); g("s_nop 1"); g(f"v_cndmask_b32 v{16+p}, 0, -1, vcc")

LDS_XN = 0
LDS_QX = 8192
LDS_OT = 16384
LDS_FX = 49152
LDS_CX = 49664
LDS_CS = 51200
LDS_GX = 52224
LDS_SX = 53248

def tile_setup(g):
    g("v_lshlrev_b32 v8, 1, v3"); g("v_xor_b32 v8, v8, v2"); g("v_lshlrev_b32 v8, 4, v8"); g("v_lshl_add_u32 v8, v3, 10, v8")
    g("v_xor_b32 v9, 0x80, v8")
    g("s_lshl_b32 s68, s3, 13"); g(f"s_add_u32 s68, s68, {LDS_OT}")
    g("v_bfe_u32 v11, v1, 2, 2")
    g("v_lshl_add_u32 v10, v3, 3, v11"); g("v_lshlrev_b32 v10, 8, v10")
    g("v_and_b32 v12, 1, v3"); g("v_lshl_add_u32 v12, v12, 2, v11"); g("v_lshlrev_b32 v12, 1, v12")
    g("v_bfe_u32 v13, v1, 1, 1"); g("v_xor_b32 v12, v12, v13")
    g("v_lshl_add_u32 v10, v12, 4, v10")
    g("v_and_b32 v13, 1, v1"); g("v_lshl_add_u32 v10, v13, 3, v10")
    g("v_add_u32 v10, s68, v10")

def tile_dma(g, sbase):
    for n in range(8):
        g(f"s_add_u32 m0, s68, {n*1024}")
        g(f"s_add_u32 s63, s{sbase}, {n*4096}")
        g(f"buffer_load_dwordx4 v{8+((n>>1)&1)}, s[4:7], s63 offen sc1 lds")

def tile_read(g, A):
    for t in range(8):
        g(f"v_xor_b32 v11, {t<<5}, v10")
        g(f"ds_read_b64_tr_b16 v[{A+4*t}:{A+4*t+1}], v11")
        g(f"ds_read_b64_tr_b16 v[{A+4*t+2}:{A+4*t+3}], v11 offset:1024")
        if t == 5: g("s_waitcnt lgkmcnt(6)")
    g("s_waitcnt lgkmcnt(0)")

def ffn_stage(g):
    tile_setup(g)
    g("s_lshl_b32 s69, s67, 15"); g("s_lshl_b32 s63, s3, 8"); g("s_add_u32 s69, s69, s63"); g(f"s_add_u32 s69, s69, {APART}")
    g(f"s_mov_b32 s64, {SPIN}")
    l = g.lab("fp"); e = g.lab("fpe")
    g(f"{l}:")
    tile_dma(g, 69)
    g("s_waitcnt vmcnt(0)")
    tile_read(g, 32)
    for t in range(8):
        g(f"v_mfma_f32_16x16x32_bf16 v[{64+4*t}:{67+4*t}], v[{32+4*t}:{35+4*t}], v[24:27], v[{128+4*t}:{131+4*t}]")
    g.nop(2)
    for t in range(8):
        g(f"v_cvt_pk_bf16_f32 v{96+2*t}, v{64+4*t}, v{65+4*t}")
        g(f"v_cvt_pk_bf16_f32 v{97+2*t}, v{66+4*t}, v{67+4*t}")
    g.nop(2)
    def mm(ks, t):
        A = f"v[{96+4*ks}:{99+4*ks}]"
        B = f"v[{160+16*ks+4*t}:{163+16*ks+4*t}]" if t < 4 else ("v[24:27]" if t == 4 else A)
        c = "0" if ks == 0 else f"v[{32+4*t}:{35+4*t}]"
        g(f"v_mfma_f32_16x16x32_bf16 v[{32+4*t}:{35+4*t}], {A}, {B}, {c}")
    for ks in range(4): mm(ks, 4)
    for ks in range(4): mm(ks, 5)
    g("s_sub_u32 s64, s64, 1"); g("s_cmp_eq_u32 s64, 0"); g(f"s_cbranch_scc1 {e}")
    g.nop(2)
    g("v_cmp_u_f32 vcc, v48, v48")
    g(f"s_cbranch_vccnz {l}")
    g(f"{e}:")
    g.stamp(7)
    for ks in range(4):
        for t in range(4): mm(ks, t)
    sk = g.lab("nh")
    g("s_cmp_lg_u32 s66, 0"); g(f"s_cbranch_scc1 {sk}")
    g(f"s_mul_i32 s62, s67, {44*2048}"); g("s_lshl_b32 s63, s3, 9"); g("s_add_u32 s62, s62, s63"); g(f"s_add_u32 s62, s62, {FPART+43*2048}")
    g("v_lshlrev_b32 v13, 4, v3")
    g("s_mov_b32 s70, 0x00010001"); g("s_mov_b32 s71, 0x00010001"); g("s_mov_b64 exec, s[70:71]")
    for t in range(8):
        g(f"buffer_store_dwordx4 v[{64+4*t}:{67+4*t}], v13, s[4:7], s62 offen offset:{64*t} sc1")
    g("s_mov_b64 exec, -1")
    g(f"{sk}:")
    g("v_lshlrev_b32 v13, 4, v2"); g("s_lshl_b32 s62, s3, 8"); g("v_add_u32 v13, s62, v13")
    g("s_lshl_b32 s62, s3, 3"); g("v_mov_b32 v14, s62")
    g.nop(6)
    for t in range(1, 4): g(f"v_mov_b32 v{32+t}, v{32+4*t}")
    g("v_mov_b32 v49, v52")
    g("s_mov_b64 exec, 0xffff")
    g(f"ds_write_b128 v13, v[32:35] offset:{LDS_GX}")
    g(f"ds_write_b64 v14, v[48:49] offset:{LDS_SX}")
    g("s_mov_b64 exec, -1")
    g("v_mov_b32 v14, 0")
    g("s_waitcnt lgkmcnt(0)")
    g("s_barrier")
    g(f"ds_read_b128 v[56:59], v14 offset:{LDS_SX}")
    g(f"ds_read_b128 v[60:63], v14 offset:{LDS_SX+16}")
    for w in range(4):
        g(f"ds_read_b128 v[{32+4*w}:{35+4*w}], v7 offset:{LDS_GX+256*w}")
    g("s_waitcnt lgkmcnt(4)")
    g("v_add_f32 v56, v56, v58"); g("v_add_f32 v57, v57, v59"); g("v_add_f32 v60, v60, v62"); g("v_add_f32 v61, v61, v63")
    g("v_add_f32 v56, v56, v60"); g("v_add_f32 v57, v57, v61")
    g(f"v_mul_f32 v56, 0x{f2u(1/512):08x}, v56")
    g(f"v_mul_f32 v57, 0x{f2u(1/512):08x}, v57")
    g("v_fma_f32 v57, -v56, v56, v57"); g("v_max_f32 v57, 0, v57")
    g.bf16r(56, 56); g.bf16r(57, 57)
    g(f"v_add_f32 v57, 0x{f2u(1e-5):08x}, v57"); g.bf16r(57, 57)
    g("v_sqrt_f32 v57, v57"); g("s_nop 0"); g.bf16r(57, 57)
    g("v_rcp_f32 v57, v57")
    g("s_waitcnt lgkmcnt(0)")
    for k in range(4):
        g(f"v_add_f32 v{32+k}, v{32+k}, v{36+k}"); g(f"v_add_f32 v{40+k}, v{40+k}, v{44+k}")
    for k in range(4):
        g(f"v_add_f32 v{32+k}, v{32+k}, v{40+k}")
        g(f"v_fma_f32 v{32+k}, -v56, v{20+k}, v{32+k}")
        g(f"v_mul_f32 v{32+k}, v57, v{32+k}")
    g("v_cvt_pk_bf16_f32 v36, v32, v33"); g("v_cvt_pk_bf16_f32 v37, v34, v35")
    g("v_lshlrev_b32 v32, 16, v36"); g("v_and_b32 v33, 0xffff0000, v36")
    g("v_lshlrev_b32 v34, 16, v37"); g("v_and_b32 v35, 0xffff0000, v37")
    c1 = -2 * math.sqrt(2 / math.pi) * math.log2(math.e)
    g(f"s_mov_b32 s62, 0x{f2u(c1*0.044715):08x}"); g(f"v_mov_b32 v40, 0x{f2u(c1):08x}")
    for k in range(2):
        g(f"v_mul_f32 v{38+k}, v{32+k}, v{32+k}")
    for k in range(2):
        g(f"v_fma_f32 v{38+k}, v{38+k}, s62, v40")
    for k in range(2):
        g(f"v_mul_f32 v{38+k}, v{38+k}, v{32+k}")
    for k in range(2):
        g(f"v_exp_f32 v{38+k}, v{38+k}")
    g("s_nop 0")
    for k in range(2):
        g(f"v_add_f32 v{38+k}, 1.0, v{38+k}")
    for k in range(2):
        g(f"v_rcp_f32 v{38+k}, v{38+k}")
    g("s_nop 0")
    for k in range(2):
        g(f"v_mul_f32 v{38+k}, v{38+k}, v{32+k}")
    g("v_cvt_pk_bf16_f32 v36, v38, v39")
    g("v_lshlrev_b32 v38, 16, v36"); g("v_and_b32 v39, 0xffff0000, v36")
    g("v_mul_f32 v38, v38, v34"); g("v_mul_f32 v39, v39, v35")
    g("v_cvt_pk_bf16_f32 v36, v38, v39")
    for p in range(4): g(f"v_and_b32 v{40+p}, v36, v{16+p}")
    g.nop(2)
    for t in range(8):
        g(f"v_mfma_f32_16x16x32_bf16 v[{64+4*t}:{67+4*t}], v[40:43], v[{224+4*t}:{227+4*t}], 0")
    g(f"s_mul_i32 s62, s67, 44"); g("s_add_u32 s62, s62, s66"); g("s_lshl_b32 s62, s62, 11")
    g("s_lshl_b32 s63, s3, 9"); g("s_add_u32 s62, s62, s63"); g(f"s_add_u32 s62, s62, {FPART}")
    g("v_lshlrev_b32 v13, 5, v2"); g("v_lshl_add_u32 v13, v3, 4, v13")
    g("v_cmp_ne_u32 vcc, 0, v3")
    for t in range(8):
        g(f"v_add_f32 v{64+4*t}, v{64+4*t}, v{65+4*t}"); g(f"v_add_f32 v{66+4*t}, v{66+4*t}, v{67+4*t}")
    for t in range(8):
        g(f"v_add_f32 v{64+4*t}, v{64+4*t}, v{66+4*t}")
    for q in range(4):
        g(f"v_cndmask_b32 v{32+q}, v{64+4*q}, v{80+4*q}, vcc")
    g("s_mov_b32 exec_hi, 0")
    g("buffer_store_dwordx4 v[32:35], v13, s[4:7], s62 offen sc1")
    g("s_mov_b64 exec, -1")
    g.stamp(8)

def gen(opts):
    g = G(opts)
    wf = opts["wflag"]; cf = opts["cflag"]
    g("s_cmp_ge_u32 s2, 256"); g("s_cbranch_scc1 L_end")
    g.stamp(0)
    g("s_load_dwordx16 s[16:31], s[0:1], 0")
    g("s_load_dwordx8 s[32:39], s[0:1], 64")
    g("s_load_dwordx2 s[40:41], s[0:1], 96")
    g("v_lshrrev_b32 v2, 6, v0"); g("v_and_b32 v1, 63, v0")
    g("v_readfirstlane_b32 s3, v2")
    g("v_and_b32 v2, 15, v0"); g("v_lshrrev_b32 v3, 4, v1")
    g("s_and_b32 s42, s2, 7"); g("s_lshr_b32 s43, s2, 4"); g("s_lshl_b32 s43, s43, 3"); g("s_or_b32 s42, s42, s43")
    g("s_lshr_b32 s43, s42, 5"); g("s_lshl_b32 s43, s43, 3"); g("s_and_b32 s72, s42, 7"); g("s_or_b32 s72, s72, s43")
    g("s_bfe_u32 s73, s42, 0x20003")
    g("s_mov_b32 s60, 0x05040100"); g("s_mov_b32 s61, 0x07060302")
    if opts.get("stamps"):
        for k in range(82, 102): g(f"s_mov_b32 s{k}, 0")
    g("s_waitcnt lgkmcnt(0)")
    g.srd(4, 40, WS); g.srd(8, 38, 256)
    g("s_bitcmp1_b32 s2, 3")
    g("s_cbranch_scc1 L_A")
    for k in range(4): g(f"v_mov_b32 v{24+k}, -1")
    g("s_lshl_b32 s74, s72, 12"); g("s_lshl_b32 s62, s73, 10"); g("s_add_u32 s74, s74, s62"); g(f"s_add_u32 s74, s74, {QABS}")
    g("v_lshlrev_b32 v28, 2, v0")
    g("buffer_store_dword v24, v28, s[4:7], s74 offen sc1")
    g("s_lshl_b32 s75, s73, 5"); g("s_add_u32 s75, s75, s72")
    g(f"s_mul_i32 s62, s42, 2816"); g(f"s_add_u32 s62, s62, {FPART}")
    g("s_lshl_b32 s63, s75, 10"); g(f"s_add_u32 s63, s63, {APART - 192*16}")
    g("v_lshlrev_b32 v29, 4, v0")
    g("v_add_u32 v30, s62, v29"); g("v_add_u32 v31, s63, v29")
    g(f"v_mov_b32 v5, {OOB}")
    g("v_cmp_gt_u32 vcc, 176, v0"); g("s_nop 1"); g("v_cndmask_b32 v30, v5, v30, vcc")
    g("v_cmp_le_u32 vcc, 192, v0"); g("s_nop 1"); g("v_cndmask_b32 v30, v30, v31, vcc")
    g("buffer_store_dwordx4 v[24:27], v30, s[4:7], 0 offen sc1")
    g("s_lshl_b32 s76, s75, 12"); g(f"s_add_u32 s76, s76, {STAT}")
    g("v_lshlrev_b32 v31, 7, v0")
    g("v_cmp_gt_u32 vcc, 32, v0"); g("s_nop 1"); g("v_cndmask_b32 v31, v5, v31, vcc")
    g("buffer_store_dwordx2 v[24:25], v31, s[4:7], s76 offen sc1")
    g.srd(56, 16, 4096); g.srd(12, 20, 4 << 20); g.srd(44, 22, 4 << 20)
    g("buffer_load_dwordx4 v[8:11], v29, s[56:59], 0 offen")
    g("v_lshlrev_b32 v4, 16, v3"); g("v_lshl_add_u32 v4, v2, 4, v4")
    g("s_lshl_b32 s62, s3, 20"); g("s_lshl_b32 s63, s72, 8"); g("s_add_u32 s62, s62, s63")
    for ks in range(4):
        for e in range(8):
            g(f"s_add_u32 s63, s62, {(32*ks+e)*8192}")
            r = 32 + 32*ks + 4*e
            g(f"buffer_load_dwordx4 v[{r}:{r+3}], v4, s[12:15], s63 offen {wf}")
    g("v_lshlrev_b32 v5, 14, v2"); g("v_lshl_add_u32 v5, v3, 4, v5")
    g("s_lshl_b32 s62, s73, 20"); g("s_lshl_b32 s63, s3, 18"); g("s_add_u32 s62, s62, s63"); g("s_lshl_b32 s63, s72, 8"); g("s_add_u32 s62, s62, s63")
    g("s_add_u32 s63, s62, 8192")
    for tt in range(2):
        for ks in range(4):
            r = 160 + 16*tt + 4*ks
            g(f"buffer_load_dwordx4 v[{r}:{r+3}], v5, s[44:47], s{62+tt} offen offset:{64*ks} {cf}")
    g("s_waitcnt vmcnt(40)")
    for q in range(4):
        g(f"v_lshlrev_b32 v{12+2*q}, 16, v{8+q}"); g(f"v_and_b32 v{13+2*q}, 0xffff0000, v{8+q}")
    g("v_add_f32 v20, v12, v13"); g("v_add_f32 v21, v14, v15"); g("v_add_f32 v22, v16, v17"); g("v_add_f32 v23, v18, v19")
    g("v_add_f32 v20, v20, v21"); g("v_add_f32 v22, v22, v23"); g("v_add_f32 v20, v20, v22")
    g.allred("v_add_f32", 20, 21)
    g(f"v_mul_f32 v20, 0x{f2u(1/512):08x}, v20")
    g("v_sub_f32 v22, v12, v20"); g("v_mul_f32 v21, v22, v22")
    for k in range(1, 8):
        g(f"v_sub_f32 v22, v{12+k}, v20"); g("v_fmac_f32 v21, v22, v22")
    g.allred("v_add_f32", 21, 22)
    g(f"v_mul_f32 v21, 0x{f2u(1/512):08x}, v21")
    g.bf16r(20, 20); g.bf16r(21, 21)
    g(f"v_add_f32 v21, 0x{f2u(1e-5):08x}, v21"); g.bf16r(21, 21)
    g("v_sqrt_f32 v21, v21"); g("s_nop 0"); g.bf16r(21, 21)
    g("v_rcp_f32 v21, v21")
    for k in range(8): g(f"v_sub_f32 v{12+k}, v{12+k}, v20")
    for q in range(4): g(f"v_cvt_pk_bf16_f32 v{8+q}, v{12+2*q}, v{13+2*q}")
    for q in range(4):
        g(f"v_lshlrev_b32 v{12+2*q}, 16, v{8+q}"); g(f"v_and_b32 v{13+2*q}, 0xffff0000, v{8+q}")
    for k in range(8): g(f"v_mul_f32 v{12+k}, v{12+k}, v21")
    for q in range(4): g(f"v_cvt_pk_bf16_f32 v{8+q}, v{12+2*q}, v{13+2*q}")
    g("s_mul_i32 s62, s3, 1040"); g("v_lshlrev_b32 v6, 4, v1"); g("v_add_u32 v6, s62, v6")
    g(f"ds_write_b128 v6, v[8:11] offset:{LDS_XN}")
    g("v_and_b32 v6, 3, v2"); g("v_mul_u32_u24 v6, 1040, v6"); g("v_lshl_add_u32 v6, v3, 4, v6")
    g("s_lshl_b32 s62, s3, 8"); g("v_add_u32 v6, s62, v6")
    g("s_waitcnt lgkmcnt(0)")
    g("s_barrier")
    for ks in range(4):
        g(f"ds_read_b128 v[{8+4*ks}:{11+4*ks}], v6 offset:{LDS_XN+64*ks}")
    cnt_signal(g, 0)
    g.stamp(1)
    for ks in range(4):
        g(f"s_waitcnt vmcnt({8+8*(3-ks)})")
        g.perm8x8(32+32*ks, 192)
        if ks == 0: g("s_waitcnt lgkmcnt(0)")
        for t in range(8):
            c = "0" if ks == 0 else f"v[{224+4*t}:{227+4*t}]"
            g(f"v_mfma_f32_16x16x32_bf16 v[{224+4*t}:{227+4*t}], v[{8+4*ks}:{11+4*ks}], v[{192+4*t}:{195+4*t}], {c}")
    g("s_mul_i32 s62, s3, 272"); g("v_lshlrev_b32 v6, 4, v2"); g("v_add_u32 v6, s62, v6")
    g("v_mul_u32_u24 v7, 272, v2"); g("v_lshl_add_u32 v7, v3, 4, v7")
    g.nop(4)
    for b in range(4):
        for p in range(4):
            g(f"v_cvt_pk_bf16_f32 v{8+4*b+p}, v{224+8*p+b}, v{228+8*p+b}")
    g("s_mov_b64 exec, 0xffff")
    for b in range(4):
        g(f"ds_write_b128 v6, v[{8+4*b}:{11+4*b}] offset:{LDS_QX+4*272*b}")
    g("s_mov_b64 exec, -1")
    g("s_waitcnt lgkmcnt(0)")
    g("s_barrier")
    for ks in range(4):
        g(f"ds_read_b128 v[{8+4*ks}:{11+4*ks}], v7 offset:{LDS_QX+64*ks}")
    g("s_waitcnt vmcnt(0) lgkmcnt(0)")
    for ks in range(4):
        for tt in range(2):
            c = "0" if ks == 0 else f"v[{224+4*tt}:{227+4*tt}]"
            g(f"v_mfma_f32_16x16x32_bf16 v[{224+4*tt}:{227+4*tt}], v[{8+4*ks}:{11+4*ks}], v[{160+16*tt+4*ks}:{163+16*tt+4*ks}], {c}")
    g.nop(8)
    for tt in range(2):
        r = 224 + 4*tt
        g(f"v_add_f32 v{r}, v{r}, v{r+1}"); g(f"v_add_f32 v{r+2}, v{r+2}, v{r+3}")
    for tt in range(2):
        r = 224 + 4*tt
        g(f"v_add_f32 v{r}, v{r}, v{r+2}")
    for tt in range(2):
        r = 224 + 4*tt
        g(f"v_mul_f32 v{r}, 0x{f2u(SCALE):08x}, v{r}")
    g("v_cvt_pk_bf16_f32 v8, v224, v228")
    g("buffer_store_dword v8, v28, s[4:7], s74 offen sc1")
    g.stamp(2)
    g("s_lshl_b32 s77, s75, 15"); g(f"s_add_u32 s77, s77, {OPART}")
    for n in range(8):
        g(f"s_add_u32 s63, s77, {n*4096}")
        g("buffer_store_dwordx4 v[24:27], v29, s[4:7], s63 offen sc1")
    g.srd(12, 24, 4 << 20); g.srd(44, 26, 4 << 20)
    g("v_lshlrev_b32 v4, 15, v3"); g("v_lshl_add_u32 v4, v2, 4, v4")
    g("v_lshlrev_b32 v5, 13, v3"); g("v_lshl_add_u32 v5, v2, 4, v5")
    g("s_lshl_b32 s78, s3, 20"); g("s_lshl_b32 s63, s72, 8"); g("s_add_u32 s78, s78, s63")
    g("s_lshl_b32 s79, s72, 17"); g("s_lshl_b32 s63, s3, 8"); g("s_add_u32 s79, s79, s63")
    def tw_issue(n):
        ks = n & 3
        for e in range(8):
            r = 32 + 32*ks + 4*e
            if n < 4:
                g(f"s_add_u32 s63, s78, {(32*ks+16*(e>>2)+(e&3))*8192}")
                g(f"buffer_load_dwordx4 v[{r}:{r+3}], v4, s[12:15], s63 offen {wf}")
            else:
                g(f"s_add_u32 s63, s79, {(32*ks+e)*1024}")
                g(f"buffer_load_dwordx4 v[{r}:{r+3}], v5, s[44:47], s63 offen {wf}")
    for n in range(4): tw_issue(n)
    for n in range(8):
        rem = min(3, 7 - n)
        g(f"s_waitcnt vmcnt({8*rem})")
        if n == 0:
            g("s_barrier")
            cnt_signal(g, 64)
            g("s_waitcnt vmcnt(24)")
        g.perm8x8(32+32*(n&3), 192, acc=32*n)
        if n + 4 < 8: tw_issue(n+4)
    g.stamp(3)
    cnt_wait(g, 0, 8, 9)
    g("s_mov_b32 s67, s73"); g("s_add_u32 s66, s72, 32")
    g("s_cmp_ge_u32 s72, 11"); g("s_cbranch_scc1 L_T_nofw")
    ffn_weights(g)
    g("L_T_nofw:")
    tile_setup(g)
    g("s_lshl_b32 s63, s3, 8"); g("s_add_u32 s69, s77, s63")
    g("v_and_b32 v13, 31, v1"); g("v_lshlrev_b32 v14, 7, v13")
    g(f"s_mov_b32 s64, {SPIN*4}")
    g("L_T_poll:")
    g("buffer_load_dwordx2 v[32:33], v14, s[4:7], s76 offen sc1")
    g("s_sub_u32 s64, s64, 1"); g("s_cmp_eq_u32 s64, 0"); g("s_cbranch_scc1 L_T_polle")
    g("s_waitcnt vmcnt(0)")
    g("v_max_u32 v34, v32, v33")
    g("v_cmp_eq_u32 vcc, -1, v34")
    g("s_cbranch_vccnz L_T_poll")
    g("L_T_polle:")
    g("s_waitcnt vmcnt(0)")
    g.stamp(4)
    tile_dma(g, 69)
    g("v_mov_b32 v34, v32")
    g.allred("v_max_f32", 34, 35, 32)
    g("v_sub_f32 v34, v32, v34"); g("v_exp_f32 v34, v34"); g("s_nop 0")
    g("v_mul_f32 v36, v34, v33")
    g.allred("v_add_f32", 36, 35, 32)
    g("v_rcp_f32 v36, v36"); g("s_nop 0")
    g("v_mul_f32 v34, v34, v36")
    g.bf16r(35, 34)
    g("v_sub_f32 v35, v34, v35")
    g("v_cvt_pk_bf16_f32 v34, v34, v35")
    g("s_lshl_b32 s62, s3, 7"); g("v_lshlrev_b32 v13, 1, v13"); g("v_add_u32 v13, s62, v13")
    g(f"ds_write_b16 v13, v34 offset:{LDS_FX}")
    g(f"ds_write_b16_d16_hi v13, v34 offset:{LDS_FX+64}")
    g("v_and_b32 v13, 1, v2"); g("v_lshlrev_b32 v13, 6, v13"); g("v_lshl_add_u32 v13, v3, 4, v13"); g("v_add_u32 v13, s62, v13")
    g("s_waitcnt lgkmcnt(0)")
    g(f"ds_read_b128 v[28:31], v13 offset:{LDS_FX}")
    g(f"s_mov_b32 s64, {SPIN}")
    g("s_branch L_T_pay1")
    g("L_T_pay:")
    tile_dma(g, 69)
    g("L_T_pay1:")
    g("s_waitcnt vmcnt(0)")
    tile_read(g, 32)
    g.stamp(5)
    for t in range(8):
        g(f"v_mfma_f32_16x16x32_bf16 v[{64+4*t}:{67+4*t}], v[{32+4*t}:{35+4*t}], v[28:31], 0")
    g.nop(2)
    for t in range(8):
        if t == 7: g.nop(1)
        g(f"v_cvt_pk_bf16_f32 v{96+2*t}, v{64+4*t}, v{65+4*t}")
        g(f"v_cvt_pk_bf16_f32 v{97+2*t}, v{66+4*t}, v{67+4*t}")
    g.nop(2)
    for ks in range(4):
        for t in range(8):
            c = "0" if ks == 0 else f"v[{32+4*t}:{35+4*t}]"
            g(f"v_mfma_f32_16x16x32_bf16 v[{32+4*t}:{35+4*t}], v[{96+4*ks}:{99+4*ks}], a[{32*ks+4*t}:{32*ks+4*t+3}], {c}")
    g("s_mul_i32 s62, s3, 272"); g("v_lshlrev_b32 v13, 4, v2"); g("v_add_u32 v14, s62, v13")
    g("v_and_b32 v15, 3, v2"); g("v_mul_u32_u24 v15, 272, v15"); g("v_lshl_add_u32 v15, v3, 4, v15")
    g("s_sub_u32 s64, s64, 1"); g("s_cmp_eq_u32 s64, 0"); g("s_cbranch_scc1 L_T_paye")
    g("v_cmp_u_f32 vcc, v32, v32")
    g("s_cbranch_vccnz L_T_pay")
    g("L_T_paye:")
    for t in range(8):
        g(f"v_add_f32 v{32+4*t}, v{32+4*t}, v{33+4*t}")
    for p in range(4):
        g(f"v_cvt_pk_bf16_f32 v{64+p}, v{32+8*p}, v{36+8*p}")
    g("s_mov_b64 exec, 0xffff")
    g(f"ds_write_b128 v14, v[64:67] offset:{LDS_CX}")
    g("s_mov_b64 exec, -1")
    g("s_waitcnt lgkmcnt(0)")
    g("s_barrier")
    for ks in range(4):
        g(f"ds_read_b128 v[{96+4*ks}:{99+4*ks}], v15 offset:{LDS_CX+64*ks}")
    g("s_lshl_b32 s62, s75, 10"); g("s_lshl_b32 s63, s3, 8"); g("s_add_u32 s62, s62, s63"); g(f"s_add_u32 s62, s62, {APART}")
    for ks in range(4):
        g(f"s_waitcnt lgkmcnt({3-ks})")
        for t in range(8):
            c = "0" if ks == 0 else f"v[{32+4*t}:{35+4*t}]"
            g(f"v_mfma_f32_16x16x32_bf16 v[{32+4*t}:{35+4*t}], v[{96+4*ks}:{99+4*ks}], a[{128+32*ks+4*t}:{128+32*ks+4*t+3}], {c}")
    g.nop(2)
    for t in range(8):
        g(f"v_add_f32 v{32+4*t}, v{32+4*t}, v{33+4*t}"); g(f"v_add_f32 v{34+4*t}, v{34+4*t}, v{35+4*t}")
    for t in range(8):
        g(f"v_add_f32 v{32+4*t}, v{32+4*t}, v{34+4*t}")
    for p in range(4):
        g(f"v_cvt_pk_bf16_f32 v{64+p}, v{32+8*p}, v{36+8*p}")
    g("s_mov_b64 exec, 0xffff")
    g("buffer_store_dwordx4 v[64:67], v13, s[4:7], s62 offen sc1")
    g("s_mov_b64 exec, -1")
    g.stamp(6)
    g("s_cmp_lt_u32 s72, 11"); g("s_cbranch_scc1 L_FFN")
    g("s_cmp_lt_u32 s72, 16"); g("s_cbranch_scc1 L_fin")
    g("s_cmp_lg_u32 s3, 0"); g("s_cbranch_scc1 L_fin")
    g.srd(12, 36, 4096)
    g("v_lshrrev_b32 v4, 3, v1"); g("v_and_b32 v5, 7, v1")
    g("v_lshlrev_b32 v6, 11, v4"); g("v_lshl_add_u32 v6, v5, 4, v6")
    g(f"v_mov_b32 v7, {OOB}")
    g("v_cmp_gt_u32 vcc, 3, v4"); g("s_nop 1"); g("v_cndmask_b32 v7, v7, v6, vcc")
    g("v_lshlrev_b32 v8, 4, v5")
    g(f"s_mul_i32 s62, s73, {44*2048}"); g("s_sub_u32 s65, s72, 16"); g("s_lshl_b32 s63, s65, 7"); g("s_add_u32 s62, s62, s63"); g(f"s_add_u32 s62, s62, {FPART}")
    g(f"s_mov_b32 s64, {SPIN*4}")
    g("L_R_poll:")
    for n in range(6):
        g(f"s_add_u32 s63, s62, {n*16384}")
        g(f"buffer_load_dwordx4 v[{32+4*n}:{35+4*n}], v{6 if n < 5 else 7}, s[4:7], s63 offen sc1")
    g(f"s_add_u32 s63, s62, {43*2048}")
    g("buffer_load_dwordx4 v[56:59], v8, s[4:7], s63 offen sc1")
    g("s_sub_u32 s64, s64, 1"); g("s_cmp_eq_u32 s64, 0"); g("s_cbranch_scc1 L_R_polle")
    g("s_waitcnt vmcnt(0)")
    g.maxtree(9, range(32, 60))
    g("v_cmp_eq_u32 vcc, -1, v9")
    g("s_cbranch_vccnz L_R_poll")
    g("L_R_polle:")
    g("s_waitcnt vmcnt(0)")
    g.stamp(9)
    for k in range(4):
        g(f"v_add_f32 v{32+k}, v{32+k}, v{36+k}"); g(f"v_add_f32 v{40+k}, v{40+k}, v{44+k}"); g(f"v_add_f32 v{48+k}, v{48+k}, v{52+k}")
    for k in range(4):
        g(f"v_add_f32 v{32+k}, v{32+k}, v{40+k}")
    for k in range(4):
        g(f"v_add_f32 v{32+k}, v{32+k}, v{48+k}")
    g("s_nop 1")
    for k in range(4):
        g(f"v_add_f32_dpp v{32+k}, v{32+k}, v{32+k} row_ror:8 row_mask:0xf bank_mask:0xf")
    for sw in ("v_permlane16_swap_b32", "v_permlane32_swap_b32"):
        for k in range(4): g(f"v_mov_b32 v{36+k}, v{32+k}")
        g("s_nop 1")
        for k in range(4): g(f"{sw} v{32+k}, v{36+k}")
        for k in range(4): g(f"v_add_f32 v{32+k}, v{32+k}, v{36+k}")
    g("v_cvt_pk_bf16_f32 v36, v32, v33"); g("v_cvt_pk_bf16_f32 v37, v34, v35")
    g("v_cvt_pk_bf16_f32 v38, v56, v57"); g("v_cvt_pk_bf16_f32 v39, v58, v59")
    for q in range(2):
        g(f"v_lshlrev_b32 v{32+2*q}, 16, v{36+q}"); g(f"v_and_b32 v{33+2*q}, 0xffff0000, v{36+q}")
        g(f"v_lshlrev_b32 v{40+2*q}, 16, v{38+q}"); g(f"v_and_b32 v{41+2*q}, 0xffff0000, v{38+q}")
    for k in range(4): g(f"v_add_f32 v{32+k}, v{32+k}, v{40+k}")
    g("v_cvt_pk_bf16_f32 v36, v32, v33"); g("v_cvt_pk_bf16_f32 v37, v34, v35")
    g("v_lshlrev_b32 v8, 3, v5")
    g("s_lshl_b32 s62, s73, 10"); g("s_lshl_b32 s63, s65, 6"); g("s_add_u32 s62, s62, s63")
    g("s_mov_b64 exec, 0xff")
    g("buffer_store_dwordx2 v[36:37], v8, s[12:15], s62 offen")
    g("s_mov_b64 exec, -1")
    g.stamp(10)
    g("s_branch L_fin")
    g("L_A:")
    acu(g)
    g("s_mov_b32 s66, s72"); g("s_mov_b32 s67, s73")
    g("s_barrier")
    ffn_weights(g)
    g.stamp(6)
    g("L_FFN:")
    ffn_stage(g)
    g("L_fin:")
    if opts.get("stamps"):
        nst = 11
        g("s_waitcnt lgkmcnt(0)")
        g("s_cmp_lg_u32 s3, 0"); g("s_cbranch_scc1 L_end")
        g("s_mov_b64 exec, 1")
        g(f"s_mul_i32 s62, s2, {nst*8}"); g(f"s_add_u32 s62, s62, {WS - 256*nst*8}")
        g("v_mov_b32 v3, 0")
        for k in range(nst):
            g(f"v_mov_b32 v4, s{80+2*k}"); g(f"v_mov_b32 v5, s{81+2*k}")
            g(f"buffer_store_dwordx2 v[4:5], v3, s[4:7], s62 offen offset:{8*k}")
            g("s_nop 1")
    if opts.get("stamps"):
        for wg, lst, base in ((128, (1,2,3,4,5,6,9,10), 1), (8, (1,2,3,4,5,7,8), 9)):
            sk = g.lab("ds")
            g(f"s_cmp_lg_u32 s2, {wg}"); g(f"s_cbranch_scc1 {sk}")
            for n, k in enumerate(lst):
                g(f"s_sub_u32 s62, s{80+2*k}, s80"); g("v_mov_b32 v4, s62")
                g(f"buffer_store_dword v4, v3, s[8:11], 0 offen offset:{4*(base+n)}")
            g(f"{sk}:")
    g("L_end:")
    g("s_endpgm")
    hdr = open("hdr.txt").read()
    return hdr + "; @launch grid=(256,1,1) block=(256,1,1) lds=163840\n" + '.amdgcn_target "amdgcn-amd-amdhsa--gfx950"\n.text\n' + kstart(KN) + "\n".join(g.L) + "\n" + kdesc(KN, vgpr=512, accum=256).replace(".text\n", "")

LQ = 131072
LMX = LQ
LP = LQ + 1024

def acu(g):
    cf = g.o["cflag"]
    g.srd(12, 18, 32 << 20)
    g("s_lshr_b32 s74, s42, 5")
    g("s_and_b32 s75, s42, 31")
    g("s_lshl_b32 s76, s42, 18")
    g("v_lshlrev_b32 v4, 4, v1")
    g("v_and_b32 v5, 31, v1")
    g("v_lshrrev_b32 v6, 5, v1")
    def dma_chunk(ch):
        g("s_lshl_b32 s62, s3, 14")
        g(f"s_add_u32 s65, s76, s62")
        for tl in range(4):
            for r in range(16):
                off = tl*32768 + r*1024
                g(f"s_add_u32 m0, s62, {off}")
                g(f"v_xor_b32 v7, {fswz(r)<<4}, v4")
                g(f"s_add_u32 s63, s65, {ch*131072+off}")
                g(f"buffer_load_dwordx4 v7, s[12:15], s63 offen {cf} lds")
    g("s_cmp_ge_u32 s3, 2"); g("s_cbranch_scc1 L_A_gath")
    dma_chunk(0)
    g("s_branch L_A_q")
    g("L_A_gath:")
    cnt_wait(g, 0, 8, 9)
    g("v_lshrrev_b32 v8, 2, v1"); g("v_lshlrev_b32 v8, 8, v8"); g("v_and_b32 v9, 3, v1"); g("v_lshl_add_u32 v8, v9, 4, v8")
    g("s_sub_u32 s62, s3, 2"); g("s_lshl_b32 s65, s62, 16"); g("s_lshl_b32 s63, s74, 6"); g("s_add_u32 s65, s65, s63"); g(f"s_add_u32 s65, s65, {QABS}")
    g(f"s_mov_b32 s64, {SPIN}")
    g("L_A_gp:")
    for r in range(16):
        g(f"s_add_u32 s63, s65, {r*4096}")
        g(f"buffer_load_dwordx4 v[{160+4*r}:{163+4*r}], v8, s[4:7], s63 offen sc1")
    g("s_sub_u32 s64, s64, 1"); g("s_cmp_eq_u32 s64, 0"); g("s_cbranch_scc1 L_A_gpe")
    g("s_waitcnt vmcnt(0)")
    g.maxtree(9, range(160, 224))
    g("v_cmp_eq_u32 vcc, -1, v9")
    g("s_cbranch_vccnz L_A_gp")
    g("L_A_gpe:")
    g("s_waitcnt vmcnt(0)")
    g("s_lshl_b32 s62, s62, 14"); g(f"s_add_u32 s62, s62, {LQ}")
    g("v_add_u32 v9, s62, v4")
    for r in range(16):
        g(f"v_xor_b32 v7, {fswz(r)<<4}, v9")
        g(f"ds_write_b128 v7, v[{160+4*r}:{163+4*r}] offset:{r*1024}")
    g("s_waitcnt lgkmcnt(0)")
    g("L_A_q:")
    g("v_and_b32 v8, 3, v5"); g("v_lshlrev_b32 v8, 2, v8"); g("v_bfe_u32 v9, v5, 2, 2"); g("v_or_b32 v8, v8, v9"); g("v_xor_b32 v8, v8, v6")
    g("v_lshlrev_b32 v10, 10, v5"); g("v_lshl_add_u32 v10, v8, 4, v10")
    g(f"v_add_u32 v11, {LQ}, v10")
    g("s_lshl_b32 s62, s3, 15"); g("v_add_u32 v10, s62, v10")
    for k in range(8): g(f"v_xor_b32 v{16+k}, {k<<5}, v10")
    g("v_bfe_u32 v8, v1, 2, 2")
    g("v_lshl_add_u32 v9, v6, 2, v8"); g("v_lshlrev_b32 v12, 10, v9")
    g("v_and_b32 v9, 1, v1"); g("v_lshlrev_b32 v9, 1, v9"); g("v_bfe_u32 v13, v1, 4, 1"); g("v_or_b32 v9, v9, v13")
    g("v_lshl_add_u32 v13, v8, 2, v6"); g("v_xor_b32 v9, v9, v13")
    g("v_lshl_add_u32 v12, v9, 4, v12")
    g("v_bfe_u32 v9, v1, 1, 1"); g("v_lshl_add_u32 v12, v9, 3, v12")
    g("s_lshl_b32 s62, s3, 8"); g("v_add_u32 v12, s62, v12")
    for ct in range(4):
        for hv in range(2):
            g(f"v_xor_b32 v{24+2*ct+hv}, {(ct<<6)|(hv<<5)}, v12")
            g(f"v_add_u32 v{32+2*ct+hv}, 0x10000, v{24+2*ct+hv}")
    g("s_barrier")
    g.stamp(1)
    for s in range(32):
        if s % 8 == 0 and s: g("s_waitcnt lgkmcnt(4)")
        g(f"v_xor_b32 v7, {(s&7)<<5}, v11")
        g(f"ds_read_b128 a[{128+4*s}:{131+4*s}], v7 offset:{(s>>3)*256}")
    g("v_lshlrev_b32 v40, 4, v5"); g(f"v_add_u32 v40, {LMX}, v40")
    g("s_lshl_b32 s62, s3, 2"); g("v_add_u32 v41, s62, v40")
    g(f"v_add_u32 v42, {LP}, v4")
    g("s_lshl_b32 s62, s3, 11"); g("v_add_u32 v43, s62, v42")
    g("v_mov_b32 v44, 0xff800000")
    g("v_mov_b32 v45, 0")
    g("v_mov_b32 v46, 0x3f803f80")
    g("s_waitcnt lgkmcnt(0)")
    for ch in range(2):
        if ch == 1:
            g("s_barrier")
            sk = g.lab("nl")
            g("s_cmp_ge_u32 s3, 2"); g(f"s_cbranch_scc1 {sk}")
            dma_chunk(1)
            g(f"{sk}:")
            sk = g.lab("nc")
            g("s_cmp_lg_u32 s3, 2"); g(f"s_cbranch_scc1 {sk}")
            cnt_wait(g, 64, 8, 9)
            g(f"{sk}:")
        g("s_waitcnt vmcnt(0)")
        g("s_barrier")
        g.stamp(2 + 2*ch)
        D = 12
        def rd(s):
            r = 160 + 4*(s % 24)
            g(f"ds_read_b128 v[{r}:{r+3}], v{16+(s&7)} offset:{(s>>3)*256}")
        for s in range(D): rd(s)
        for s in range(32):
            g(f"s_waitcnt lgkmcnt({min(D-1, 31-s)})")
            r = 160 + 4*(s % 24)
            c = "0" if s == 0 else "v[48:63]"
            g(f"v_mfma_f32_32x32x16_bf16 v[48:63], v[{r}:{r+3}], a[{128+4*s}:{131+4*s}], {c}")
            if s + D < 32: rd(s + D)
        if ch == 1: g.stamp(9)
        g.nop(12)
        g("v_max3_f32 v8, v48, v49, v50")
        for k in range(51, 63, 2): g(f"v_max3_f32 v8, v8, v{k}, v{k+1}")
        g("v_max_f32 v8, v8, v63")
        g("v_mov_b32 v9, v8"); g("s_nop 1"); g("v_permlane32_swap_b32 v8, v9"); g("v_max_f32 v8, v8, v9")
        g("ds_write_b32 v41, v8")
        g("s_waitcnt lgkmcnt(0)")
        g("s_barrier")
        g("ds_read_b128 v[12:15], v40")
        g("s_waitcnt lgkmcnt(0)")
        g("v_max3_f32 v8, v12, v13, v14"); g("v_max3_f32 v8, v8, v15, v44")
        g("v_sub_f32 v47, v44, v8"); g("v_exp_f32 v47, v47"); g("v_mov_b32 v44, v8")
        for k in range(16): g(f"v_sub_f32 v{48+k}, v{48+k}, v8")
        for k in range(16): g(f"v_exp_f32 v{48+k}, v{48+k}")
        g("s_nop 0")
        for k in range(8): g(f"v_cvt_pk_bf16_f32 v{48+k}, v{48+2*k}, v{49+2*k}")
        g("ds_write_b128 v43, v[48:51]"); g("ds_write_b128 v43, v[52:55] offset:1024")
        if ch > 0:
            for k in range(64): g(f"v_mul_f32 v{64+k}, v47, v{64+k}")
            g("v_mul_f32 v45, v47, v45")
        g("s_waitcnt lgkmcnt(0)")
        g("s_barrier")
        for k in range(8): g(f"ds_read_b128 v[{128+4*k}:{131+4*k}], v42 offset:{1024*k}")
        if ch == 1: g.stamp(10)
        steps = [(kk, ct) for kk in range(8) for ct in range(4)]
        DP = 6
        def rdp(n):
            kk, ct = steps[n]
            r = 160 + 4*(n % 24)
            row = 16*kk
            ab = 24 if row < 64 else 32
            for hv in range(2):
                g(f"ds_read_b64_tr_b16 v[{r+2*hv}:{r+2*hv+1}], v{ab+2*ct+hv} offset:{((row % 64) + 8*hv)*1024}")
        g("s_waitcnt lgkmcnt(2)")
        for n in range(DP): rdp(n)
        for n in range(32):
            kk, ct = steps[n]
            g(f"s_waitcnt lgkmcnt({2*min(DP-1, 31-n)})")
            r = 160 + 4*(n % 24)
            c = "0" if (ch == 0 and kk == 0) else f"v[{64+16*ct}:{79+16*ct}]"
            g(f"v_mfma_f32_32x32x16_bf16 v[{64+16*ct}:{79+16*ct}], v[{r}:{r+3}], v[{128+4*kk}:{131+4*kk}], {c}")
            g(f"v_dot2c_f32_bf16 v45, v{128+n}, v46")
            if n + DP < 32: rdp(n + DP)
        g.stamp(3 + 2*ch)
    g("v_and_b32 v8, 7, v5"); g("v_lshlrev_b32 v9, 1, v6"); g("v_xor_b32 v8, v8, v9")
    g("v_lshlrev_b32 v12, 10, v5"); g("v_lshl_add_u32 v12, v8, 4, v12")
    g("s_lshl_b32 s62, s3, 8"); g("v_add_u32 v12, s62, v12")
    g("v_lshlrev_b32 v13, 10, v3"); g("v_lshl_add_u32 v13, v2, 4, v13"); g("v_add_u32 v13, s62, v13")
    g("v_xor_b32 v14, v2, v3"); g("v_lshlrev_b32 v14, 4, v14"); g("v_lshl_add_u32 v14, v3, 15, v14")
    g("v_xor_b32 v15, 64, v14")
    g("v_mov_b32 v9, v45"); g("s_nop 1"); g("v_permlane32_swap_b32 v45, v9"); g("v_add_f32 v45, v45, v9")
    for ct in range(4):
        for k in range(8):
            g(f"v_cvt_pk_bf16_f32 v{128+8*ct+k}, v{64+16*ct+2*k}, v{65+16*ct+2*k}")
        for q in range(2):
            g(f"v_xor_b32 v7, {(((4*ct)&7)|q)<<4}, v12")
            g(f"ds_write_b128 v7, v[{128+8*ct+4*q}:{131+8*ct+4*q}] offset:{(ct>>1)*128}")
    g("s_lshl_b32 s65, s74, 20"); g("s_lshl_b32 s63, s75, 10"); g("s_add_u32 s65, s65, s63"); g("s_add_u32 s65, s65, s62"); g(f"s_add_u32 s65, s65, {OPART}")
    g("s_waitcnt lgkmcnt(0)")
    for n in range(8):
        g(f"ds_read_b128 v[{160+4*n}:{163+4*n}], v13 offset:{n*4096}")
    for n in range(8):
        g(f"s_add_u32 s63, s65, {n*4*32768}")
        g(f"s_waitcnt lgkmcnt({7-n})")
        g(f"buffer_store_dwordx4 v[{160+4*n}:{163+4*n}], v{14+(n&1)}, s[4:7], s63 offen sc1")
    sk = g.lab("ns")
    g("s_cmp_lg_u32 s3, 3"); g(f"s_cbranch_scc1 {sk}")
    g("v_lshlrev_b32 v8, 12, v5")
    g("s_lshl_b32 s62, s74, 17"); g("s_lshl_b32 s63, s75, 7"); g("s_add_u32 s62, s62, s63"); g(f"s_add_u32 s62, s62, {STAT}")
    g("s_mov_b32 exec_hi, 0")
    g("buffer_store_dwordx2 v[44:45], v8, s[4:7], s62 offen sc1")
    g("s_mov_b64 exec, -1")
    g(f"{sk}:")

if __name__ == "__main__":
    import argparse
    ap = argparse.ArgumentParser()
    ap.add_argument("out"); ap.add_argument("--stamps", action="store_true")
    ap.add_argument("--wflag", default="nt"); ap.add_argument("--cflag", default="nt")
    a = ap.parse_args()
    open(a.out, "w").write(gen(dict(stamps=a.stamps, wflag=a.wflag, cflag=a.cflag)))
```

```python
import sys, math, struct
from gen_common import *
from gen1 import G, f2u, fswz, QABS, STAT, OPART, APART, FPART, OOB, SCALE

SPIN = 20000
BFLAG = 0x0C0000
LDS_XN = 0
LDS_QX = 8192
LDS_OT = 16384
LDS_FX = 49152
LDS_CX = 49664
LDS_CS = 51200
LDS_GX = 52224
LDS_SX = 53248
LQ = 131072
LRF = LQ
LLS = LQ + 1024
LP = LQ + 2048

def poll_loop(g, body, cond, spin=SPIN, sleep=1):
    l = g.lab("pl"); e = g.lab("ple"); f = g.lab("plf")
    g(f"s_mov_b32 s64, {spin}")
    g(f"s_branch {f}")
    g(f"{l}:")
    if sleep: g(f"s_sleep {sleep}")
    g(f"{f}:")
    body()
    g("s_sub_u32 s64, s64, 1"); g("s_cmp_eq_u32 s64, 0")
    g("s_waitcnt vmcnt(0)")
    g(f"s_cbranch_scc1 {e}")
    cond()
    g(f"s_cbranch_vccnz {l}")
    g(f"{e}:")

def cnt_wait(g, vt, vo, sleep=4):
    g(f"v_mov_b32 v{vo}, 0")
    poll_loop(g, lambda: g(f"buffer_load_dword v{vt}, v{vo}, s[8:11], 0 offen sc1"),
              lambda: g(f"v_cmp_ne_u32 vcc, 16, v{vt}"), sleep=sleep)

def cnt_signal(g, off):
    e = g.lab("cs")
    g("s_cmp_lg_u32 s3, 0")
    g(f"s_cbranch_scc1 {e}")
    g("s_and_b32 s64, s42, 1"); g("s_lshl_b32 s64, s64, 7")
    g("v_mov_b32 v30, s64"); g("v_mov_b32 v31, 1")
    g("s_mov_b64 exec, 1")
    g(f"buffer_atomic_add v31, v30, s[8:11], 0 offen offset:{off} sc1")
    g("s_mov_b64 exec, -1")
    g(f"{e}:")

def rot_bases(g, base, rot, stride, dst):
    for ks in range(4):
        g(f"s_xor_b32 s63, s{rot}, {ks}"); g(f"s_mul_i32 s63, s63, {stride}"); g(f"s_add_u32 s{dst+ks}, s{base}, s63")

LDS_FW = 65536
def ffn_issue(g):
    wf = g.o["wflag"]
    g.srd(44, 30, 512*2752); g.srd(48, 32, 512*2752); g.srd(52, 34, 1376*1024); g.srd(56, 16, 4096)
    g("v_lshrrev_b32 v4, 2, v1"); g("v_mul_u32_u24 v4, 2752, v4"); g("v_and_b32 v5, 3, v1"); g("v_lshl_add_u32 v4, v5, 4, v4")
    g(f"s_mul_i32 s62, s3, {128*2752}"); g("s_lshl_b32 s63, s66, 6"); g("s_add_u32 s62, s62, s63")
    g("s_lshl_b32 s63, s3, 14"); g(f"s_add_u32 m0, s63, {LDS_FW}")
    g("v_lshlrev_b32 v5, 12, v3"); g("v_lshl_add_u32 v5, v2, 4, v5")
    for n in range(8):
        g(f"buffer_load_dwordx4 v4, s[44:47], s62 offen {wf} lds")
        g("s_addk_i32 m0, 0x2000"); g("s_nop 0")
        g(f"buffer_load_dwordx4 v4, s[48:51], s62 offen {wf} lds")
        if n < 7:
            g("s_addk_i32 m0, 0xe400"); g(f"s_add_u32 s62, s62, {16*2752}")
    g("s_lshl_b32 s62, s66, 15"); g("s_lshl_b32 s63, s3, 8"); g("s_add_u32 s62, s62, s63"); g("s_add_u32 s63, s62, 0x4000")
    for e in range(8):
        g(f"buffer_load_dwordx4 v[{160+4*e}:{163+4*e}], v5, s[52:55], s{62+(e&1)} offen offset:{(e>>1)*1024} {wf}")
    g("v_lshlrev_b32 v6, 3, v3")
    g("s_lshl_b32 s62, s67, 10"); g("s_lshl_b32 s63, s3, 8"); g("s_add_u32 s62, s62, s63")
    for t in range(8):
        g(f"buffer_load_dwordx2 v[{192+2*t}:{193+2*t}], v6, s[56:59], s62 offen offset:{32*t}")

def ffn_finish(g):
    g("v_lshrrev_b32 v6, 2, v1"); g("v_lshlrev_b32 v6, 6, v6"); g("v_and_b32 v28, 3, v1"); g("v_lshl_add_u32 v6, v28, 3, v6")
    g("s_lshl_b32 s63, s3, 14"); g(f"s_add_u32 s63, s63, {LDS_FW}"); g("v_add_u32 v6, s63, v6")
    for k in range(4): g(f"v_mov_b32 v{24+k}, 0x3f803f80")
    for p in range(4):
        g(f"v_cmp_eq_u32 vcc, {p}, v28"); g("s_nop 1"); g(f"v_cndmask_b32 v{16+p}, 0, -1, vcc")
    if g.o["fine2"]:
        g.stamp(4); g("s_waitcnt vmcnt(16)"); g.stamp(5)
    g("s_waitcnt vmcnt(8)")
    if g.o["fine2"]: g.stamp(2)
    g.perm8x8(160, 224)
    g("s_waitcnt vmcnt(0)")
    for t in range(8):
        for q in range(2):
            g(f"v_lshlrev_b32 v{128+4*t+2*q}, 16, v{192+2*t+q}")
            g(f"v_and_b32 v{128+4*t+2*q+1}, 0xffff0000, v{192+2*t+q}")
    for ks in range(4):
        for t in range(4):
            for hv in range(2):
                r = 160+16*ks+4*t+2*hv
                g(f"ds_read_b64_tr_b16 v[{r}:{r+1}], v6 offset:{ks*2048+hv*1024+(t&1)*32+(t>>1)*8192}")
    g("v_lshlrev_b32 v7, 4, v2"); g("s_lshl_b32 s62, s3, 8"); g(f"v_add_u32 v7, s62, v7")
    g("s_waitcnt lgkmcnt(0)")
    for ks in range(4):
        for t in range(4):
            c = "0" if ks == 0 else f"v[{32+4*t}:{35+4*t}]"
            g(f"v_mfma_f32_16x16x32_bf16 v[{32+4*t}:{35+4*t}], v[24:27], v[{160+16*ks+4*t}:{163+16*ks+4*t}], {c}")
    g.nop(8)
    for t in range(1, 4): g(f"v_mov_b32 v{32+t}, v{32+4*t}")
    g(f"ds_write_b128 v7, v[32:35] offset:{LDS_CS}")
    g("v_lshl_add_u32 v7, v3, 2, v28"); g("v_lshlrev_b32 v7, 4, v7")
    g("s_waitcnt lgkmcnt(0)")
    g("s_barrier")
    for w in range(4):
        g(f"ds_read_b128 v[{32+4*w}:{35+4*w}], v7 offset:{LDS_CS+256*w}")
    g("s_waitcnt lgkmcnt(0)")
    for k in range(4):
        g(f"v_add_f32 v{32+k}, v{32+k}, v{36+k}"); g(f"v_add_f32 v{40+k}, v{40+k}, v{44+k}")
        g(f"v_add_f32 v{20+k}, v{32+k}, v{40+k}")

def tile_setup(g, rot):
    g("v_lshlrev_b32 v8, 1, v3"); g("v_xor_b32 v8, v8, v2"); g("v_lshlrev_b32 v8, 4, v8"); g("v_lshl_add_u32 v8, v3, 10, v8")
    g("v_xor_b32 v9, 0x80, v8")
    g("s_lshl_b32 s68, s3, 13"); g(f"s_add_u32 s68, s68, {LDS_OT}")
    g("v_bfe_u32 v11, v1, 2, 2")
    g("v_lshl_add_u32 v10, v3, 3, v11"); g("v_lshlrev_b32 v10, 8, v10")
    g("v_and_b32 v12, 1, v3"); g("v_lshl_add_u32 v12, v12, 2, v11"); g("v_lshlrev_b32 v12, 1, v12")
    g("v_bfe_u32 v13, v1, 1, 1"); g("v_xor_b32 v12, v12, v13")
    g("v_lshl_add_u32 v10, v12, 4, v10")
    g("v_and_b32 v13, 1, v1"); g("v_lshl_add_u32 v10, v13, 3, v10")
    g("v_add_u32 v10, s68, v10")
    if rot is not None:
        g(f"s_lshl_b32 s63, s{rot}, 6"); g("v_xor_b32 v10, s63, v10")
    for t in range(8): g(f"v_xor_b32 v{112+t}, {t<<5}, v10")

def tile_dma(g, sbase):
    g("s_mov_b32 m0, s68"); g(f"s_mov_b32 s63, s{sbase}")
    for n in range(8):
        g(f"buffer_load_dwordx4 v{8+((n>>1)&1)}, s[4:7], s63 offen sc1 lds")
        if n < 7:
            g("s_addk_i32 m0, 0x400"); g("s_addk_i32 s63, 0x1000")

def tile_read(g, A):
    for t in range(8):
        if t == 6: g("s_waitcnt lgkmcnt(8)")
        g(f"ds_read_b64_tr_b16 v[{A+4*t}:{A+4*t+1}], v{112+t}")
        g(f"ds_read_b64_tr_b16 v[{A+4*t+2}:{A+4*t+3}], v{112+t} offset:1024")

def ffn_stage(g):
    tile_setup(g, None)
    g("s_lshl_b32 s69, s67, 15"); g("s_lshl_b32 s63, s3, 8"); g("s_add_u32 s69, s69, s63"); g(f"s_add_u32 s69, s69, {APART}")
    g("v_lshrrev_b32 v13, 1, v1"); g("v_lshlrev_b32 v13, 10, v13"); g("v_and_b32 v14, 1, v1"); g("v_lshl_add_u32 v13, v14, 7, v13")
    g("v_lshlrev_b32 v120, 4, v2"); g("s_lshl_b32 s62, s3, 8"); g("v_add_u32 v120, s62, v120")
    g("s_lshl_b32 s62, s3, 3"); g("v_mov_b32 v121, s62"); g("v_mov_b32 v122, 0")
    g("v_lshlrev_b32 v123, 5, v2"); g("v_lshl_add_u32 v123, v3, 4, v123")
    g(f"s_mul_i32 s74, s67, 44"); g("s_add_u32 s74, s74, s66"); g("s_lshl_b32 s74, s74, 11")
    g("s_lshl_b32 s63, s3, 9"); g("s_add_u32 s74, s74, s63"); g(f"s_add_u32 s74, s74, {FPART}")
    c1 = -2 * math.sqrt(2 / math.pi) * math.log2(math.e)
    g(f"s_mov_b32 s75, 0x{f2u(c1*0.044715):08x}"); g(f"v_mov_b32 v124, 0x{f2u(c1):08x}")
    g(f"s_mov_b32 s65, {SPIN}")
    l = g.lab("fp"); e = g.lab("fpe")
    g(f"{l}:")
    poll_loop(g, lambda: g("buffer_load_dword v14, v13, s[4:7], s69 offen sc1"), lambda: g("v_cmp_eq_u32 vcc, -1, v14"), spin=4*SPIN)
    tile_dma(g, 69)
    g.stamp(7)
    g("s_waitcnt vmcnt(0)")
    tile_read(g, 32)
    for t in range(8):
        g(f"s_waitcnt lgkmcnt({14-2*t})")
        g(f"v_mfma_f32_16x16x32_bf16 v[{64+4*t}:{67+4*t}], v[{32+4*t}:{35+4*t}], v[24:27], v[{128+4*t}:{131+4*t}]")
    for t in range(8):
        g(f"v_cvt_pk_bf16_f32 v{96+2*t}, v{64+4*t}, v{65+4*t}")
        g(f"v_cvt_pk_bf16_f32 v{97+2*t}, v{66+4*t}, v{67+4*t}")
    def mm(ks, t):
        A = f"v[{96+4*ks}:{99+4*ks}]"
        B = f"v[{160+16*ks+4*t}:{163+16*ks+4*t}]" if t < 4 else ("v[24:27]" if t == 4 else A)
        c = "0" if ks == 0 else f"v[{32+4*t}:{35+4*t}]"
        g(f"v_mfma_f32_16x16x32_bf16 v[{32+4*t}:{35+4*t}], {A}, {B}, {c}")
    for ks in range(4):
        for t in range(6): mm(ks, t)
    g("s_sub_u32 s65, s65, 1"); g("s_cmp_eq_u32 s65, 0"); g(f"s_cbranch_scc1 {e}")
    g("v_cmp_u_f32 vcc, v32, v32")
    g(f"s_cbranch_vccnz {l}")
    g(f"{e}:")
    g("s_nop 1")
    for t in range(1, 4): g(f"v_mov_b32 v{32+t}, v{32+4*t}")
    g("v_mov_b32 v49, v52")
    g("s_mov_b64 exec, 0xffff")
    g(f"ds_write_b128 v120, v[32:35] offset:{LDS_GX}")
    g(f"ds_write_b64 v121, v[48:49] offset:{LDS_SX}")
    g("s_mov_b64 exec, -1")
    sk = g.lab("nh")
    g("s_cmp_lg_u32 s66, 0"); g(f"s_cbranch_scc1 {sk}")
    g(f"s_add_u32 s62, s74, {43*2048}")
    g("v_lshlrev_b32 v13, 4, v3")
    g("s_mov_b32 s70, 0x00010001"); g("s_mov_b32 s71, 0x00010001"); g("s_mov_b64 exec, s[70:71]")
    for t in range(8):
        g(f"buffer_store_dwordx4 v[{64+4*t}:{67+4*t}], v13, s[4:7], s62 offen offset:{64*t} sc1")
    g("s_mov_b64 exec, -1")
    g(f"{sk}:")
    g("s_waitcnt lgkmcnt(0)")
    g("s_barrier")
    g(f"ds_read_b128 v[56:59], v122 offset:{LDS_SX}")
    g(f"ds_read_b128 v[60:63], v122 offset:{LDS_SX+16}")
    for w in range(4):
        g(f"ds_read_b128 v[{32+4*w}:{35+4*w}], v7 offset:{LDS_GX+256*w}")
    g("s_waitcnt lgkmcnt(4)")
    g("v_add_f32 v56, v56, v58"); g("v_add_f32 v57, v57, v59"); g("v_add_f32 v60, v60, v62"); g("v_add_f32 v61, v61, v63")
    g("v_add_f32 v56, v56, v60"); g("v_add_f32 v57, v57, v61")
    g(f"v_mul_f32 v56, 0x{f2u(1/512):08x}, v56")
    g(f"v_mul_f32 v57, 0x{f2u(1/512):08x}, v57")
    g("v_fma_f32 v57, -v56, v56, v57"); g("v_max_f32 v57, 0, v57")
    g("v_cvt_pk_bf16_f32 v57, v56, v57"); g("v_lshlrev_b32 v56, 16, v57"); g("v_and_b32 v57, 0xffff0000, v57")
    g(f"v_add_f32 v57, 0x{f2u(1e-5):08x}, v57"); g.bf16r(57, 57)
    g("v_sqrt_f32 v57, v57")
    g("s_waitcnt lgkmcnt(0)")
    for k in range(4):
        g(f"v_add_f32 v{32+k}, v{32+k}, v{36+k}"); g(f"v_add_f32 v{40+k}, v{40+k}, v{44+k}")
    g.bf16r(57, 57)
    g("v_rcp_f32 v57, v57")
    for k in range(4):
        g(f"v_add_f32 v{32+k}, v{32+k}, v{40+k}")
    for k in range(4):
        g(f"v_fma_f32 v{32+k}, -v56, v{20+k}, v{32+k}")
    for k in range(4):
        g(f"v_mul_f32 v{32+k}, v57, v{32+k}")
    g("v_cvt_pk_bf16_f32 v36, v32, v33"); g("v_cvt_pk_bf16_f32 v37, v34, v35")
    g("v_lshlrev_b32 v32, 16, v36"); g("v_and_b32 v33, 0xffff0000, v36")
    for k in range(2): g(f"v_mul_f32 v{38+k}, v{32+k}, v{32+k}")
    for k in range(2): g(f"v_fma_f32 v{38+k}, v{38+k}, s75, v124")
    for k in range(2): g(f"v_mul_f32 v{38+k}, v{38+k}, v{32+k}")
    for k in range(2): g(f"v_exp_f32 v{38+k}, v{38+k}")
    g("v_lshlrev_b32 v34, 16, v37")
    for k in range(2): g(f"v_add_f32 v{38+k}, 1.0, v{38+k}")
    for k in range(2): g(f"v_rcp_f32 v{38+k}, v{38+k}")
    g("v_and_b32 v35, 0xffff0000, v37")
    for k in range(2): g(f"v_mul_f32 v{38+k}, v{38+k}, v{32+k}")
    g("v_cvt_pk_bf16_f32 v36, v38, v39")
    g("v_lshlrev_b32 v38, 16, v36"); g("v_and_b32 v39, 0xffff0000, v36")
    g("v_mul_f32 v38, v38, v34"); g("v_mul_f32 v39, v39, v35")
    g("v_cvt_pk_bf16_f32 v36, v38, v39")
    for p in range(4): g(f"v_and_b32 v{40+p}, v36, v{16+p}")
    g("v_cmp_ne_u32 vcc, 0, v3")
    g.nop(1)
    for t in range(8):
        g(f"v_mfma_f32_16x16x32_bf16 v[{64+4*t}:{67+4*t}], v[40:43], v[{224+4*t}:{227+4*t}], 0")
    g.nop(1)
    for t in range(8):
        g(f"v_add_f32 v{64+4*t}, v{64+4*t}, v{65+4*t}"); g(f"v_add_f32 v{66+4*t}, v{66+4*t}, v{67+4*t}")
    for t in range(8):
        g(f"v_add_f32 v{64+4*t}, v{64+4*t}, v{66+4*t}")
    for q in range(4):
        g(f"v_cndmask_b32 v{32+q}, v{64+4*q}, v{80+4*q}, vcc")
    g("s_mov_b32 exec_hi, 0")
    g("buffer_store_dwordx4 v[32:35], v123, s[4:7], s74 offen sc1")
    g("s_mov_b64 exec, -1")
    g.stamp(8)

def tcu(g):
    opts = g.o; wf = opts["wflag"]; cf = opts["cflag"]
    g("s_lshl_b32 s74, s72, 12"); g("s_lshl_b32 s62, s73, 10"); g("s_add_u32 s74, s74, s62")
    g("v_lshlrev_b32 v28, 2, v0")
    g("s_lshl_b32 s75, s73, 5"); g("s_add_u32 s75, s75, s72")
    g("v_lshlrev_b32 v29, 4, v0")
    g("s_lshl_b32 s76, s75, 12"); g(f"s_add_u32 s76, s76, {STAT}")
    g("v_lshlrev_b32 v4, 16, v3"); g("v_lshl_add_u32 v4, v2, 4, v4")
    g("s_lshl_b32 s62, s3, 20"); g("s_lshl_b32 s63, s72, 8")
    g("s_add_u32 s62, s62, s63")
    rot_bases(g, 62, 73, 32*8192, 52)
    g("v_lshlrev_b32 v5, 14, v2"); g("v_lshl_add_u32 v5, v3, 4, v5")
    g("s_lshl_b32 s78, s73, 20"); g("s_lshl_b32 s63, s3, 18"); g("s_add_u32 s78, s78, s63"); g("s_lshl_b32 s63, s72, 8"); g("s_add_u32 s78, s78, s63")
    g("s_add_u32 s79, s78, 8192")
    g("s_mov_b32 s14, 0x400000"); g("s_mov_b32 s15, 0x20000"); g("s_mov_b32 s58, 4096"); g("s_mov_b32 s59, 0x20000")
    g("s_mov_b32 s46, 0x400000"); g("s_mov_b32 s47, 0x20000")
    g("s_waitcnt lgkmcnt(0)")
    g("s_mov_b32 s56, s16"); g("s_and_b32 s57, s17, 0xffff"); g("s_mov_b32 s12, s20"); g("s_and_b32 s13, s21, 0xffff")
    def wq(ks):
        for e in range(8):
            g(f"s_add_u32 s63, s{52+ks}, {e*8192}")
            r = 32 + 32*ks + 4*e
            g(f"buffer_load_dwordx4 v[{r}:{r+3}], v4, s[12:15], s63 offen {wf}")
    g("buffer_load_dwordx4 v[8:11], v29, s[56:59], 0 offen")
    wq(0)
    g("s_mov_b32 s44, s22"); g("s_and_b32 s45, s23, 0xffff")
    for tt in range(2):
        for ks in range(4):
            r = 160 + 16*tt + 4*ks
            g(f"buffer_load_dwordx4 v[{r}:{r+3}], v5, s[44:47], s{78+tt} offen offset:{64*ks} {cf}")
    g.srd(4, 40, WS); g.srd(8, 38, 256)
    for k in range(4): g(f"v_mov_b32 v{24+k}, -1")
    g(f"s_mul_i32 s62, s42, 2816"); g(f"s_add_u32 s62, s62, {FPART}")
    g("s_lshl_b32 s63, s75, 10"); g(f"s_add_u32 s63, s63, {APART - 192*16}")
    g("v_add_u32 v30, s62, v29"); g("v_add_u32 v31, s63, v29")
    g("v_cmp_gt_u32 vcc, 176, v0"); g(f"v_mov_b32 v7, {OOB}"); g("s_nop 0"); g("v_cndmask_b32 v30, v7, v30, vcc")
    g("v_cmp_le_u32 vcc, 192, v0"); g("s_nop 1"); g("v_cndmask_b32 v30, v30, v31, vcc")
    g("buffer_store_dwordx4 v[24:27], v29, s[4:7], s76 offen sc1")
    g("buffer_store_dwordx4 v[24:27], v30, s[4:7], 0 offen sc1")
    g("s_mul_i32 s62, s3, 1040"); g("v_lshlrev_b32 v6, 4, v1"); g("v_add_u32 v6, s62, v6")
    g("v_and_b32 v7, 3, v2"); g("v_mul_u32_u24 v7, 1040, v7"); g("v_lshl_add_u32 v7, v3, 4, v7")
    g("s_lshl_b32 s62, s3, 8"); g("v_add_u32 v7, s62, v7")
    g("s_waitcnt vmcnt(18)")
    for q in range(4):
        g(f"v_lshlrev_b32 v{12+2*q}, 16, v{8+q}"); g(f"v_and_b32 v{13+2*q}, 0xffff0000, v{8+q}")
    g("v_add_f32 v20, v12, v13"); g("v_add_f32 v21, v14, v15"); g("v_add_f32 v22, v16, v17"); g("v_add_f32 v23, v18, v19")
    g("v_add_f32 v20, v20, v21"); g("v_add_f32 v22, v22, v23"); g("v_add_f32 v20, v20, v22")
    g.allred("v_add_f32", 20, 21)
    g(f"v_mul_f32 v20, 0x{f2u(1/512):08x}, v20")
    g("v_sub_f32 v22, v12, v20"); g("v_mul_f32 v21, v22, v22")
    for k in range(1, 8):
        g(f"v_sub_f32 v22, v{12+k}, v20"); g("v_fmac_f32 v21, v22, v22")
    g.allred("v_add_f32", 21, 22)
    g(f"v_mul_f32 v21, 0x{f2u(1/512):08x}, v21")
    g.bf16r(20, 20); g.bf16r(21, 21)
    g(f"v_add_f32 v21, 0x{f2u(1e-5):08x}, v21"); g.bf16r(21, 21)
    g("v_sqrt_f32 v21, v21"); g("s_nop 0"); g.bf16r(21, 21)
    g("v_rcp_f32 v21, v21")
    for k in range(8): g(f"v_sub_f32 v{12+k}, v{12+k}, v20")
    for q in range(4): g(f"v_cvt_pk_bf16_f32 v{8+q}, v{12+2*q}, v{13+2*q}")
    for q in range(4):
        g(f"v_lshlrev_b32 v{12+2*q}, 16, v{8+q}"); g(f"v_and_b32 v{13+2*q}, 0xffff0000, v{8+q}")
    for k in range(8): g(f"v_mul_f32 v{12+k}, v{12+k}, v21")
    for q in range(4): g(f"v_cvt_pk_bf16_f32 v{8+q}, v{12+2*q}, v{13+2*q}")
    g(f"ds_write_b128 v6, v[8:11] offset:{LDS_XN}")
    g("v_mov_b32 v30, 0")
    g("s_waitcnt vmcnt(10) lgkmcnt(0)")
    g.stamp(1)
    wq(1)
    g("s_barrier")
    for ks in range(4):
        g(f"s_xor_b32 s63, s73, {ks}"); g("s_lshl_b32 s63, s63, 6"); g("v_add_u32 v6, s63, v7")
        g(f"ds_read_b128 v[{8+4*ks}:{11+4*ks}], v6 offset:{LDS_XN}")
    wq(2)
    for ks in range(4):
        if ks == 1: wq(3)
        if ks: g(f"s_waitcnt vmcnt({8*(3-ks) + (1 if ks == 3 else 0)})")
        if ks == 2: g("buffer_load_dword v31, v30, s[8:11], 0 offen sc1")
        if ks == 3: g.stamp(7)
        g.perm8x8(32+32*ks, 192)
        if ks == 0: g("s_waitcnt lgkmcnt(0)")
        for t in range(8):
            c = "0" if ks == 0 else f"v[{224+4*t}:{227+4*t}]"
            g(f"v_mfma_f32_16x16x32_bf16 v[{224+4*t}:{227+4*t}], v[{8+4*ks}:{11+4*ks}], v[{192+4*t}:{195+4*t}], {c}")
    g("s_mul_i32 s62, s3, 272"); g("v_lshlrev_b32 v6, 4, v2"); g("v_add_u32 v6, s62, v6")
    g("v_mul_u32_u24 v7, 272, v2"); g("v_lshl_add_u32 v7, v3, 4, v7")
    for p in range(4):
        for b in range(4):
            g(f"v_cvt_pk_bf16_f32 v{8+4*b+p}, v{224+8*p+b}, v{228+8*p+b}")
    g("s_mov_b64 exec, 0xffff")
    for b in range(4):
        g(f"ds_write_b128 v6, v[{8+4*b}:{11+4*b}] offset:{LDS_QX+4*272*b}")
    g("s_mov_b64 exec, -1")
    g("s_waitcnt lgkmcnt(0)")
    g("s_barrier")
    for ks in range(4):
        g(f"ds_read_b128 v[{8+4*ks}:{11+4*ks}], v7 offset:{LDS_QX+64*ks}")
    for ks in range(4):
        g(f"s_waitcnt lgkmcnt({3-ks})")
        for tt in range(2):
            c = "0" if ks == 0 else f"v[{224+4*tt}:{227+4*tt}]"
            g(f"v_mfma_f32_16x16x32_bf16 v[{224+4*tt}:{227+4*tt}], v[{8+4*ks}:{11+4*ks}], v[{160+16*tt+4*ks}:{163+16*tt+4*ks}], {c}")
    g("s_waitcnt vmcnt(0)")
    g("v_cmp_ne_u32 vcc, 16, v31")
    g.srd(12, 18, 32 << 20)
    g("s_lshl_b32 s77, s75, 15"); g(f"s_add_u32 s77, s77, {OPART}")
    for tt in range(2):
        r = 224 + 4*tt
        g(f"v_add_f32 v{r}, v{r}, v{r+1}"); g(f"v_add_f32 v{r+2}, v{r+2}, v{r+3}")
    for tt in range(2):
        r = 224 + 4*tt
        g(f"v_add_f32 v{r}, v{r}, v{r+2}")
    for tt in range(2):
        r = 224 + 4*tt
        g(f"v_mul_f32 v{r}, 0x{f2u(SCALE):08x}, v{r}")
    g("v_cvt_pk_bf16_f32 v8, v224, v228")
    g("s_cbranch_vccz L_T_c0ok")
    cnt_wait(g, 31, 30)
    g("L_T_c0ok:")
    g("buffer_store_dword v8, v28, s[4:7], s74 offen sc1")
    g.stamp(2)
    pf0 = opts["pf0"]; pfw = opts["pfw"]
    g("s_mov_b32 s67, s73"); g("s_add_u32 s66, s43, 32")
    g("s_cmp_lt_u32 s42, 64"); g("s_cbranch_scc1 L_T_nopf0")
    g("v_lshlrev_b32 v4, 6, v1")
    g("s_and_b32 s62, s42, 63"); g("s_lshr_b32 s63, s3, 1"); g("s_lshl_b32 s63, s63, 6"); g("s_add_u32 s62, s62, s63")
    g("s_lshl_b32 s62, s62, 18"); g("s_and_b32 s63, s3, 1"); g("s_lshl_b32 s63, s63, 14"); g("s_add_u32 s62, s62, s63"); g(f"s_add_u32 s62, s62, {pf0*32768}")
    for i in range(8 - pf0):
        if i >= pfw: g(f"s_waitcnt vmcnt({4*(pfw-1)})")
        for k in range(4):
            g(f"buffer_load_dword v32, v4, s[12:15], s62 offen")
            g(f"s_addk_i32 s62, {0x1000 if k < 3 else 0x5000}")
    g("s_waitcnt vmcnt(0)")
    g("s_branch L_T_nofw")
    g("L_T_nopf0:")
    g("s_cmp_ge_u32 s43, 11"); g("s_cbranch_scc1 L_T_nofw")
    ffn_issue(g); ffn_finish(g)
    g("L_T_nofw:")
    g.stamp(9)
    g.srd(12, 24, 4 << 20); g.srd(44, 26, 4 << 20)
    g("s_lshl_b32 s62, s3, 20"); g("s_lshl_b32 s63, s72, 8"); g("s_add_u32 s62, s62, s63")
    rot_bases(g, 62, 73, 32*8192, 52)
    g("v_lshlrev_b32 v4, 15, v3"); g("v_lshl_add_u32 v4, v2, 4, v4")
    g("v_lshlrev_b32 v5, 13, v3"); g("v_lshl_add_u32 v5, v2, 4, v5")
    g("s_lshl_b32 s79, s72, 17"); g("s_lshl_b32 s63, s3, 8"); g("s_add_u32 s79, s79, s63")
    order = [0, 4, 1, 2, 3, 5, 6, 7]
    def buf(i): return 32 + 32*(i % 3)
    def tw_issue2(i):
        n = order[i]; ks = n & 3
        if n >= 4:
            g(f"s_xor_b32 s62, s73, {ks}"); g("s_lshl_b32 s62, s62, 15"); g("s_add_u32 s62, s62, s79")
        for e in range(8):
            r = buf(i) + 4*e
            if n < 4:
                g(f"s_add_u32 s63, s{52+ks}, {(16*(e>>2)+(e&3))*8192}")
                g(f"buffer_load_dwordx4 v[{r}:{r+3}], v4, s[12:15], s63 offen {wf}")
            else:
                if e == 4: g("s_addk_i32 s62, 0x1000")
                g(f"buffer_load_dwordx4 v[{r}:{r+3}], v5, s[44:47], s62 offen offset:{(e&3)*1024} {wf}")
    tw_issue2(0); tw_issue2(1)
    for i in range(8):
        g(f"s_waitcnt vmcnt({8 if i < 7 else 0})")
        if i + 2 < 8: tw_issue2(i+2)
        R = buf(i); acc = 32*order[i]
        for t in range(8):
            for p in range(4):
                g(f"v_perm_b32 v{8+p+4*(t&1)}, v{R+4*(2*p+1)+(t>>1)}, v{R+4*(2*p)+(t>>1)}, s{60+(t&1)}")
            for p in range(4):
                g(f"v_accvgpr_write_b32 a{acc+4*t+p}, v{8+p+4*(t&1)}")
    if opts["ffpf"]:
        g("s_cmp_lt_u32 s42, 64"); g("s_cbranch_scc1 L_T_nopf")
        g.srd(44, 30, 512*2752); g.srd(48, 32, 512*2752); g.srd(52, 34, 1376*1024)
        g("v_lshrrev_b32 v4, 2, v1"); g("v_mul_u32_u24 v4, 2752, v4"); g("v_and_b32 v5, 3, v1"); g("v_lshl_add_u32 v4, v5, 6, v4")
        g("s_lshr_b32 s62, s42, 3"); g("s_sub_u32 s62, s62, 8"); g("s_lshl_b32 s62, s62, 2"); g("s_add_u32 s62, s62, s3")
        g(f"s_mul_i32 s63, s62, {16*2752}"); g("s_and_b32 s64, s42, 7"); g("s_lshl_b32 s65, s64, 8"); g("s_add_u32 s63, s63, s65")
        g("buffer_load_dword v32, v4, s[44:47], s63 offen"); g("buffer_load_dword v33, v4, s[48:51], s63 offen")
        g("v_lshlrev_b32 v4, 6, v1"); g("s_lshl_b32 s62, s62, 12"); g("s_lshl_b32 s64, s64, 17"); g("s_add_u32 s62, s62, s64")
        g("buffer_load_dword v34, v4, s[52:55], s62 offen")
        g("L_T_nopf:")
    g.stamp(3)
    tile_setup(g, 73)
    g("s_lshl_b32 s63, s3, 8"); g("s_add_u32 s69, s77, s63")
    g("v_and_b32 v13, 31, v1"); g("v_lshlrev_b32 v14, 7, v13")
    g("s_lshl_b32 s62, s3, 7"); g("v_lshlrev_b32 v13, 1, v13"); g("v_add_u32 v13, s62, v13")
    g("v_and_b32 v15, 1, v2"); g("v_lshlrev_b32 v15, 6, v15"); g("v_lshl_add_u32 v15, v3, 4, v15"); g("v_add_u32 v15, s62, v15")
    g("s_mul_i32 s62, s3, 272"); g("v_lshlrev_b32 v120, 4, v2"); g("v_add_u32 v121, s62, v120")
    g("v_and_b32 v122, 3, v2"); g("v_mul_u32_u24 v122, 272, v122"); g("v_lshl_add_u32 v122, v3, 4, v122")
    for ks in range(4):
        g(f"s_xor_b32 s63, s73, {ks}"); g("s_lshl_b32 s63, s63, 6"); g(f"v_add_u32 v{124+ks}, s63, v122")
    g("s_lshl_b32 s78, s75, 10"); g("s_lshl_b32 s63, s3, 8"); g("s_add_u32 s78, s78, s63"); g(f"s_add_u32 s78, s78, {APART}")
    def cond():
        g("v_max_u32 v34, v32, v33"); g("v_cmp_eq_u32 vcc, -1, v34")
    poll_loop(g, lambda: g("buffer_load_dwordx2 v[32:33], v14, s[4:7], s76 offen sc1"), cond, spin=4*SPIN, sleep=g.o["tsleep"])
    tile_dma(g, 69)
    g.stamp(4)
    g("v_mov_b32 v34, v32")
    g.allred("v_max_f32", 34, 35, 32)
    g("v_sub_f32 v34, v32, v34"); g("v_exp_f32 v34, v34"); g("s_nop 0")
    g("v_mul_f32 v36, v34, v33")
    g.allred("v_add_f32", 36, 35, 32)
    g("v_rcp_f32 v36, v36"); g("s_nop 0")
    g("v_mul_f32 v34, v34, v36")
    g.bf16r(35, 34)
    g("v_sub_f32 v35, v34, v35")
    g("v_cvt_pk_bf16_f32 v34, v34, v35")
    g(f"ds_write_b16 v13, v34 offset:{LDS_FX}")
    g(f"ds_write_b16_d16_hi v13, v34 offset:{LDS_FX+64}")
    g("s_waitcnt lgkmcnt(0)")
    g(f"ds_read_b128 v[28:31], v15 offset:{LDS_FX}")
    g("s_waitcnt vmcnt(0) lgkmcnt(0)")
    g.stamp(5)
    tile_read(g, 32)
    for t in range(8):
        g(f"s_waitcnt lgkmcnt({14-2*t})" if not g.o.get("stamps") else "s_waitcnt lgkmcnt(0)")
        g(f"v_mfma_f32_16x16x32_bf16 v[{64+4*t}:{67+4*t}], v[{32+4*t}:{35+4*t}], v[28:31], 0")
    for t in range(8):
        g(f"v_cvt_pk_bf16_f32 v{96+2*t}, v{64+4*t}, v{65+4*t}")
        g(f"v_cvt_pk_bf16_f32 v{97+2*t}, v{66+4*t}, v{67+4*t}")
    for ks in range(4):
        for t in range(8):
            c = "0" if ks == 0 else f"v[{32+4*t}:{35+4*t}]"
            g(f"v_mfma_f32_16x16x32_bf16 v[{32+4*t}:{35+4*t}], v[{96+4*ks}:{99+4*ks}], a[{32*ks+4*t}:{32*ks+4*t+3}], {c}")
    g.nop(1)
    for t in range(8):
        g(f"v_add_f32 v{32+4*t}, v{32+4*t}, v{33+4*t}")
    for p in range(4):
        g(f"v_cvt_pk_bf16_f32 v{64+p}, v{32+8*p}, v{36+8*p}")
    g("s_mov_b64 exec, 0xffff")
    g(f"ds_write_b128 v121, v[64:67] offset:{LDS_CX}")
    g("s_mov_b64 exec, -1")
    g("s_waitcnt lgkmcnt(0)")
    g("s_barrier")
    for ks in range(4):
        g(f"ds_read_b128 v[{96+4*ks}:{99+4*ks}], v{124+ks} offset:{LDS_CX}")
    for ks in range(4):
        g(f"s_waitcnt lgkmcnt({3-ks})")
        for t in range(8):
            c = "0" if ks == 0 else f"v[{32+4*t}:{35+4*t}]"
            g(f"v_mfma_f32_16x16x32_bf16 v[{32+4*t}:{35+4*t}], v[{96+4*ks}:{99+4*ks}], a[{128+32*ks+4*t}:{128+32*ks+4*t+3}], {c}")
    g.nop(1)
    for t in range(8):
        g(f"v_add_f32 v{32+4*t}, v{32+4*t}, v{33+4*t}"); g(f"v_add_f32 v{34+4*t}, v{34+4*t}, v{35+4*t}")
    for t in range(8):
        g(f"v_add_f32 v{32+4*t}, v{32+4*t}, v{34+4*t}")
    for p in range(4):
        g(f"v_cvt_pk_bf16_f32 v{64+p}, v{32+8*p}, v{36+8*p}")
    g("s_mov_b64 exec, 0xffff")
    g("buffer_store_dwordx4 v[64:67], v120, s[4:7], s78 offen sc1")
    g("s_mov_b64 exec, -1")
    g.stamp(6)
    g("s_cmp_lt_u32 s43, 11"); g("s_cbranch_scc1 L_FFN")
    g("s_cmp_lt_u32 s43, 16"); g("s_cbranch_scc1 L_fin")
    g("s_cmp_lg_u32 s3, 0"); g("s_cbranch_scc1 L_fin")
    g.srd(12, 36, 4096)
    g("v_lshrrev_b32 v4, 3, v1"); g("v_and_b32 v5, 7, v1")
    g("v_lshlrev_b32 v6, 11, v4"); g("v_lshl_add_u32 v6, v5, 4, v6")
    g(f"v_mov_b32 v7, {OOB}")
    g("v_cmp_gt_u32 vcc, 3, v4"); g("s_nop 1"); g("v_cndmask_b32 v7, v7, v6, vcc")
    g("v_lshlrev_b32 v8, 4, v5"); g("v_lshlrev_b32 v10, 3, v5")
    g(f"s_mul_i32 s62, s73, {44*2048}"); g("s_sub_u32 s65, s43, 16"); g("s_lshl_b32 s63, s65, 7"); g("s_add_u32 s62, s62, s63"); g(f"s_add_u32 s62, s62, {FPART}")
    g("s_lshl_b32 s74, s73, 10"); g("s_lshl_b32 s63, s65, 6"); g("s_add_u32 s74, s74, s63")
    def body():
        for n in range(6):
            g(f"s_add_u32 s63, s62, {n*16384}")
            g(f"buffer_load_dwordx4 v[{32+4*n}:{35+4*n}], v{6 if n < 5 else 7}, s[4:7], s63 offen sc1")
        g(f"s_add_u32 s63, s62, {43*2048}")
        g("buffer_load_dwordx4 v[56:59], v8, s[4:7], s63 offen sc1")
    def cond2():
        for k in range(4):
            g(f"v_add_f32 v{32+k}, v{32+k}, v{36+k}"); g(f"v_add_f32 v{40+k}, v{40+k}, v{44+k}"); g(f"v_add_f32 v{48+k}, v{48+k}, v{52+k}")
        for k in range(4): g(f"v_add_f32 v{32+k}, v{32+k}, v{40+k}")
        for k in range(4): g(f"v_add_f32 v{32+k}, v{32+k}, v{48+k}")
        g("v_add_f32 v40, v56, v57"); g("v_add_f32 v41, v58, v59"); g("v_add_f32 v42, v32, v33"); g("v_add_f32 v43, v34, v35")
        g("v_add_f32 v40, v40, v41"); g("v_add_f32 v42, v42, v43")
        g("v_cmp_u_f32 vcc, v40, v42")
    poll_loop(g, body, cond2, spin=4*SPIN, sleep=0)
    g.stamp(8)
    for k in range(4):
        g(f"v_add_f32_dpp v{32+k}, v{32+k}, v{32+k} row_ror:8 row_mask:0xf bank_mask:0xf")
    g("v_cvt_pk_bf16_f32 v44, v56, v57"); g("v_cvt_pk_bf16_f32 v45, v58, v59")
    for sw in ("v_permlane16_swap_b32", "v_permlane32_swap_b32"):
        for k in range(4): g(f"v_mov_b32 v{36+k}, v{32+k}")
        g("s_nop 0")
        for k in range(4): g(f"{sw} v{32+k}, v{36+k}")
        for k in range(4): g(f"v_add_f32 v{32+k}, v{32+k}, v{36+k}")
    g("v_cvt_pk_bf16_f32 v36, v32, v33"); g("v_cvt_pk_bf16_f32 v37, v34, v35")
    for q in range(2):
        g(f"v_lshlrev_b32 v{32+2*q}, 16, v{36+q}"); g(f"v_and_b32 v{33+2*q}, 0xffff0000, v{36+q}")
        g(f"v_lshlrev_b32 v{40+2*q}, 16, v{44+q}"); g(f"v_and_b32 v{41+2*q}, 0xffff0000, v{44+q}")
    for k in range(4): g(f"v_add_f32 v{32+k}, v{32+k}, v{40+k}")
    g("v_cvt_pk_bf16_f32 v36, v32, v33"); g("v_cvt_pk_bf16_f32 v37, v34, v35")
    g("s_mov_b64 exec, 0xff")
    g("buffer_store_dwordx2 v[36:37], v10, s[12:15], s74 offen")
    g("s_mov_b64 exec, -1")
    g.stamp(10)
    g("s_branch L_fin")

QD = 8
def qreg(s):
    return f"v[{224+4*s}:{227+4*s}]" if s < QD else f"a[{128+4*(s-QD)}:{131+4*(s-QD)}]"

class Lds:
    def __init__(s, g): s.g = g; s.n = 0; s.done = 0
    def op(s, txt): s.g(txt); s.n += 1; return s.n
    def wait(s, i):
        if i <= s.done: return
        k = min(14, s.n - i); s.g(f"s_waitcnt lgkmcnt({k})"); s.done = s.n - k
    def all(s): s.wait(s.n)

def acu(g):
    cf = g.o["cflag"]; fine = g.o["fine"]
    nd = g.o["nd"]
    ea = ["v_and_b32 v8, 7, v5", "v_lshlrev_b32 v9, 1, v6", "v_xor_b32 v8, v8, v9", "v_lshlrev_b32 v208, 10, v5", "v_lshl_add_u32 v208, v8, 4, v208",
          "s_lshl_b32 s62, s3, 8", "v_add_u32 v208, s62, v208"] + [f"v_xor_b32 v{208+k}, {((4*(k>>1))|(k&1))<<4}, v208" for k in range(1, 4)] + \
         ["v_lshrrev_b32 v8, 3, v1", "v_and_b32 v9, 7, v1", "v_lshlrev_b32 v212, 10, v8", "v_lshl_add_u32 v212, v9, 4, v212", "v_add_u32 v212, s62, v212",
          "v_lshlrev_b32 v214, 12, v8", "v_lshl_add_u32 v214, v9, 4, v214", "v_xor_b32 v9, v9, v8", "v_lshlrev_b32 v213, 15, v8", "v_lshl_add_u32 v213, v9, 4, v213",
          "s_lshl_b32 s63, s3, 5", "v_lshl_add_u32 v215, v8, 2, s63",
          "s_lshl_b32 s65, s74, 20", "s_lshl_b32 s63, s75, 10", "s_add_u32 s65, s65, s63", "s_add_u32 s65, s65, s62", f"s_add_u32 s65, s65, {OPART}",
          "s_lshl_b32 s79, s74, 17", "s_lshl_b32 s63, s75, 7", "s_add_u32 s79, s79, s63", f"s_add_u32 s79, s79, {STAT}", "s_lshl_b32 s63, s3, 15", "s_add_u32 s79, s79, s63"]
    g("v_lshlrev_b32 v4, 4, v1")
    g("s_lshr_b32 s74, s42, 5"); g("s_and_b32 s75, s42, 31")
    g("s_lshl_b32 s76, s42, 18"); g("s_lshl_b32 s77, s3, 13"); g("s_add_u32 s76, s76, s77")
    g("s_and_b32 s62, s3, 1"); g("s_lshl_b32 s62, s62, 5"); g("v_xor_b32 v7, s62, v4")
    for r in range(8):
        g(f"v_xor_b32 v{160+r}, {(fswz(r)<<4) | ((r>>2)<<12)}, v7")
    g(f"s_add_u32 s62, s77, {LQ}"); g("v_add_u32 v15, s62, v7")
    def dma_ops(slot):
        ops = []
        for r in range(8):
            pre = []
            if r == 0: pre = [f"s_add_u32 m0, s77, {slot*32768}", "s_nop 0"]
            if r == 4: pre = ["s_addk_i32 m0, 0x1000", "s_nop 0"]
            post = ["s_add_u32 s76, s76, 0x8000"] if r == 7 else []
            ops.append(pre + [f"buffer_load_dwordx4 v{160+r}, s[12:15], s76 offen offset:{(r&3)*1024} {cf} lds"] + post)
        return ops
    def dma_tile(slot):
        for o in dma_ops(slot):
            for x in o: g(x)
    def setup():
        g("v_and_b32 v5, 31, v1"); g("v_lshrrev_b32 v6, 5, v1")
        g("v_and_b32 v8, 3, v5"); g("v_lshlrev_b32 v8, 2, v8"); g("v_bfe_u32 v9, v5, 2, 2"); g("v_or_b32 v8, v8, v9"); g("v_xor_b32 v8, v8, v6")
        g("v_lshlrev_b32 v10, 10, v5"); g("v_lshl_add_u32 v10, v8, 4, v10")
        g(f"v_add_u32 v11, {LQ}, v10")
        g("s_lshl_b32 s62, s3, 15"); g("v_add_u32 v10, s62, v10")
        for k in range(8): g(f"v_xor_b32 v{16+k}, {k<<5}, v10")
        for k in range(8): g(f"v_xor_b32 v{128+k}, {k<<5}, v11")
        g("v_bfe_u32 v8, v1, 2, 2")
        g("v_lshl_add_u32 v9, v6, 2, v8"); g("v_lshlrev_b32 v12, 10, v9")
        g("v_and_b32 v9, 1, v1"); g("v_lshlrev_b32 v9, 1, v9"); g("v_bfe_u32 v13, v1, 4, 1"); g("v_or_b32 v9, v9, v13")
        g("v_lshl_add_u32 v13, v8, 2, v6"); g("v_xor_b32 v9, v9, v13")
        g("v_lshl_add_u32 v12, v9, 4, v12")
        g("v_bfe_u32 v9, v1, 1, 1"); g("v_lshl_add_u32 v12, v9, 3, v12")
        g("s_lshl_b32 s62, s3, 8"); g("v_add_u32 v12, s62, v12")
        for ct in range(4):
            for hv in range(2):
                g(f"v_xor_b32 v{24+2*ct+hv}, {(ct<<6)|(hv<<5)}, v12")
                g(f"v_add_u32 v{32+2*ct+hv}, 0x10000, v{24+2*ct+hv}")
        g("v_lshlrev_b32 v40, 5, v5"); g("v_lshl_add_u32 v40, v6, 4, v40"); g(f"v_add_u32 v40, {LRF}, v40")
        g("v_xor_b32 v46, 16, v40")
        g("s_lshl_b32 s62, s3, 2"); g("v_add_u32 v41, s62, v40")
        g(f"v_add_u32 v42, {LP}, v4")
        g("s_lshl_b32 s62, s3, 11"); g("v_add_u32 v43, s62, v42")
        g("v_lshrrev_b32 v14, 2, v1"); g("v_lshlrev_b32 v14, 8, v14"); g("v_and_b32 v9, 3, v1"); g("v_lshl_add_u32 v14, v9, 4, v14")
        g("s_lshl_b32 s78, s3, 15"); g("s_lshl_b32 s63, s74, 6"); g("s_add_u32 s78, s78, s63")
        g("v_mov_b32 v12, 0"); g("v_mov_b32 v13, 1")
    for k in range(4): g(f"v_mov_b32 v{48+k}, -1")
    g("s_waitcnt lgkmcnt(0)")
    g.srd(4, 40, WS)
    g("s_cmp_ge_u32 s42, 16"); g("s_cbranch_scc1 L_A_ni")
    g("s_lshl_b32 s62, s42, 13"); g("s_lshl_b32 s63, s3, 11"); g("s_add_u32 s62, s62, s63")
    for k in range(2):
        g(f"buffer_store_dwordx4 v[48:51], v4, s[4:7], s62 offen offset:{k*1024} sc1")
    g("L_A_ni:")
    g.srd(12, 18, 32 << 20); g.srd(8, 38, 256)
    setup()
    if g.o["adelay"]:
        g(f"s_add_u32 s64, s80, {g.o['adelay']}")
        g("L_A_dl:")
        g("s_memrealtime s[62:63]"); g("s_waitcnt lgkmcnt(0)")
        g("s_sub_u32 s62, s62, s64"); g("s_cmp_lt_i32 s62, 0"); g("s_cbranch_scc1 L_A_dl")
    g("s_cmp_ge_u32 s42, 16"); g("s_cbranch_scc1 L_A_ni2")
    g("s_waitcnt vmcnt(0)")
    g("s_barrier")
    g("s_cmp_lg_u32 s3, 0"); g("s_cbranch_scc1 L_A_ni2")
    g("s_mov_b64 exec, 1")
    g("buffer_atomic_add v13, v12, s[8:11], 0 offen sc1")
    g("s_mov_b64 exec, -1")
    g("L_A_ni2:")
    dma_tile(0); dma_tile(1)
    for x in ea: g(x)
    def pvreg(kk, ct): return 16*kk + 4*ct
    def rdp_txt(kk, ct):
        r = pvreg(kk, ct); row = 16*kk; ab = 24 if row < 64 else 32
        return [f"ds_read_b64_tr_b16 a[{r+2*hv}:{r+2*hv+1}], v{ab+2*ct+hv} offset:{((row % 64) + 8*hv)*1024}" for hv in range(2)]
    def gather():
        g("s_mov_b32 s63, s78")
        for r in range(8):
            g(f"buffer_load_dwordx4 v[{176+4*r}:{179+4*r}], v14, s[4:7], s63 offen sc1")
            if r < 7: g("s_addk_i32 s63, 0x1000")
    for tl in range(4):
        if tl < 2: g("s_waitcnt vmcnt(8)"); dma_tile(tl+2)
        elif tl == 2:
            g("s_waitcnt vmcnt(8) lgkmcnt(0)")
        else:
            g(f"s_waitcnt vmcnt({1 + (8 if nd == 5 else 0)})")
        g("s_barrier")
        if tl == 2:
            g("buffer_load_dword v47, v12, s[8:11], 0 offen sc1")
            if nd == 5: dma_tile(0)
        if tl == 0 and not fine: g.stamp(1)
        if tl == 3 and not fine: g.stamp(2)
        for ks in range(2):
            for ct in range(4):
                for x in rdp_txt(2*tl+ks, ct): g(x)
        sk = g.lab("p1c")
        g(f"s_cmp_lg_u32 s3, {tl}"); g(f"s_cbranch_scc1 {sk}")
        for s in range(32):
            g(f"ds_read_b128 a[{128+4*s}:{131+4*s}], v{16+(s&7)} offset:{(s>>3)*256}")
        g(f"{sk}:")
    dpos = g.o["dpos"]
    npre = {0: 8 - nd, 1: 0, 2: 1, 3: 2}[dpos]
    g(f"s_waitcnt vmcnt({g.o['gw']}) lgkmcnt(0)")
    g("v_cmp_ne_u32 vcc, 16, v47")
    g("s_cbranch_vccz L_A_c0")
    cnt_wait(g, 47, 12)
    g("L_A_c0:")
    if g.o["fine3"]: g.stamp(1)
    def gcond():
        g.maxtree(9, range(176, 208)); g("v_cmp_eq_u32 vcc, -1, v9")
    if npre:
        gather()
        g("s_barrier")
        for t in range(nd, nd + npre): dma_tile(t & 3)
        g(f"s_waitcnt vmcnt({8*npre})")
        gcond()
        g("s_cbranch_vccz L_A_gok")
    poll_loop(g, gather, gcond, sleep=g.o["gsleep"])
    g("L_A_gok:")
    if g.o["fine3"]:
        g.stamp(2)
        g(f"s_sub_u32 s70, {SPIN}, s64"); g("s_mul_i32 s70, s70, 100")
    for r in range(8):
        g(f"v_xor_b32 v7, {fswz(r)<<4}, v15")
        g(f"ds_write_b128 v7, v[{176+4*r}:{179+4*r}] offset:{r*1024}")
    g("s_waitcnt lgkmcnt(0)")
    g("s_barrier")
    g.stamp(3)
    L = Lds(g)
    dq = []
    for t in range(nd + npre, 8): dq += dma_ops(t & 3)
    ids = {}
    def rdq(s): ids[s] = L.op(f"ds_read_b128 {qreg(s)}, v{128+(s&7)} offset:{(s>>3)*256}")
    for s in range(QD-1): rdq(s)
    for x in range(min(len(dq), 4)):
        for y in dq.pop(0): g(y)
    for s in range(32):
        L.wait(ids[s])
        c = "0" if s == 0 else "v[48:63]"
        g(f"v_mfma_f32_32x32x16_bf16 v[48:63], a[{128+4*s}:{131+4*s}], {qreg(s)}, {c}")
        if s + QD - 1 < 32: rdq(s + QD - 1)
        if dq:
            for y in dq.pop(0): g(y)
    assert not dq
    def sma_ops(ch):
        o = ch*10240
        R = 216 if ch == 0 else 8
        T = []
        T += ["v_max3_f32 v8, v48, v49, v50", "v_max3_f32 v9, v51, v52, v53", "v_max3_f32 v10, v54, v55, v56", "v_max3_f32 v11, v57, v58, v59",
              "v_max3_f32 v8, v8, v60, v61", "v_max3_f32 v9, v9, v62, v63", "v_max_f32 v10, v10, v11", "v_max3_f32 v8, v8, v9, v10"]
        if ch == 0: T += ["v_ceil_f32 v216, v8"]
        else: T += ["v_cmp_gt_f32 vcc, v8, v47", "v_ceil_f32 v8, v8", f"@ds_write_b32 v41, v217 offset:1024", "v_cndmask_b32 v8, v44, v8, vcc"]
        for h in range(2):
            T += [f"v_sub_f32 v{48+8*h+k}, v{48+8*h+k}, v{R}" for k in range(8)]
            T += [f"v_exp_f32 v{48+8*h+k}, v{48+8*h+k}" for k in range(8)]
            if h == 0 and ch == 0: T += ["s_barrier"]
            T += [f"v_cvt_pk_bf16_f32 v{168+4*h+k}, v{48+8*h+2*k}, v{49+8*h+2*k}" for k in range(4)]
            T += [f"@ds_write_b128 v43, v[{168+4*h}:{171+4*h}] offset:{o+1024*h}"]
            if h == 0: T += [f"@ds_write_b32 v41, v{R} offset:{o}"]
        T += [f"v_add_f32 v{48+k}, v{48+k}, v{56+k}" for k in range(8)]
        T += [f"v_add_f32 v{48+k}, v{48+k}, v{52+k}" for k in range(4)]
        T += ["v_add_f32 v48, v48, v50", "v_add_f32 v49, v49, v51"]
        if ch == 0: T += ["v_add_f32 v217, v48, v49"]
        else: T += ["v_add_f32 v48, v48, v49", f"@ds_write_b32 v41, v48 offset:{o+1024}"]
        return T
    def emit(x):
        if callable(x): return x()
        if x.startswith("@"): return L.op(x[1:])
        g(x)
    def kfix(P, waits=None):
        T = []
        for w in range(4):
            T += [f"v_sub_f32 v{12+w}, v44, v{12+w}", f"v_cvt_u32_f32 v{8+w}, v{12+w}", f"v_min_u32 v{8+w}, 0xff, v{8+w}", f"v_mul_u32_u24 v{8+w}, 0x800080, v{8+w}"]
            for kk in (2*w, 2*w+1):
                if waits: T += [lambda kk=kk: L.wait(waits[kk])]
                T += [f"v_pk_sub_u16 v{P+4*kk+i}, v{P+4*kk+i}, v{8+w} clamp" for i in range(4)]
        return T
    def cost(x):
        if callable(x): return 0
        if x.startswith("v_exp"): return 2
        return 1
    def fill(q, budget):
        while q and budget > 0:
            x = q.pop(0); budget -= cost(x); emit(x)
    if fine: g.stamp(1)
    g.nop(12)
    for x in sma_ops(0): emit(x)
    L.all()
    g("s_waitcnt vmcnt(0)")
    g("s_barrier")
    if fine: g.stamp(2)
    else: g.stamp(4)
    D = 6
    ids = {}
    def rdc(s):
        r = 176 + 4*(s % 8)
        ids[s] = L.op(f"ds_read_b128 v[{r}:{r+3}], v{16+(s&7)} offset:{(s>>3)*256}")
    for s in range(D): rdc(s)
    r0 = {}
    def rd0(key, txt): r0[key] = L.op(txt)
    q = [lambda: rd0("x", "ds_read_b128 v[12:15], v40"), lambda: rd0("ref", "ds_read_b128 v[168:171], v46")]
    q += [lambda k=k: rd0(k, f"ds_read_b128 v[{128+4*k}:{131+4*k}], v42 offset:{1024*k}") for k in range(8)]
    q2 = [lambda: L.wait(r0["ref"]), "v_max3_f32 v9, v12, v13, v14", "v_max3_f32 v10, v169, v170, v171", "v_max3_f32 v9, v9, v15, v168", "v_max_f32 v44, v9, v10"]
    q2 += kfix(128, r0)
    q2 += ["v_sub_f32 v216, v216, v44", "v_exp_f32 v216, v216", f"v_add_f32 v47, 0x{f2u(float(g.o['thr'])):08x}, v44", "v_mul_f32 v217, v217, v216"]
    for s in range(32):
        L.wait(ids[s])
        r = 176 + 4*(s % 8)
        c = "0" if s == 0 else "v[48:63]"
        g(f"v_mfma_f32_32x32x16_bf16 v[48:63], v[{r}:{r+3}], {qreg(s)}, {c}")
        if s + D < 32: rdc(s + D)
        if q:
            emit(q.pop(0)); emit(q.pop(0))
        elif s >= 7: fill(q2, 3)
    fill(q2, 1000)
    if fine: g.stamp(6)
    else: g.stamp(5)
    q = sma_ops(1)
    r1 = {}
    def rd1(key, txt): r1[key] = L.op(txt)
    n = 0; state = 0
    pvid = {}
    order = [(kk, ct) for ct in range(4) for kk in range(8)]
    rq = []
    def refill(cnt):
        for _ in range(cnt):
            if rq:
                key, x = rq.pop(0); pvid[key] = L.op(x)
    for n, (kk, ct) in enumerate(order):
        r = pvreg(kk, ct)
        c = "0" if kk == 0 else f"v[{64+16*ct}:{79+16*ct}]"
        g(f"v_mfma_f32_32x32x16_bf16 v[{64+16*ct}:{79+16*ct}], a[{r}:{r+3}], v[{128+4*kk}:{131+4*kk}], {c}")
        if state == 0:
            if n < 5: refill(2); g.nop(1) if n < 2 else None
            else:
                refill(1); fill(q, g.o["fb"])
                if not q:
                    last_w = L.n; state = 1
        elif state == 1:
            L.wait(last_w); g("s_barrier"); state = 2
            q = [lambda: rd1("x", "ds_read_b128 v[12:15], v40 offset:10240"), lambda: rd1("ref", "ds_read_b128 v[48:51], v46 offset:10240")]
            q += [lambda k=k: rd1(k, f"ds_read_b128 v[{176+4*k}:{179+4*k}], v42 offset:{10240+1024*k}") for k in range(8)]
            q += [lambda: rd1("y", "ds_read_b128 v[52:55], v40 offset:1024"), lambda: rd1("l", "ds_read_b128 v[56:59], v40 offset:11264")]
            for _ in range(3): emit(q.pop(0))
        elif state == 2:
            for _ in range(3):
                if q: emit(q.pop(0))
            if not q: state = 3
        elif state == 3:
            refill(3)
        rq += [((kk, ct), x) for x in rdp_txt(kk, ct)]
    for x in q: emit(x)
    assert state >= 2, state
    L.wait(r1["ref"])
    g("v_max3_f32 v9, v12, v13, v14"); g("v_max3_f32 v10, v49, v50, v51"); g("v_max3_f32 v9, v9, v15, v48"); g("v_max_f32 v9, v9, v10")
    g("v_cmp_neq_f32 vcc, v9, v44")
    g("s_cbranch_vccnz L_A_slow")
    g("L_A_back:")
    slow = ["L_A_slow:", "s_waitcnt lgkmcnt(0)", "v_sub_f32 v47, v44, v9", "v_mov_b32 v44, v9", "v_exp_f32 v47, v47"] + kfix(176) + \
           [f"v_exp_f32 v{12+w}, -v{12+w}" for w in range(4)] + [f"v_mul_f32 v{64+k}, v47, v{64+k}" for k in range(64)] + \
           [f"v_mul_f32 v{52+w}, v47, v{52+w}" for w in range(4)] + [f"v_mul_f32 v{56+w}, v{12+w}, v{56+w}" for w in range(4)] + ["s_branch L_A_back"]
    g.slow = slow
    if fine: g.stamp(10)
    def epi_w(ct, qq):
        b = 128+8*(ct&1)+4*qq
        return [f"v_cvt_pk_bf16_f32 v{b+k}, v{64+16*ct+8*qq+2*k}, v{65+16*ct+8*qq+2*k}" for k in range(4)] + \
               [f"@ds_write_b128 v{208+2*(ct&1)+qq}, v[{b}:{b+3}] offset:{(ct>>1)*128}"]
    er = {}
    def epi_r(half):
        for n_ in range(4):
            er[(half, n_)] = L.op(f"ds_read_b128 v[{224+16*half+4*n_}:{227+16*half+4*n_}], v212 offset:{n_*8192+half*128}")
    def epi_s(half, n_):
        L.wait(er[(half, n_)])
        g(f"s_add_u32 s63, s65, {n_*8*32768}")
        g(f"buffer_store_dwordx4 v[{224+16*half+4*n_}:{227+16*half+4*n_}], v213, s[4:7], s63 offen offset:{half*128} sc1")
    q = [lambda: L.wait(r1["l"])] + [f"v_add_f32 v{52+w}, v{52+w}, v{56+w}" for w in range(4)] + \
        ["v_add_f32 v52, v52, v53", "v_add_f32 v54, v54, v55", "v_add_f32 v45, v52, v54", "v_mov_b32 v9, v45", "s_nop 1", "v_permlane32_swap_b32 v45, v9", "v_add_f32 v45, v45, v9"] + \
        [f"@ds_bpermute_b32 v{60+i}, v215, v{44+(i&1)}" for i in range(4)]
    for n, (kk, ct) in enumerate(order):
        r = pvreg(kk, ct)
        while (kk, ct) not in pvid or any(k == (kk, ct) for k, _ in rq): refill(1)
        if ct == 0: L.wait(r1[kk])
        L.wait(pvid[(kk, ct)])
        g(f"v_mfma_f32_32x32x16_bf16 v[{64+16*ct}:{79+16*ct}], a[{r}:{r+3}], v[{176+4*kk}:{179+4*kk}], v[{64+16*ct}:{79+16*ct}]")
        if rq:
            refill(3); fill(q, 1)
        else:
            if ct >= 1 and kk >= 3:
                for c2 in range(ct):
                    if c2 not in er and ("w", c2) not in er:
                        er[("w", c2)] = 1
                        q += epi_w(c2, 0) + epi_w(c2, 1)
                        if c2 == 1 and g.o["early"]: q += [lambda: epi_r(0), "s_nop 0", "s_nop 0", "s_nop 0", "s_nop 0"] + [x for n_ in range(4) for x in (lambda n_=n_: epi_s(0, n_), "s_nop 0", "s_nop 0")]
            b = 4
            while q and b > 0:
                x = q.pop(0); b -= cost(x)
                if x != "s_nop 0": emit(x)
            if b == 4: g.nop(3) if (kk < 3 and ct >= 1) else None
    for x in q:
        if x != "s_nop 0": emit(x)
    if g.o["fine2"]: g.stamp(1)
    if not g.o["early"]:
        epi_r(0); g.nop(8)
    else: g.nop(12)
    for x in epi_w(3, 0) + epi_w(3, 1): emit(x)
    epi_r(1)
    if not g.o["early"]:
        for n_ in range(4): epi_s(0, n_)
    for n_ in range(4): epi_s(1, n_)
    g.stamp(9)
    g("s_waitcnt vmcnt(0)")
    g("s_barrier")
    g("buffer_store_dwordx4 v[60:63], v214, s[4:7], s79 offen sc1")
    if not fine: g.stamp(10)

def gen(opts):
    g = G(opts)
    g("s_load_dwordx16 s[16:31], s[0:1], 0")
    g("s_load_dwordx8 s[32:39], s[0:1], 64")
    g("s_load_dwordx2 s[40:41], s[0:1], 96")
    g("s_cmp_ge_u32 s2, 256"); g("s_cbranch_scc1 L_end")
    g.stamp(0)
    if opts.get("cpf", 1):
        g("s_getpc_b64 s[4:5]")
        g("s_and_b32 s5, s5, 0xffff"); g("s_mov_b32 s6, L_end - L_pcv"); g("s_mov_b32 s7, 0x20000")
        g("L_pcv:")
        g("s_bfe_u32 s62, s2, 0x40003"); g("s_lshl_b32 s62, s62, 12")
        g("v_lshlrev_b32 v1, 4, v0")
        g("buffer_load_dwordx4 v[252:255], v1, s[4:7], s62 offen")
    g("v_lshrrev_b32 v2, 6, v0"); g("v_and_b32 v1, 63, v0")
    g("v_readfirstlane_b32 s3, v2")
    g("v_and_b32 v2, 15, v0"); g("v_lshrrev_b32 v3, 4, v1")
    g("s_and_b32 s62, s2, 7"); g("s_lshr_b32 s43, s2, 4"); g("s_lshl_b32 s42, s43, 3"); g("s_or_b32 s42, s42, s62")
    g("s_and_b32 s73, s43, 3")
    g("s_lshr_b32 s43, s43, 2")
    g("s_lshl_b32 s72, s62, 2"); g("s_or_b32 s72, s72, s43")
    g("s_lshl_b32 s43, s43, 3"); g("s_or_b32 s43, s43, s62")
    if opts.get("hmap") == 0: g("s_mov_b32 s72, s43")
    g("s_mov_b32 s60, 0x05040100"); g("s_mov_b32 s61, 0x07060302")
    if opts.get("stamps"):
        for k in range(82, 102): g(f"s_mov_b32 s{k}, 0")
    g("s_bitcmp1_b32 s2, 3")
    g("s_cbranch_scc1 L_A")
    tcu(g)
    g("L_A:")
    acu(g)
    g("s_mov_b32 s66, s72"); g("s_mov_b32 s67, s73")
    ffn_issue(g)
    ffn_finish(g)
    if g.o["fine3"]:
        g("s_waitcnt lgkmcnt(0)"); g("s_add_u32 s88, s80, s70"); g("s_addc_u32 s89, s81, 0")
    if not g.o["fine"]:
        g("s_cmp_eq_u32 s92, 0"); g("s_cbranch_scc0 L_nos6"); g.stamp(6); g("L_nos6:")
    g("L_FFN:")
    ffn_stage(g)
    g("L_fin:")
    if opts.get("stamps"):
        nst = 11
        g("s_waitcnt lgkmcnt(0)")
        g("s_cmp_lg_u32 s3, 0"); g("s_cbranch_scc1 L_end")
        g("s_mov_b64 exec, 1")
        g(f"s_mul_i32 s62, s2, {nst*8}"); g(f"s_add_u32 s62, s62, {WS - 256*nst*8}")
        g("v_mov_b32 v3, 0")
        for k in range(nst):
            g(f"v_mov_b32 v4, s{80+2*k}"); g(f"v_mov_b32 v5, s{81+2*k}")
            g(f"buffer_store_dwordx2 v[4:5], v3, s[4:7], s62 offen offset:{8*k}")
            g("s_nop 1")
    g("L_end:")
    g("s_endpgm")
    for x in g.slow: g(x)
    hdr = open("hdr.txt").read()
    return hdr + "; @launch grid=(256,1,1) block=(256,1,1) lds=163840\n" + '.amdgcn_target "amdgcn-amd-amdhsa--gfx950"\n.text\n' + kstart(KN) + "\n".join(g.L) + "\n" + kdesc(KN, vgpr=512, accum=256).replace(".text\n", "")

if __name__ == "__main__":
    import argparse
    ap = argparse.ArgumentParser()
    ap.add_argument("out"); ap.add_argument("--stamps", action="store_true")
    ap.add_argument("--wflag", default=""); ap.add_argument("--cflag", default="")
    ap.add_argument("--gstep", type=int, default=3); ap.add_argument("--tsleep", type=int, default=1)
    ap.add_argument("--qord", type=int, default=1); ap.add_argument("--n0", type=int, default=1); ap.add_argument("--oinit", type=int, default=1)
    ap.add_argument("--fine", type=int, default=0)
    ap.add_argument("--bgate", type=int, default=1)
    ap.add_argument("--adelay", type=int, default=0)
    ap.add_argument("--pfs", type=int, default=64); ap.add_argument("--pf0", type=int, default=5); ap.add_argument("--pfw", type=int, default=2)
    ap.add_argument("--ffpf", type=int, default=1); ap.add_argument("--late", type=int, default=1); ap.add_argument("--n1", type=int, default=2)
    ap.add_argument("--nd", type=int, default=5); ap.add_argument("--gw", type=int, default=0); ap.add_argument("--gsleep", type=int, default=0); ap.add_argument("--fb", type=int, default=4)
    ap.add_argument("--dpos", type=int, default=1); ap.add_argument("--thr", type=float, default=30)
    ap.add_argument("--fine2", type=int, default=0)
    ap.add_argument("--fine3", type=int, default=0); ap.add_argument("--early", type=int, default=1)
    ap.add_argument("--hmap", type=int, default=1); ap.add_argument("--cpf", type=int, default=1)
    a = ap.parse_args()
    open(a.out, "w").write(gen(vars(a)))
```

```python
import sys, math, struct
from gen_common import *
from gen1 import G, f2u, fswz, QABS, STAT, OPART, APART, FPART, OOB, SCALE

SPIN = 20000
BFLAG = 0x0C0000
LDS_XN = 0
LDS_QX = 8192
LDS_OT = 16384
LDS_FX = 49152
LDS_CX = 49664
LDS_CS = 51200
LDS_GX = 52224
LDS_SX = 53248
LQ = 131072
LRF = LQ
LLS = LQ + 1024
LP = LQ + 2048

def poll_loop(g, body, cond, spin=SPIN, sleep=1):
    l = g.lab("pl"); e = g.lab("ple"); f = g.lab("plf")
    g(f"s_mov_b32 s64, {spin}")
    g(f"s_branch {f}")
    g(f"{l}:")
    if sleep: g(f"s_sleep {sleep}")
    g(f"{f}:")
    body()
    g("s_sub_u32 s64, s64, 1"); g("s_cmp_eq_u32 s64, 0")
    g("s_waitcnt vmcnt(0)")
    g(f"s_cbranch_scc1 {e}")
    cond()
    g(f"s_cbranch_vccnz {l}")
    g(f"{e}:")

def cnt_wait(g, vt, vo, sleep=4):
    g(f"v_mov_b32 v{vo}, 0")
    poll_loop(g, lambda: g(f"buffer_load_dword v{vt}, v{vo}, s[8:11], 0 offen sc1"),
              lambda: g(f"v_cmp_ne_u32 vcc, 16, v{vt}"), sleep=sleep)

def cnt_signal(g, off):
    e = g.lab("cs")
    g("s_cmp_lg_u32 s3, 0")
    g(f"s_cbranch_scc1 {e}")
    g("s_and_b32 s64, s42, 1"); g("s_lshl_b32 s64, s64, 7")
    g("v_mov_b32 v30, s64"); g("v_mov_b32 v31, 1")
    g("s_mov_b64 exec, 1")
    g(f"buffer_atomic_add v31, v30, s[8:11], 0 offen offset:{off} sc1")
    g("s_mov_b64 exec, -1")
    g(f"{e}:")

def rot_bases(g, base, rot, stride, dst):
    for ks in range(4):
        g(f"s_xor_b32 s63, s{rot}, {ks}"); g(f"s_mul_i32 s63, s63, {stride}"); g(f"s_add_u32 s{dst+ks}, s{base}, s63")

LDS_FW = 65536
def ffn_issue(g):
    wf = g.o["wflag"]
    g.srd(44, 30, 512*2752); g.srd(48, 32, 512*2752); g.srd(52, 34, 1376*1024); g.srd(56, 16, 4096)
    g("v_lshrrev_b32 v4, 2, v1"); g("v_mul_u32_u24 v4, 2752, v4"); g("v_and_b32 v5, 3, v1"); g("v_lshl_add_u32 v4, v5, 4, v4")
    g(f"s_mul_i32 s62, s3, {128*2752}"); g("s_lshl_b32 s63, s66, 6"); g("s_add_u32 s62, s62, s63")
    g("s_lshl_b32 s63, s3, 14"); g(f"s_add_u32 m0, s63, {LDS_FW}")
    g("v_lshlrev_b32 v5, 12, v3"); g("v_lshl_add_u32 v5, v2, 4, v5")
    for n in range(8):
        g(f"buffer_load_dwordx4 v4, s[44:47], s62 offen {wf} lds")
        g("s_addk_i32 m0, 0x2000"); g("s_nop 0")
        g(f"buffer_load_dwordx4 v4, s[48:51], s62 offen {wf} lds")
        if n < 7:
            g("s_addk_i32 m0, 0xe400"); g(f"s_add_u32 s62, s62, {16*2752}")
    g("s_lshl_b32 s62, s66, 15"); g("s_lshl_b32 s63, s3, 8"); g("s_add_u32 s62, s62, s63"); g("s_add_u32 s63, s62, 0x4000")
    for e in range(8):
        g(f"buffer_load_dwordx4 v[{160+4*e}:{163+4*e}], v5, s[52:55], s{62+(e&1)} offen offset:{(e>>1)*1024} {wf}")
    g("v_lshlrev_b32 v6, 3, v3")
    g("s_lshl_b32 s62, s67, 10"); g("s_lshl_b32 s63, s3, 8"); g("s_add_u32 s62, s62, s63")
    for t in range(8):
        g(f"buffer_load_dwordx2 v[{192+2*t}:{193+2*t}], v6, s[56:59], s62 offen offset:{32*t}")

def ffn_finish(g):
    g("v_lshrrev_b32 v6, 2, v1"); g("v_lshlrev_b32 v6, 6, v6"); g("v_and_b32 v28, 3, v1"); g("v_lshl_add_u32 v6, v28, 3, v6")
    g("s_lshl_b32 s63, s3, 14"); g(f"s_add_u32 s63, s63, {LDS_FW}"); g("v_add_u32 v6, s63, v6")
    for k in range(4): g(f"v_mov_b32 v{24+k}, 0x3f803f80")
    for p in range(4):
        g(f"v_cmp_eq_u32 vcc, {p}, v28"); g("s_nop 1"); g(f"v_cndmask_b32 v{16+p}, 0, -1, vcc")
    if g.o["fine2"]:
        g.stamp(4); g("s_waitcnt vmcnt(16)"); g.stamp(5)
    g("s_waitcnt vmcnt(8)")
    if g.o["fine2"]: g.stamp(2)
    g.perm8x8(160, 224)
    g("s_waitcnt vmcnt(0)")
    for t in range(8):
        for q in range(2):
            g(f"v_lshlrev_b32 v{128+4*t+2*q}, 16, v{192+2*t+q}")
            g(f"v_and_b32 v{128+4*t+2*q+1}, 0xffff0000, v{192+2*t+q}")
    for ks in range(4):
        for t in range(4):
            for hv in range(2):
                r = 160+16*ks+4*t+2*hv
                g(f"ds_read_b64_tr_b16 v[{r}:{r+1}], v6 offset:{ks*2048+hv*1024+(t&1)*32+(t>>1)*8192}")
    g("v_lshlrev_b32 v7, 4, v2"); g("s_lshl_b32 s62, s3, 8"); g(f"v_add_u32 v7, s62, v7")
    g("s_waitcnt lgkmcnt(0)")
    for ks in range(4):
        for t in range(4):
            c = "0" if ks == 0 else f"v[{32+4*t}:{35+4*t}]"
            g(f"v_mfma_f32_16x16x32_bf16 v[{32+4*t}:{35+4*t}], v[24:27], v[{160+16*ks+4*t}:{163+16*ks+4*t}], {c}")
    g.nop(8)
    for t in range(1, 4): g(f"v_mov_b32 v{32+t}, v{32+4*t}")
    g(f"ds_write_b128 v7, v[32:35] offset:{LDS_CS}")
    g("v_lshl_add_u32 v7, v3, 2, v28"); g("v_lshlrev_b32 v7, 4, v7")
    g("s_waitcnt lgkmcnt(0)")
    g("s_barrier")
    for w in range(4):
        g(f"ds_read_b128 v[{32+4*w}:{35+4*w}], v7 offset:{LDS_CS+256*w}")
    g("s_waitcnt lgkmcnt(0)")
    for k in range(4):
        g(f"v_add_f32 v{32+k}, v{32+k}, v{36+k}"); g(f"v_add_f32 v{40+k}, v{40+k}, v{44+k}")
        g(f"v_add_f32 v{20+k}, v{32+k}, v{40+k}")

def tile_setup(g, rot):
    g("v_lshlrev_b32 v8, 1, v3"); g("v_xor_b32 v8, v8, v2"); g("v_lshlrev_b32 v8, 4, v8"); g("v_lshl_add_u32 v8, v3, 10, v8")
    g("v_xor_b32 v9, 0x80, v8")
    g("s_lshl_b32 s68, s3, 13"); g(f"s_add_u32 s68, s68, {LDS_OT}")
    g("v_bfe_u32 v11, v1, 2, 2")
    g("v_lshl_add_u32 v10, v3, 3, v11"); g("v_lshlrev_b32 v10, 8, v10")
    g("v_and_b32 v12, 1, v3"); g("v_lshl_add_u32 v12, v12, 2, v11"); g("v_lshlrev_b32 v12, 1, v12")
    g("v_bfe_u32 v13, v1, 1, 1"); g("v_xor_b32 v12, v12, v13")
    g("v_lshl_add_u32 v10, v12, 4, v10")
    g("v_and_b32 v13, 1, v1"); g("v_lshl_add_u32 v10, v13, 3, v10")
    g("v_add_u32 v10, s68, v10")
    if rot is not None:
        g(f"s_lshl_b32 s63, s{rot}, 6"); g("v_xor_b32 v10, s63, v10")
    for t in range(8): g(f"v_xor_b32 v{112+t}, {t<<5}, v10")

def tile_dma(g, sbase):
    g("s_mov_b32 m0, s68"); g(f"s_mov_b32 s63, s{sbase}")
    for n in range(8):
        g(f"buffer_load_dwordx4 v{8+((n>>1)&1)}, s[4:7], s63 offen sc1 lds")
        if n < 7:
            g("s_addk_i32 m0, 0x400"); g("s_addk_i32 s63, 0x1000")

def tile_read(g, A):
    for t in range(8):
        if t == 6: g("s_waitcnt lgkmcnt(8)")
        g(f"ds_read_b64_tr_b16 v[{A+4*t}:{A+4*t+1}], v{112+t}")
        g(f"ds_read_b64_tr_b16 v[{A+4*t+2}:{A+4*t+3}], v{112+t} offset:1024")

def ffn_stage(g):
    tile_setup(g, None)
    g("s_lshl_b32 s69, s67, 15"); g("s_lshl_b32 s63, s3, 8"); g("s_add_u32 s69, s69, s63"); g(f"s_add_u32 s69, s69, {APART}")
    g("v_lshrrev_b32 v13, 1, v1"); g("v_lshlrev_b32 v13, 10, v13"); g("v_and_b32 v14, 1, v1"); g("v_lshl_add_u32 v13, v14, 7, v13")
    g("v_lshlrev_b32 v120, 4, v2"); g("s_lshl_b32 s62, s3, 8"); g("v_add_u32 v120, s62, v120")
    g("s_lshl_b32 s62, s3, 3"); g("v_mov_b32 v121, s62"); g("v_mov_b32 v122, 0")
    g("v_lshlrev_b32 v123, 5, v2"); g("v_lshl_add_u32 v123, v3, 4, v123")
    g(f"s_mul_i32 s74, s67, 44"); g("s_add_u32 s74, s74, s66"); g("s_lshl_b32 s74, s74, 11")
    g("s_lshl_b32 s63, s3, 9"); g("s_add_u32 s74, s74, s63"); g(f"s_add_u32 s74, s74, {FPART}")
    c1 = -2 * math.sqrt(2 / math.pi) * math.log2(math.e)
    g(f"s_mov_b32 s75, 0x{f2u(c1*0.044715):08x}"); g(f"v_mov_b32 v124, 0x{f2u(c1):08x}")
    g(f"s_mov_b32 s65, {SPIN}")
    l = g.lab("fp"); e = g.lab("fpe")
    g(f"{l}:")
    poll_loop(g, lambda: g("buffer_load_dword v14, v13, s[4:7], s69 offen sc1"), lambda: g("v_cmp_eq_u32 vcc, -1, v14"), spin=4*SPIN)
    tile_dma(g, 69)
    g.stamp(7)
    g("s_waitcnt vmcnt(0)")
    tile_read(g, 32)
    for t in range(8):
        g(f"s_waitcnt lgkmcnt({14-2*t})")
        g(f"v_mfma_f32_16x16x32_bf16 v[{64+4*t}:{67+4*t}], v[{32+4*t}:{35+4*t}], v[24:27], v[{128+4*t}:{131+4*t}]")
    for t in range(8):
        g(f"v_cvt_pk_bf16_f32 v{96+2*t}, v{64+4*t}, v{65+4*t}")
        g(f"v_cvt_pk_bf16_f32 v{97+2*t}, v{66+4*t}, v{67+4*t}")
    def mm(ks, t):
        A = f"v[{96+4*ks}:{99+4*ks}]"
        B = f"v[{160+16*ks+4*t}:{163+16*ks+4*t}]" if t < 4 else ("v[24:27]" if t == 4 else A)
        c = "0" if ks == 0 else f"v[{32+4*t}:{35+4*t}]"
        g(f"v_mfma_f32_16x16x32_bf16 v[{32+4*t}:{35+4*t}], {A}, {B}, {c}")
    for ks in range(4):
        for t in range(6): mm(ks, t)
    g("s_sub_u32 s65, s65, 1"); g("s_cmp_eq_u32 s65, 0"); g(f"s_cbranch_scc1 {e}")
    g("v_cmp_u_f32 vcc, v32, v32")
    g(f"s_cbranch_vccnz {l}")
    g(f"{e}:")
    g("s_nop 1")
    for t in range(1, 4): g(f"v_mov_b32 v{32+t}, v{32+4*t}")
    g("v_mov_b32 v49, v52")
    g("s_mov_b64 exec, 0xffff")
    g(f"ds_write_b128 v120, v[32:35] offset:{LDS_GX}")
    g(f"ds_write_b64 v121, v[48:49] offset:{LDS_SX}")
    g("s_mov_b64 exec, -1")
    sk = g.lab("nh")
    g("s_cmp_lg_u32 s66, 0"); g(f"s_cbranch_scc1 {sk}")
    g(f"s_add_u32 s62, s74, {43*2048}")
    g("v_lshlrev_b32 v13, 4, v3")
    g("s_mov_b32 s70, 0x00010001"); g("s_mov_b32 s71, 0x00010001"); g("s_mov_b64 exec, s[70:71]")
    for t in range(8):
        g(f"buffer_store_dwordx4 v[{64+4*t}:{67+4*t}], v13, s[4:7], s62 offen offset:{64*t} sc1")
    g("s_mov_b64 exec, -1")
    g(f"{sk}:")
    g("s_waitcnt lgkmcnt(0)")
    g("s_barrier")
    g(f"ds_read_b128 v[56:59], v122 offset:{LDS_SX}")
    g(f"ds_read_b128 v[60:63], v122 offset:{LDS_SX+16}")
    for w in range(4):
        g(f"ds_read_b128 v[{32+4*w}:{35+4*w}], v7 offset:{LDS_GX+256*w}")
    g("s_waitcnt lgkmcnt(4)")
    g("v_add_f32 v56, v56, v58"); g("v_add_f32 v57, v57, v59"); g("v_add_f32 v60, v60, v62"); g("v_add_f32 v61, v61, v63")
    g("v_add_f32 v56, v56, v60"); g("v_add_f32 v57, v57, v61")
    g(f"v_mul_f32 v56, 0x{f2u(1/512):08x}, v56")
    g(f"v_mul_f32 v57, 0x{f2u(1/512):08x}, v57")
    g("v_fma_f32 v57, -v56, v56, v57"); g("v_max_f32 v57, 0, v57")
    g("v_cvt_pk_bf16_f32 v57, v56, v57"); g("v_lshlrev_b32 v56, 16, v57"); g("v_and_b32 v57, 0xffff0000, v57")
    g(f"v_add_f32 v57, 0x{f2u(1e-5):08x}, v57"); g.bf16r(57, 57)
    g("v_sqrt_f32 v57, v57")
    g("s_waitcnt lgkmcnt(0)")
    for k in range(4):
        g(f"v_add_f32 v{32+k}, v{32+k}, v{36+k}"); g(f"v_add_f32 v{40+k}, v{40+k}, v{44+k}")
    g.bf16r(57, 57)
    g("v_rcp_f32 v57, v57")
    for k in range(4):
        g(f"v_add_f32 v{32+k}, v{32+k}, v{40+k}")
    for k in range(4):
        g(f"v_fma_f32 v{32+k}, -v56, v{20+k}, v{32+k}")
    for k in range(4):
        g(f"v_mul_f32 v{32+k}, v57, v{32+k}")
    g("v_cvt_pk_bf16_f32 v36, v32, v33"); g("v_cvt_pk_bf16_f32 v37, v34, v35")
    g("v_lshlrev_b32 v32, 16, v36"); g("v_and_b32 v33, 0xffff0000, v36")
    for k in range(2): g(f"v_mul_f32 v{38+k}, v{32+k}, v{32+k}")
    for k in range(2): g(f"v_fma_f32 v{38+k}, v{38+k}, s75, v124")
    for k in range(2): g(f"v_mul_f32 v{38+k}, v{38+k}, v{32+k}")
    for k in range(2): g(f"v_exp_f32 v{38+k}, v{38+k}")
    g("v_lshlrev_b32 v34, 16, v37")
    for k in range(2): g(f"v_add_f32 v{38+k}, 1.0, v{38+k}")
    for k in range(2): g(f"v_rcp_f32 v{38+k}, v{38+k}")
    g("v_and_b32 v35, 0xffff0000, v37")
    for k in range(2): g(f"v_mul_f32 v{38+k}, v{38+k}, v{32+k}")
    g("v_cvt_pk_bf16_f32 v36, v38, v39")
    g("v_lshlrev_b32 v38, 16, v36"); g("v_and_b32 v39, 0xffff0000, v36")
    g("v_mul_f32 v38, v38, v34"); g("v_mul_f32 v39, v39, v35")
    g("v_cvt_pk_bf16_f32 v36, v38, v39")
    for p in range(4): g(f"v_and_b32 v{40+p}, v36, v{16+p}")
    g("v_cmp_ne_u32 vcc, 0, v3")
    g.nop(1)
    for t in range(8):
        g(f"v_mfma_f32_16x16x32_bf16 v[{64+4*t}:{67+4*t}], v[40:43], v[{224+4*t}:{227+4*t}], 0")
    g.nop(1)
    for t in range(8):
        g(f"v_add_f32 v{64+4*t}, v{64+4*t}, v{65+4*t}"); g(f"v_add_f32 v{66+4*t}, v{66+4*t}, v{67+4*t}")
    for t in range(8):
        g(f"v_add_f32 v{64+4*t}, v{64+4*t}, v{66+4*t}")
    for q in range(4):
        g(f"v_cndmask_b32 v{32+q}, v{64+4*q}, v{80+4*q}, vcc")
    g("s_mov_b32 exec_hi, 0")
    g("buffer_store_dwordx4 v[32:35], v123, s[4:7], s74 offen sc1")
    g("s_mov_b64 exec, -1")
    g.stamp(8)

def tcu(g):
    opts = g.o; wf = opts["wflag"]; cf = opts["cflag"]
    g("s_lshl_b32 s74, s72, 12"); g("s_lshl_b32 s62, s73, 10"); g("s_add_u32 s74, s74, s62")
    g("v_lshlrev_b32 v28, 2, v0")
    g("s_lshl_b32 s75, s73, 5"); g("s_add_u32 s75, s75, s72")
    g("v_lshlrev_b32 v29, 4, v0")
    g("s_lshl_b32 s76, s75, 12"); g(f"s_add_u32 s76, s76, {STAT}")
    g("v_lshlrev_b32 v4, 16, v3"); g("v_lshl_add_u32 v4, v2, 4, v4")
    g("s_lshl_b32 s62, s3, 20"); g("s_lshl_b32 s63, s72, 8")
    g("s_add_u32 s62, s62, s63")
    rot_bases(g, 62, 73, 32*8192, 52)
    g("v_lshlrev_b32 v5, 14, v2"); g("v_lshl_add_u32 v5, v3, 4, v5")
    g("s_lshl_b32 s78, s73, 20"); g("s_lshl_b32 s63, s3, 18"); g("s_add_u32 s78, s78, s63"); g("s_lshl_b32 s63, s72, 8"); g("s_add_u32 s78, s78, s63")
    g("s_add_u32 s79, s78, 8192")
    g("s_mov_b32 s14, 0x400000"); g("s_mov_b32 s15, 0x20000"); g("s_mov_b32 s58, 4096"); g("s_mov_b32 s59, 0x20000")
    g("s_mov_b32 s46, 0x400000"); g("s_mov_b32 s47, 0x20000")
    g("s_waitcnt lgkmcnt(0)")
    g("s_mov_b32 s56, s16"); g("s_and_b32 s57, s17, 0xffff"); g("s_mov_b32 s12, s20"); g("s_and_b32 s13, s21, 0xffff")
    def wq(ks):
        for e in range(8):
            g(f"s_add_u32 s63, s{52+ks}, {e*8192}")
            r = 32 + 32*ks + 4*e
            g(f"buffer_load_dwordx4 v[{r}:{r+3}], v4, s[12:15], s63 offen {wf}")
    g("buffer_load_dwordx4 v[8:11], v29, s[56:59], 0 offen")
    wq(0)
    g("s_mov_b32 s44, s22"); g("s_and_b32 s45, s23, 0xffff")
    ukl = opts["ukl"]
    def wuk():
        for tt in range(2):
            for ks in range(4):
                r = 160 + 16*tt + 4*ks
                g(f"buffer_load_dwordx4 v[{r}:{r+3}], v5, s[44:47], s{78+tt} offen offset:{64*ks} {cf}")
    if not ukl:
        if opts["tbar"]: g("s_barrier")
        wuk()
    g.srd(4, 40, WS); g.srd(8, 38, 256)
    for k in range(4): g(f"v_mov_b32 v{24+k}, -1")
    g(f"s_mul_i32 s62, s42, 2816"); g(f"s_add_u32 s62, s62, {FPART}")
    g("s_lshl_b32 s63, s75, 10"); g(f"s_add_u32 s63, s63, {APART - 192*16}")
    g("v_add_u32 v30, s62, v29"); g("v_add_u32 v31, s63, v29")
    g("v_cmp_gt_u32 vcc, 176, v0"); g(f"v_mov_b32 v7, {OOB}"); g("s_nop 0"); g("v_cndmask_b32 v30, v7, v30, vcc")
    g("v_cmp_le_u32 vcc, 192, v0"); g("s_nop 1"); g("v_cndmask_b32 v30, v30, v31, vcc")
    g("buffer_store_dwordx4 v[24:27], v29, s[4:7], s76 offen sc1")
    g("buffer_store_dwordx4 v[24:27], v30, s[4:7], 0 offen sc1")
    g("s_mul_i32 s62, s3, 1040"); g("v_lshlrev_b32 v6, 4, v1"); g("v_add_u32 v6, s62, v6")
    g("v_and_b32 v7, 3, v2"); g("v_mul_u32_u24 v7, 1040, v7"); g("v_lshl_add_u32 v7, v3, 4, v7")
    g("s_lshl_b32 s62, s3, 8"); g("v_add_u32 v7, s62, v7")
    g(f"s_waitcnt vmcnt({10 if ukl else 18})")
    for q in range(4):
        g(f"v_lshlrev_b32 v{12+2*q}, 16, v{8+q}"); g(f"v_and_b32 v{13+2*q}, 0xffff0000, v{8+q}")
    g("v_add_f32 v20, v12, v13"); g("v_add_f32 v21, v14, v15"); g("v_add_f32 v22, v16, v17"); g("v_add_f32 v23, v18, v19")
    g("v_add_f32 v20, v20, v21"); g("v_add_f32 v22, v22, v23"); g("v_add_f32 v20, v20, v22")
    g.allred("v_add_f32", 20, 21)
    g(f"v_mul_f32 v20, 0x{f2u(1/512):08x}, v20")
    g("v_sub_f32 v22, v12, v20"); g("v_mul_f32 v21, v22, v22")
    for k in range(1, 8):
        g(f"v_sub_f32 v22, v{12+k}, v20"); g("v_fmac_f32 v21, v22, v22")
    g.allred("v_add_f32", 21, 22)
    g(f"v_mul_f32 v21, 0x{f2u(1/512):08x}, v21")
    g.bf16r(20, 20); g.bf16r(21, 21)
    g(f"v_add_f32 v21, 0x{f2u(1e-5):08x}, v21"); g.bf16r(21, 21)
    g("v_sqrt_f32 v21, v21"); g("s_nop 0"); g.bf16r(21, 21)
    g("v_rcp_f32 v21, v21")
    for k in range(8): g(f"v_sub_f32 v{12+k}, v{12+k}, v20")
    for q in range(4): g(f"v_cvt_pk_bf16_f32 v{8+q}, v{12+2*q}, v{13+2*q}")
    for q in range(4):
        g(f"v_lshlrev_b32 v{12+2*q}, 16, v{8+q}"); g(f"v_and_b32 v{13+2*q}, 0xffff0000, v{8+q}")
    for k in range(8): g(f"v_mul_f32 v{12+k}, v{12+k}, v21")
    for q in range(4): g(f"v_cvt_pk_bf16_f32 v{8+q}, v{12+2*q}, v{13+2*q}")
    g(f"ds_write_b128 v6, v[8:11] offset:{LDS_XN}")
    g("v_mov_b32 v30, 0")
    g(f"s_waitcnt vmcnt({(2 if ukl else 10) + opts['w1e']}) lgkmcnt(0)")
    g.stamp(1)
    fq = opts["fakeq"]
    if not fq: wq(1)
    g("s_barrier")
    for ks in range(4):
        g(f"s_xor_b32 s63, s73, {ks}"); g("s_lshl_b32 s63, s63, 6"); g("v_add_u32 v6, s63, v7")
        g(f"ds_read_b128 v[{8+4*ks}:{11+4*ks}], v6 offset:{LDS_XN}")
    if not fq: wq(2)
    for ks in range(1 if fq else 4):
        if ks == 0: g(f"s_waitcnt vmcnt({(2 if ukl else 10) + 16})")
        if ks == 1: wq(3)
        if ks == 2 and ukl: wuk()
        if ks: g(f"s_waitcnt vmcnt({8*(3-ks) + (1 if ks == 3 else 0) + (8 if ukl and ks >= 2 else 0)})")
        if ks == 2:
            if opts["nocnt"]: g("buffer_load_dword v31, v30, s[56:59], 0 offen")
            else: g("buffer_load_dword v31, v30, s[8:11], 0 offen sc1")
        if ks == 3: g.stamp(7)
        g.perm8x8(32+32*ks, 192)
        if ks == 0: g("s_waitcnt lgkmcnt(0)")
        for t in range(8):
            c = "0" if ks == 0 else f"v[{224+4*t}:{227+4*t}]"
            g(f"v_mfma_f32_16x16x32_bf16 v[{224+4*t}:{227+4*t}], v[{8+4*ks}:{11+4*ks}], v[{192+4*t}:{195+4*t}], {c}")
    g("s_mul_i32 s62, s3, 272"); g("v_lshlrev_b32 v6, 4, v2"); g("v_add_u32 v6, s62, v6")
    g("v_mul_u32_u24 v7, 272, v2"); g("v_lshl_add_u32 v7, v3, 4, v7")
    for p in range(4):
        for b in range(4):
            g(f"v_cvt_pk_bf16_f32 v{8+4*b+p}, v{224+8*p+b}, v{228+8*p+b}")
    g("s_mov_b64 exec, 0xffff")
    for b in range(4):
        g(f"ds_write_b128 v6, v[{8+4*b}:{11+4*b}] offset:{LDS_QX+4*272*b}")
    g("s_mov_b64 exec, -1")
    g("s_waitcnt lgkmcnt(0)")
    g("s_barrier")
    if fq == 1:
        g.stamp(4); g("s_waitcnt vmcnt(2)"); g.stamp(5); g("s_waitcnt vmcnt(0)"); g.stamp(6)
        g("buffer_load_dword v31, v30, s[8:11], 0 offen sc1"); g("s_waitcnt vmcnt(0)"); g.stamp(7)
        g("s_branch L_fin")
    if fq:
        g("s_memrealtime s[62:63]"); g("s_waitcnt lgkmcnt(0)"); g(f"s_add_u32 s64, s62, {fq}")
        g("L_fq:")
        g("s_memrealtime s[62:63]"); g("s_waitcnt lgkmcnt(0)")
        g("s_sub_u32 s62, s62, s64"); g("s_cmp_lt_i32 s62, -50"); g("s_cbranch_scc1 L_fq")
        g("buffer_load_dword v31, v30, s[8:11], 0 offen sc1")
        g("L_fq2:")
        g("s_memrealtime s[62:63]"); g("s_waitcnt lgkmcnt(0)")
        g("s_sub_u32 s62, s62, s64"); g("s_cmp_lt_i32 s62, 0"); g("s_cbranch_scc1 L_fq2")
        g("s_waitcnt vmcnt(1)")
    for ks in range(4):
        g(f"ds_read_b128 v[{8+4*ks}:{11+4*ks}], v7 offset:{LDS_QX+64*ks}")
    if ukl: g("s_waitcnt vmcnt(1)")
    for ks in range(4):
        g(f"s_waitcnt lgkmcnt({3-ks})")
        for tt in range(2):
            c = "0" if ks == 0 else f"v[{224+4*tt}:{227+4*tt}]"
            g(f"v_mfma_f32_16x16x32_bf16 v[{224+4*tt}:{227+4*tt}], v[{8+4*ks}:{11+4*ks}], v[{160+16*tt+4*ks}:{163+16*tt+4*ks}], {c}")
    g("s_waitcnt vmcnt(0)")
    g("v_cmp_ne_u32 vcc, 16, v31")
    g.srd(12, 18, 32 << 20)
    g("s_lshl_b32 s77, s75, 15"); g(f"s_add_u32 s77, s77, {OPART}")
    for tt in range(2):
        r = 224 + 4*tt
        g(f"v_add_f32 v{r}, v{r}, v{r+1}"); g(f"v_add_f32 v{r+2}, v{r+2}, v{r+3}")
    for tt in range(2):
        r = 224 + 4*tt
        g(f"v_add_f32 v{r}, v{r}, v{r+2}")
    for tt in range(2):
        r = 224 + 4*tt
        g(f"v_mul_f32 v{r}, 0x{f2u(SCALE):08x}, v{r}")
    g("v_cvt_pk_bf16_f32 v8, v224, v228")
    g("s_cbranch_vccz L_T_c0ok" if not opts["nocnt"] else "s_branch L_T_c0ok")
    cnt_wait(g, 31, 30)
    g("L_T_c0ok:")
    g("buffer_store_dword v8, v28, s[4:7], s74 offen sc1")
    g.stamp(2)
    if opts["stop"]: g("s_branch L_fin")
    if opts["pdelay"]:
        g(f"s_add_u32 s64, s80, {opts['pdelay']}")
        g("L_T_dl:")
        g("s_memrealtime s[62:63]"); g("s_waitcnt lgkmcnt(0)")
        g("s_sub_u32 s62, s62, s64"); g("s_cmp_lt_i32 s62, 0"); g("s_cbranch_scc1 L_T_dl")
    if opts["qw"]:
        g("v_lshlrev_b32 v4, 11, v1"); g("s_lshr_b32 s62, s42, 3"); g("s_lshl_b32 s62, s62, 7")
        g("s_waitcnt vmcnt(0)")
        poll_loop(g, lambda: g("buffer_load_dword v32, v4, s[4:7], s62 offen sc1"), lambda: g("v_cmp_eq_u32 vcc, -1, v32"), sleep=opts["qws"])
        g.stamp(8)
    pf0 = opts["pf0"]; pfw = opts["pfw"]
    g("s_mov_b32 s67, s73"); g("s_add_u32 s66, s43, 32")
    g("s_cmp_lt_u32 s42, 64"); g("s_cbranch_scc1 L_T_nopf0")
    sh = 7 if opts["pfs"] == 128 else 6
    npi = 2 if sh == 7 else 4
    g(f"v_lshlrev_b32 v4, {sh}, v1")
    g("s_and_b32 s62, s42, 63"); g("s_lshr_b32 s63, s3, 1"); g("s_lshl_b32 s63, s63, 6"); g("s_add_u32 s62, s62, s63")
    g("s_lshl_b32 s62, s62, 18"); g("s_and_b32 s63, s3, 1"); g("s_lshl_b32 s63, s63, 14"); g("s_add_u32 s62, s62, s63"); g(f"s_add_u32 s62, s62, {(7 if opts['prev'] else pf0)*32768}")
    for i in range(8 - pf0):
        if i >= pfw: g(f"s_waitcnt vmcnt({npi*(pfw-1)})")
        for k in range(npi):
            g(f"buffer_load_dword v32, v4, s[12:15], s62 offen")
            g(f"s_addk_i32 s62, {(64 << sh) + (0x4000 if k == npi-1 else 0)}")
            if k == npi-1 and opts["prev"]: g("s_sub_u32 s62, s62, 0x10000")
    g("s_waitcnt vmcnt(0)")
    g("s_branch L_T_nofw")
    g("L_T_nopf0:")
    g("s_cmp_ge_u32 s43, 11"); g("s_cbranch_scc1 L_T_nofw")
    ffn_issue(g); ffn_finish(g)
    g("L_T_nofw:")
    g.stamp(9)
    g.srd(12, 24, 4 << 20); g.srd(44, 26, 4 << 20)
    g("s_lshl_b32 s62, s3, 20"); g("s_lshl_b32 s63, s72, 8"); g("s_add_u32 s62, s62, s63")
    rot_bases(g, 62, 73, 32*8192, 52)
    g("v_lshlrev_b32 v4, 15, v3"); g("v_lshl_add_u32 v4, v2, 4, v4")
    g("v_lshlrev_b32 v5, 13, v3"); g("v_lshl_add_u32 v5, v2, 4, v5")
    g("s_lshl_b32 s79, s72, 17"); g("s_lshl_b32 s63, s3, 8"); g("s_add_u32 s79, s79, s63")
    order = [0, 4, 1, 2, 3, 5, 6, 7]
    def buf(i): return 32 + 32*(i % 3)
    def tw_issue2(i):
        n = order[i]; ks = n & 3
        if n >= 4:
            g(f"s_xor_b32 s62, s73, {ks}"); g("s_lshl_b32 s62, s62, 15"); g("s_add_u32 s62, s62, s79")
        for e in range(8):
            r = buf(i) + 4*e
            if n < 4:
                g(f"s_add_u32 s63, s{52+ks}, {(16*(e>>2)+(e&3))*8192}")
                g(f"buffer_load_dwordx4 v[{r}:{r+3}], v4, s[12:15], s63 offen {wf}")
            else:
                if e == 4: g("s_addk_i32 s62, 0x1000")
                g(f"buffer_load_dwordx4 v[{r}:{r+3}], v5, s[44:47], s62 offen offset:{(e&3)*1024} {wf}")
    tw_issue2(0); tw_issue2(1)
    for i in range(8):
        g(f"s_waitcnt vmcnt({8 if i < 7 else 0})")
        if i + 2 < 8: tw_issue2(i+2)
        R = buf(i); acc = 32*order[i]
        for t in range(8):
            for p in range(4):
                g(f"v_perm_b32 v{8+p+4*(t&1)}, v{R+4*(2*p+1)+(t>>1)}, v{R+4*(2*p)+(t>>1)}, s{60+(t&1)}")
            for p in range(4):
                g(f"v_accvgpr_write_b32 a{acc+4*t+p}, v{8+p+4*(t&1)}")
    if opts["ffpf"]:
        g("s_cmp_lt_u32 s42, 64"); g("s_cbranch_scc1 L_T_nopf")
        g.srd(44, 30, 512*2752); g.srd(48, 32, 512*2752); g.srd(52, 34, 1376*1024)
        g("v_lshrrev_b32 v4, 2, v1"); g("v_mul_u32_u24 v4, 2752, v4"); g("v_and_b32 v5, 3, v1"); g("v_lshl_add_u32 v4, v5, 6, v4")
        g("s_lshr_b32 s62, s42, 3"); g("s_sub_u32 s62, s62, 8"); g("s_lshl_b32 s62, s62, 2"); g("s_add_u32 s62, s62, s3")
        g(f"s_mul_i32 s63, s62, {16*2752}"); g("s_and_b32 s64, s42, 7"); g("s_lshl_b32 s65, s64, 8"); g("s_add_u32 s63, s63, s65")
        g("buffer_load_dword v32, v4, s[44:47], s63 offen"); g("buffer_load_dword v33, v4, s[48:51], s63 offen")
        g("v_lshlrev_b32 v4, 6, v1"); g("s_lshl_b32 s62, s62, 12"); g("s_lshl_b32 s64, s64, 17"); g("s_add_u32 s62, s62, s64")
        g("buffer_load_dword v34, v4, s[52:55], s62 offen")
        g("L_T_nopf:")
    g.stamp(3)
    tile_setup(g, 73)
    g("s_lshl_b32 s63, s3, 8"); g("s_add_u32 s69, s77, s63")
    g("v_and_b32 v13, 31, v1"); g("v_lshlrev_b32 v14, 7, v13")
    g("s_lshl_b32 s62, s3, 7"); g("v_lshlrev_b32 v13, 1, v13"); g("v_add_u32 v13, s62, v13")
    g("v_and_b32 v15, 1, v2"); g("v_lshlrev_b32 v15, 6, v15"); g("v_lshl_add_u32 v15, v3, 4, v15"); g("v_add_u32 v15, s62, v15")
    g("s_mul_i32 s62, s3, 272"); g("v_lshlrev_b32 v120, 4, v2"); g("v_add_u32 v121, s62, v120")
    g("v_and_b32 v122, 3, v2"); g("v_mul_u32_u24 v122, 272, v122"); g("v_lshl_add_u32 v122, v3, 4, v122")
    for ks in range(4):
        g(f"s_xor_b32 s63, s73, {ks}"); g("s_lshl_b32 s63, s63, 6"); g(f"v_add_u32 v{124+ks}, s63, v122")
    g("s_lshl_b32 s78, s75, 10"); g("s_lshl_b32 s63, s3, 8"); g("s_add_u32 s78, s78, s63"); g(f"s_add_u32 s78, s78, {APART}")
    def cond():
        g("v_max_u32 v34, v32, v33"); g("v_cmp_eq_u32 vcc, -1, v34")
    poll_loop(g, lambda: g("buffer_load_dwordx2 v[32:33], v14, s[4:7], s76 offen sc1"), cond, spin=4*SPIN, sleep=g.o["tsleep"])
    tile_dma(g, 69)
    g.stamp(4)
    g("v_mov_b32 v34, v32")
    g.allred("v_max_f32", 34, 35, 32)
    g("v_sub_f32 v34, v32, v34"); g("v_exp_f32 v34, v34"); g("s_nop 0")
    g("v_mul_f32 v36, v34, v33")
    g.allred("v_add_f32", 36, 35, 32)
    g("v_rcp_f32 v36, v36"); g("s_nop 0")
    g("v_mul_f32 v34, v34, v36")
    g.bf16r(35, 34)
    g("v_sub_f32 v35, v34, v35")
    g("v_cvt_pk_bf16_f32 v34, v34, v35")
    g(f"ds_write_b16 v13, v34 offset:{LDS_FX}")
    g(f"ds_write_b16_d16_hi v13, v34 offset:{LDS_FX+64}")
    g("s_waitcnt lgkmcnt(0)")
    g(f"ds_read_b128 v[28:31], v15 offset:{LDS_FX}")
    g("s_waitcnt vmcnt(0) lgkmcnt(0)")
    g.stamp(5)
    tile_read(g, 32)
    for t in range(8):
        g(f"s_waitcnt lgkmcnt({14-2*t})" if not g.o.get("stamps") else "s_waitcnt lgkmcnt(0)")
        g(f"v_mfma_f32_16x16x32_bf16 v[{64+4*t}:{67+4*t}], v[{32+4*t}:{35+4*t}], v[28:31], 0")
    for t in range(8):
        g(f"v_cvt_pk_bf16_f32 v{96+2*t}, v{64+4*t}, v{65+4*t}")
        g(f"v_cvt_pk_bf16_f32 v{97+2*t}, v{66+4*t}, v{67+4*t}")
    for ks in range(4):
        for t in range(8):
            c = "0" if ks == 0 else f"v[{32+4*t}:{35+4*t}]"
            g(f"v_mfma_f32_16x16x32_bf16 v[{32+4*t}:{35+4*t}], v[{96+4*ks}:{99+4*ks}], a[{32*ks+4*t}:{32*ks+4*t+3}], {c}")
    g.nop(1)
    for t in range(8):
        g(f"v_add_f32 v{32+4*t}, v{32+4*t}, v{33+4*t}")
    for p in range(4):
        g(f"v_cvt_pk_bf16_f32 v{64+p}, v{32+8*p}, v{36+8*p}")
    g("s_mov_b64 exec, 0xffff")
    g(f"ds_write_b128 v121, v[64:67] offset:{LDS_CX}")
    g("s_mov_b64 exec, -1")
    g("s_waitcnt lgkmcnt(0)")
    g("s_barrier")
    for ks in range(4):
        g(f"ds_read_b128 v[{96+4*ks}:{99+4*ks}], v{124+ks} offset:{LDS_CX}")
    for ks in range(4):
        g(f"s_waitcnt lgkmcnt({3-ks})")
        for t in range(8):
            c = "0" if ks == 0 else f"v[{32+4*t}:{35+4*t}]"
            g(f"v_mfma_f32_16x16x32_bf16 v[{32+4*t}:{35+4*t}], v[{96+4*ks}:{99+4*ks}], a[{128+32*ks+4*t}:{128+32*ks+4*t+3}], {c}")
    g.nop(1)
    for t in range(8):
        g(f"v_add_f32 v{32+4*t}, v{32+4*t}, v{33+4*t}"); g(f"v_add_f32 v{34+4*t}, v{34+4*t}, v{35+4*t}")
    for t in range(8):
        g(f"v_add_f32 v{32+4*t}, v{32+4*t}, v{34+4*t}")
    for p in range(4):
        g(f"v_cvt_pk_bf16_f32 v{64+p}, v{32+8*p}, v{36+8*p}")
    g("s_mov_b64 exec, 0xffff")
    g("buffer_store_dwordx4 v[64:67], v120, s[4:7], s78 offen sc1")
    g("s_mov_b64 exec, -1")
    g.stamp(6)
    g("s_cmp_lt_u32 s43, 11"); g("s_cbranch_scc1 L_FFN")
    g("s_cmp_lt_u32 s43, 16"); g("s_cbranch_scc1 L_fin")
    g("s_cmp_lg_u32 s3, 0"); g("s_cbranch_scc1 L_fin")
    g.srd(12, 36, 4096)
    g("v_lshrrev_b32 v4, 3, v1"); g("v_and_b32 v5, 7, v1")
    g("v_lshlrev_b32 v6, 11, v4"); g("v_lshl_add_u32 v6, v5, 4, v6")
    g(f"v_mov_b32 v7, {OOB}")
    g("v_cmp_gt_u32 vcc, 3, v4"); g("s_nop 1"); g("v_cndmask_b32 v7, v7, v6, vcc")
    g("v_lshlrev_b32 v8, 4, v5"); g("v_lshlrev_b32 v10, 3, v5")
    g(f"s_mul_i32 s62, s73, {44*2048}"); g("s_sub_u32 s65, s43, 16"); g("s_lshl_b32 s63, s65, 7"); g("s_add_u32 s62, s62, s63"); g(f"s_add_u32 s62, s62, {FPART}")
    g("s_lshl_b32 s74, s73, 10"); g("s_lshl_b32 s63, s65, 6"); g("s_add_u32 s74, s74, s63")
    def body():
        for n in range(6):
            g(f"s_add_u32 s63, s62, {n*16384}")
            g(f"buffer_load_dwordx4 v[{32+4*n}:{35+4*n}], v{6 if n < 5 else 7}, s[4:7], s63 offen sc1")
        g(f"s_add_u32 s63, s62, {43*2048}")
        g("buffer_load_dwordx4 v[56:59], v8, s[4:7], s63 offen sc1")
    def cond2():
        for k in range(4):
            g(f"v_add_f32 v{32+k}, v{32+k}, v{36+k}"); g(f"v_add_f32 v{40+k}, v{40+k}, v{44+k}"); g(f"v_add_f32 v{48+k}, v{48+k}, v{52+k}")
        for k in range(4): g(f"v_add_f32 v{32+k}, v{32+k}, v{40+k}")
        for k in range(4): g(f"v_add_f32 v{32+k}, v{32+k}, v{48+k}")
        g("v_add_f32 v40, v56, v57"); g("v_add_f32 v41, v58, v59"); g("v_add_f32 v42, v32, v33"); g("v_add_f32 v43, v34, v35")
        g("v_add_f32 v40, v40, v41"); g("v_add_f32 v42, v42, v43")
        g("v_cmp_u_f32 vcc, v40, v42")
    poll_loop(g, body, cond2, spin=4*SPIN, sleep=0)
    g.stamp(8)
    for k in range(4):
        g(f"v_add_f32_dpp v{32+k}, v{32+k}, v{32+k} row_ror:8 row_mask:0xf bank_mask:0xf")
    g("v_cvt_pk_bf16_f32 v44, v56, v57"); g("v_cvt_pk_bf16_f32 v45, v58, v59")
    for sw in ("v_permlane16_swap_b32", "v_permlane32_swap_b32"):
        for k in range(4): g(f"v_mov_b32 v{36+k}, v{32+k}")
        g("s_nop 0")
        for k in range(4): g(f"{sw} v{32+k}, v{36+k}")
        for k in range(4): g(f"v_add_f32 v{32+k}, v{32+k}, v{36+k}")
    g("v_cvt_pk_bf16_f32 v36, v32, v33"); g("v_cvt_pk_bf16_f32 v37, v34, v35")
    for q in range(2):
        g(f"v_lshlrev_b32 v{32+2*q}, 16, v{36+q}"); g(f"v_and_b32 v{33+2*q}, 0xffff0000, v{36+q}")
        g(f"v_lshlrev_b32 v{40+2*q}, 16, v{44+q}"); g(f"v_and_b32 v{41+2*q}, 0xffff0000, v{44+q}")
    for k in range(4): g(f"v_add_f32 v{32+k}, v{32+k}, v{40+k}")
    g("v_cvt_pk_bf16_f32 v36, v32, v33"); g("v_cvt_pk_bf16_f32 v37, v34, v35")
    g("s_mov_b64 exec, 0xff")
    g("buffer_store_dwordx2 v[36:37], v10, s[12:15], s74 offen")
    g("s_mov_b64 exec, -1")
    g.stamp(10)
    g("s_branch L_fin")

QD = 8
def qreg(s):
    return f"v[{224+4*s}:{227+4*s}]" if s < QD else f"a[{128+4*(s-QD)}:{131+4*(s-QD)}]"

class Lds:
    def __init__(s, g): s.g = g; s.n = 0; s.done = 0
    def op(s, txt): s.g(txt); s.n += 1; return s.n
    def wait(s, i):
        if i <= s.done: return
        k = min(14, s.n - i); s.g(f"s_waitcnt lgkmcnt({k})"); s.done = s.n - k
    def all(s): s.wait(s.n)

def acu(g):
    cf = g.o["cflag"]; fine = g.o["fine"]
    nd = g.o["nd"]
    ea = ["v_and_b32 v8, 7, v5", "v_lshlrev_b32 v9, 1, v6", "v_xor_b32 v8, v8, v9", "v_lshlrev_b32 v208, 10, v5", "v_lshl_add_u32 v208, v8, 4, v208",
          "s_lshl_b32 s62, s3, 8", "v_add_u32 v208, s62, v208"] + [f"v_xor_b32 v{208+k}, {((4*(k>>1))|(k&1))<<4}, v208" for k in range(1, 4)] + \
         ["v_lshrrev_b32 v8, 3, v1", "v_and_b32 v9, 7, v1", "v_lshlrev_b32 v212, 10, v8", "v_lshl_add_u32 v212, v9, 4, v212", "v_add_u32 v212, s62, v212",
          "v_lshlrev_b32 v214, 12, v8", "v_lshl_add_u32 v214, v9, 4, v214", "v_xor_b32 v9, v9, v8", "v_lshlrev_b32 v213, 15, v8", "v_lshl_add_u32 v213, v9, 4, v213",
          "s_lshl_b32 s63, s3, 5", "v_lshl_add_u32 v215, v8, 2, s63",
          "s_lshl_b32 s65, s74, 20", "s_lshl_b32 s63, s75, 10", "s_add_u32 s65, s65, s63", "s_add_u32 s65, s65, s62", f"s_add_u32 s65, s65, {OPART}",
          "s_lshl_b32 s79, s74, 17", "s_lshl_b32 s63, s75, 7", "s_add_u32 s79, s79, s63", f"s_add_u32 s79, s79, {STAT}", "s_lshl_b32 s63, s3, 15", "s_add_u32 s79, s79, s63"]
    g("v_lshlrev_b32 v4, 4, v1")
    g("s_lshr_b32 s74, s42, 5"); g("s_and_b32 s75, s42, 31")
    g("s_lshl_b32 s76, s42, 18"); g("s_lshl_b32 s77, s3, 13"); g("s_add_u32 s76, s76, s77")
    g("s_and_b32 s62, s3, 1"); g("s_lshl_b32 s62, s62, 5"); g("v_xor_b32 v7, s62, v4")
    for r in range(8):
        g(f"v_xor_b32 v{160+r}, {(fswz(r)<<4) | ((r>>2)<<12)}, v7")
    g(f"s_add_u32 s62, s77, {LQ}"); g("v_add_u32 v15, s62, v7")
    def dma_ops(slot):
        ops = []
        for r in range(8):
            pre = []
            if r == 0: pre = [f"s_add_u32 m0, s77, {slot*32768}", "s_nop 0"]
            if r == 4: pre = ["s_addk_i32 m0, 0x1000", "s_nop 0"]
            post = ["s_add_u32 s76, s76, 0x8000"] if r == 7 else []
            ops.append(pre + [f"buffer_load_dwordx4 v{160+r}, s[12:15], s76 offen offset:{(r&3)*1024} {cf} lds"] + post)
        return ops
    def dma_tile(slot):
        for o in dma_ops(slot):
            for x in o: g(x)
    def setup():
        g("v_and_b32 v5, 31, v1"); g("v_lshrrev_b32 v6, 5, v1")
        g("v_and_b32 v8, 3, v5"); g("v_lshlrev_b32 v8, 2, v8"); g("v_bfe_u32 v9, v5, 2, 2"); g("v_or_b32 v8, v8, v9"); g("v_xor_b32 v8, v8, v6")
        g("v_lshlrev_b32 v10, 10, v5"); g("v_lshl_add_u32 v10, v8, 4, v10")
        g(f"v_add_u32 v11, {LQ}, v10")
        g("s_lshl_b32 s62, s3, 15"); g("v_add_u32 v10, s62, v10")
        for k in range(8): g(f"v_xor_b32 v{16+k}, {k<<5}, v10")
        for k in range(8): g(f"v_xor_b32 v{128+k}, {k<<5}, v11")
        g("v_bfe_u32 v8, v1, 2, 2")
        g("v_lshl_add_u32 v9, v6, 2, v8"); g("v_lshlrev_b32 v12, 10, v9")
        g("v_and_b32 v9, 1, v1"); g("v_lshlrev_b32 v9, 1, v9"); g("v_bfe_u32 v13, v1, 4, 1"); g("v_or_b32 v9, v9, v13")
        g("v_lshl_add_u32 v13, v8, 2, v6"); g("v_xor_b32 v9, v9, v13")
        g("v_lshl_add_u32 v12, v9, 4, v12")
        g("v_bfe_u32 v9, v1, 1, 1"); g("v_lshl_add_u32 v12, v9, 3, v12")
        g("s_lshl_b32 s62, s3, 8"); g("v_add_u32 v12, s62, v12")
        for ct in range(4):
            for hv in range(2):
                g(f"v_xor_b32 v{24+2*ct+hv}, {(ct<<6)|(hv<<5)}, v12")
                g(f"v_add_u32 v{32+2*ct+hv}, 0x10000, v{24+2*ct+hv}")
        g("v_lshlrev_b32 v40, 5, v5"); g("v_lshl_add_u32 v40, v6, 4, v40"); g(f"v_add_u32 v40, {LRF}, v40")
        g("v_xor_b32 v46, 16, v40")
        g("s_lshl_b32 s62, s3, 2"); g("v_add_u32 v41, s62, v40")
        g(f"v_add_u32 v42, {LP}, v4")
        g("s_lshl_b32 s62, s3, 11"); g("v_add_u32 v43, s62, v42")
        g("v_lshrrev_b32 v14, 2, v1"); g("v_lshlrev_b32 v14, 8, v14"); g("v_and_b32 v9, 3, v1"); g("v_lshl_add_u32 v14, v9, 4, v14")
        g("s_lshl_b32 s78, s3, 15"); g("s_lshl_b32 s63, s74, 6"); g("s_add_u32 s78, s78, s63")
        g("v_mov_b32 v12, 0"); g("v_mov_b32 v13, 1")
    for k in range(4): g(f"v_mov_b32 v{48+k}, -1")
    g("s_waitcnt lgkmcnt(0)")
    g.srd(4, 40, WS)
    g("s_cmp_ge_u32 s42, 16"); g("s_cbranch_scc1 L_A_ni")
    g("s_lshl_b32 s62, s42, 13"); g("s_lshl_b32 s63, s3, 11"); g("s_add_u32 s62, s62, s63")
    for k in range(2):
        g(f"buffer_store_dwordx4 v[48:51], v4, s[4:7], s62 offen offset:{k*1024} sc1")
    g("L_A_ni:")
    g.srd(12, 18, 32 << 20); g.srd(8, 38, 256)
    setup()
    if g.o["adelay"]:
        g(f"s_add_u32 s64, s80, {g.o['adelay']}")
        g("L_A_dl:")
        g("s_memrealtime s[62:63]"); g("s_waitcnt lgkmcnt(0)")
        g("s_sub_u32 s62, s62, s64"); g("s_cmp_lt_i32 s62, 0"); g("s_cbranch_scc1 L_A_dl")
    g("s_cmp_ge_u32 s42, 16"); g("s_cbranch_scc1 L_A_ni2")
    g("s_waitcnt vmcnt(0)")
    g("s_barrier")
    g("s_cmp_lg_u32 s3, 0"); g("s_cbranch_scc1 L_A_ni2")
    g("s_mov_b64 exec, 1")
    g("buffer_atomic_add v13, v12, s[8:11], 0 offen sc1")
    g("s_mov_b64 exec, -1")
    g("L_A_ni2:")
    ss = g.o["ss"]
    if g.o["ukl"]:
        g.srd(44, 22, 4 << 20)
        g("v_lshrrev_b32 v8, 1, v1"); g("v_lshlrev_b32 v8, 13, v8"); g("v_and_b32 v9, 1, v1"); g("v_lshl_add_u32 v8, v9, 7, v8")
        g("s_lshl_b32 s62, s73, 20"); g("s_lshl_b32 s63, s3, 18"); g("s_add_u32 s62, s62, s63"); g("s_lshl_b32 s63, s72, 8"); g("s_add_u32 s62, s62, s63")
        g("buffer_load_dword v47, v8, s[44:47], s62 offen")
    o0 = dma_ops(0)
    for o in o0[:ss]:
        for x in o: g(x)
    for x in ea: g(x)
    if ss or g.o["ukw"]: g("s_waitcnt vmcnt(0)")
    for o in o0[ss:]:
        for x in o: g(x)
    dma_tile(1)
    def pvreg(kk, ct): return 16*kk + 4*ct
    def rdp_txt(kk, ct):
        r = pvreg(kk, ct); row = 16*kk; ab = 24 if row < 64 else 32
        return [f"ds_read_b64_tr_b16 a[{r+2*hv}:{r+2*hv+1}], v{ab+2*ct+hv} offset:{((row % 64) + 8*hv)*1024}" for hv in range(2)]
    def gather():
        g("s_mov_b32 s63, s78")
        for r in range(8):
            g(f"buffer_load_dwordx4 v[{176+4*r}:{179+4*r}], v14, s[4:7], s63 offen sc1")
            if r < 7: g("s_addk_i32 s63, 0x1000")
    for tl in range(4):
        if tl < 2: g("s_waitcnt vmcnt(8)"); dma_tile(tl+2)
        elif tl == 2:
            g("s_waitcnt vmcnt(8) lgkmcnt(0)")
        else:
            g(f"s_waitcnt vmcnt({1 + (8 if nd == 5 else 0)})")
        g("s_barrier")
        if tl == 2:
            g("buffer_load_dword v47, v12, s[8:11], 0 offen sc1")
            if nd == 5: dma_tile(0)
        if tl == 0 and not fine: g.stamp(1)
        if tl == 3 and not fine: g.stamp(2)
        for ks in range(2):
            for ct in range(4):
                for x in rdp_txt(2*tl+ks, ct): g(x)
        sk = g.lab("p1c")
        g(f"s_cmp_lg_u32 s3, {tl}"); g(f"s_cbranch_scc1 {sk}")
        for s in range(32):
            g(f"ds_read_b128 a[{128+4*s}:{131+4*s}], v{16+(s&7)} offset:{(s>>3)*256}")
        g(f"{sk}:")
    dpos = g.o["dpos"]
    npre = {0: 8 - nd, 1: 0, 2: 1, 3: 2}[dpos]
    g(f"s_waitcnt vmcnt({g.o['gw']}) lgkmcnt(0)")
    g("v_cmp_ne_u32 vcc, 16, v47")
    g("s_cbranch_vccz L_A_c0")
    cnt_wait(g, 47, 12)
    g("L_A_c0:")
    if g.o["fakeq"] == 1: g("s_branch L_fin")
    if g.o["fine3"]: g.stamp(1)
    def gcond():
        g.maxtree(9, range(176, 208)); g("v_cmp_eq_u32 vcc, -1, v9")
    if npre:
        gather()
        g("s_barrier")
        for t in range(nd, nd + npre): dma_tile(t & 3)
        g(f"s_waitcnt vmcnt({8*npre})")
        gcond()
        g("s_cbranch_vccz L_A_gok")
    poll_loop(g, gather, gcond, sleep=g.o["gsleep"])
    g("L_A_gok:")
    if g.o["fine3"]:
        g.stamp(2)
        g(f"s_sub_u32 s70, {SPIN}, s64"); g("s_mul_i32 s70, s70, 100")
    for r in range(8):
        g(f"v_xor_b32 v7, {fswz(r)<<4}, v15")
        g(f"ds_write_b128 v7, v[{176+4*r}:{179+4*r}] offset:{r*1024}")
    g("s_waitcnt lgkmcnt(0)")
    g("s_barrier")
    g.stamp(3)
    if g.o["stop"]: g("s_branch L_fin")
    L = Lds(g)
    dq = []
    for t in range(nd + npre, 8): dq += dma_ops(t & 3)
    ids = {}
    def rdq(s): ids[s] = L.op(f"ds_read_b128 {qreg(s)}, v{128+(s&7)} offset:{(s>>3)*256}")
    for s in range(QD-1): rdq(s)
    def dpop(n=1):
        for _ in range(n):
            if dq:
                for y in dq.pop(0): g(y)
    dpop(g.o["d0"])
    dn = g.o["dn"]
    for s in range(32):
        L.wait(ids[s])
        c = "0" if s == 0 else "v[48:63]"
        g(f"v_mfma_f32_32x32x16_bf16 v[48:63], a[{128+4*s}:{131+4*s}], {qreg(s)}, {c}")
        if s + QD - 1 < 32: rdq(s + QD - 1)
        if (s + 1) * dn // 32 > s * dn // 32: dpop()
    cpre = g.o["cpre"]; fb = g.o["fb"]
    def sma_ops(ch):
        o = ch*10240
        R = 216 if ch == 0 else 222
        T = []
        T += ["v_max3_f32 v8, v48, v49, v50", "v_max3_f32 v9, v51, v52, v53", "v_max3_f32 v10, v54, v55, v56", "v_max3_f32 v11, v57, v58, v59",
              "v_max3_f32 v8, v8, v60, v61", "v_max3_f32 v9, v9, v62, v63", "v_max_f32 v10, v10, v11", "v_max3_f32 v8, v8, v9, v10"]
        if ch == 0: T += ["v_ceil_f32 v216, v8"]
        else: T += ["v_cmp_gt_f32 vcc, v8, v47", "v_ceil_f32 v8, v8", "s_nop 0", "v_cndmask_b32 v222, v44, v8, vcc"]
        for h in range(2):
            T += [f"v_sub_f32 v{48+8*h+k}, v{48+8*h+k}, v{R}" for k in range(8)]
            T += [f"v_exp_f32 v{48+8*h+k}, v{48+8*h+k}" for k in range(8)]
            if h == 0 and ch == 0: T += ["s_barrier"]
            if h == 0: T += [f"@ds_write_b32 v41, v{R} offset:{o}"]
            T += [f"v_cvt_pk_bf16_f32 v{168+4*h+k}, v{48+8*h+2*k}, v{49+8*h+2*k}" for k in range(4)]
            T += [f"@ds_write_b128 v43, v[{168+4*h}:{171+4*h}] offset:{o+1024*h}"]
        return T
    def lsum_ops(ch):
        T = [f"v_add_f32 v{48+k}, v{48+k}, v{56+k}" for k in range(8)]
        T += [f"v_add_f32 v{48+k}, v{48+k}, v{52+k}" for k in range(4)]
        T += ["v_add_f32 v48, v48, v50", "v_add_f32 v49, v49, v51"]
        if ch == 0: T += ["v_add_f32 v217, v48, v49"]
        else: T += ["v_add_f32 v48, v48, v49", "v_add_f32 v217, v217, v48", "@ds_write_b32 v41, v217 offset:1024"]
        return T
    def emit(x):
        if callable(x): return x()
        if x.startswith("@"): return L.op(x[1:])
        g(x)
    def kfix(P, waits=None):
        T = []
        for w in range(4):
            T += [f"v_sub_f32 v{12+w}, v44, v{12+w}", f"v_cvt_u32_f32 v{8+w}, v{12+w}", f"v_min_u32 v{8+w}, 0xff, v{8+w}", f"v_mul_u32_u24 v{8+w}, 0x800080, v{8+w}"]
            for kk in (2*w, 2*w+1):
                if waits is not None: T += [lambda kk=kk: L.wait(waits[kk])]
                T += [f"v_pk_sub_u16 v{P+4*kk+i}, v{P+4*kk+i}, v{8+w} clamp" for i in range(4)]
        return T
    def cost(x):
        if callable(x): return getattr(x, "c", 0)
        if x.startswith("v_exp"): return 2
        return 1
    def fill(q, budget):
        while q and budget > 0:
            x = q.pop(0); budget -= cost(x); emit(x)
        return budget
    def rdop(d, key, txt):
        def f(): d[key] = L.op(txt)
        f.c = 1
        return f
    order = [(kk, ct) for ct in range(4) for kk in range(8)]
    pvid = {}; rq = []
    def refill(cnt):
        n_ = 0
        while rq and n_ < cnt:
            key, x = rq.pop(0); pvid[key] = L.op(x); n_ += 1
        return n_
    def pv0(kk, ct):
        r = pvreg(kk, ct)
        c = "0" if kk == 0 else f"v[{64+16*ct}:{79+16*ct}]"
        g(f"v_mfma_f32_32x32x16_bf16 v[{64+16*ct}:{79+16*ct}], a[{r}:{r+3}], v[{128+4*kk}:{131+4*kk}], {c}")
    def flush_until(q, prefix):
        if any((not callable(x)) and x.startswith(prefix) for x in q):
            while True:
                x = q.pop(0); emit(x)
                if (not callable(x)) and x.startswith(prefix): break
            g("s_nop 1")
    if fine: g.stamp(1)
    n0_ = len(g.L); dpop(g.o["d1"]); g.nop(max(0, 12 - (len(g.L) - n0_)))
    for x in sma_ops(0): emit(x)
    dpop(g.o["d2"] if cpre else 100)
    if cpre == 0:
        for x in lsum_ops(0): emit(x)
    L.all()
    if cpre == 0: g("s_waitcnt vmcnt(0)")
    g("s_barrier")
    if fine: g.stamp(2)
    r0 = {}
    qr = [rdop(r0, "x", "ds_read_b128 v[12:15], v40"), rdop(r0, "ref", "ds_read_b128 v[168:171], v46")]
    qr += [rdop(r0, k, f"ds_read_b128 v[{128+4*k}:{131+4*k}], v42 offset:{1024*k}") for k in range(8)]
    q2 = [lambda: L.wait(r0["ref"]), "v_max3_f32 v9, v12, v13, v14", "v_max3_f32 v10, v169, v170, v171", "v_max3_f32 v9, v9, v15, v168", "v_max_f32 v44, v9, v10"]
    q2 += kfix(128, r0)
    q2 += ["v_sub_f32 v216, v216, v44", "v_exp_f32 v216, v216", f"v_add_f32 v47, 0x{f2u(float(g.o['thr'])):08x}, v44", "v_mul_f32 v217, v217, v216"]
    if cpre:
        for x in qr: emit(x)
        qr = []
        for x in lsum_ops(0): emit(x)
        flush_until(q2, "v_pk_sub_u16 v135,")
        for n, (kk, ct) in enumerate(order[:8*cpre]):
            if ct == 0: flush_until(q2, f"v_pk_sub_u16 v{128+4*kk+3},")
            pv0(kk, ct)
            fill(q2, 6 if ct == 0 else 4)
            if n % g.o["d3"] == 0: dpop()
            rq += [((kk, ct), x) for x in rdp_txt(kk, ct)]
        dpop(100)
        g("s_waitcnt vmcnt(0)")
        g("s_barrier")
    g.stamp(4)
    D = 6
    ids = {}
    def rdc(s):
        r = 176 + 4*(s % 8)
        ids[s] = L.op(f"ds_read_b128 v[{r}:{r+3}], v{16+(s&7)} offset:{(s>>3)*256}")
    for s in range(D): rdc(s)
    for s in range(32):
        L.wait(ids[s])
        r = 176 + 4*(s % 8)
        c = "0" if s == 0 else "v[48:63]"
        g(f"v_mfma_f32_32x32x16_bf16 v[48:63], v[{r}:{r+3}], {qreg(s)}, {c}")
        if s + D < 32: rdc(s + D)
        if qr: fill(qr, 2)
        elif q2 and (s >= 7 or cpre): fill(q2, 3)
        else: refill(2)
    fill(q2, 1000)
    g.stamp(5)
    q = sma_ops(1)
    r1 = {}
    qr = [rdop(r1, "x", "ds_read_b128 v[12:15], v40 offset:10240"), rdop(r1, "ref", "ds_read_b128 v[218:221], v46 offset:10240")]
    qr += [rdop(r1, k, f"ds_read_b128 v[{176+4*k}:{179+4*k}], v42 offset:{10240+1024*k}") for k in range(8)]
    state = 0; dist = 0
    for n, (kk, ct) in enumerate(order[8*cpre:]):
        pv0(kk, ct); dist += 1
        if state == 0:
            if dist < 12:
                k_ = refill(3); dist += k_
                if k_ < 3: g.nop(3 - k_); dist += 3 - k_
            else:
                fill(q, fb)
                if not q:
                    last_w = L.n; state = 1
        elif state == 1:
            L.wait(last_w); g("s_barrier"); state = 2
            fill(qr, 3)
        elif state == 2:
            if qr: fill(qr, 3)
            else: refill(3)
        rq += [((kk, ct), x) for x in rdp_txt(kk, ct)]
    if state == 0:
        if dist < 12: g.nop(12 - dist)
        fill(q, 1000); last_w = L.n; state = 1
    if state == 1:
        L.wait(last_w); g("s_barrier")
    fill(qr, 1000)
    L.wait(r1["ref"])
    g("v_max3_f32 v9, v12, v13, v14"); g("v_max3_f32 v10, v219, v220, v221"); g("v_max3_f32 v9, v9, v15, v218"); g("v_max_f32 v9, v9, v10")
    g("v_cmp_neq_f32 vcc, v9, v44")
    g("s_cbranch_vccnz L_A_slow")
    g("L_A_back:")
    slow = ["L_A_slow:", "s_waitcnt lgkmcnt(0)", "v_sub_f32 v47, v44, v9", "v_sub_f32 v222, v222, v9", "v_mov_b32 v44, v9", "v_exp_f32 v47, v47", "v_exp_f32 v222, v222"] + kfix(176) + \
           [f"v_mul_f32 v{64+k}, v47, v{64+k}" for k in range(64)] + ["v_mul_f32 v217, v47, v217"] + \
           [f"v_mul_f32 v{48+k}, v222, v{48+k}" for k in range(16)] + ["s_branch L_A_back"]
    g.slow = slow
    if fine: g.stamp(10)
    def epi_w(ct, qq):
        b = 128+8*(ct&1)+4*qq
        return [f"v_cvt_pk_bf16_f32 v{b+k}, v{64+16*ct+8*qq+2*k}, v{65+16*ct+8*qq+2*k}" for k in range(4)] + \
               [f"@ds_write_b128 v{208+2*(ct&1)+qq}, v[{b}:{b+3}] offset:{(ct>>1)*128}"]
    er = {}
    def epi_r(half):
        return [rdop(er, (half, n_), f"ds_read_b128 v[{224+16*half+4*n_}:{227+16*half+4*n_}], v212 offset:{n_*8192+half*128}") for n_ in range(4)]
    def epi_s(half, n_):
        def f():
            L.wait(er[(half, n_)])
            g(f"s_add_u32 s63, s65, {n_*8*32768}")
            g(f"buffer_store_dwordx4 v[{224+16*half+4*n_}:{227+16*half+4*n_}], v213, s[4:7], s63 offen offset:{half*128} sc1")
        f.c = g.o['sc']
        return f
    lw = {}
    def mark(): lw["w"] = L.n
    def lbar(): L.wait(lw["w"]); g("s_barrier")
    lbar.c = 2
    q = lsum_ops(1) + [mark]
    ql = [lbar, rdop(lw, "a", "ds_read_b128 v[52:55], v40 offset:1024"), rdop(lw, "b", "ds_read_b128 v[56:59], v46 offset:1024")]
    ql2 = [lambda: L.wait(lw["b"])] + [f"v_add_f32 v{52+w}, v{52+w}, v{56+w}" for w in range(4)] + \
        ["v_add_f32 v52, v52, v53", "v_add_f32 v54, v54, v55", "v_add_f32 v45, v52, v54"] + \
        [f"@ds_bpermute_b32 v{60+i}, v215, v{44+(i&1)}" for i in range(4)]
    wdone = 0
    for n, (kk, ct) in enumerate(order):
        r = pvreg(kk, ct)
        while (kk, ct) not in pvid or any(k == (kk, ct) for k, _ in rq): refill(1)
        if ct == 0: L.wait(r1[kk])
        L.wait(pvid[(kk, ct)])
        g(f"v_mfma_f32_32x32x16_bf16 v[{64+16*ct}:{79+16*ct}], a[{r}:{r+3}], v[{176+4*kk}:{179+4*kk}], v[{64+16*ct}:{79+16*ct}]")
        b = 4 - refill(3)
        if kk == 0: since = 0
        if not rq and wdone < ct and since >= 11:
            q += epi_w(wdone, 0) + epi_w(wdone, 1)
            if wdone == 0: q += ql
            if wdone == 1: q += epi_r(0) + ql2 + [epi_s(0, n_) for n_ in range(4)]
            wdone += 1
        n0_ = len(g.L)
        b = fill(q, b)
        if b > 0 and wdone < ct and since < 11:
            g.nop(b); since += b
        since += 1 + (4 - max(b, 0))
    while wdone < 3:
        q += epi_w(wdone, 0) + epi_w(wdone, 1)
        if wdone == 0: q += ql
        if wdone == 1: q += epi_r(0) + ql2 + [epi_s(0, n_) for n_ in range(4)]
        wdone += 1
    n0_ = len(g.L)
    fill(q, 1000)
    if g.o["fine2"]: g.stamp(1)
    g.nop(max(0, 12 - (len(g.L) - n0_)))
    for x in epi_w(3, 0) + epi_w(3, 1) + epi_r(1) + [epi_s(1, n_) for n_ in range(4)]: emit(x)
    g.stamp(9)
    g("s_waitcnt vmcnt(0)")
    g("s_barrier")
    g("buffer_store_dwordx4 v[60:63], v214, s[4:7], s79 offen sc1")
    if not fine: g.stamp(10)

def gen(opts):
    g = G(opts)
    g("s_load_dwordx16 s[16:31], s[0:1], 0")
    g("s_load_dwordx8 s[32:39], s[0:1], 64")
    g("s_load_dwordx2 s[40:41], s[0:1], 96")
    g("s_cmp_ge_u32 s2, 256"); g("s_cbranch_scc1 L_end")
    g.stamp(0)
    if opts["scr"]:
        g("s_lshr_b32 s62, s2, 5"); g("s_lshl_b32 s2, s2, 3"); g("s_or_b32 s2, s2, s62"); g("s_and_b32 s2, s2, 255")
    if opts.get("cpf", 1):
        g("s_getpc_b64 s[4:5]")
        g("s_and_b32 s5, s5, 0xffff"); g("s_mov_b32 s6, L_end - L_pcv"); g("s_mov_b32 s7, 0x20000")
        g("L_pcv:")
        g("s_bfe_u32 s62, s2, 0x40003"); g("s_lshl_b32 s62, s62, 12")
        g("v_lshlrev_b32 v1, 4, v0")
        g("buffer_load_dwordx4 v[252:255], v1, s[4:7], s62 offen")
    g("v_lshrrev_b32 v2, 6, v0"); g("v_and_b32 v1, 63, v0")
    g("v_readfirstlane_b32 s3, v2")
    g("v_and_b32 v2, 15, v0"); g("v_lshrrev_b32 v3, 4, v1")
    g("s_and_b32 s62, s2, 7"); g("s_lshr_b32 s43, s2, 4"); g("s_lshl_b32 s42, s43, 3"); g("s_or_b32 s42, s42, s62")
    g("s_and_b32 s73, s43, 3")
    g("s_lshr_b32 s43, s43, 2")
    g("s_lshl_b32 s72, s62, 2"); g("s_or_b32 s72, s72, s43")
    g("s_lshl_b32 s43, s43, 3"); g("s_or_b32 s43, s43, s62")
    if opts.get("hmap") == 0: g("s_mov_b32 s72, s43")
    g("s_mov_b32 s60, 0x05040100"); g("s_mov_b32 s61, 0x07060302")
    if opts.get("stamps"):
        for k in range(82, 102): g(f"s_mov_b32 s{k}, 0")
    g("s_bitcmp1_b32 s2, 3")
    g("s_cbranch_scc1 L_A")
    tcu(g)
    g("L_A:")
    acu(g)
    g("s_mov_b32 s66, s72"); g("s_mov_b32 s67, s73")
    ffn_issue(g)
    ffn_finish(g)
    if g.o["fine3"]:
        g("s_waitcnt lgkmcnt(0)"); g("s_add_u32 s88, s80, s70"); g("s_addc_u32 s89, s81, 0")
    if not g.o["fine"]:
        g("s_cmp_eq_u32 s92, 0"); g("s_cbranch_scc0 L_nos6"); g.stamp(6); g("L_nos6:")
    g("L_FFN:")
    ffn_stage(g)
    g("L_fin:")
    if opts.get("stamps"):
        nst = 11
        g("s_waitcnt lgkmcnt(0)")
        g("s_cmp_lg_u32 s3, 0"); g("s_cbranch_scc1 L_end")
        g("s_mov_b64 exec, 1")
        g(f"s_mul_i32 s62, s2, {nst*8}"); g(f"s_add_u32 s62, s62, {WS - 256*nst*8}")
        g("v_mov_b32 v3, 0")
        for k in range(nst):
            g(f"v_mov_b32 v4, s{80+2*k}"); g(f"v_mov_b32 v5, s{81+2*k}")
            g(f"buffer_store_dwordx2 v[4:5], v3, s[4:7], s62 offen offset:{8*k}")
            g("s_nop 1")
    g("L_end:")
    g("s_endpgm")
    for x in g.slow: g(x)
    hdr = open("hdr.txt").read()
    return hdr + "; @launch grid=(256,1,1) block=(256,1,1) lds=163840\n" + '.amdgcn_target "amdgcn-amd-amdhsa--gfx950"\n.text\n' + kstart(KN) + "\n".join(g.L) + "\n" + kdesc(KN, vgpr=512, accum=256).replace(".text\n", "")

if __name__ == "__main__":
    import argparse
    ap = argparse.ArgumentParser()
    ap.add_argument("out"); ap.add_argument("--stamps", action="store_true")
    ap.add_argument("--wflag", default=""); ap.add_argument("--cflag", default="")
    ap.add_argument("--gstep", type=int, default=3); ap.add_argument("--tsleep", type=int, default=1)
    ap.add_argument("--qord", type=int, default=1); ap.add_argument("--n0", type=int, default=1); ap.add_argument("--oinit", type=int, default=1)
    ap.add_argument("--fine", type=int, default=0)
    ap.add_argument("--bgate", type=int, default=1)
    ap.add_argument("--adelay", type=int, default=0)
    ap.add_argument("--pfs", type=int, default=64); ap.add_argument("--pf0", type=int, default=4); ap.add_argument("--pfw", type=int, default=2)
    ap.add_argument("--ffpf", type=int, default=1); ap.add_argument("--late", type=int, default=1); ap.add_argument("--n1", type=int, default=2)
    ap.add_argument("--nd", type=int, default=4); ap.add_argument("--gw", type=int, default=0); ap.add_argument("--gsleep", type=int, default=0); ap.add_argument("--fb", type=int, default=4)
    ap.add_argument("--dpos", type=int, default=1); ap.add_argument("--thr", type=float, default=30)
    ap.add_argument("--fine2", type=int, default=0)
    ap.add_argument("--fine3", type=int, default=0); ap.add_argument("--early", type=int, default=1)
    ap.add_argument("--scr", type=int, default=0)
    ap.add_argument("--fakeq", type=int, default=0)
    ap.add_argument("--ss", type=int, default=0); ap.add_argument("--tbar", type=int, default=1)
    ap.add_argument("--cpre", type=int, default=4)
    for k, v in (("d0", 4), ("dn", 12), ("d1", 4), ("d2", 4), ("d3", 2), ("sc", 4), ("ukl", 1), ("ukw", 1), ("w1e", 0), ("nocnt", 0), ("stop", 0), ("qw", 0), ("pdelay", 0), ("prev", 0), ("qws", 2)): ap.add_argument("--" + k, type=int, default=v)
    ap.add_argument("--hmap", type=int, default=1); ap.add_argument("--cpf", type=int, default=1)
    a = ap.parse_args()
    open(a.out, "w").write(gen(vars(a)))
```

```python
import sys, math, struct
from gen_common import *
from gen1 import G, f2u, fswz, QABS, STAT, OPART, APART, FPART, OOB, SCALE

SPIN = 20000
BFLAG = 0x0C0000
LDS_XN = 0
LDS_QX = 8192
LDS_OT = 16384
LDS_FX = 49152
LDS_CX = 49664
LDS_CS = 51200
LDS_GX = 53248
LQ = 131072
LRF = LQ
LLS = LQ + 1024
LP = LQ + 2048

def poll_loop(g, body, cond, spin=SPIN, sleep=1):
    l = g.lab("pl"); e = g.lab("ple"); f = g.lab("plf")
    g(f"s_mov_b32 s64, {spin}")
    g(f"s_branch {f}")
    g(f"{l}:")
    if sleep: g(f"s_sleep {sleep}")
    g(f"{f}:")
    body()
    g("s_sub_u32 s64, s64, 1"); g("s_cmp_eq_u32 s64, 0")
    g("s_waitcnt vmcnt(0)")
    g(f"s_cbranch_scc1 {e}")
    cond()
    g(f"s_cbranch_vccnz {l}")
    g(f"{e}:")

def cnt_wait(g, vt, vo, sleep=4):
    g(f"v_mov_b32 v{vo}, 0")
    poll_loop(g, lambda: g(f"buffer_load_dword v{vt}, v{vo}, s[8:11], 0 offen sc1"),
              lambda: g(f"v_cmp_ne_u32 vcc, 16, v{vt}"), sleep=sleep)

def cnt_signal(g, off):
    e = g.lab("cs")
    g("s_cmp_lg_u32 s3, 0")
    g(f"s_cbranch_scc1 {e}")
    g("s_and_b32 s64, s42, 1"); g("s_lshl_b32 s64, s64, 7")
    g("v_mov_b32 v30, s64"); g("v_mov_b32 v31, 1")
    g("s_mov_b64 exec, 1")
    g(f"buffer_atomic_add v31, v30, s[8:11], 0 offen offset:{off} sc1")
    g("s_mov_b64 exec, -1")
    g(f"{e}:")

def rot_bases(g, base, rot, stride, dst):
    for ks in range(4):
        g(f"s_xor_b32 s63, s{rot}, {ks}"); g(f"s_mul_i32 s63, s63, {stride}"); g(f"s_add_u32 s{dst+ks}, s{base}, s63")

LDS_FW = 57344
NSL = 29
def ffn_issue(g):
    wf = g.o["wflag"]
    g.srd(44, 30, 512*2752); g.srd(48, 32, 512*2752); g.srd(52, 34, 1376*1024)
    for m in range(3):
        g(f"v_add_u32 v7, {64*m}, v1"); g("v_mul_u32_u24 v8, 43691, v7"); g("v_lshrrev_b32 v8, 18, v8")
        g(f"v_mul_u32_u24 v{4+m}, {2752-96}, v8"); g(f"v_lshl_add_u32 v{4+m}, v7, 4, v{4+m}")
    g(f"s_mul_i32 s62, s3, {128*2752}"); g("s_mul_i32 s63, s66, 96"); g("s_add_u32 s62, s62, s63")
    g("s_mul_i32 s63, s3, 24576"); g(f"s_add_u32 m0, s63, {LDS_FW}")
    g("v_lshlrev_b32 v7, 12, v3"); g("v_lshl_add_u32 v7, v2, 4, v7")
    for n in range(12):
        g(f"buffer_load_dwordx4 v{4+n%3}, s[44:47], s62 offen {wf} lds")
        g("s_addk_i32 m0, 0x3000"); g("s_nop 0")
        g(f"buffer_load_dwordx4 v{4+n%3}, s[48:51], s62 offen {wf} lds")
        if n < 11:
            g("s_addk_i32 m0, 0xd400")
            g(f"s_add_u32 s62, s62, {32*2752}" if n % 3 == 2 else "s_nop 0")
    g("s_mul_i32 s62, s66, 49152"); g("s_lshl_b32 s63, s3, 8"); g("s_add_u32 s62, s62, s63"); g("s_add_u32 s63, s62, 0x4000"); g("s_add_u32 s64, s62, 0x8000")
    for e in range(8):
        g(f"buffer_load_dwordx4 v[{160+4*e}:{163+4*e}], v7, s[52:55], s{62+(e&1)} offen offset:{(e>>1)*1024} {wf}")
    for e in range(4):
        g(f"buffer_load_dwordx4 v[{192+4*e}:{195+4*e}], v7, s[52:55], s64 offen offset:{e*1024} {wf}")

def x_issue(g):
    g.srd(56, 16, 4096)
    g("v_lshlrev_b32 v8, 3, v3")
    g("s_lshl_b32 s62, s67, 10"); g("s_lshl_b32 s63, s3, 8"); g("s_add_u32 s62, s62, s63")
    for t in range(8):
        g(f"buffer_load_dwordx2 v[{96+2*t}:{97+2*t}], v8, s[56:59], s62 offen offset:{32*t}")
    for k in range(4): g(f"v_mov_b32 v{24+k}, 0x3f803f80")

def x_finish(g):
    for t in range(8):
        for q in range(2):
            g(f"v_lshlrev_b32 v{128+4*t+2*q}, 16, v{96+2*t+q}")
            g(f"v_and_b32 v{128+4*t+2*q+1}, 0xffff0000, v{96+2*t+q}")

def ffn_finish(g):
    g("v_lshrrev_b32 v6, 2, v1"); g("v_mul_u32_u24 v6, 96, v6"); g("v_and_b32 v28, 3, v1"); g("v_lshl_add_u32 v6, v28, 3, v6")
    g("s_mul_i32 s63, s3, 24576"); g(f"s_add_u32 s63, s63, {LDS_FW}"); g("v_add_u32 v6, s63, v6")
    for p in range(4):
        g(f"v_cmp_eq_u32 vcc, {p}, v28"); g("s_nop 1"); g(f"v_cndmask_b32 v{16+p}, 0, -1, vcc")
    g("v_and_b32 v29, 0xffff, v16"); g("v_and_b32 v30, 0xffff0000, v17"); g("v_or_b32 v29, v29, v30")
    g("v_and_b32 v30, 0xffff, v18"); g("v_and_b32 v31, 0xffff0000, v19"); g("v_or_b32 v30, v30, v31")
    g("v_lshlrev_b32 v120, 5, v2"); g("s_lshl_b32 s62, s3, 9"); g(f"s_add_u32 s62, s62, {LDS_CS}"); g("v_add_u32 v120, s62, v120")
    g("v_lshl_add_u32 v7, v3, 2, v28"); g("v_lshlrev_b32 v7, 5, v7")
    g("s_waitcnt vmcnt(36)")
    x_finish(g)
    for ks in range(4):
        g(f"s_waitcnt vmcnt({12 + 6*(3-ks)})")
        for t in range(6):
            for hv in range(2):
                r = 24*ks+4*t+2*hv
                g(f"ds_read_b64_tr_b16 a[{r}:{r+1}], v6 offset:{ks*3072+hv*1536+(t%3)*32+(t//3)*12288}")
    if g.o["fine2"]: g.stamp(2)
    g("s_waitcnt lgkmcnt(0)")
    for ks in range(4):
        for t in range(6):
            c = "0" if ks == 0 else f"v[{32+4*t}:{35+4*t}]"
            g(f"v_mfma_f32_16x16x32_bf16 v[{32+4*t}:{35+4*t}], v[24:27], a[{24*ks+4*t}:{24*ks+4*t+3}], {c}")
    g("s_waitcnt vmcnt(4)")
    g.perm8x8(160, 224)
    g("ds_write2_b32 v120, v32, v36 offset0:0 offset1:1"); g("ds_write2_b32 v120, v40, v44 offset0:2 offset1:4"); g("ds_write2_b32 v120, v48, v52 offset0:5 offset1:6")
    g("s_waitcnt vmcnt(0)")
    for t in range(8):
        for p in range(2):
            g(f"v_perm_b32 v{208+2*t+p}, v{192+4*(2*p+1)+(t>>1)}, v{192+4*(2*p)+(t>>1)}, s{60+(t&1)}")
    g("s_waitcnt lgkmcnt(0)")
    g("s_barrier")
    for w in range(4):
        g(f"ds_read_b128 v[{32+8*w}:{35+8*w}], v7 offset:{LDS_CS+512*w}"); g(f"ds_read_b128 v[{36+8*w}:{39+8*w}], v7 offset:{LDS_CS+512*w+16}")
    g(f"v_add_u32 v120, {LDS_GX-LDS_CS}, v120")
    g("s_waitcnt lgkmcnt(0)")
    for k in (0, 1, 2, 4, 5, 6):
        g(f"v_add_f32 v{32+k}, v{32+k}, v{40+k}"); g(f"v_add_f32 v{48+k}, v{48+k}, v{56+k}")
        g(f"v_add_f32 v{160+k}, v{32+k}, v{48+k}")

def tile_setup(g, rot):
    g("v_lshlrev_b32 v8, 1, v3"); g("v_xor_b32 v8, v8, v2"); g("v_lshlrev_b32 v8, 4, v8"); g("v_lshl_add_u32 v8, v3, 10, v8")
    g("v_xor_b32 v9, 0x80, v8")
    g("s_lshl_b32 s68, s3, 13"); g(f"s_add_u32 s68, s68, {LDS_OT}")
    g("v_bfe_u32 v11, v1, 2, 2")
    g("v_lshl_add_u32 v10, v3, 3, v11"); g("v_lshlrev_b32 v10, 8, v10")
    g("v_and_b32 v12, 1, v3"); g("v_lshl_add_u32 v12, v12, 2, v11"); g("v_lshlrev_b32 v12, 1, v12")
    g("v_bfe_u32 v13, v1, 1, 1"); g("v_xor_b32 v12, v12, v13")
    g("v_lshl_add_u32 v10, v12, 4, v10")
    g("v_and_b32 v13, 1, v1"); g("v_lshl_add_u32 v10, v13, 3, v10")
    g("v_add_u32 v10, s68, v10")
    if rot is not None:
        g(f"s_lshl_b32 s63, s{rot}, 6"); g("v_xor_b32 v10, s63, v10")
    for t in range(8): g(f"v_xor_b32 v{112+t}, {t<<5}, v10")

def tile_dma(g, sbase):
    g("s_mov_b32 m0, s68"); g(f"s_mov_b32 s63, s{sbase}")
    for n in range(8):
        g(f"buffer_load_dwordx4 v{8+((n>>1)&1)}, s[4:7], s63 offen sc1 lds")
        if n < 7:
            g("s_addk_i32 m0, 0x400"); g("s_addk_i32 s63, 0x1000")

def tile_read(g, A):
    for t in range(8):
        if t == 6: g("s_waitcnt lgkmcnt(8)")
        g(f"ds_read_b64_tr_b16 v[{A+4*t}:{A+4*t+1}], v{112+t}")
        g(f"ds_read_b64_tr_b16 v[{A+4*t+2}:{A+4*t+3}], v{112+t} offset:1024")

def ffn_stage(g):
    tile_setup(g, None)
    g("s_lshl_b32 s69, s67, 15"); g("s_lshl_b32 s63, s3, 8"); g("s_add_u32 s69, s69, s63"); g(f"s_add_u32 s69, s69, {APART}")
    g("v_lshrrev_b32 v13, 1, v1"); g("v_lshlrev_b32 v13, 10, v13"); g("v_and_b32 v14, 1, v1"); g("v_lshl_add_u32 v13, v14, 7, v13")
    g("v_lshlrev_b32 v123, 5, v2"); g("v_lshl_add_u32 v123, v3, 4, v123")
    g("s_lshl_b32 s74, s67, 5"); g("s_add_u32 s74, s74, s66"); g("s_lshl_b32 s74, s74, 11")
    g("s_lshl_b32 s63, s3, 9"); g("s_add_u32 s74, s74, s63"); g(f"s_add_u32 s74, s74, {FPART}")
    c1 = -2 * math.sqrt(2 / math.pi) * math.log2(math.e)
    g(f"s_mov_b32 s75, 0x{f2u(c1*0.044715):08x}"); g(f"v_mov_b32 v124, 0x{f2u(c1):08x}")
    g(f"s_mov_b32 s65, {SPIN}")
    l = g.lab("fp"); e = g.lab("fpe")
    g(f"{l}:")
    poll_loop(g, lambda: g("buffer_load_dword v14, v13, s[4:7], s69 offen sc1"), lambda: g("v_cmp_eq_u32 vcc, -1, v14"), spin=4*SPIN, sleep=g.o["fsleep"])
    tile_dma(g, 69)
    g.stamp(7)
    g("s_waitcnt vmcnt(0)")
    tile_read(g, 32)
    for t in range(8):
        g(f"s_waitcnt lgkmcnt({14-2*t})")
        g(f"v_mfma_f32_16x16x32_bf16 v[{64+4*t}:{67+4*t}], v[{32+4*t}:{35+4*t}], v[24:27], v[{128+4*t}:{131+4*t}]")
    for t in range(8):
        g(f"v_cvt_pk_bf16_f32 v{96+2*t}, v{64+4*t}, v{65+4*t}")
        g(f"v_cvt_pk_bf16_f32 v{97+2*t}, v{66+4*t}, v{67+4*t}")
    def mm(ks, t):
        A = f"v[{96+4*ks}:{99+4*ks}]"
        B = f"a[{24*ks+4*t}:{24*ks+4*t+3}]" if t < 6 else ("v[24:27]" if t == 6 else A)
        c = "0" if ks == 0 else f"v[{32+4*t}:{35+4*t}]"
        g(f"v_mfma_f32_16x16x32_bf16 v[{32+4*t}:{35+4*t}], {A}, {B}, {c}")
    for ks in range(4): mm(ks, 6)
    g(f"s_cmp_ge_u32 s66, {NSL}"); g("s_cbranch_scc1 L_HPUB")
    for ks in range(4):
        for t in (7, 0, 1, 2, 3, 4, 5): mm(ks, t)
    g("s_sub_u32 s65, s65, 1"); g("s_cmp_eq_u32 s65, 0"); g(f"s_cbranch_scc1 {e}")
    g("v_cmp_u_f32 vcc, v56, v56")
    g(f"s_cbranch_vccnz {l}")
    g(f"{e}:")
    hp = ["L_HPUB:", "s_sub_u32 s65, s65, 1", "s_cmp_eq_u32 s65, 0", "s_cbranch_scc1 L_HPUB2", "s_nop 3", "v_cmp_u_f32 vcc, v56, v56", f"s_cbranch_vccnz {l}", "L_HPUB2:",
          "v_lshlrev_b32 v13, 4, v3", "s_mov_b32 s70, 0x00010001", "s_mov_b32 s71, 0x00010001", "s_mov_b64 exec, s[70:71]"] + \
         [f"buffer_store_dwordx4 v[{64+4*t}:{67+4*t}], v13, s[4:7], s74 offen offset:{64*t} sc1" for t in range(8)] + ["s_mov_b64 exec, -1", "s_branch L_fin"]
    g.slow += hp
    g("s_mov_b64 exec, 0xffff")
    g("ds_write2_b32 v120, v56, v60 offset0:3 offset1:7")
    g("ds_write2_b32 v120, v32, v36 offset0:0 offset1:1"); g("ds_write2_b32 v120, v40, v44 offset0:2 offset1:4")
    g("s_nop 0")
    g("ds_write2_b32 v120, v48, v52 offset0:5 offset1:6")
    g("s_mov_b64 exec, -1")
    g("s_waitcnt lgkmcnt(0)")
    g("s_barrier")
    for w in range(4):
        g(f"ds_read_b128 v[{32+8*w}:{35+8*w}], v7 offset:{LDS_GX+512*w}"); g(f"ds_read_b128 v[{36+8*w}:{39+8*w}], v7 offset:{LDS_GX+512*w+16}")
    g("s_waitcnt lgkmcnt(4)")
    for k in (3, 7, 0, 1, 2, 4, 5, 6): g(f"v_add_f32 v{32+k}, v{32+k}, v{40+k}")
    g("s_waitcnt lgkmcnt(0)")
    for k in (3, 7): g(f"v_add_f32 v{48+k}, v{48+k}, v{56+k}")
    for k in (3, 7): g(f"v_add_f32 v{32+k}, v{32+k}, v{48+k}")
    rest = [f"v_add_f32 v{48+k}, v{48+k}, v{56+k}" for k in (0, 1, 2, 4, 5, 6)] + [f"v_add_f32 v{32+k}, v{32+k}, v{48+k}" for k in (0, 1, 2, 4, 5, 6)]
    chain = [f"v_mul_f32 v35, 0x{f2u(1/512):08x}, v35", f"v_mul_f32 v39, 0x{f2u(1/512):08x}, v39", "v_fma_f32 v39, -v35, v35, v39", "v_max_f32 v39, 0, v39",
             "v_cvt_pk_bf16_f32 v39, v35, v39", "v_lshlrev_b32 v35, 16, v39", "v_and_b32 v39, 0xffff0000, v39", f"v_add_f32 v39, 0x{f2u(1e-5):08x}, v39",
             "v_cvt_pk_bf16_f32 v39, v39, v39", "v_lshlrev_b32 v39, 16, v39", "v_sqrt_f32 v39, v39", None, "v_cvt_pk_bf16_f32 v39, v39, v39", "v_lshlrev_b32 v39, 16, v39", "v_rcp_f32 v39, v39"]
    for x in chain:
        if x: g(x)
        if rest: g(rest.pop(0))
    K6 = (0, 1, 2, 4, 5, 6)
    for k in K6: g(f"v_fma_f32 v{32+k}, -v35, v{160+k}, v{32+k}")
    for k in K6: g(f"v_mul_f32 v{32+k}, v39, v{32+k}")
    g("v_cvt_pk_bf16_f32 v40, v32, v33"); g("v_cvt_pk_bf16_f32 v41, v34, v38"); g("v_cvt_pk_bf16_f32 v42, v36, v37")
    g("v_lshlrev_b32 v32, 16, v40"); g("v_and_b32 v33, 0xffff0000, v40"); g("v_lshlrev_b32 v34, 16, v41")
    for k in range(3): g(f"v_mul_f32 v{44+k}, v{32+k}, v{32+k}")
    for k in range(3): g(f"v_fma_f32 v{44+k}, v{44+k}, s75, v124")
    for k in range(3): g(f"v_mul_f32 v{44+k}, v{44+k}, v{32+k}")
    for k in range(3): g(f"v_exp_f32 v{44+k}, v{44+k}")
    g("v_lshlrev_b32 v36, 16, v42")
    for k in range(3): g(f"v_add_f32 v{44+k}, 1.0, v{44+k}")
    for k in range(3): g(f"v_rcp_f32 v{44+k}, v{44+k}")
    g("v_and_b32 v37, 0xffff0000, v42"); g("v_and_b32 v38, 0xffff0000, v41")
    for k in range(3): g(f"v_mul_f32 v{44+k}, v{44+k}, v{32+k}")
    g("v_cvt_pk_bf16_f32 v40, v44, v45"); g("v_cvt_pk_bf16_f32 v41, v46, v46")
    g("v_lshlrev_b32 v44, 16, v40"); g("v_and_b32 v45, 0xffff0000, v40"); g("v_and_b32 v46, 0xffff0000, v41")
    for k in range(3): g(f"v_mul_f32 v{44+k}, v{44+k}, v{36+k}")
    g("v_cvt_pk_bf16_f32 v40, v44, v45"); g("v_cvt_pk_bf16_f32 v41, v46, v46")
    for p in range(4): g(f"v_and_b32 v{48+p}, v40, v{16+p}")
    for p in range(2): g(f"v_and_b32 v{52+p}, v41, v{29+p}")
    for t in range(8):
        g(f"v_mfma_f32_16x16x32_bf16 v[{64+4*t}:{67+4*t}], v[48:51], v[{224+4*t}:{227+4*t}], 0")
    g("v_cmp_ne_u32 vcc, 0, v3")
    for t in range(8):
        g(f"v_mfma_f32_16x16x16_bf16 v[{64+4*t}:{67+4*t}], v[52:53], v[{208+2*t}:{209+2*t}], v[{64+4*t}:{67+4*t}]")
    g.nop(1)
    for t in range(8):
        g(f"v_add_f32 v{64+4*t}, v{64+4*t}, v{65+4*t}"); g(f"v_add_f32 v{66+4*t}, v{66+4*t}, v{67+4*t}")
    for t in range(8):
        g(f"v_add_f32 v{64+4*t}, v{64+4*t}, v{66+4*t}")
    for q in range(4):
        g(f"v_cndmask_b32 v{32+q}, v{64+4*q}, v{80+4*q}, vcc")
    g("s_mov_b32 exec_hi, 0")
    g("buffer_store_dwordx4 v[32:35], v123, s[4:7], s74 offen sc1")
    g("s_mov_b64 exec, -1")
    g.stamp(8)

def tcu(g):
    opts = g.o; wf = opts["wflag"]; cf = opts["cflag"]
    if opts["ql"]:
        g("s_lshl_b32 s74, s72, 10"); g("s_lshl_b32 s62, s73, 8"); g("s_add_u32 s74, s74, s62"); g("s_lshl_b32 s62, s3, 6"); g("s_add_u32 s74, s74, s62")
        g("v_lshlrev_b32 v28, 15, v3"); g("v_lshl_add_u32 v28, v2, 2, v28")
    else:
        g("s_lshl_b32 s74, s72, 12"); g("s_lshl_b32 s62, s73, 10"); g("s_add_u32 s74, s74, s62")
        g("v_lshlrev_b32 v28, 2, v0")
    g("s_lshl_b32 s75, s73, 5"); g("s_add_u32 s75, s75, s72")
    g("v_lshlrev_b32 v29, 4, v0")
    g("s_lshl_b32 s76, s75, 12"); g(f"s_add_u32 s76, s76, {STAT}")
    g("v_lshlrev_b32 v4, 16, v3"); g("v_lshl_add_u32 v4, v2, 4, v4")
    g("s_lshl_b32 s62, s3, 20"); g("s_lshl_b32 s63, s72, 8")
    g("s_add_u32 s62, s62, s63")
    rot_bases(g, 62, 73, 32*8192, 52)
    g("v_lshlrev_b32 v5, 14, v2"); g("v_lshl_add_u32 v5, v3, 4, v5")
    g("s_lshl_b32 s78, s73, 20"); g("s_lshl_b32 s63, s3, 18"); g("s_add_u32 s78, s78, s63"); g("s_lshl_b32 s63, s72, 8"); g("s_add_u32 s78, s78, s63")
    g("s_add_u32 s79, s78, 8192")
    g("s_mov_b32 s14, 0x400000"); g("s_mov_b32 s15, 0x20000"); g("s_mov_b32 s58, 4096"); g("s_mov_b32 s59, 0x20000")
    g("s_mov_b32 s46, 0x400000"); g("s_mov_b32 s47, 0x20000")
    g("s_waitcnt lgkmcnt(0)")
    g("s_mov_b32 s56, s16"); g("s_and_b32 s57, s17, 0xffff"); g("s_mov_b32 s12, s20"); g("s_and_b32 s13, s21, 0xffff")
    def wq(ks):
        for e in range(8):
            g(f"s_add_u32 s63, s{52+ks}, {e*8192}")
            r = 32 + 32*ks + 4*e
            g(f"buffer_load_dwordx4 v[{r}:{r+3}], v4, s[12:15], s63 offen {wf}")
    g("buffer_load_dwordx4 v[8:11], v29, s[56:59], 0 offen")
    wq(0)
    g("s_mov_b32 s44, s22"); g("s_and_b32 s45, s23, 0xffff")
    ukl = opts["ukl"]
    def wuk():
        for tt in range(2):
            for ks in range(4):
                r = 160 + 16*tt + 4*ks
                g(f"buffer_load_dwordx4 v[{r}:{r+3}], v5, s[44:47], s{78+tt} offen offset:{64*ks} {opts['ukflag']}")
    if not ukl:
        if opts["tbar"]: g("s_barrier")
        wuk()
    g.srd(4, 40, WS); g.srd(8, 38, 256)
    for k in range(4): g(f"v_mov_b32 v{24+k}, -1")
    g(f"s_lshl_b32 s62, s42, 11"); g(f"s_add_u32 s62, s62, {FPART}")
    g("s_lshl_b32 s63, s75, 10"); g(f"s_add_u32 s63, s63, {APART - 192*16}")
    g("v_add_u32 v30, s62, v29"); g("v_add_u32 v31, s63, v29")
    g("v_cmp_gt_u32 vcc, 128, v0"); g(f"v_mov_b32 v7, {OOB}"); g("s_nop 0"); g("v_cndmask_b32 v30, v7, v30, vcc")
    g("v_cmp_le_u32 vcc, 192, v0"); g("s_nop 1"); g("v_cndmask_b32 v30, v30, v31, vcc")
    g("buffer_store_dwordx4 v[24:27], v29, s[4:7], s76 offen sc1")
    g("buffer_store_dwordx4 v[24:27], v30, s[4:7], 0 offen sc1")
    g("s_mul_i32 s62, s3, 1040"); g("v_lshlrev_b32 v6, 4, v1"); g("v_add_u32 v6, s62, v6")
    g("v_and_b32 v7, 3, v2"); g("v_mul_u32_u24 v7, 1040, v7"); g("v_lshl_add_u32 v7, v3, 4, v7")
    g("s_lshl_b32 s62, s3, 8"); g("v_add_u32 v7, s62, v7")
    g(f"s_waitcnt vmcnt({10 if ukl else 18})")
    for q in range(4):
        g(f"v_lshlrev_b32 v{12+2*q}, 16, v{8+q}"); g(f"v_and_b32 v{13+2*q}, 0xffff0000, v{8+q}")
    g("v_add_f32 v20, v12, v13"); g("v_add_f32 v21, v14, v15"); g("v_add_f32 v22, v16, v17"); g("v_add_f32 v23, v18, v19")
    g("v_add_f32 v20, v20, v21"); g("v_add_f32 v22, v22, v23"); g("v_add_f32 v20, v20, v22")
    g.allred("v_add_f32", 20, 21)
    g(f"v_mul_f32 v20, 0x{f2u(1/512):08x}, v20")
    g("v_sub_f32 v22, v12, v20"); g("v_mul_f32 v21, v22, v22")
    for k in range(1, 8):
        g(f"v_sub_f32 v22, v{12+k}, v20"); g("v_fmac_f32 v21, v22, v22")
    g.allred("v_add_f32", 21, 22)
    g(f"v_mul_f32 v21, 0x{f2u(1/512):08x}, v21")
    g.bf16r(20, 20); g.bf16r(21, 21)
    g(f"v_add_f32 v21, 0x{f2u(1e-5):08x}, v21"); g.bf16r(21, 21)
    g("v_sqrt_f32 v21, v21"); g("s_nop 0"); g.bf16r(21, 21)
    g("v_rcp_f32 v21, v21")
    for k in range(8): g(f"v_sub_f32 v{12+k}, v{12+k}, v20")
    for q in range(4): g(f"v_cvt_pk_bf16_f32 v{8+q}, v{12+2*q}, v{13+2*q}")
    for q in range(4):
        g(f"v_lshlrev_b32 v{12+2*q}, 16, v{8+q}"); g(f"v_and_b32 v{13+2*q}, 0xffff0000, v{8+q}")
    for k in range(8): g(f"v_mul_f32 v{12+k}, v{12+k}, v21")
    for q in range(4): g(f"v_cvt_pk_bf16_f32 v{8+q}, v{12+2*q}, v{13+2*q}")
    g(f"ds_write_b128 v6, v[8:11] offset:{LDS_XN}")
    g("v_mov_b32 v30, 0")
    g(f"s_waitcnt vmcnt({(2 if ukl else 10) + opts['w1e']}) lgkmcnt(0)")
    g.stamp(1)
    fq = opts["fakeq"]
    if not fq: wq(1)
    g("s_barrier")
    for ks in range(4):
        g(f"s_xor_b32 s63, s73, {ks}"); g("s_lshl_b32 s63, s63, 6"); g("v_add_u32 v6, s63, v7")
        g(f"ds_read_b128 v[{8+4*ks}:{11+4*ks}], v6 offset:{LDS_XN}")
    if not fq: wq(2)
    for ks in range(1 if fq else 4):
        if ks == 0: g(f"s_waitcnt vmcnt({(2 if ukl else 10) + 16})")
        if ks == 1: wq(3)
        if ks == 2 and ukl: wuk()
        if ks: g(f"s_waitcnt vmcnt({8*(3-ks) + (1 if ks == 3 else 0) + (8 if ukl and ks >= 2 else 0)})")
        if ks == 2:
            if opts["nocnt"]: g("buffer_load_dword v31, v30, s[56:59], 0 offen")
            else: g("buffer_load_dword v31, v30, s[8:11], 0 offen sc1")
        if ks == 3: g.stamp(7)
        g.perm8x8(32+32*ks, 192)
        if ks == 0: g("s_waitcnt lgkmcnt(0)")
        for t in range(8):
            c = "0" if ks == 0 else f"v[{224+4*t}:{227+4*t}]"
            g(f"v_mfma_f32_16x16x32_bf16 v[{224+4*t}:{227+4*t}], v[{8+4*ks}:{11+4*ks}], v[{192+4*t}:{195+4*t}], {c}")
    g("s_mul_i32 s62, s3, 272"); g("v_lshlrev_b32 v6, 4, v2"); g("v_add_u32 v6, s62, v6")
    g("v_mul_u32_u24 v7, 272, v2"); g("v_lshl_add_u32 v7, v3, 4, v7")
    for p in range(4):
        for b in range(4):
            g(f"v_cvt_pk_bf16_f32 v{8+4*b+p}, v{224+8*p+b}, v{228+8*p+b}")
    g("s_mov_b64 exec, 0xffff")
    for b in range(4):
        g(f"ds_write_b128 v6, v[{8+4*b}:{11+4*b}] offset:{LDS_QX+4*272*b}")
    g("s_mov_b64 exec, -1")
    g("s_waitcnt lgkmcnt(0)")
    g("s_barrier")
    if fq == 1:
        g.stamp(4); g("s_waitcnt vmcnt(2)"); g.stamp(5); g("s_waitcnt vmcnt(0)"); g.stamp(6)
        g("buffer_load_dword v31, v30, s[8:11], 0 offen sc1"); g("s_waitcnt vmcnt(0)"); g.stamp(7)
        g("s_branch L_fin")
    if fq:
        g("s_memrealtime s[62:63]"); g("s_waitcnt lgkmcnt(0)"); g(f"s_add_u32 s64, s62, {fq}")
        g("L_fq:")
        g("s_memrealtime s[62:63]"); g("s_waitcnt lgkmcnt(0)")
        g("s_sub_u32 s62, s62, s64"); g("s_cmp_lt_i32 s62, -50"); g("s_cbranch_scc1 L_fq")
        g("buffer_load_dword v31, v30, s[8:11], 0 offen sc1")
        g("L_fq2:")
        g("s_memrealtime s[62:63]"); g("s_waitcnt lgkmcnt(0)")
        g("s_sub_u32 s62, s62, s64"); g("s_cmp_lt_i32 s62, 0"); g("s_cbranch_scc1 L_fq2")
        g("s_waitcnt vmcnt(1)")
    for ks in range(4):
        g(f"ds_read_b128 v[{8+4*ks}:{11+4*ks}], v7 offset:{LDS_QX+64*ks}")
    if ukl: g("s_waitcnt vmcnt(1)")
    for ks in range(4):
        g(f"s_waitcnt lgkmcnt({3-ks})")
        for tt in range(2):
            c = "0" if ks == 0 else f"v[{224+4*tt}:{227+4*tt}]"
            g(f"v_mfma_f32_16x16x32_bf16 v[{224+4*tt}:{227+4*tt}], v[{8+4*ks}:{11+4*ks}], v[{160+16*tt+4*ks}:{163+16*tt+4*ks}], {c}")
    g("s_waitcnt vmcnt(0)")
    g("v_cmp_ne_u32 vcc, 16, v31")
    g.srd(12, 18, 32 << 20)
    g("s_lshl_b32 s77, s75, 15"); g(f"s_add_u32 s77, s77, {OPART}")
    for tt in range(2):
        r = 224 + 4*tt
        g(f"v_add_f32 v{r}, v{r}, v{r+1}"); g(f"v_add_f32 v{r+2}, v{r+2}, v{r+3}")
    for tt in range(2):
        r = 224 + 4*tt
        g(f"v_add_f32 v{r}, v{r}, v{r+2}")
    for tt in range(2):
        r = 224 + 4*tt
        g(f"v_mul_f32 v{r}, 0x{f2u(SCALE):08x}, v{r}")
    g("v_cvt_pk_bf16_f32 v8, v224, v228")
    g("s_cbranch_vccz L_T_c0ok" if not opts["nocnt"] else "s_branch L_T_c0ok")
    cnt_wait(g, 31, 30)
    g("L_T_c0ok:")
    g("buffer_store_dword v8, v28, s[4:7], s74 offen sc1")
    g.stamp(2)
    if opts["stop"]: g("s_branch L_fin")
    if opts["pdelay"]:
        g(f"s_add_u32 s64, s80, {opts['pdelay']}")
        g("L_T_dl:")
        g("s_sleep 4")
        g("s_memrealtime s[62:63]"); g("s_waitcnt lgkmcnt(0)")
        g("s_sub_u32 s62, s62, s64"); g("s_cmp_lt_i32 s62, 0"); g("s_cbranch_scc1 L_T_dl")
    if opts["qw"]:
        g("v_lshlrev_b32 v4, 11, v1"); g("s_lshr_b32 s62, s42, 3"); g("s_lshl_b32 s62, s62, 7")
        g("s_waitcnt vmcnt(0)")
        poll_loop(g, lambda: g("buffer_load_dword v32, v4, s[4:7], s62 offen sc1"), lambda: g("v_cmp_eq_u32 vcc, -1, v32"), sleep=opts["qws"])
        g.stamp(8)
    def ttouch():
        g.srd(44, 24, 4 << 20); g.srd(48, 26, 4 << 20)
        g("v_lshrrev_b32 v5, 1, v1"); g("v_lshlrev_b32 v5, 13, v5"); g("v_and_b32 v6, 1, v1"); g("v_lshl_add_u32 v5, v6, 7, v5")
        g("s_lshl_b32 s63, s3, 20"); g("s_lshl_b32 s64, s73, 18"); g("s_add_u32 s63, s63, s64"); g("s_lshl_b32 s64, s72, 8"); g("s_add_u32 s63, s63, s64")
        g("buffer_load_dword v33, v5, s[44:47], s63 offen")
        g("v_lshlrev_b32 v5, 7, v1")
        g("s_lshl_b32 s63, s72, 17"); g("s_lshl_b32 s64, s73, 15"); g("s_add_u32 s63, s63, s64"); g("s_lshl_b32 s64, s3, 13"); g("s_add_u32 s63, s63, s64")
        g("buffer_load_dword v33, v5, s[48:51], s63 offen")
    pf0 = opts["pf0"]; pfw = opts["pfw"]
    g("v_lshlrev_b32 v4, 7, v1")
    TS = 0x100000 if opts["il"] else 0x8000
    if opts["il"]:
        g("s_lshr_b32 s62, s42, 5"); g("s_lshl_b32 s62, s62, 23"); g("s_and_b32 s63, s42, 31"); g("s_lshl_b32 s63, s63, 15"); g("s_add_u32 s62, s62, s63")
    else: g("s_lshl_b32 s62, s42, 18")
    g("s_lshl_b32 s63, s3, 13"); g("s_add_u32 s62, s62, s63"); g(f"s_add_u32 s62, s62, {pf0*TS}")
    for i in range(8 - pf0):
        if i >= pfw: g(f"s_waitcnt vmcnt({pfw-1})")
        if opts["tt"] and i == opts["ttp"]: ttouch()
        g(f"buffer_load_dword v32, v4, s[12:15], s62 offen {opts['pflag']}")
        g(f"s_add_u32 s62, s62, {TS}")
    g(f"s_waitcnt vmcnt({opts['pfe']})")
    if opts["tt"] and opts["ttp"] >= 8 - pf0: ttouch()
    g.stamp(9)
    g.srd(12, 24, 4 << 20); g.srd(44, 26, 4 << 20)
    g("s_lshl_b32 s62, s3, 20"); g("s_lshl_b32 s63, s72, 8"); g("s_add_u32 s62, s62, s63")
    rot_bases(g, 62, 73, 32*8192, 52)
    g("v_lshlrev_b32 v4, 15, v3"); g("v_lshl_add_u32 v4, v2, 4, v4")
    g("v_lshlrev_b32 v5, 13, v3"); g("v_lshl_add_u32 v5, v2, 4, v5")
    g("s_lshl_b32 s79, s72, 17"); g("s_lshl_b32 s63, s3, 8"); g("s_add_u32 s79, s79, s63")
    order = [[0, 4, 1, 2, 3, 5, 6, 7], [0, 1, 2, 3, 4, 5, 6, 7], [4, 0, 5, 6, 7, 1, 2, 3], [0, 4, 5, 6, 7, 1, 2, 3]][opts["tord"]]
    NB = opts['nb']
    def buf(i): return 32 + 32*(i % NB)
    def tw_issue2(i):
        n = order[i]; ks = n & 3
        if n >= 4:
            g(f"s_xor_b32 s62, s73, {ks}"); g("s_lshl_b32 s62, s62, 15"); g("s_add_u32 s62, s62, s79")
        for e in range(8):
            r = buf(i) + 4*e
            if n < 4:
                g(f"s_add_u32 s63, s{52+ks}, {(16*(e>>2)+(e&3))*8192}")
                g(f"buffer_load_dwordx4 v[{r}:{r+3}], v4, s[12:15], s63 offen {wf}")
            else:
                if e == 4: g("s_addk_i32 s62, 0x1000")
                g(f"buffer_load_dwordx4 v[{r}:{r+3}], v5, s[44:47], s62 offen offset:{(e&3)*1024} {wf}")
    issued = 2
    tw_issue2(0); tw_issue2(1)
    for i in range(8):
        g(f"s_waitcnt vmcnt({8*(issued-1-i)})")
        lim = min(8, i + NB) if i >= opts["tg"] else issued
        while issued < lim:
            tw_issue2(issued); issued += 1
        R = buf(i); acc = 32*order[i]
        for t in range(8):
            for p in range(4):
                g(f"v_perm_b32 v{8+p+4*(t&1)}, v{R+4*(2*p+1)+(t>>1)}, v{R+4*(2*p)+(t>>1)}, s{60+(t&1)}")
            for p in range(4):
                g(f"v_accvgpr_write_b32 a{acc+4*t+p}, v{8+p+4*(t&1)}")
    g.stamp(3)
    tile_setup(g, 73)
    g("s_lshl_b32 s63, s3, 8"); g("s_add_u32 s69, s77, s63")
    g("v_and_b32 v13, 31, v1"); g("v_lshlrev_b32 v14, 7, v13")
    g("s_lshl_b32 s62, s3, 7"); g("v_lshlrev_b32 v13, 1, v13"); g("v_add_u32 v13, s62, v13")
    g("v_and_b32 v15, 1, v2"); g("v_lshlrev_b32 v15, 6, v15"); g("v_lshl_add_u32 v15, v3, 4, v15"); g("v_add_u32 v15, s62, v15")
    g("s_mul_i32 s62, s3, 272"); g("v_lshlrev_b32 v120, 4, v2"); g("v_add_u32 v121, s62, v120")
    g("v_and_b32 v122, 3, v2"); g("v_mul_u32_u24 v122, 272, v122"); g("v_lshl_add_u32 v122, v3, 4, v122")
    for ks in range(4):
        g(f"s_xor_b32 s63, s73, {ks}"); g("s_lshl_b32 s63, s63, 6"); g(f"v_add_u32 v{124+ks}, s63, v122")
    g("s_lshl_b32 s78, s75, 10"); g("s_lshl_b32 s63, s3, 8"); g("s_add_u32 s78, s78, s63"); g(f"s_add_u32 s78, s78, {APART}")
    def cond():
        g("v_max_u32 v34, v32, v33"); g("v_cmp_eq_u32 vcc, -1, v34")
    poll_loop(g, lambda: g("buffer_load_dwordx2 v[32:33], v14, s[4:7], s76 offen sc1"), cond, spin=4*SPIN, sleep=g.o["tsleep"])
    tile_dma(g, 69)
    g.stamp(4)
    g("v_mov_b32 v34, v32")
    g.allred("v_max_f32", 34, 35, 32)
    g("v_sub_f32 v34, v32, v34"); g("v_exp_f32 v34, v34"); g("s_nop 0")
    g("v_mul_f32 v36, v34, v33")
    g.allred("v_add_f32", 36, 35, 32)
    g("v_rcp_f32 v36, v36"); g("s_nop 0")
    g("v_mul_f32 v34, v34, v36")
    g.bf16r(35, 34)
    g("v_sub_f32 v35, v34, v35")
    g("v_cvt_pk_bf16_f32 v34, v34, v35")
    g(f"ds_write_b16 v13, v34 offset:{LDS_FX}")
    g(f"ds_write_b16_d16_hi v13, v34 offset:{LDS_FX+64}")
    g("s_waitcnt lgkmcnt(0)")
    g(f"ds_read_b128 v[28:31], v15 offset:{LDS_FX}")
    g("s_waitcnt vmcnt(0) lgkmcnt(0)")
    g.stamp(5)
    tile_read(g, 32)
    for t in range(8):
        g(f"s_waitcnt lgkmcnt({14-2*t})" if not g.o.get("stamps") else "s_waitcnt lgkmcnt(0)")
        g(f"v_mfma_f32_16x16x32_bf16 v[{64+4*t}:{67+4*t}], v[{32+4*t}:{35+4*t}], v[28:31], 0")
    for t in range(8):
        g(f"v_cvt_pk_bf16_f32 v{96+2*t}, v{64+4*t}, v{65+4*t}")
        g(f"v_cvt_pk_bf16_f32 v{97+2*t}, v{66+4*t}, v{67+4*t}")
    for ks in range(4):
        for t in range(8):
            c = "0" if ks == 0 else f"v[{32+4*t}:{35+4*t}]"
            g(f"v_mfma_f32_16x16x32_bf16 v[{32+4*t}:{35+4*t}], v[{96+4*ks}:{99+4*ks}], a[{32*ks+4*t}:{32*ks+4*t+3}], {c}")
    g.nop(1)
    for t in range(8):
        g(f"v_add_f32 v{32+4*t}, v{32+4*t}, v{33+4*t}")
    for p in range(4):
        g(f"v_cvt_pk_bf16_f32 v{64+p}, v{32+8*p}, v{36+8*p}")
    g("s_mov_b64 exec, 0xffff")
    g(f"ds_write_b128 v121, v[64:67] offset:{LDS_CX}")
    g("s_mov_b64 exec, -1")
    g("s_waitcnt lgkmcnt(0)")
    g("s_barrier")
    for ks in range(4):
        g(f"ds_read_b128 v[{96+4*ks}:{99+4*ks}], v{124+ks} offset:{LDS_CX}")
    for ks in range(4):
        g(f"s_waitcnt lgkmcnt({3-ks})")
        for t in range(8):
            c = "0" if ks == 0 else f"v[{32+4*t}:{35+4*t}]"
            g(f"v_mfma_f32_16x16x32_bf16 v[{32+4*t}:{35+4*t}], v[{96+4*ks}:{99+4*ks}], a[{128+32*ks+4*t}:{128+32*ks+4*t+3}], {c}")
    g.nop(1)
    for t in range(8):
        g(f"v_add_f32 v{32+4*t}, v{32+4*t}, v{33+4*t}"); g(f"v_add_f32 v{34+4*t}, v{34+4*t}, v{35+4*t}")
    for t in range(8):
        g(f"v_add_f32 v{32+4*t}, v{32+4*t}, v{34+4*t}")
    for p in range(4):
        g(f"v_cvt_pk_bf16_f32 v{64+p}, v{32+8*p}, v{36+8*p}")
    g("s_mov_b64 exec, 0xffff")
    g("buffer_store_dwordx4 v[64:67], v120, s[4:7], s78 offen sc1")
    g("s_mov_b64 exec, -1")
    g.stamp(6)
    g("s_cmp_lt_u32 s43, 16"); g("s_cbranch_scc1 L_fin")
    g("s_cmp_lg_u32 s3, 0"); g("s_cbranch_scc1 L_fin")
    g.srd(12, 36, 4096)
    g("v_lshrrev_b32 v4, 3, v1"); g("v_and_b32 v5, 7, v1")
    g("v_lshlrev_b32 v6, 11, v4"); g("v_lshl_add_u32 v6, v5, 4, v6")
    g(f"v_mov_b32 v7, {OOB}")
    g("v_cmp_gt_u32 vcc, 5, v4"); g("s_nop 1"); g("v_cndmask_b32 v7, v7, v6, vcc")
    g("v_lshlrev_b32 v8, 4, v5"); g("v_lshlrev_b32 v10, 3, v5")
    g(f"s_lshl_b32 s62, s73, 16"); g("s_sub_u32 s65, s43, 16"); g("s_lshl_b32 s63, s65, 7"); g("s_add_u32 s62, s62, s63"); g(f"s_add_u32 s62, s62, {FPART}")
    g("s_lshl_b32 s74, s73, 10"); g("s_lshl_b32 s63, s65, 6"); g("s_add_u32 s74, s74, s63")
    for n in range(1, 4): g(f"s_add_u32 s{75+n}, s62, {n*16384}")
    g(f"s_add_u32 s79, s62, {31*2048}")
    def body():
        for n in range(4):
            g(f"buffer_load_dwordx4 v[{32+4*n}:{35+4*n}], v{6 if n < 3 else 7}, s[4:7], s{62 if n == 0 else 75+n} offen sc1")
        g("buffer_load_dwordx4 v[56:59], v8, s[4:7], s79 offen sc1")
    def cond2():
        for k in range(4):
            g(f"v_add_f32 v{32+k}, v{32+k}, v{36+k}"); g(f"v_add_f32 v{40+k}, v{40+k}, v{44+k}")
        for k in range(4): g(f"v_add_f32 v{32+k}, v{32+k}, v{40+k}")
        g("v_add_f32 v40, v56, v57"); g("v_add_f32 v41, v58, v59"); g("v_add_f32 v42, v32, v33"); g("v_add_f32 v43, v34, v35")
        g("v_add_f32 v40, v40, v41"); g("v_add_f32 v42, v42, v43")
        g("v_cmp_u_f32 vcc, v40, v42")
    poll_loop(g, body, cond2, spin=4*SPIN, sleep=0)
    g.stamp(8)
    for k in range(4):
        g(f"v_add_f32_dpp v{32+k}, v{32+k}, v{32+k} row_ror:8 row_mask:0xf bank_mask:0xf")
    g("v_cvt_pk_bf16_f32 v44, v56, v57"); g("v_cvt_pk_bf16_f32 v45, v58, v59")
    for sw in ("v_permlane16_swap_b32", "v_permlane32_swap_b32"):
        for k in range(4): g(f"v_mov_b32 v{36+k}, v{32+k}")
        g("s_nop 0")
        for k in range(4): g(f"{sw} v{32+k}, v{36+k}")
        for k in range(4): g(f"v_add_f32 v{32+k}, v{32+k}, v{36+k}")
    g("v_cvt_pk_bf16_f32 v36, v32, v33"); g("v_cvt_pk_bf16_f32 v37, v34, v35")
    for q in range(2):
        g(f"v_lshlrev_b32 v{32+2*q}, 16, v{36+q}"); g(f"v_and_b32 v{33+2*q}, 0xffff0000, v{36+q}")
        g(f"v_lshlrev_b32 v{40+2*q}, 16, v{44+q}"); g(f"v_and_b32 v{41+2*q}, 0xffff0000, v{44+q}")
    for k in range(4): g(f"v_add_f32 v{32+k}, v{32+k}, v{40+k}")
    g("v_cvt_pk_bf16_f32 v36, v32, v33"); g("v_cvt_pk_bf16_f32 v37, v34, v35")
    g("s_mov_b64 exec, 0xff")
    g("buffer_store_dwordx2 v[36:37], v10, s[12:15], s74 offen")
    g("s_mov_b64 exec, -1")
    g.stamp(10)
    g("s_branch L_fin")

QD = 8
def qreg(s):
    return f"v[{224+4*s}:{227+4*s}]" if s < QD else f"a[{128+4*(s-QD)}:{131+4*(s-QD)}]"

class Lds:
    def __init__(s, g): s.g = g; s.n = 0; s.done = 0
    def op(s, txt): s.g(txt); s.n += 1; return s.n
    def wait(s, i):
        if i <= s.done: return
        k = min(14, s.n - i); s.g(f"s_waitcnt lgkmcnt({k})"); s.done = s.n - k
    def all(s): s.wait(s.n)

def acu(g):
    cf = g.o["cflag"]; fine = g.o["fine"]
    nd = g.o["nd"]
    ea = ["v_and_b32 v8, 7, v5", "v_lshlrev_b32 v9, 1, v6", "v_xor_b32 v8, v8, v9", "v_lshlrev_b32 v208, 10, v5", "v_lshl_add_u32 v208, v8, 4, v208",
          "s_lshl_b32 s62, s3, 8", "v_add_u32 v208, s62, v208"] + [f"v_xor_b32 v{208+k}, {((4*(k>>1))|(k&1))<<4}, v208" for k in range(1, 4)] + \
         ["v_lshrrev_b32 v8, 3, v1", "v_and_b32 v9, 7, v1", "v_lshlrev_b32 v212, 10, v8", "v_lshl_add_u32 v212, v9, 4, v212", "v_add_u32 v212, s62, v212",
          "v_lshlrev_b32 v214, 12, v8", "v_lshl_add_u32 v214, v9, 4, v214", "v_xor_b32 v9, v9, v8", "v_lshlrev_b32 v213, 15, v8", "v_lshl_add_u32 v213, v9, 4, v213",
          "s_lshl_b32 s63, s3, 5", "v_lshl_add_u32 v215, v8, 2, s63",
          "s_lshl_b32 s65, s74, 20", "s_lshl_b32 s63, s75, 10", "s_add_u32 s65, s65, s63", "s_add_u32 s65, s65, s62", f"s_add_u32 s65, s65, {OPART}",
          "s_lshl_b32 s79, s74, 17", "s_lshl_b32 s63, s75, 7", "s_add_u32 s79, s79, s63", f"s_add_u32 s79, s79, {STAT}", "s_lshl_b32 s63, s3, 15", "s_add_u32 s79, s79, s63"]
    g("v_lshlrev_b32 v4, 4, v1")
    g("s_lshr_b32 s74, s42, 5"); g("s_and_b32 s75, s42, 31")
    TS = 0x100000 if g.o["il"] else 0x8000
    if g.o["il"]:
        g("s_lshl_b32 s76, s74, 23"); g("s_lshl_b32 s77, s75, 15"); g("s_add_u32 s76, s76, s77")
    else: g("s_lshl_b32 s76, s42, 18")
    g("s_lshl_b32 s77, s3, 13"); g("s_add_u32 s76, s76, s77")
    g("s_and_b32 s62, s3, 1"); g("s_lshl_b32 s62, s62, 5"); g("v_xor_b32 v7, s62, v4")
    for r in range(8):
        g(f"v_xor_b32 v{160+r}, {(fswz(r)<<4) | ((r>>2)<<12)}, v7")
    g(f"s_add_u32 s62, s77, {LQ}"); g("v_add_u32 v15, s62, v7")
    def dma_ops(slot, cf=cf):
        ops = []
        for r in range(8):
            pre = []
            if r == 0: pre = [f"s_add_u32 m0, s77, {slot*32768}", "s_nop 0"]
            if r == 4: pre = ["s_addk_i32 m0, 0x1000", "s_nop 0"]
            post = [f"s_add_u32 s76, s76, {TS}"] if r == 7 else []
            ops.append(pre + [f"buffer_load_dwordx4 v{160+r}, s[12:15], s76 offen offset:{(r&3)*1024} {cf} lds"] + post)
        return ops
    def dma_tile(slot):
        for o in dma_ops(slot):
            for x in o: g(x)
    def setup():
        g("v_and_b32 v5, 31, v1"); g("v_lshrrev_b32 v6, 5, v1")
        g("v_and_b32 v8, 3, v5"); g("v_lshlrev_b32 v8, 2, v8"); g("v_bfe_u32 v9, v5, 2, 2"); g("v_or_b32 v8, v8, v9"); g("v_xor_b32 v8, v8, v6")
        g("v_lshlrev_b32 v10, 10, v5"); g("v_lshl_add_u32 v10, v8, 4, v10")
        g(f"v_add_u32 v11, {LQ}, v10")
        g("s_lshl_b32 s62, s3, 15"); g("v_add_u32 v10, s62, v10")
        for k in range(8): g(f"v_xor_b32 v{16+k}, {k<<5}, v10")
        for k in range(8): g(f"v_xor_b32 v{128+k}, {k<<5}, v11")
        g("v_bfe_u32 v8, v1, 2, 2")
        g("v_lshl_add_u32 v9, v6, 2, v8"); g("v_lshlrev_b32 v12, 10, v9")
        g("v_and_b32 v9, 1, v1"); g("v_lshlrev_b32 v9, 1, v9"); g("v_bfe_u32 v13, v1, 4, 1"); g("v_or_b32 v9, v9, v13")
        g("v_lshl_add_u32 v13, v8, 2, v6"); g("v_xor_b32 v9, v9, v13")
        g("v_lshl_add_u32 v12, v9, 4, v12")
        g("v_bfe_u32 v9, v1, 1, 1"); g("v_lshl_add_u32 v12, v9, 3, v12")
        g("s_lshl_b32 s62, s3, 8"); g("v_add_u32 v12, s62, v12")
        for ct in range(4):
            for hv in range(2):
                g(f"v_xor_b32 v{24+2*ct+hv}, {(ct<<6)|(hv<<5)}, v12")
                g(f"v_add_u32 v{32+2*ct+hv}, 0x10000, v{24+2*ct+hv}")
        g("v_lshlrev_b32 v40, 5, v5"); g("v_lshl_add_u32 v40, v6, 4, v40"); g(f"v_add_u32 v40, {LRF}, v40")
        g("v_xor_b32 v46, 16, v40")
        g("s_lshl_b32 s62, s3, 2"); g("v_add_u32 v41, s62, v40")
        g(f"v_add_u32 v42, {LP}, v4")
        g("s_lshl_b32 s62, s3, 11"); g("v_add_u32 v43, s62, v42")
        g("v_lshrrev_b32 v14, 2, v1"); g("v_lshlrev_b32 v14, 8, v14"); g("v_and_b32 v9, 3, v1"); g("v_lshl_add_u32 v14, v9, 4, v14")
        if g.o["ql"]:
            g("v_mov_b32 v14, v4"); g("s_lshl_b32 s78, s3, 13"); g("s_lshl_b32 s63, s74, 15"); g("s_add_u32 s78, s78, s63")
        else:
            g("s_lshl_b32 s78, s3, 15"); g("s_lshl_b32 s63, s74, 6"); g("s_add_u32 s78, s78, s63")
        g("v_mov_b32 v12, 0"); g("v_mov_b32 v13, 1")
    for k in range(4): g(f"v_mov_b32 v{48+k}, -1")
    g("s_waitcnt lgkmcnt(0)")
    g.srd(4, 40, WS)
    g("s_cmp_ge_u32 s42, 16"); g("s_cbranch_scc1 L_A_ni")
    g("s_lshl_b32 s62, s42, 13"); g("s_lshl_b32 s63, s3, 11"); g("s_add_u32 s62, s62, s63")
    for k in range(2):
        g(f"buffer_store_dwordx4 v[48:51], v4, s[4:7], s62 offen offset:{k*1024} sc1")
    g("L_A_ni:")
    g.srd(12, 18, 32 << 20); g.srd(8, 38, 256)
    setup()
    if g.o["adelay"]:
        g(f"s_add_u32 s64, s80, {g.o['adelay']}")
        g("L_A_dl:")
        g("s_memrealtime s[62:63]"); g("s_waitcnt lgkmcnt(0)")
        g("s_sub_u32 s62, s62, s64"); g("s_cmp_lt_i32 s62, 0"); g("s_cbranch_scc1 L_A_dl")
    g("s_cmp_ge_u32 s42, 16"); g("s_cbranch_scc1 L_A_ni2")
    g("s_waitcnt vmcnt(0)")
    g("s_barrier")
    g("s_cmp_lg_u32 s3, 0"); g("s_cbranch_scc1 L_A_ni2")
    g("s_mov_b64 exec, 1")
    g("buffer_atomic_add v13, v12, s[8:11], 0 offen sc1")
    g("s_mov_b64 exec, -1")
    g("L_A_ni2:")
    ss = g.o["ss"]
    if g.o["ukl"]:
        g.srd(44, 22, 4 << 20)
        g("v_lshrrev_b32 v8, 1, v1"); g("v_lshlrev_b32 v8, 13, v8"); g("v_and_b32 v9, 1, v1"); g("v_lshl_add_u32 v8, v9, 7, v8")
        g("s_lshl_b32 s62, s73, 20"); g("s_lshl_b32 s63, s3, 18"); g("s_add_u32 s62, s62, s63"); g("s_lshl_b32 s63, s72, 8"); g("s_add_u32 s62, s62, s63")
        g("buffer_load_dword v47, v8, s[44:47], s62 offen")
    o0 = dma_ops(0)
    for o in o0[:ss]:
        for x in o: g(x)
    for x in ea: g(x)
    if ss or g.o["ukw"]: g("s_waitcnt vmcnt(0)")
    for o in o0[ss:]:
        for x in o: g(x)
    dma_tile(1)
    def pvreg(kk, ct): return 16*kk + 4*ct
    def rdp_txt(kk, ct):
        r = pvreg(kk, ct); row = 16*kk; ab = 24 if row < 64 else 32
        return [f"ds_read_b64_tr_b16 a[{r+2*hv}:{r+2*hv+1}], v{ab+2*ct+hv} offset:{((row % 64) + 8*hv)*1024}" for hv in range(2)]
    def gather():
        g("s_mov_b32 s63, s78")
        for r in range(8):
            g(f"buffer_load_dwordx4 v[{176+4*r}:{179+4*r}], v14, s[4:7], s63 offen sc1")
            if r < 7: g("s_addk_i32 s63, 0x400" if g.o["ql"] else "s_addk_i32 s63, 0x1000")
    for tl in range(4):
        if tl < 2: g("s_waitcnt vmcnt(8)"); dma_tile(tl+2)
        elif tl == 2:
            g("s_waitcnt vmcnt(8) lgkmcnt(0)")
        else:
            g(f"s_waitcnt vmcnt({1 + (8 if nd == 5 else 0)})")
        g("s_barrier")
        if tl == 2:
            g("buffer_load_dword v47, v12, s[8:11], 0 offen sc1")
            if nd == 5: dma_tile(0)
        if tl == 0 and not fine: g.stamp(1)
        if tl == 3 and not fine: g.stamp(2)
        for ks in range(2):
            for ct in range(4):
                for x in rdp_txt(2*tl+ks, ct): g(x)
        sk = g.lab("p1c")
        g(f"s_cmp_lg_u32 s3, {tl}"); g(f"s_cbranch_scc1 {sk}")
        for s in range(32):
            g(f"ds_read_b128 a[{128+4*s}:{131+4*s}], v{16+(s&7)} offset:{(s>>3)*256}")
        g(f"{sk}:")
    dpos = g.o["dpos"]
    npre = {0: 8 - nd, 1: 0, 2: 1, 3: 2}[dpos]
    g(f"s_waitcnt vmcnt({g.o['gw']}) lgkmcnt(0)")
    g("v_cmp_ne_u32 vcc, 16, v47")
    g("s_cbranch_vccz L_A_c0")
    cnt_wait(g, 47, 12)
    g("L_A_c0:")
    if g.o["fakeq"] == 1: g("s_branch L_fin")
    if g.o["fine3"]: g.stamp(1)
    def gcond():
        g.maxtree(9, range(176, 208)); g("v_cmp_eq_u32 vcc, -1, v9")
    if npre:
        gather()
        g("s_barrier")
        for t in range(nd, nd + npre): dma_tile(t & 3)
        g(f"s_waitcnt vmcnt({8*npre})")
        gcond()
        g("s_cbranch_vccz L_A_gok")
    poll_loop(g, gather, gcond, sleep=g.o["gsleep"])
    g("L_A_gok:")
    if g.o["fine3"]:
        g.stamp(2)
        g(f"s_sub_u32 s70, {SPIN}, s64"); g("s_mul_i32 s70, s70, 100")
    for r in range(8):
        g(f"v_xor_b32 v7, {fswz(r)<<4}, v15")
        g(f"ds_write_b128 v7, v[{176+4*r}:{179+4*r}] offset:{r*1024}")
    g("s_waitcnt lgkmcnt(0)")
    g("s_barrier")
    g.stamp(3)
    if g.o["stop"]: g("s_branch L_fin")
    L = Lds(g)
    dq = []
    for t in range(nd + npre, 8): dq += dma_ops(t & 3, g.o['cflag2'])
    ids = {}
    def rdq(s): ids[s] = L.op(f"ds_read_b128 {qreg(s)}, v{128+(s&7)} offset:{(s>>3)*256}")
    for s in range(QD-1): rdq(s)
    def dpop(n=1):
        for _ in range(n):
            if dq:
                for y in dq.pop(0): g(y)
    dpop(g.o["d0"])
    dn = g.o["dn"]
    for s in range(32):
        L.wait(ids[s])
        c = "0" if s == 0 else "v[48:63]"
        g(f"v_mfma_f32_32x32x16_bf16 v[48:63], a[{128+4*s}:{131+4*s}], {qreg(s)}, {c}")
        if s + QD - 1 < 32: rdq(s + QD - 1)
        if (s + 1) * dn // 32 > s * dn // 32: dpop()
    cpre = g.o["cpre"]; fb = g.o["fb"]
    def sma_ops(ch):
        o = ch*10240
        R = 216 if ch == 0 else 222
        T = []
        T += ["v_max3_f32 v8, v48, v49, v50", "v_max3_f32 v9, v51, v52, v53", "v_max3_f32 v10, v54, v55, v56", "v_max3_f32 v11, v57, v58, v59",
              "v_max3_f32 v8, v8, v60, v61", "v_max3_f32 v9, v9, v62, v63", "v_max_f32 v10, v10, v11", "v_max3_f32 v8, v8, v9, v10"]
        if ch == 0: T += ["v_ceil_f32 v216, v8"]
        else: T += ["v_cmp_gt_f32 vcc, v8, v47", "v_ceil_f32 v8, v8", "s_nop 0", "v_cndmask_b32 v222, v44, v8, vcc"]
        for h in range(2):
            T += [f"v_sub_f32 v{48+8*h+k}, v{48+8*h+k}, v{R}" for k in range(8)]
            T += [f"v_exp_f32 v{48+8*h+k}, v{48+8*h+k}" for k in range(8)]
            if h == 0 and ch == 0: T += ["s_barrier"]
            if h == 0: T += [f"@ds_write_b32 v41, v{R} offset:{o}"]
            T += [f"v_cvt_pk_bf16_f32 v{168+4*h+k}, v{48+8*h+2*k}, v{49+8*h+2*k}" for k in range(4)]
            T += [f"@ds_write_b128 v43, v[{168+4*h}:{171+4*h}] offset:{o+1024*h}"]
        return T
    def lsum_ops(ch):
        T = [f"v_add_f32 v{48+k}, v{48+k}, v{56+k}" for k in range(8)]
        T += [f"v_add_f32 v{48+k}, v{48+k}, v{52+k}" for k in range(4)]
        T += ["v_add_f32 v48, v48, v50", "v_add_f32 v49, v49, v51"]
        if ch == 0: T += ["v_add_f32 v217, v48, v49"]
        else: T += ["v_add_f32 v48, v48, v49", "v_add_f32 v217, v217, v48", "@ds_write_b32 v41, v217 offset:1024"]
        return T
    def emit(x):
        if callable(x): return x()
        if x.startswith("@"): return L.op(x[1:])
        g(x)
    def kfix(P, waits=None):
        T = []
        for w in range(4):
            T += [f"v_sub_f32 v{12+w}, v44, v{12+w}", f"v_cvt_u32_f32 v{8+w}, v{12+w}", f"v_min_u32 v{8+w}, 0xff, v{8+w}", f"v_mul_u32_u24 v{8+w}, 0x800080, v{8+w}"]
            for kk in (2*w, 2*w+1):
                if waits is not None: T += [lambda kk=kk: L.wait(waits[kk])]
                T += [f"v_pk_sub_u16 v{P+4*kk+i}, v{P+4*kk+i}, v{8+w} clamp" for i in range(4)]
        return T
    def cost(x):
        if callable(x): return getattr(x, "c", 0)
        if x.startswith("v_exp"): return 2
        return 1
    def fill(q, budget):
        while q and budget > 0:
            x = q.pop(0); budget -= cost(x); emit(x)
        return budget
    def rdop(d, key, txt):
        def f(): d[key] = L.op(txt)
        f.c = 1
        return f
    order = [(kk, ct) for ct in range(4) for kk in range(8)]
    pvid = {}; rq = []
    def refill(cnt):
        n_ = 0
        while rq and n_ < cnt:
            key, x = rq.pop(0); pvid[key] = L.op(x); n_ += 1
        return n_
    def pv0(kk, ct):
        r = pvreg(kk, ct)
        c = "0" if kk == 0 else f"v[{64+16*ct}:{79+16*ct}]"
        g(f"v_mfma_f32_32x32x16_bf16 v[{64+16*ct}:{79+16*ct}], a[{r}:{r+3}], v[{128+4*kk}:{131+4*kk}], {c}")
    def flush_until(q, prefix):
        if any((not callable(x)) and x.startswith(prefix) for x in q):
            while True:
                x = q.pop(0); emit(x)
                if (not callable(x)) and x.startswith(prefix): break
            g("s_nop 1")
    if fine: g.stamp(1)
    n0_ = len(g.L); dpop(g.o["d1"]); g.nop(max(0, 12 - (len(g.L) - n0_)))
    for x in sma_ops(0): emit(x)
    dpop(g.o["d2"] if cpre else 100)
    if cpre == 0:
        for x in lsum_ops(0): emit(x)
    L.all()
    if cpre == 0: g("s_waitcnt vmcnt(0)")
    g("s_barrier")
    if fine: g.stamp(2)
    r0 = {}
    qr = [rdop(r0, "x", "ds_read_b128 v[12:15], v40"), rdop(r0, "ref", "ds_read_b128 v[168:171], v46")]
    qr += [rdop(r0, k, f"ds_read_b128 v[{128+4*k}:{131+4*k}], v42 offset:{1024*k}") for k in range(8)]
    q2 = [lambda: L.wait(r0["ref"]), "v_max3_f32 v9, v12, v13, v14", "v_max3_f32 v10, v169, v170, v171", "v_max3_f32 v9, v9, v15, v168", "v_max_f32 v44, v9, v10"]
    q2 += kfix(128, r0)
    q2 += ["v_sub_f32 v216, v216, v44", "v_exp_f32 v216, v216", f"v_add_f32 v47, 0x{f2u(float(g.o['thr'])):08x}, v44", "v_mul_f32 v217, v217, v216"]
    if cpre:
        for x in qr: emit(x)
        qr = []
        for x in lsum_ops(0): emit(x)
        flush_until(q2, "v_pk_sub_u16 v135,")
        for n, (kk, ct) in enumerate(order[:8*cpre]):
            if ct == 0: flush_until(q2, f"v_pk_sub_u16 v{128+4*kk+3},")
            pv0(kk, ct)
            fill(q2, 6 if ct == 0 else 4)
            if n % g.o["d3"] == 0: dpop()
            rq += [((kk, ct), x) for x in rdp_txt(kk, ct)]
        dpop(100)
        g("s_waitcnt vmcnt(0)")
        g("s_barrier")
    g.stamp(4)
    if g.o["aft"]:
        g.srd(44, 30, 512*2752); g.srd(48, 32, 512*2752); g.srd(52, 34, 1376*1024)
        g("v_mul_u32_u24 v8, 2752, v5"); g("v_mul_u32_u24 v9, 92, v6"); g("v_add_u32 v8, v8, v9")
        g("s_lshl_b32 s62, s73, 2"); g("s_add_u32 s62, s62, s3"); g(f"s_mul_i32 s63, s62, {32*2752}"); g("s_mul_i32 s64, s72, 96"); g("s_add_u32 s63, s63, s64")
        g("buffer_load_dword v223, v8, s[44:47], s63 offen"); g("buffer_load_dword v223, v8, s[48:51], s63 offen")
        g("v_lshlrev_b32 v8, 6, v1"); g("s_mul_i32 s62, s62, 3072"); g("s_mul_i32 s64, s72, 49152"); g("s_add_u32 s62, s62, s64")
        g("buffer_load_dword v223, v8, s[52:55], s62 offen")
    D = 6
    ids = {}
    def rdc(s):
        r = 176 + 4*(s % 8)
        ids[s] = L.op(f"ds_read_b128 v[{r}:{r+3}], v{16+(s&7)} offset:{(s>>3)*256}")
    for s in range(D): rdc(s)
    for s in range(32):
        L.wait(ids[s])
        r = 176 + 4*(s % 8)
        c = "0" if s == 0 else "v[48:63]"
        g(f"v_mfma_f32_32x32x16_bf16 v[48:63], v[{r}:{r+3}], {qreg(s)}, {c}")
        if s + D < 32: rdc(s + D)
        if qr: fill(qr, 2)
        elif q2 and (s >= 7 or cpre): fill(q2, 3)
        else: refill(2)
    fill(q2, 1000)
    g.stamp(5)
    q = sma_ops(1)
    r1 = {}
    qr = [rdop(r1, "x", "ds_read_b128 v[12:15], v40 offset:10240"), rdop(r1, "ref", "ds_read_b128 v[218:221], v46 offset:10240")]
    qr += [rdop(r1, k, f"ds_read_b128 v[{176+4*k}:{179+4*k}], v42 offset:{10240+1024*k}") for k in range(8)]
    state = 0; dist = 0
    for n, (kk, ct) in enumerate(order[8*cpre:]):
        pv0(kk, ct); dist += 1
        if state == 0:
            if dist < 12:
                k_ = refill(3); dist += k_
                if k_ < 3: g.nop(3 - k_); dist += 3 - k_
            else:
                fill(q, fb)
                if not q:
                    last_w = L.n; state = 1
        elif state == 1:
            L.wait(last_w); g("s_barrier"); state = 2
            fill(qr, 3)
        elif state == 2:
            if qr: fill(qr, 3)
            else: refill(3)
        rq += [((kk, ct), x) for x in rdp_txt(kk, ct)]
    if state == 0:
        if dist < 12: g.nop(12 - dist)
        fill(q, 1000); last_w = L.n; state = 1
    if state == 1:
        L.wait(last_w); g("s_barrier")
    fill(qr, 1000)
    L.wait(r1["ref"])
    g("v_max3_f32 v9, v12, v13, v14"); g("v_max3_f32 v10, v219, v220, v221"); g("v_max3_f32 v9, v9, v15, v218"); g("v_max_f32 v9, v9, v10")
    g("v_cmp_neq_f32 vcc, v9, v44")
    g("s_cbranch_vccnz L_A_slow")
    g("L_A_back:")
    slow = ["L_A_slow:", "s_waitcnt lgkmcnt(0)", "v_sub_f32 v47, v44, v9", "v_sub_f32 v222, v222, v9", "v_mov_b32 v44, v9", "v_exp_f32 v47, v47", "v_exp_f32 v222, v222"] + kfix(176) + \
           [f"v_mul_f32 v{64+k}, v47, v{64+k}" for k in range(64)] + ["v_mul_f32 v217, v47, v217"] + \
           [f"v_mul_f32 v{48+k}, v222, v{48+k}" for k in range(16)] + ["s_branch L_A_back"]
    g.slow = slow
    if fine: g.stamp(10)
    def epi_w(ct, qq):
        b = 128+8*(ct&1)+4*qq
        return [f"v_cvt_pk_bf16_f32 v{b+k}, v{64+16*ct+8*qq+2*k}, v{65+16*ct+8*qq+2*k}" for k in range(4)] + \
               [f"@ds_write_b128 v{208+2*(ct&1)+qq}, v[{b}:{b+3}] offset:{(ct>>1)*128}"]
    er = {}
    def epi_r(half):
        return [rdop(er, (half, n_), f"ds_read_b128 v[{224+16*half+4*n_}:{227+16*half+4*n_}], v212 offset:{n_*8192+half*128}") for n_ in range(4)]
    def epi_s(half, n_):
        def f():
            L.wait(er[(half, n_)])
            g(f"s_add_u32 s63, s65, {n_*8*32768}")
            g(f"buffer_store_dwordx4 v[{224+16*half+4*n_}:{227+16*half+4*n_}], v213, s[4:7], s63 offen offset:{half*128} sc1")
        f.c = g.o['sc']
        return f
    lw = {}
    def mark(): lw["w"] = L.n
    def lbar(): L.wait(lw["w"]); g("s_barrier")
    lbar.c = 2
    q = lsum_ops(1) + [mark]
    ql = [lbar, rdop(lw, "a", "ds_read_b128 v[52:55], v40 offset:1024"), rdop(lw, "b", "ds_read_b128 v[56:59], v46 offset:1024")]
    ql2 = [lambda: L.wait(lw["b"])] + [f"v_add_f32 v{52+w}, v{52+w}, v{56+w}" for w in range(4)] + \
        ["v_add_f32 v52, v52, v53", "v_add_f32 v54, v54, v55", "v_add_f32 v45, v52, v54"] + \
        [f"@ds_bpermute_b32 v{60+i}, v215, v{44+(i&1)}" for i in range(4)]
    wdone = 0
    for n, (kk, ct) in enumerate(order):
        r = pvreg(kk, ct)
        while (kk, ct) not in pvid or any(k == (kk, ct) for k, _ in rq): refill(1)
        if ct == 0: L.wait(r1[kk])
        L.wait(pvid[(kk, ct)])
        g(f"v_mfma_f32_32x32x16_bf16 v[{64+16*ct}:{79+16*ct}], a[{r}:{r+3}], v[{176+4*kk}:{179+4*kk}], v[{64+16*ct}:{79+16*ct}]")
        b = 4 - refill(3)
        if kk == 0: since = 0
        if not rq and wdone < ct and since >= 11:
            q += epi_w(wdone, 0) + epi_w(wdone, 1)
            if wdone == 0: q += ql
            if wdone == 1: q += epi_r(0) + ql2 + [epi_s(0, n_) for n_ in range(4)]
            wdone += 1
        n0_ = len(g.L)
        b = fill(q, b)
        if b > 0 and wdone < ct and since < 11:
            g.nop(b); since += b
        since += 1 + (4 - max(b, 0))
    while wdone < 3:
        q += epi_w(wdone, 0) + epi_w(wdone, 1)
        if wdone == 0: q += ql
        if wdone == 1: q += epi_r(0) + ql2 + [epi_s(0, n_) for n_ in range(4)]
        wdone += 1
    n0_ = len(g.L)
    fill(q, 1000)
    if g.o["fine2"]: g.stamp(1)
    g.nop(max(0, 12 - (len(g.L) - n0_)))
    for x in epi_w(3, 0) + epi_w(3, 1) + epi_r(1) + [epi_s(1, n_) for n_ in range(4)]: emit(x)
    g.stamp(9)
    g("s_waitcnt vmcnt(0)")
    g("s_barrier")
    g("buffer_store_dwordx4 v[60:63], v214, s[4:7], s79 offen sc1")
    if not fine: g.stamp(10)

def gen(opts):
    g = G(opts)
    g("s_load_dwordx16 s[16:31], s[0:1], 0")
    g("s_load_dwordx8 s[32:39], s[0:1], 64")
    g("s_load_dwordx2 s[40:41], s[0:1], 96")
    g("s_cmp_ge_u32 s2, 256"); g("s_cbranch_scc1 L_end")
    g.stamp(0)
    if opts["scr"]:
        g("s_lshr_b32 s62, s2, 5"); g("s_lshl_b32 s2, s2, 3"); g("s_or_b32 s2, s2, s62"); g("s_and_b32 s2, s2, 255")
    if opts.get("cpf", 1):
        g("s_getpc_b64 s[4:5]")
        g("s_and_b32 s5, s5, 0xffff"); g("s_mov_b32 s6, L_end - L_pcv"); g("s_mov_b32 s7, 0x20000")
        g("L_pcv:")
        g("s_bfe_u32 s62, s2, 0x40003"); g("s_lshl_b32 s62, s62, 12")
        g("v_lshlrev_b32 v1, 4, v0")
        g("buffer_load_dwordx4 v[252:255], v1, s[4:7], s62 offen")
    g("v_lshrrev_b32 v2, 6, v0"); g("v_and_b32 v1, 63, v0")
    g("v_readfirstlane_b32 s3, v2")
    g("v_and_b32 v2, 15, v0"); g("v_lshrrev_b32 v3, 4, v1")
    g("s_and_b32 s62, s2, 7"); g("s_lshr_b32 s43, s2, 4"); g("s_lshl_b32 s42, s43, 3"); g("s_or_b32 s42, s42, s62")
    g("s_and_b32 s73, s43, 3")
    g("s_lshr_b32 s43, s43, 2")
    g("s_lshl_b32 s72, s62, 2"); g("s_or_b32 s72, s72, s43")
    g("s_lshl_b32 s43, s43, 3"); g("s_or_b32 s43, s43, s62")
    if opts.get("hmap") == 0: g("s_mov_b32 s72, s43")
    g("s_mov_b32 s60, 0x05040100"); g("s_mov_b32 s61, 0x07060302")
    if opts.get("stamps"):
        for k in range(82, 102): g(f"s_mov_b32 s{k}, 0")
    g("s_bitcmp1_b32 s2, 3")
    g("s_cbranch_scc1 L_A")
    tcu(g)
    g("L_A:")
    acu(g)
    g("s_mov_b32 s66, s72"); g("s_mov_b32 s67, s73")
    g(f"s_cmp_lt_u32 s66, {NSL}"); g("s_cbranch_scc1 L_FW")
    g("s_cmp_lg_u32 s66, 31"); g("s_cbranch_scc1 L_fin")
    x_issue(g); g("s_waitcnt vmcnt(0)"); x_finish(g)
    g("s_branch L_FFN")
    g("L_FW:")
    x_issue(g); ffn_issue(g); ffn_finish(g)
    if not g.o["fine"]: g.stamp(6)
    g("L_FFN:")
    ffn_stage(g)
    g("L_fin:")
    if opts["probe"]:
        wg, k = [int(x) for x in opts["probe"].split(",")]
        g("s_waitcnt lgkmcnt(0)")
        g(f"s_cmp_lg_u32 s2, {wg}"); g("s_cbranch_scc1 L_end")
        g("s_cmp_lg_u32 s3, 0"); g("s_cbranch_scc1 L_end")
        g(f"s_sub_u32 s64, s{80+2*k}, s80"); g("s_mul_i32 s64, s64, 20"); g("s_min_u32 s64, s64, 100000")
        g("s_memrealtime s[62:63]"); g("s_waitcnt lgkmcnt(0)"); g("s_add_u32 s64, s64, s62")
        g("L_pr:")
        g("s_sleep 2")
        g("s_memrealtime s[62:63]"); g("s_waitcnt lgkmcnt(0)")
        g("s_sub_u32 s62, s62, s64"); g("s_cmp_lt_i32 s62, 0"); g("s_cbranch_scc1 L_pr")
    elif opts.get("stamps"):
        nst = 11
        g("s_waitcnt lgkmcnt(0)")
        g("s_cmp_lg_u32 s3, 0"); g("s_cbranch_scc1 L_end")
        g("s_mov_b64 exec, 1")
        g(f"s_mul_i32 s62, s2, {nst*8}"); g(f"s_add_u32 s62, s62, {WS - 256*nst*8}")
        g("v_mov_b32 v3, 0")
        for k in range(nst):
            g(f"v_mov_b32 v4, s{80+2*k}"); g(f"v_mov_b32 v5, s{81+2*k}")
            g(f"buffer_store_dwordx2 v[4:5], v3, s[4:7], s62 offen offset:{8*k}")
            g("s_nop 1")
    g("L_end:")
    g("s_endpgm")
    for x in g.slow: g(x)
    hdr = open("hdr.txt").read()
    return hdr + "; @launch grid=(256,1,1) block=(256,1,1) lds=163840\n" + '.amdgcn_target "amdgcn-amd-amdhsa--gfx950"\n.text\n' + kstart(KN) + "\n".join(g.L) + "\n" + kdesc(KN, vgpr=512, accum=256).replace(".text\n", "")

if __name__ == "__main__":
    import argparse
    ap = argparse.ArgumentParser()
    ap.add_argument("out"); ap.add_argument("--stamps", action="store_true")
    ap.add_argument("--wflag", default=""); ap.add_argument("--cflag", default="nt")
    ap.add_argument("--gstep", type=int, default=3); ap.add_argument("--tsleep", type=int, default=1)
    ap.add_argument("--qord", type=int, default=1); ap.add_argument("--n0", type=int, default=1); ap.add_argument("--oinit", type=int, default=1)
    ap.add_argument("--fine", type=int, default=0)
    ap.add_argument("--bgate", type=int, default=1)
    ap.add_argument("--adelay", type=int, default=0)
    ap.add_argument("--pfs", type=int, default=64); ap.add_argument("--pf0", type=int, default=4); ap.add_argument("--pfw", type=int, default=4)
    ap.add_argument("--ffpf", type=int, default=0); ap.add_argument("--late", type=int, default=1); ap.add_argument("--n1", type=int, default=2)
    ap.add_argument("--nd", type=int, default=4); ap.add_argument("--gw", type=int, default=0); ap.add_argument("--gsleep", type=int, default=0); ap.add_argument("--fb", type=int, default=4)
    ap.add_argument("--dpos", type=int, default=1); ap.add_argument("--thr", type=float, default=30)
    ap.add_argument("--fine2", type=int, default=0)
    ap.add_argument("--fine3", type=int, default=0); ap.add_argument("--early", type=int, default=1)
    ap.add_argument("--scr", type=int, default=0)
    ap.add_argument("--fakeq", type=int, default=0)
    ap.add_argument("--ss", type=int, default=1); ap.add_argument("--tbar", type=int, default=1)
    ap.add_argument("--cpre", type=int, default=2)
    for k, v in (("d0", 8), ("dn", 12), ("d1", 4), ("d2", 4), ("d3", 1), ("sc", 4), ("ukl", 0), ("ukw", 0), ("w1e", 0), ("nocnt", 0), ("stop", 0), ("qw", 0), ("pdelay", 0), ("prev", 0), ("tt", 0), ("ttw", 4), ("aft", 1), ("tord", 3), ("ql", 1), ("il", 1), ("ttp", 3), ("tg", 1), ("nb", 5), ("pfe", 4), ("fsleep", 1), ("pfall", 0), ("twd", 1000), ("qws", 2)): ap.add_argument("--" + k, type=int, default=v)
    ap.add_argument("--probe", default="")
    ap.add_argument("--pflag", default=""); ap.add_argument("--cflag2", default=""); ap.add_argument("--ukflag", default="")
    ap.add_argument("--hmap", type=int, default=1); ap.add_argument("--cpf", type=int, default=1)
    a = ap.parse_args()
    open(a.out, "w").write(gen(vars(a)))
```

```python
import sys, math, struct
from gen_common import *
def f2u(x): return struct.unpack("<I", struct.pack("<f", x))[0]
QABS = 0x000000
STAT = 0x040000
OPART = 0x100000
APART = 0x500000
FPART = 0x600000
OOB = 0x40000000
SCALE = (128 ** -0.5) * math.log2(math.e)
class G:
    def __init__(s, opts):
        s.L = []; s.o = opts; s.uid = 0
    def a(s, x): s.L.append(x)
    def __call__(s, x): s.L.append(x)
    def lab(s, p="L"):
        s.uid += 1; return f"{p}_{s.uid}"
    def nop(s, n):
        while n > 0:
            k = min(n, 16); s.a(f"s_nop {k-1}"); n -= k
    def stamp(s, k):
        if s.o.get("stamps"):
            s.a(f"s_memrealtime s[{80+2*k}:{81+2*k}]")
    def srd(s, d, p, size):
        s.a(f"s_mov_b32 s{d}, s{p}"); s.a(f"s_and_b32 s{d+1}, s{p+1}, 0xffff")
        s.a(f"s_mov_b32 s{d+2}, {size}"); s.a(f"s_mov_b32 s{d+3}, 0x20000")
    def dpp(s, op, v, ctrl):
        s.a("s_nop 1"); s.a(f"{op}_dpp v{v}, v{v}, v{v} {ctrl} row_mask:0xf bank_mask:0xf")
    def allred(s, op, v, t, width=64):
        for c in ("quad_perm:[1,0,3,2]", "quad_perm:[2,3,0,1]", "row_half_mirror", "row_mirror"):
            s.dpp(op, v, c)
        if width >= 32:
            s.a(f"v_mov_b32 v{t}, v{v}"); s.a("s_nop 1"); s.a(f"v_permlane16_swap_b32 v{v}, v{t}"); s.a(f"{op} v{v}, v{v}, v{t}")
        if width >= 64:
            s.a(f"v_mov_b32 v{t}, v{v}"); s.a("s_nop 1"); s.a(f"v_permlane32_swap_b32 v{v}, v{t}"); s.a(f"{op} v{v}, v{v}, v{t}")
    def bf16r(s, d, v):
        s.a(f"v_cvt_pk_bf16_f32 v{d}, v{v}, v{v}"); s.a(f"v_lshlrev_b32 v{d}, 16, v{d}")
    def maxtree(s, d, regs):
        regs = list(regs)
        s.a(f"v_max3_u32 v{d}, v{regs[0]}, v{regs[1]}, v{regs[2]}")
        i = 3
        while i + 1 < len(regs):
            s.a(f"v_max3_u32 v{d}, v{d}, v{regs[i]}, v{regs[i+1]}"); i += 2
        if i < len(regs):
            s.a(f"v_max_u32 v{d}, v{d}, v{regs[i]}")
    def perm8x8(s, R, T, acc=None):
        for t in range(8):
            for p in range(4):
                s.a(f"v_perm_b32 v{T+4*t+p}, v{R+4*(2*p+1)+(t>>1)}, v{R+4*(2*p)+(t>>1)}, s{60+(t&1)}")
        if acc is not None:
            for k in range(32):
                s.a(f"v_accvgpr_write_b32 a{acc+k}, v{T+k}")

def fswz(k):
    return ((k & 3) << 2) | ((k >> 2) & 3)

SPIN = 20000
LDS_XN = 0
LDS_QX = 8192
LDS_OT = 16384
LDS_FX = 49152
LDS_CX = 49664
LDS_CS = 51200
LDS_GX = 53248
LDS_FW = 57344
NSL = 29
LQ = 131072
LRF = LQ
LP = LQ + 2048
TS = 0x100000
SMF = "v_smfmac_f32_16x16x64_bf16"
M16 = "v_mfma_f32_16x16x32_bf16"

def poll_loop(g, body, cond, spin=SPIN, sleep=1):
    l = g.lab("pl"); e = g.lab("ple"); f = g.lab("plf")
    g(f"s_mov_b32 s64, {spin}")
    if sleep: g(f"s_branch {f}")
    g(f"{l}:")
    if sleep:
        g(f"s_sleep {sleep}")
        g(f"{f}:")
    body()
    g("s_sub_u32 s64, s64, 1"); g("s_cmp_eq_u32 s64, 0")
    g("s_waitcnt vmcnt(0)")
    g(f"s_cbranch_scc1 {e}")
    cond()
    g(f"s_cbranch_vccnz {l}")
    g(f"{e}:")

def cnt_wait(g, vt, vo, sleep=4):
    poll_loop(g, lambda: g(f"buffer_load_dword v{vt}, v{vo}, s[8:11], 0 offen sc1"),
              lambda: g(f"v_cmp_ne_u32 vcc, 16, v{vt}"), sleep=sleep)

def tile_setup(g, rot):
    g("v_lshlrev_b32 v8, 1, v3"); g("v_xor_b32 v8, v8, v2"); g("v_lshlrev_b32 v8, 4, v8"); g("v_lshl_add_u32 v8, v3, 10, v8")
    g("v_xor_b32 v9, 0x80, v8")
    g("s_lshl_b32 s68, s3, 13"); g(f"s_add_u32 s68, s68, {LDS_OT}")
    g("v_bfe_u32 v11, v1, 2, 2")
    g("v_lshl_add_u32 v10, v3, 3, v11"); g("v_lshlrev_b32 v10, 8, v10")
    g("v_and_b32 v12, 1, v3"); g("v_lshl_add_u32 v12, v12, 2, v11"); g("v_lshlrev_b32 v12, 1, v12")
    g("v_bfe_u32 v13, v1, 1, 1"); g("v_xor_b32 v12, v12, v13")
    g("v_lshl_add_u32 v10, v12, 4, v10")
    g("v_and_b32 v13, 1, v1"); g("v_lshl_add_u32 v10, v13, 3, v10")
    g("v_add_u32 v10, s68, v10")
    if rot:
        g("s_lshr_b32 s63, s73, 1"); g("s_lshl_b32 s63, s63, 7"); g("s_and_b32 s62, s73, 1"); g("s_lshl_b32 s62, s62, 4"); g("s_or_b32 s63, s63, s62")
        g("v_xor_b32 v10, s63, v10")
    for t in range(8): g(f"v_xor_b32 v{112+t}, {t<<5}, v10")
    g("s_mov_b32 s70, 0xaaaaaaaa"); g("s_mov_b32 s71, 0xaaaaaaaa")
    g("v_mov_b32 v29, 0x4444"); g("v_mov_b32 v28, 0xeeee"); g("v_cndmask_b32 v29, v29, v28, s[70:71]")

def tile_dma(g, sbase):
    g("s_mov_b32 m0, s68"); g(f"s_mov_b32 s63, s{sbase}")
    for n in range(8):
        g(f"buffer_load_dwordx4 v{8+((n>>1)&1)}, s[4:7], s63 offen sc1 lds")
        if n < 7:
            g("s_addk_i32 m0, 0x400"); g("s_addk_i32 s63, 0x1000")

def tile_read(g, A):
    for t in range(8):
        if t == 6: g("s_waitcnt lgkmcnt(8)")
        g(f"ds_read_b64_tr_b16 v[{A+4*t}:{A+4*t+1}], v{112+t}")
        g(f"ds_read_b64_tr_b16 v[{A+4*t+2}:{A+4*t+3}], v{112+t} offset:1024")

def ffn_setup(g):
    g("s_mov_b32 s66, s72"); g("s_mov_b32 s67, s73")
    g.srd(56, 16, 4096)
    for m in range(3):
        g(f"v_add_u32 v7, {64*m}, v1"); g("v_mul_u32_u24 v8, 43691, v7"); g("v_lshrrev_b32 v8, 18, v8")
        g(f"v_mul_u32_u24 v{4+m}, {2752-96}, v8"); g(f"v_lshl_add_u32 v{4+m}, v7, 4, v{4+m}")
    g("v_lshlrev_b32 v121, 11, v3"); g("v_lshl_add_u32 v121, v2, 4, v121")
    g("v_lshlrev_b32 v122, 3, v3")
    for k in range(4): g(f"v_mov_b32 v{24+k}, 0x3f803f80")
    tile_setup(g, False)
    g("v_and_b32 v10, 1, v3"); g("v_lshlrev_b32 v10, 5, v10"); g("v_lshrrev_b32 v12, 1, v3"); g("v_lshl_add_u32 v10, v12, 2, v10"); g("v_add_u32 v10, v10, v11")
    g("v_mul_u32_u24 v125, 96, v10"); g("v_and_b32 v28, 3, v1"); g("v_lshl_add_u32 v125, v28, 3, v125")
    g("s_mul_i32 s76, s3, 24576"); g(f"s_add_u32 s76, s76, {LDS_FW}"); g("v_add_u32 v125, s76, v125")
    for p in range(4):
        g(f"v_cmp_eq_u32 vcc, {p}, v28"); g("s_nop 1"); g(f"v_cndmask_b32 v{16+p}, 0, -1, vcc")
    for p in range(4): g(f"v_and_b32 v{20+p}, 0xffff, v{16+(p^1)}")
    g("v_xor_b32 v10, 1, v28"); g("v_lshlrev_b32 v10, 2, v10"); g("v_lshlrev_b32 v30, v10, 10"); g("v_or_b32 v30, 0x4444, v30")
    g("v_lshlrev_b32 v120, 5, v2"); g("s_lshl_b32 s62, s3, 9"); g(f"s_add_u32 s62, s62, {LDS_CS}"); g("v_add_u32 v120, s62, v120")
    g("v_lshl_add_u32 v7, v3, 2, v28"); g("v_lshlrev_b32 v7, 5, v7")
    rep = g.o["rep"]
    g("s_lshl_b32 s69, s67, 15"); g("s_lshl_b32 s63, s3, 8"); g("s_add_u32 s69, s69, s63"); g(f"s_add_u32 s69, s69, {APART}")
    if rep:
        g("s_and_b32 s63, s42, 7"); g("s_lshl_b32 s63, s63, 17"); g("s_add_u32 s69, s69, s63")
    g("v_lshrrev_b32 v13, 1, v1"); g("v_lshlrev_b32 v13, 10, v13"); g("v_and_b32 v14, 1, v1"); g("v_lshl_add_u32 v13, v14, 7, v13")
    g("v_lshlrev_b32 v123, 5, v2"); g("v_lshl_add_u32 v123, v3, 4, v123")
    g("s_lshl_b32 s74, s67, 5"); g("s_add_u32 s74, s74, s66"); g("s_lshl_b32 s74, s74, 11")
    g("s_lshl_b32 s63, s3, 9"); g("s_add_u32 s74, s74, s63"); g(f"s_add_u32 s74, s74, {FPART}")
    c1 = -2 * math.sqrt(2 / math.pi) * math.log2(math.e)
    g(f"s_mov_b32 s75, 0x{f2u(c1*0.044715):08x}"); g(f"v_mov_b32 v124, 0x{f2u(c1):08x}")
    for k in range(32): g(f"v_mov_b32 v{160+k}, 0")

def x_issue(g):
    g("s_lshl_b32 s62, s67, 10"); g("s_lshl_b32 s63, s3, 8"); g("s_add_u32 s62, s62, s63")
    for t in range(8):
        g(f"buffer_load_dwordx2 v[{96+2*t}:{97+2*t}], v122, s[56:59], s62 offen offset:{32*t}")

def x_finish(g):
    for t in range(8):
        for q in range(2):
            g(f"v_lshlrev_b32 v{128+4*t+2*q}, 16, v{96+2*t+q}")
            g(f"v_and_b32 v{128+4*t+2*q+1}, 0xffff0000, v{96+2*t+q}")

def ffn_issue(g):
    g(f"s_mul_i32 s62, s3, {128*2752}"); g("s_mul_i32 s63, s66, 96"); g("s_mov_b32 m0, s76"); g("s_add_u32 s62, s62, s63")
    for n in range(12):
        g(f"buffer_load_dwordx4 v{4+n%3}, s[44:47], s62 offen lds")
        g("s_addk_i32 m0, 0x3000"); g("s_nop 0")
        g(f"buffer_load_dwordx4 v{4+n%3}, s[48:51], s62 offen lds")
        if n < 11:
            g("s_addk_i32 m0, 0xd400")
            g(f"s_add_u32 s62, s62, {32*2752}" if n % 3 == 2 else "s_nop 0")
    g("s_mul_i32 s62, s66, 49152"); g("s_lshl_b32 s63, s3, 8"); g("s_add_u32 s62, s62, s63")
    for hb in range(2):
        for pos in range(3):
            g(f"s_add_u32 s63, s62, {(16*pos + 8*hb)*1024}")
            for q in range(2):
                r = 192 + 24*hb + 8*pos + 4*q
                g(f"buffer_load_dwordx4 v[{r}:{r+3}], v121, s[52:55], s63 offen offset:{(q if pos < 2 else q ^ 1)*1024}")

def ffn_finish(g):
    g("s_waitcnt vmcnt(36)")
    x_finish(g)
    for s2 in range(2):
        g(f"s_waitcnt vmcnt({12 + 12*(1-s2)})")
        for t in range(6):
            for hb in range(2):
                for hv in range(2):
                    r = 48*s2+8*t+4*hb+2*hv
                    g(f"ds_read_b64_tr_b16 a[{r}:{r+1}], v125 offset:{(64*s2+8*hb+16*hv)*96+(t%3)*32+(t//3)*12288}")
    g("s_waitcnt lgkmcnt(0)")
    for ks in range(4):
        for t in range(6):
            c = "0" if ks == 0 else f"v[{32+4*t}:{35+4*t}]"
            r = 48*(ks>>1)+8*t+4*(ks&1)
            g(f"{M16} v[{32+4*t}:{35+4*t}], v[24:27], a[{r}:{r+3}], {c}")
    g("s_waitcnt vmcnt(0)")
    for hb in range(2):
        for t in range(8):
            R = lambda pos, q: 192 + 24*hb + 8*pos + 4*q + (t>>1)
            for q in range(2):
                g(f"v_perm_b32 v{64+2*q}, v{R(1,q)}, v{R(0,q)}, s{60+(t&1)}")
                g(f"v_perm_b32 v{65+2*q}, v{R(2,q)}, v{R(2,q)}, s{60+(t&1)}")
            for p in range(4): g(f"v_accvgpr_write_b32 a{96+8*t+4*hb+p}, v{64+p}")
        if hb == 0:
            g("ds_write2_b32 v120, v32, v36 offset0:0 offset1:1"); g("ds_write2_b32 v120, v40, v44 offset0:2 offset1:4"); g("ds_write2_b32 v120, v48, v52 offset0:5 offset1:6")
    g("s_waitcnt lgkmcnt(0)")
    g("s_barrier")
    for w in range(4):
        g(f"ds_read_b128 v[{32+8*w}:{35+8*w}], v7 offset:{LDS_CS+512*w}"); g(f"ds_read_b128 v[{36+8*w}:{39+8*w}], v7 offset:{LDS_CS+512*w+16}")
    g(f"v_add_u32 v120, {LDS_GX-LDS_CS}, v120")
    g("s_waitcnt lgkmcnt(0)")
    for k in (0, 1, 2, 4, 5, 6):
        g(f"v_add_f32 v{32+k}, v{32+k}, v{40+k}"); g(f"v_add_f32 v{48+k}, v{48+k}, v{56+k}")
        g(f"v_add_f32 v{224+k}, v{32+k}, v{48+k}")

def ffn_stage(g):
    g(f"s_mov_b32 s65, {SPIN}")
    l = g.lab("fp"); e = g.lab("fpe")
    g(f"{l}:")
    for k in range(24): g(f"v_mov_b32 v{192+k}, 0")
    poll_loop(g, lambda: g("buffer_load_dword v14, v13, s[4:7], s69 offen sc1"), lambda: g("v_cmp_eq_u32 vcc, -1, v14"), spin=4*SPIN, sleep=g.o["fsleep"])
    tile_dma(g, 69)
    g.stamp(7)
    g("s_waitcnt vmcnt(0)")
    tile_read(g, 32)
    for t in range(8):
        g(f"s_waitcnt lgkmcnt({14-2*t})")
        g(f"{M16} v[{64+4*t}:{67+4*t}], v[{32+4*t}:{35+4*t}], v[24:27], v[{128+4*t}:{131+4*t}]")
    def cv(t):
        g(f"v_cvt_pk_bf16_f32 v{96+2*t}, v{64+4*t}, v{65+4*t}")
        g(f"v_cvt_pk_bf16_f32 v{97+2*t}, v{66+4*t}, v{67+4*t}")
        g(f"v_cndmask_b32 v{216+t}, v{96+2*t}, v{97+2*t}, s[70:71]")
    def st(ks, which):
        A = f"v[{96+4*ks}:{99+4*ks}]"; d = 56 + 4*which
        c = "0" if ks == 0 else f"v[{d}:{d+3}]"
        g(f"{M16} v[{d}:{d+3}], {A}, {'v[24:27]' if which == 0 else A}, {c}")
    def sm(s2, t):
        g(f"{SMF} v[{192+4*t}:{195+4*t}], v[{216+4*s2}:{219+4*s2}], a[{48*s2+8*t}:{48*s2+8*t+7}], v29")
    for t in range(4): cv(t)
    st(0, 0); st(0, 1)
    cv(4); sm(0, 0); sm(0, 1); cv(5); sm(0, 2); sm(0, 3); cv(6); sm(0, 4); sm(0, 5); cv(7)
    st(1, 0); st(1, 1); st(2, 0); st(3, 0); st(2, 1); st(3, 1)
    g(f"s_cmp_ge_u32 s66, {NSL}"); g("s_cbranch_scc1 L_HPUB")
    for t in range(6): sm(1, t)
    g("s_sub_u32 s65, s65, 1"); g("s_cmp_eq_u32 s65, 0"); g(f"s_cbranch_scc1 {e}")
    g("v_cmp_u_f32 vcc, v56, v56")
    g(f"s_cbranch_vccnz {l}")
    g(f"{e}:")
    hp = ["L_HPUB:", "s_sub_u32 s65, s65, 1", "s_cmp_eq_u32 s65, 0", "s_cbranch_scc1 L_HPUB2", "s_nop 3", "v_cmp_u_f32 vcc, v56, v56", f"s_cbranch_vccnz {l}", "L_HPUB2:",
          "v_lshlrev_b32 v13, 4, v3", "s_mov_b32 s70, 0x00010001", "s_mov_b32 s71, 0x00010001", "s_mov_b64 exec, s[70:71]"] + \
         [f"buffer_store_dwordx4 v[{64+4*t}:{67+4*t}], v13, s[4:7], s74 offen offset:{64*t} sc1" for t in range(8)] + ["s_mov_b64 exec, -1", "s_branch L_fin"]
    g.slow += hp
    g("s_mov_b64 exec, 0xffff")
    g("ds_write2_b32 v120, v56, v60 offset0:3 offset1:7")
    for t in range(6):
        g(f"v_add_f32 v{192+4*t}, v{192+4*t}, v{193+4*t}")
        if t == 1: g("ds_write2_b32 v120, v192, v196 offset0:0 offset1:1")
        if t == 3: g("ds_write2_b32 v120, v200, v204 offset0:2 offset1:4")
    g("ds_write2_b32 v120, v208, v212 offset0:5 offset1:6")
    g("s_mov_b64 exec, -1")
    g("s_waitcnt lgkmcnt(0)")
    g("s_barrier")
    for w in range(4):
        g(f"ds_read_b128 v[{32+8*w}:{35+8*w}], v7 offset:{LDS_GX+512*w}"); g(f"ds_read_b128 v[{36+8*w}:{39+8*w}], v7 offset:{LDS_GX+512*w+16}")
    g("s_waitcnt lgkmcnt(4)")
    for k in (3, 7, 0, 1, 2, 4, 5, 6): g(f"v_add_f32 v{32+k}, v{32+k}, v{40+k}")
    g("s_waitcnt lgkmcnt(0)")
    for k in (3, 7): g(f"v_add_f32 v{48+k}, v{48+k}, v{56+k}")
    for k in (3, 7): g(f"v_add_f32 v{32+k}, v{32+k}, v{48+k}")
    rest = [f"v_add_f32 v{48+k}, v{48+k}, v{56+k}" for k in (0, 1, 2, 4, 5, 6)] + [f"v_add_f32 v{32+k}, v{32+k}, v{48+k}" for k in (0, 1, 2, 4, 5, 6)]
    chain = [f"v_mul_f32 v35, 0x{f2u(1/512):08x}, v35", f"v_mul_f32 v39, 0x{f2u(1/512):08x}, v39", "v_fma_f32 v39, -v35, v35, v39", "v_max_f32 v39, 0, v39",
             "v_cvt_pk_bf16_f32 v39, v35, v39", "v_lshlrev_b32 v35, 16, v39", "v_and_b32 v39, 0xffff0000, v39", f"v_add_f32 v39, 0x{f2u(1e-5):08x}, v39",
             "v_cvt_pk_bf16_f32 v39, v39, v39", "v_lshlrev_b32 v39, 16, v39", "v_sqrt_f32 v39, v39", None, "v_cvt_pk_bf16_f32 v39, v39, v39", "v_lshlrev_b32 v39, 16, v39", "v_rcp_f32 v39, v39"]
    for x in chain:
        if x: g(x)
        if rest: g(rest.pop(0))
    K6 = (0, 1, 2, 4, 5, 6)
    for k in K6: g(f"v_fma_f32 v{32+k}, -v35, v{224+k}, v{32+k}")
    for k in K6: g(f"v_mul_f32 v{32+k}, v39, v{32+k}")
    g("v_cvt_pk_bf16_f32 v40, v32, v33"); g("v_cvt_pk_bf16_f32 v41, v34, v38"); g("v_cvt_pk_bf16_f32 v42, v36, v37")
    g("v_lshlrev_b32 v32, 16, v40"); g("v_and_b32 v33, 0xffff0000, v40"); g("v_lshlrev_b32 v34, 16, v41")
    for k in range(3): g(f"v_mul_f32 v{44+k}, v{32+k}, v{32+k}")
    for k in range(3): g(f"v_fma_f32 v{44+k}, v{44+k}, s75, v124")
    for k in range(3): g(f"v_mul_f32 v{44+k}, v{44+k}, v{32+k}")
    for k in range(3): g(f"v_exp_f32 v{44+k}, v{44+k}")
    g("v_lshlrev_b32 v36, 16, v42")
    for k in range(3): g(f"v_add_f32 v{44+k}, 1.0, v{44+k}")
    for k in range(3): g(f"v_rcp_f32 v{44+k}, v{44+k}")
    g("v_and_b32 v37, 0xffff0000, v42"); g("v_and_b32 v38, 0xffff0000, v41")
    for k in range(3): g(f"v_mul_f32 v{44+k}, v{44+k}, v{32+k}")
    g("v_cvt_pk_bf16_f32 v40, v44, v45"); g("v_cvt_pk_bf16_f32 v41, v46, v46")
    g("v_lshlrev_b32 v44, 16, v40"); g("v_and_b32 v45, 0xffff0000, v40"); g("v_and_b32 v46, 0xffff0000, v41")
    for k in range(3): g(f"v_mul_f32 v{44+k}, v{44+k}, v{36+k}")
    g("v_cvt_pk_bf16_f32 v40, v44, v45"); g("v_cvt_pk_bf16_f32 v41, v46, v46")
    for p in range(4): g(f"v_and_b32 v{48+p}, v40, v{16+p}")
    for p in range(4): g(f"v_and_or_b32 v{48+p}, v41, v{20+p}, v{48+p}")
    g("v_cmp_ne_u32 vcc, 0, v3"); g("s_nop 0")
    for t in range(8):
        g(f"{SMF} v[{160+4*t}:{163+4*t}], v[48:51], a[{96+8*t}:{103+8*t}], v30")
    g.nop(1)
    for t in range(8):
        g(f"v_add_f32 v{160+4*t}, v{160+4*t}, v{161+4*t}"); g(f"v_add_f32 v{162+4*t}, v{162+4*t}, v{163+4*t}")
    for t in range(8):
        g(f"v_add_f32 v{160+4*t}, v{160+4*t}, v{162+4*t}")
    for q in range(4):
        g(f"v_cndmask_b32 v{32+q}, v{160+4*q}, v{176+4*q}, vcc")
    g("s_mov_b32 exec_hi, 0")
    g("buffer_store_dwordx4 v[32:35], v123, s[4:7], s74 offen sc1")
    g("s_mov_b64 exec, -1")
    g.stamp(8)

def tcu(g):
    opts = g.o; rep = opts["rep"]
    g("s_lshl_b32 s74, s72, 10"); g("s_lshl_b32 s62, s73, 8"); g("s_add_u32 s74, s74, s62"); g("s_lshl_b32 s62, s3, 6"); g("s_add_u32 s74, s74, s62")
    g("v_lshlrev_b32 v28, 15, v3"); g("v_lshl_add_u32 v28, v2, 2, v28")
    g("s_lshl_b32 s75, s73, 5"); g("s_add_u32 s75, s75, s72")
    g("v_lshlrev_b32 v29, 4, v0")
    g("s_lshl_b32 s76, s75, 12"); g(f"s_add_u32 s76, s76, {STAT}")
    g("v_lshlrev_b32 v4, 16, v3"); g("v_lshl_add_u32 v4, v2, 4, v4")
    g("s_lshl_b32 s66, s3, 20"); g("s_lshl_b32 s63, s72, 8"); g("s_add_u32 s66, s66, s63")
    for ks in range(4):
        g(f"s_xor_b32 s63, s73, {ks}"); g(f"s_lshl_b32 s63, s63, 18"); g(f"s_add_u32 s{52+ks}, s66, s63")
    g("v_lshlrev_b32 v5, 14, v2"); g("v_lshl_add_u32 v5, v3, 4, v5")
    g("s_lshl_b32 s78, s73, 20"); g("s_lshl_b32 s63, s3, 18"); g("s_add_u32 s78, s78, s63"); g("s_lshl_b32 s63, s72, 8"); g("s_add_u32 s78, s78, s63")
    g("s_add_u32 s79, s78, 8192")
    g("s_mov_b32 s14, 0x400000"); g("s_mov_b32 s15, 0x20000"); g("s_mov_b32 s58, 4096"); g("s_mov_b32 s59, 0x20000")
    g("s_mov_b32 s46, 0x400000"); g("s_mov_b32 s47, 0x20000")
    g("s_waitcnt lgkmcnt(0)")
    g("s_mov_b32 s56, s16"); g("s_and_b32 s57, s17, 0xffff"); g("s_mov_b32 s12, s20"); g("s_and_b32 s13, s21, 0xffff")
    def wq(ks):
        for e in range(8):
            g(f"s_add_u32 s63, s{52+ks}, {e*8192}")
            r = 32 + 32*ks + 4*e
            g(f"buffer_load_dwordx4 v[{r}:{r+3}], v4, s[12:15], s63 offen")
    g("buffer_load_dwordx4 v[8:11], v29, s[56:59], 0 offen")
    wq(0)
    g("s_mov_b32 s44, s22"); g("s_and_b32 s45, s23, 0xffff")
    g("s_barrier")
    for tt in range(2):
        for ks in range(4):
            r = 160 + 16*tt + 4*ks
            g(f"buffer_load_dwordx4 v[{r}:{r+3}], v5, s[44:47], s{78+tt} offen offset:{64*ks}")
    g.srd(4, 40, WS); g.srd(8, 38, 256)
    for k in range(4): g(f"v_mov_b32 v{24+k}, -1")
    g("buffer_store_dwordx4 v[24:27], v29, s[4:7], s76 offen sc1")
    g("v_lshlrev_b32 v30, 3, v0"); g(f"s_lshl_b32 s62, s42, 11"); g(f"s_add_u32 s62, s62, {FPART}")
    g("buffer_store_dwordx2 v[24:25], v30, s[4:7], s62 offen sc1")
    if rep:
        g(f"s_lshl_b32 s62, s42, 13"); g(f"s_add_u32 s62, s62, {APART}"); g("s_add_u32 s63, s62, 4096")
        g("buffer_store_dwordx4 v[24:27], v29, s[4:7], s62 offen sc1"); g("buffer_store_dwordx4 v[24:27], v29, s[4:7], s63 offen sc1")
        nst = 4
    else:
        g("v_lshlrev_b32 v30, 2, v0"); g(f"s_lshl_b32 s62, s42, 10"); g(f"s_add_u32 s62, s62, {APART}")
        g("buffer_store_dword v24, v30, s[4:7], s62 offen sc1")
        nst = 3
    g("s_mul_i32 s62, s3, 1040"); g("v_lshlrev_b32 v6, 4, v1"); g("v_add_u32 v6, s62, v6")
    g("v_and_b32 v7, 3, v2"); g("v_mul_u32_u24 v7, 1040, v7"); g("v_lshl_add_u32 v7, v3, 4, v7")
    g("s_lshl_b32 s62, s3, 8"); g("v_add_u32 v7, s62, v7")
    g(f"s_waitcnt vmcnt({16+nst})")
    for q in range(4):
        g(f"v_lshlrev_b32 v{12+2*q}, 16, v{8+q}"); g(f"v_and_b32 v{13+2*q}, 0xffff0000, v{8+q}")
    g("v_add_f32 v20, v12, v13"); g("v_add_f32 v21, v14, v15"); g("v_add_f32 v22, v16, v17"); g("v_add_f32 v23, v18, v19")
    g("v_add_f32 v20, v20, v21"); g("v_add_f32 v22, v22, v23"); g("v_add_f32 v20, v20, v22")
    g.allred("v_add_f32", 20, 21)
    g(f"v_mul_f32 v20, 0x{f2u(1/512):08x}, v20")
    g("v_sub_f32 v22, v12, v20"); g("v_mul_f32 v21, v22, v22")
    for k in range(1, 8):
        g(f"v_sub_f32 v22, v{12+k}, v20"); g("v_fmac_f32 v21, v22, v22")
    g.allred("v_add_f32", 21, 22)
    g(f"v_mul_f32 v21, 0x{f2u(1/512):08x}, v21")
    g.bf16r(20, 20); g.bf16r(21, 21)
    g(f"v_add_f32 v21, 0x{f2u(1e-5):08x}, v21"); g.bf16r(21, 21)
    g("v_sqrt_f32 v21, v21"); g("s_nop 0"); g.bf16r(21, 21)
    g("v_rcp_f32 v21, v21")
    for k in range(8): g(f"v_sub_f32 v{12+k}, v{12+k}, v20")
    for q in range(4): g(f"v_cvt_pk_bf16_f32 v{8+q}, v{12+2*q}, v{13+2*q}")
    for q in range(4):
        g(f"v_lshlrev_b32 v{12+2*q}, 16, v{8+q}"); g(f"v_and_b32 v{13+2*q}, 0xffff0000, v{8+q}")
    for k in range(8): g(f"v_mul_f32 v{12+k}, v{12+k}, v21")
    for q in range(4): g(f"v_cvt_pk_bf16_f32 v{8+q}, v{12+2*q}, v{13+2*q}")
    g(f"ds_write_b128 v6, v[8:11] offset:{LDS_XN}")
    g("v_mov_b32 v30, 0")
    g(f"s_waitcnt vmcnt({8+nst}) lgkmcnt(0)")
    g.stamp(1)
    wq(1)
    g("s_barrier")
    for ks in range(4):
        g(f"s_xor_b32 s63, s73, {ks}"); g("s_lshl_b32 s63, s63, 6"); g("v_add_u32 v6, s63, v7")
        g(f"ds_read_b128 v[{8+4*ks}:{11+4*ks}], v6 offset:{LDS_XN}")
    wq(2)
    g("s_mul_i32 s62, s3, 272"); g("v_lshlrev_b32 v6, 4, v2"); g("v_add_u32 v6, s62, v6")
    g("v_mul_u32_u24 v7, 272, v2"); g("v_lshl_add_u32 v7, v3, 4, v7")
    for ks in range(4):
        if ks == 1: wq(3)
        if ks: g(f"s_waitcnt vmcnt({8*(3-ks) + (1 if ks == 3 else 0)})")
        if ks == 2: g("buffer_load_dword v31, v30, s[8:11], 0 offen sc1")
        if ks == 3: g.stamp(7)
        R = 32+32*ks
        if ks == 0: g("s_waitcnt lgkmcnt(0)")
        def pm(t):
            for p in range(4):
                g(f"v_perm_b32 v{192+4*t+p}, v{R+4*(2*p+1)+(t>>1)}, v{R+4*(2*p)+(t>>1)}, s{60+(t&1)}")
        pm(0)
        for t in range(8):
            if t < 7: pm(t+1)
            else: g("s_nop 0")
            c = "0" if ks == 0 else f"v[{224+4*t}:{227+4*t}]"
            g(f"{M16} v[{224+4*t}:{227+4*t}], v[{8+4*ks}:{11+4*ks}], v[{192+4*t}:{195+4*t}], {c}")
    for p in range(4):
        for b in range(4):
            g(f"v_cvt_pk_bf16_f32 v{8+4*b+p}, v{224+8*p+b}, v{228+8*p+b}")
    g("s_mov_b64 exec, 0xffff")
    for b in range(4):
        g(f"ds_write_b128 v6, v[{8+4*b}:{11+4*b}] offset:{LDS_QX+4*272*b}")
    g("s_mov_b64 exec, -1")
    g("s_waitcnt lgkmcnt(0)")
    g("s_barrier")
    for ks in range(4):
        g(f"ds_read_b128 v[{8+4*ks}:{11+4*ks}], v7 offset:{LDS_QX+64*ks}")
    for ks in range(4):
        g(f"s_waitcnt lgkmcnt({3-ks})")
        for tt in range(2):
            c = "0" if ks == 0 else f"v[{224+4*tt}:{227+4*tt}]"
            g(f"{M16} v[{224+4*tt}:{227+4*tt}], v[{8+4*ks}:{11+4*ks}], v[{160+16*tt+4*ks}:{163+16*tt+4*ks}], {c}")
    g("s_waitcnt vmcnt(0)")
    g("v_cmp_ne_u32 vcc, 16, v31")
    g.srd(12, 18, 32 << 20)
    g("v_lshlrev_b32 v4, 7, v1"); g("s_lshr_b32 s62, s42, 5")
    for tt in range(2):
        r = 224 + 4*tt
        g(f"v_add_f32 v{r}, v{r}, v{r+1}"); g(f"v_add_f32 v{r+2}, v{r+2}, v{r+3}")
    for tt in range(2):
        r = 224 + 4*tt
        g(f"v_add_f32 v{r}, v{r}, v{r+2}")
    for tt in range(2):
        r = 224 + 4*tt
        g(f"v_mul_f32 v{r}, 0x{f2u(SCALE):08x}, v{r}")
    g("v_cvt_pk_bf16_f32 v8, v224, v228")
    g("s_cbranch_vccz L_T_c0ok")
    cnt_wait(g, 31, 30)
    g("L_T_c0ok:")
    g("buffer_store_dword v8, v28, s[4:7], s74 offen sc1")
    g.stamp(2)
    g("s_lshl_b32 s62, s62, 23"); g("s_and_b32 s63, s42, 31"); g("s_lshl_b32 s63, s63, 15"); g("s_add_u32 s62, s62, s63")
    g("s_lshl_b32 s63, s3, 13"); g("s_add_u32 s62, s62, s63")
    for i in range(4, 8):
        g(f"s_add_u32 s63, s62, {i*TS}")
        g(f"buffer_load_dword v31, v4, s[12:15], s63 offen")
    g.srd(12, 24, 4 << 20); g.srd(44, 26, 4 << 20)
    for ks in range(4):
        g(f"s_xor_b32 s63, s73, {ks}"); g("s_lshr_b32 s62, s63, 1"); g("s_lshl_b32 s62, s62, 19"); g("s_and_b32 s63, s63, 1"); g("s_lshl_b32 s63, s63, 16")
        g(f"s_add_u32 s{52+ks}, s66, s62"); g(f"s_add_u32 s{52+ks}, s{52+ks}, s63")
    g("v_and_b32 v6, 1, v3"); g("v_lshrrev_b32 v7, 1, v3")
    g("v_lshlrev_b32 v4, 18, v6"); g("v_lshl_add_u32 v4, v7, 15, v4"); g("v_lshl_add_u32 v4, v2, 4, v4")
    g("v_lshlrev_b32 v5, 14, v7"); g("v_lshl_add_u32 v5, v6, 12, v5"); g("v_lshl_add_u32 v5, v2, 4, v5")
    g("s_lshl_b32 s79, s72, 17"); g("s_lshl_b32 s63, s3, 8"); g("s_add_u32 s79, s79, s63")
    order = [[0, 4, 5, 6, 7, 1, 2, 3], [0, 4, 1, 5, 2, 6, 3, 7], [0, 4, 1, 2, 3, 5, 6, 7]][opts["tord"]]
    bufs = [128, 160, 192, 224, 32, 64][:opts["nb"]]
    NB = len(bufs)
    def tw_issue(i):
        n = order[i]; ks = n & 3
        if n >= 4:
            g(f"s_xor_b32 s62, s73, {ks}"); g("s_lshl_b32 s62, s62, 15"); g("s_add_u32 s62, s62, s79"); g("s_add_u32 s63, s62, 0x2000")
        for e in range(8):
            r = bufs[i % NB] + 4*e
            if n < 4:
                g(f"s_add_u32 s63, s{52+ks}, {(16*(e>>2)+(e&3))*8192}")
                g(f"buffer_load_dwordx4 v[{r}:{r+3}], v4, s[12:15], s63 offen")
            else:
                g(f"buffer_load_dwordx4 v[{r}:{r+3}], v5, s[44:47], s{62+((e>>1)&1)} offen offset:{(2*(e>>2)+(e&1))*1024}")
    issued = 2
    tw_issue(0); tw_issue(1)
    g.stamp(1)
    tile_setup(g, True)
    g("s_lshl_b32 s69, s75, 15"); g("s_lshl_b32 s63, s3, 8"); g("s_add_u32 s69, s69, s63"); g(f"s_add_u32 s69, s69, {OPART}")
    g("v_and_b32 v13, 31, v1"); g("v_lshlrev_b32 v14, 7, v13")
    g("s_lshl_b32 s62, s3, 6"); g("v_lshlrev_b32 v13, 1, v13"); g("v_add_u32 v13, s62, v13")
    g("v_lshlrev_b32 v15, 4, v3"); g("v_add_u32 v15, s62, v15")
    g("s_mul_i32 s62, s3, 272"); g("v_lshlrev_b32 v120, 4, v2"); g("v_add_u32 v121, s62, v120")
    g("v_bfe_u32 v10, v2, 2, 1"); g("v_lshlrev_b32 v11, 5, v3"); g("v_lshl_add_u32 v11, v10, 4, v11")
    g("s_lshl_b32 s62, s73, 6"); g("v_xor_b32 v11, s62, v11"); g("v_xor_b32 v12, 0x80, v11")
    g("v_and_b32 v122, 3, v2"); g("v_mul_u32_u24 v122, 272, v122"); g("v_add_u32 v123, v122, v12"); g("v_add_u32 v122, v122, v11")
    g("v_mul_u32_u24 v30, 0xaaaa, v10"); g("v_or_b32 v30, 0x4444, v30")
    g("v_lshl_add_u32 v120, v6, 3, v120")
    if rep: g("v_lshl_add_u32 v120, v7, 17, v120")
    g("s_lshl_b32 s78, s75, 10"); g("s_lshl_b32 s63, s3, 8"); g("s_add_u32 s78, s78, s63"); g(f"s_add_u32 s78, s78, {APART}")
    for i in range(8):
        g(f"s_waitcnt vmcnt({8*(issued-1-i)})")
        if i == 0: g.stamp(7)
        if i == 1: g.stamp(9)
        lim = min(8, i + NB) if i >= 1 else issued
        while issued < lim:
            tw_issue(issued); issued += 1
        R = bufs[i % NB]; n = order[i]; ks = n & 3
        acc = 128*(n>>2) + 64*(ks>>1) + 4*(ks&1)
        for t in range(8 if not opts["xnp"] else 1):
            for p in range(4):
                g(f"v_perm_b32 v{16+p+4*(t&1)}, v{R+4*(2*p+1)+(t>>1)}, v{R+4*(2*p)+(t>>1)}, s{60+(t&1)}")
            for p in range(4):
                g(f"v_accvgpr_write_b32 a{acc+8*t+p}, v{16+p+4*(t&1)}")
    g.stamp(3)
    first = [True]
    def pbody():
        g("buffer_load_dwordx2 v[32:33], v14, s[4:7], s76 offen sc1")
    def cond():
        g("v_max_u32 v34, v32, v33"); g("v_cmp_eq_u32 vcc, -1, v34")
    pbody()
    for k in range(64): g(f"v_mov_b32 v{128+k}, 0")
    g("s_waitcnt vmcnt(0)")
    cond()
    g("s_cbranch_vccz L_T_go")
    poll_loop(g, pbody, cond, spin=4*SPIN, sleep=opts["tsleep"])
    g("L_T_go:")
    tile_dma(g, 69)
    g.stamp(4)
    g("v_mov_b32 v34, v32")
    g.allred("v_max_f32", 34, 35, 32)
    g("v_sub_f32 v34, v32, v34"); g("v_cvt_i32_f32 v34, v34"); g("v_ldexp_f32 v34, 1.0, v34")
    g(f"ds_write_b16_d16_hi v13, v34 offset:{LDS_FX}")
    g("v_mul_f32 v31, v34, v33")
    g(f"ds_read_b128 v[24:27], v15 offset:{LDS_FX}")
    g.allred("v_add_f32", 31, 35, 32)
    g("v_rcp_f32 v31, v31")
    g("s_waitcnt vmcnt(0) lgkmcnt(0)")
    g.stamp(5)
    tile_read(g, 32)
    for t in range(8):
        g(f"s_waitcnt lgkmcnt({14-2*t})" if not opts.get("stamps") else "s_waitcnt lgkmcnt(0)")
        g(f"{M16} v[{64+4*t}:{67+4*t}], v[{32+4*t}:{35+4*t}], v[24:27], 0")
    def cv(t):
        g(f"v_cvt_pk_bf16_f32 v{96+t}, v{64+4*t}, v{65+4*t}")
        g(f"v_cvt_pk_bf16_f32 v{104+(t&1)}, v{66+4*t}, v{67+4*t}")
        g(f"v_cndmask_b32 v{96+t}, v{96+t}, v{104+(t&1)}, s[70:71]")
    for t in range(5): cv(t)
    for t in range(8):
        g(f"{SMF} v[{128+4*t}:{131+4*t}], v[96:99], a[{8*t}:{8*t+7}], v29")
        if t in (0, 2, 4): cv(5 + t//2)
    for t in range(8):
        g(f"{SMF} v[{128+4*t}:{131+4*t}], v[100:103], a[{64+8*t}:{64+8*t+7}], v29")
    g.nop(1)
    for t in range(8):
        g(f"v_add_f32 v{128+4*t}, v{128+4*t}, v{129+4*t}")
    for t in range(8):
        g(f"v_mul_f32 v{128+4*t}, v31, v{128+4*t}")
    for p in range(4):
        g(f"v_cvt_pk_bf16_f32 v{64+p}, v{128+8*p}, v{132+8*p}")
    g("s_mov_b64 exec, 0xffff")
    g(f"ds_write_b128 v121, v[64:67] offset:{LDS_CX}")
    g("s_mov_b64 exec, -1")
    g("s_waitcnt lgkmcnt(0)")
    g("s_barrier")
    for s2 in range(2):
        g(f"ds_read_b128 v[{96+4*s2}:{99+4*s2}], v{122+s2} offset:{LDS_CX}")
    for s2 in range(2):
        g(f"s_waitcnt lgkmcnt({1-s2})")
        for t in (0, 4, 1, 5, 2, 6, 3, 7):
            g(f"{SMF} v[{160+4*t}:{163+4*t}], v[{96+4*s2}:{99+4*s2}], a[{128+64*s2+8*t}:{128+64*s2+8*t+7}], v30")
    g.nop(1)
    for t in (0, 4, 1, 5, 2, 6, 3, 7):
        g(f"v_add_f32 v{160+4*t}, v{160+4*t}, v{161+4*t}"); g(f"v_add_f32 v{162+4*t}, v{162+4*t}, v{163+4*t}")
    for t in (0, 4, 1, 5, 2, 6, 3, 7):
        g(f"v_add_f32 v{160+4*t}, v{160+4*t}, v{162+4*t}")
    for t in range(4): g(f"v_permlane16_swap_b32 v{160+4*t}, v{176+4*t}")
    for t in range(4): g(f"v_add_f32 v{160+4*t}, v{160+4*t}, v{176+4*t}")
    g("v_cvt_pk_bf16_f32 v64, v160, v164"); g("v_cvt_pk_bf16_f32 v65, v168, v172")
    if rep:
        for c in range(4):
            g("buffer_store_dwordx2 v[64:65], v120, s[4:7], s78 offen sc1")
            if c < 3: g("s_add_u32 s78, s78, 0x40000")
    else:
        g("s_mov_b32 exec_hi, 0")
        g("buffer_store_dwordx2 v[64:65], v120, s[4:7], s78 offen sc1")
        g("s_mov_b64 exec, -1")
    g.stamp(6)
    g("s_cmp_lt_u32 s43, 16"); g("s_cbranch_scc1 L_fin")
    g("s_cmp_lg_u32 s3, 0"); g("s_cbranch_scc1 L_fin")
    g.srd(12, 36, 4096)
    g("v_lshrrev_b32 v4, 3, v1"); g("v_and_b32 v5, 7, v1")
    g("v_lshlrev_b32 v6, 11, v4"); g("v_lshl_add_u32 v6, v5, 4, v6")
    g(f"v_mov_b32 v7, {OOB}")
    g("v_cmp_gt_u32 vcc, 5, v4"); g("s_nop 1"); g("v_cndmask_b32 v7, v7, v6, vcc")
    g("v_lshlrev_b32 v8, 4, v5"); g("v_lshlrev_b32 v10, 3, v5")
    g(f"s_lshl_b32 s62, s73, 16"); g("s_sub_u32 s65, s43, 16"); g("s_lshl_b32 s63, s65, 7"); g("s_add_u32 s62, s62, s63"); g(f"s_add_u32 s62, s62, {FPART}")
    g("s_lshl_b32 s74, s73, 10"); g("s_lshl_b32 s63, s65, 6"); g("s_add_u32 s74, s74, s63")
    for n in range(1, 4): g(f"s_add_u32 s{75+n}, s62, {n*16384}")
    g(f"s_add_u32 s79, s62, {31*2048}")
    def body():
        for n in range(4):
            g(f"buffer_load_dwordx4 v[{32+4*n}:{35+4*n}], v{6 if n < 3 else 7}, s[4:7], s{62 if n == 0 else 75+n} offen sc1")
        g("buffer_load_dwordx4 v[56:59], v8, s[4:7], s79 offen sc1")
    def cond2():
        for k in range(4):
            g(f"v_add_f32 v{32+k}, v{32+k}, v{36+k}"); g(f"v_add_f32 v{40+k}, v{40+k}, v{44+k}")
        for k in range(4): g(f"v_add_f32 v{32+k}, v{32+k}, v{40+k}")
        g("v_add_f32 v40, v56, v57"); g("v_add_f32 v41, v58, v59"); g("v_add_f32 v42, v32, v33"); g("v_add_f32 v43, v34, v35")
        g("v_add_f32 v40, v40, v41"); g("v_add_f32 v42, v42, v43")
        g("v_cmp_u_f32 vcc, v40, v42")
    poll_loop(g, body, cond2, spin=4*SPIN, sleep=0)
    g.stamp(8)
    for k in range(4):
        g(f"v_add_f32_dpp v{32+k}, v{32+k}, v{32+k} row_ror:8 row_mask:0xf bank_mask:0xf")
    g("v_cvt_pk_bf16_f32 v44, v56, v57"); g("v_cvt_pk_bf16_f32 v45, v58, v59")
    for sw in ("v_permlane16_swap_b32", "v_permlane32_swap_b32"):
        for k in range(4): g(f"v_mov_b32 v{36+k}, v{32+k}")
        g("s_nop 0")
        for k in range(4): g(f"{sw} v{32+k}, v{36+k}")
        for k in range(4): g(f"v_add_f32 v{32+k}, v{32+k}, v{36+k}")
    g("v_cvt_pk_bf16_f32 v36, v32, v33"); g("v_cvt_pk_bf16_f32 v37, v34, v35")
    for q in range(2):
        g(f"v_lshlrev_b32 v{32+2*q}, 16, v{36+q}"); g(f"v_and_b32 v{33+2*q}, 0xffff0000, v{36+q}")
        g(f"v_lshlrev_b32 v{40+2*q}, 16, v{44+q}"); g(f"v_and_b32 v{41+2*q}, 0xffff0000, v{44+q}")
    for k in range(4): g(f"v_add_f32 v{32+k}, v{32+k}, v{40+k}")
    g("v_cvt_pk_bf16_f32 v36, v32, v33"); g("v_cvt_pk_bf16_f32 v37, v34, v35")
    g("s_mov_b64 exec, 0xff")
    g("buffer_store_dwordx2 v[36:37], v10, s[12:15], s74 offen" + (" sc0 sc1" if opts["osc"] else ""))
    g("s_mov_b64 exec, -1")
    g.stamp(10)
    g("s_branch L_fin")

QD = 8
def qreg(s):
    return f"v[{224+4*s}:{227+4*s}]" if s < QD else f"a[{128+4*(s-QD)}:{131+4*(s-QD)}]"

class Lds:
    def __init__(s, g): s.g = g; s.n = 0; s.done = 0
    def op(s, txt): s.g(txt); s.n += 1; return s.n
    def wait(s, i):
        if i <= s.done: return
        k = min(14, s.n - i); s.g(f"s_waitcnt lgkmcnt({k})"); s.done = s.n - k
    def all(s): s.wait(s.n)

def acu(g):
    fine = g.o["fine"]
    ea = ["v_and_b32 v8, 7, v5", "v_lshlrev_b32 v9, 1, v6", "v_xor_b32 v8, v8, v9", "v_lshlrev_b32 v208, 10, v5", "v_lshl_add_u32 v208, v8, 4, v208",
          "s_lshl_b32 s62, s3, 8", "v_add_u32 v208, s62, v208"] + [f"v_xor_b32 v{208+k}, {((4*(k>>1))|(k&1))<<4}, v208" for k in range(1, 4)] + \
         ["v_lshrrev_b32 v8, 3, v1", "v_and_b32 v9, 7, v1", "v_lshlrev_b32 v212, 10, v8", "v_lshl_add_u32 v212, v9, 4, v212", "v_add_u32 v212, s62, v212",
          "v_lshlrev_b32 v214, 12, v8", "v_lshl_add_u32 v214, v9, 4, v214", "v_xor_b32 v9, v9, v8", "v_lshlrev_b32 v213, 15, v8", "v_lshl_add_u32 v213, v9, 4, v213",
          "s_lshl_b32 s63, s3, 5", "v_lshl_add_u32 v215, v8, 2, s63",
          "s_lshl_b32 s65, s74, 20", "s_lshl_b32 s63, s75, 10", "s_add_u32 s65, s65, s63", "s_add_u32 s65, s65, s62", f"s_add_u32 s65, s65, {OPART}",
          "s_lshl_b32 s79, s74, 17", "s_lshl_b32 s63, s75, 7", "s_add_u32 s79, s79, s63", f"s_add_u32 s79, s79, {STAT}", "s_lshl_b32 s63, s3, 15", "s_add_u32 s79, s79, s63"]
    g("v_lshlrev_b32 v4, 4, v1")
    g("s_lshr_b32 s74, s42, 5"); g("s_and_b32 s75, s42, 31")
    g("s_lshl_b32 s76, s74, 23"); g("s_lshl_b32 s77, s75, 15"); g("s_add_u32 s76, s76, s77")
    g("s_lshl_b32 s77, s3, 13"); g("s_add_u32 s76, s76, s77")
    g("s_and_b32 s62, s3, 1"); g("s_lshl_b32 s62, s62, 5"); g("v_xor_b32 v7, s62, v4")
    for r in range(8):
        g(f"v_xor_b32 v{160+r}, {(fswz(r)<<4) | ((r>>2)<<12)}, v7")
    g(f"s_add_u32 s62, s77, {LQ}"); g("v_add_u32 v15, s62, v7")
    def dma_ops(slot, cf="nt"):
        ops = []
        for r in range(8):
            pre = []
            if r == 0: pre = [f"s_add_u32 m0, s77, {slot*32768}", "s_nop 0"]
            if r == 4: pre = ["s_addk_i32 m0, 0x1000", "s_nop 0"]
            post = [f"s_add_u32 s76, s76, {TS}"] if r == 7 else []
            ops.append(pre + [f"buffer_load_dwordx4 v{160+r}, s[12:15], s76 offen offset:{(r&3)*1024} {cf} lds"] + post)
        return ops
    def dma_tile(slot):
        for o in dma_ops(slot):
            for x in o: g(x)
    def setup():
        g("v_and_b32 v5, 31, v1"); g("v_lshrrev_b32 v6, 5, v1")
        g("v_and_b32 v8, 3, v5"); g("v_lshlrev_b32 v8, 2, v8"); g("v_bfe_u32 v9, v5, 2, 2"); g("v_or_b32 v8, v8, v9"); g("v_xor_b32 v8, v8, v6")
        g("v_lshlrev_b32 v10, 10, v5"); g("v_lshl_add_u32 v10, v8, 4, v10")
        g(f"v_add_u32 v11, {LQ}, v10")
        g("s_lshl_b32 s62, s3, 15"); g("v_add_u32 v10, s62, v10")
        for k in range(8): g(f"v_xor_b32 v{16+k}, {k<<5}, v10")
        for k in range(8): g(f"v_xor_b32 v{128+k}, {k<<5}, v11")
        g("v_bfe_u32 v8, v1, 2, 2")
        g("v_lshl_add_u32 v9, v6, 2, v8"); g("v_lshlrev_b32 v12, 10, v9")
        g("v_and_b32 v9, 1, v1"); g("v_lshlrev_b32 v9, 1, v9"); g("v_bfe_u32 v13, v1, 4, 1"); g("v_or_b32 v9, v9, v13")
        g("v_lshl_add_u32 v13, v8, 2, v6"); g("v_xor_b32 v9, v9, v13")
        g("v_lshl_add_u32 v12, v9, 4, v12")
        g("v_bfe_u32 v9, v1, 1, 1"); g("v_lshl_add_u32 v12, v9, 3, v12")
        g("s_lshl_b32 s62, s3, 8"); g("v_add_u32 v12, s62, v12")
        for ct in range(4):
            for hv in range(2):
                g(f"v_xor_b32 v{24+2*ct+hv}, {(ct<<6)|(hv<<5)}, v12")
                g(f"v_add_u32 v{32+2*ct+hv}, 0x10000, v{24+2*ct+hv}")
        g("v_lshlrev_b32 v40, 5, v5"); g("v_lshl_add_u32 v40, v6, 4, v40"); g(f"v_add_u32 v40, {LRF}, v40")
        g("v_xor_b32 v46, 16, v40")
        g("s_lshl_b32 s62, s3, 2"); g("v_add_u32 v41, s62, v40")
        g(f"v_add_u32 v42, {LP}, v4")
        g("s_lshl_b32 s62, s3, 11"); g("v_add_u32 v43, s62, v42")
        g("s_lshl_b32 s78, s74, 15"); g("s_add_u32 s78, s78, s77"); g("s_add_u32 s67, s78, 0x1000")
        g("v_mov_b32 v12, 0"); g("v_mov_b32 v13, 1")
        for r in range(8): g(f"v_xor_b32 v{168+r}, {fswz(r)<<4}, v15")
    for k in range(4): g(f"v_mov_b32 v{48+k}, -1")
    g("s_waitcnt lgkmcnt(0)")
    g.srd(4, 40, WS)
    g("s_cmp_ge_u32 s42, 16"); g("s_cbranch_scc1 L_A_ni")
    g("s_lshl_b32 s62, s42, 13"); g("s_lshl_b32 s63, s3, 11"); g("s_add_u32 s62, s62, s63")
    for k in range(2):
        g(f"buffer_store_dwordx4 v[48:51], v4, s[4:7], s62 offen offset:{k*1024} sc1")
    g("L_A_ni:")
    g.srd(12, 18, 32 << 20); g.srd(8, 38, 256)
    setup()
    o0 = dma_ops(0)
    for x in o0[0]: g(x)
    for x in ea: g(x)
    g.srd(44, 30, 512*2752); g.srd(48, 32, 512*2752); g.srd(52, 34, 1376*1024)
    g("v_mul_u32_u24 v218, 2752, v5"); g("v_mul_u32_u24 v9, 92, v6"); g("v_add_u32 v218, v218, v9")
    g("s_lshl_b32 s62, s73, 2"); g("s_add_u32 s62, s62, s3"); g(f"s_mul_i32 s70, s62, {32*2752}"); g("s_mul_i32 s64, s72, 96"); g("s_add_u32 s70, s70, s64")
    g("v_lshlrev_b32 v219, 6, v1"); g("s_mul_i32 s71, s62, 3072"); g("s_mul_i32 s64, s72, 49152"); g("s_add_u32 s71, s71, s64")
    g("s_cmp_ge_u32 s42, 16"); g("s_cbranch_scc1 L_A_ni2")
    g("s_waitcnt vmcnt(1)")
    g("s_barrier")
    g("s_cmp_lg_u32 s3, 0"); g("s_cbranch_scc1 L_A_ni2")
    g("s_mov_b64 exec, 1")
    g("buffer_atomic_add v13, v12, s[8:11], 0 offen sc1")
    g("s_mov_b64 exec, -1")
    g("s_branch L_A_ni3")
    g("L_A_ni2:")
    g("s_waitcnt vmcnt(0)")
    g("L_A_ni3:")
    for o in o0[1:]:
        for x in o: g(x)
    dma_tile(1)
    def pvreg(kk, ct): return 16*kk + 4*ct
    def rdp_txt(kk, ct):
        r = pvreg(kk, ct); row = 16*kk; ab = 24 if row < 64 else 32
        return [f"ds_read_b64_tr_b16 a[{r+2*hv}:{r+2*hv+1}], v{ab+2*ct+hv} offset:{((row % 64) + 8*hv)*1024}" for hv in range(2)]
    def gather():
        for r in range(8):
            g(f"buffer_load_dwordx4 v[{176+4*r}:{179+4*r}], v4, s[4:7], s{78 if r < 4 else 67} offen offset:{(r&3)*1024} sc1")
    for tl in range(4):
        g(f"s_waitcnt vmcnt({8 if tl < 3 else 0})")
        if tl == 1: g("buffer_load_dword v47, v12, s[8:11], 0 offen sc1")
        if tl < 2: dma_tile(tl+2)
        if tl == 3:
            g("v_cmp_ne_u32 vcc, 16, v47")
            g("s_cbranch_vccz L_A_c0")
            cnt_wait(g, 47, 12)
            g("L_A_c0:")
            if g.o["eg"]: gather()
        g("s_barrier")
        if tl == 0 and not fine: g.stamp(1)
        if tl == 3 and not fine: g.stamp(2)
        for ks in range(2):
            for ct in range(4):
                for x in rdp_txt(2*tl+ks, ct): g(x)
        sk = g.lab("p1c")
        g(f"s_cmp_lg_u32 s3, {tl}"); g(f"s_cbranch_scc1 {sk}")
        for s in range(32):
            g(f"ds_read_b128 a[{128+4*s}:{131+4*s}], v{16+(s&7)} offset:{(s>>3)*256}")
        g(f"{sk}:")
    g(f"s_mov_b32 s64, {SPIN}")
    if g.o["eg"]: g("s_branch L_A_g1")
    g("L_A_g0:")
    gather()
    g("L_A_g1:")
    for r in range(8):
        g(f"s_waitcnt vmcnt({7-r})")
        g(f"ds_write_b128 v{168+r}, v[{176+4*r}:{179+4*r}] offset:{r*1024}")
        if r == 0: g("v_max3_u32 v9, v176, v177, v178"); g("v_max_u32 v9, v9, v179")
        else: g(f"v_max3_u32 v9, v9, v{176+4*r}, v{177+4*r}"); g(f"v_max3_u32 v9, v9, v{178+4*r}, v{179+4*r}")
    g("s_sub_u32 s64, s64, 1"); g("s_cmp_eq_u32 s64, 0"); g("s_cbranch_scc1 L_A_gok")
    g("v_cmp_eq_u32 vcc, -1, v9")
    g("s_waitcnt lgkmcnt(0)")
    g("s_cbranch_vccnz L_A_g0")
    g("L_A_gok:")
    g("s_waitcnt lgkmcnt(0)")
    g("s_barrier")
    g.stamp(3)
    L = Lds(g)
    dq = []
    for t in range(4, 8): dq += dma_ops(t & 3, "")
    ids = {}
    def rdq(s): ids[s] = L.op(f"ds_read_b128 {qreg(s)}, v{128+(s&7)} offset:{(s>>3)*256}")
    for s in range(QD-1): rdq(s)
    def dpop(n=1):
        for _ in range(n):
            if dq:
                for y in dq.pop(0): g(y)
    dpop(g.o["d0"])
    dn = g.o["dn"]
    for s in range(32):
        L.wait(ids[s])
        c = "0" if s == 0 else "v[48:63]"
        g(f"v_mfma_f32_32x32x16_bf16 v[48:63], a[{128+4*s}:{131+4*s}], {qreg(s)}, {c}")
        if s + QD - 1 < 32: rdq(s + QD - 1)
        if (s + 1) * dn // 32 > s * dn // 32: dpop()
    cpre = g.o["cpre"]; fb = g.o["fb"]
    def sma_ops(ch):
        o = ch*10240
        R = 216 if ch == 0 else 222
        T = []
        T += ["v_max3_f32 v8, v48, v49, v50", "v_max3_f32 v9, v51, v52, v53", "v_max3_f32 v10, v54, v55, v56", "v_max3_f32 v11, v57, v58, v59",
              "v_max3_f32 v8, v8, v60, v61", "v_max3_f32 v9, v9, v62, v63", "v_max_f32 v10, v10, v11", "v_max3_f32 v8, v8, v9, v10"]
        if ch == 0: T += ["v_ceil_f32 v216, v8"]
        else: T += ["v_cmp_gt_f32 vcc, v8, v47", "v_ceil_f32 v8, v8", "s_nop 0", "v_cndmask_b32 v222, v44, v8, vcc"]
        for h in range(2):
            T += [f"v_sub_f32 v{48+8*h+k}, v{48+8*h+k}, v{R}" for k in range(8)]
            T += [f"v_exp_f32 v{48+8*h+k}, v{48+8*h+k}" for k in range(8)]
            if h == 0 and ch == 0: T += ["s_barrier"]
            if h == 0: T += [f"@ds_write_b32 v41, v{R} offset:{o}"]
            T += [f"v_cvt_pk_bf16_f32 v{168+4*h+k}, v{48+8*h+2*k}, v{49+8*h+2*k}" for k in range(4)]
            T += [f"@ds_write_b128 v43, v[{168+4*h}:{171+4*h}] offset:{o+1024*h}"]
        return T
    def lsum_ops(ch):
        T = [f"v_add_f32 v{48+k}, v{48+k}, v{56+k}" for k in range(8)]
        T += [f"v_add_f32 v{48+k}, v{48+k}, v{52+k}" for k in range(4)]
        T += ["v_add_f32 v48, v48, v50", "v_add_f32 v49, v49, v51"]
        if ch == 0: T += ["v_add_f32 v217, v48, v49"]
        else: T += ["v_add_f32 v48, v48, v49", "v_add_f32 v217, v217, v48", "@ds_write_b32 v41, v217 offset:1024"]
        return T
    def emit(x):
        if callable(x): return x()
        if x.startswith("@"): return L.op(x[1:])
        g(x)
    def kfix(P, waits=None):
        T = []
        for w in range(4):
            T += [f"v_sub_f32 v{12+w}, v44, v{12+w}", f"v_cvt_u32_f32 v{8+w}, v{12+w}", f"v_min_u32 v{8+w}, 0xff, v{8+w}", f"v_mul_u32_u24 v{8+w}, 0x800080, v{8+w}"]
            for kk in (2*w, 2*w+1):
                if waits is not None: T += [lambda kk=kk: L.wait(waits[kk])]
                T += [f"v_pk_sub_u16 v{P+4*kk+i}, v{P+4*kk+i}, v{8+w} clamp" for i in range(4)]
        return T
    def cost(x):
        if callable(x): return getattr(x, "c", 0)
        if x.startswith("v_exp"): return 2
        return 1
    def fill(q, budget):
        while q and budget > 0:
            x = q.pop(0); budget -= cost(x); emit(x)
        return budget
    def rdop(d, key, txt):
        def f(): d[key] = L.op(txt)
        f.c = 1
        return f
    order = [(kk, ct) for ct in range(4) for kk in range(8)]
    pvid = {}; rq = []
    def refill(cnt):
        n_ = 0
        while rq and n_ < cnt:
            key, x = rq.pop(0); pvid[key] = L.op(x); n_ += 1
        return n_
    def pv0(kk, ct):
        r = pvreg(kk, ct)
        c = "0" if kk == 0 else f"v[{64+16*ct}:{79+16*ct}]"
        g(f"v_mfma_f32_32x32x16_bf16 v[{64+16*ct}:{79+16*ct}], a[{r}:{r+3}], v[{128+4*kk}:{131+4*kk}], {c}")
    def flush_until(q, prefix):
        if any((not callable(x)) and x.startswith(prefix) for x in q):
            while True:
                x = q.pop(0); emit(x)
                if (not callable(x)) and x.startswith(prefix): break
            g("s_nop 1")
    if fine: g.stamp(1)
    n0_ = len(g.L); dpop(g.o["d1"]); g.nop(max(0, 12 - (len(g.L) - n0_)))
    for x in sma_ops(0): emit(x)
    dpop(g.o["d2"] if cpre else 100)
    if cpre == 0:
        for x in lsum_ops(0): emit(x)
    L.all()
    if cpre == 0: g("s_waitcnt vmcnt(0)")
    g("s_barrier")
    if fine: g.stamp(2)
    r0 = {}
    qr = [rdop(r0, "x", "ds_read_b128 v[12:15], v40"), rdop(r0, "ref", "ds_read_b128 v[168:171], v46")]
    qr += [rdop(r0, k, f"ds_read_b128 v[{128+4*k}:{131+4*k}], v42 offset:{1024*k}") for k in range(8)]
    q2 = [lambda: L.wait(r0["ref"]), "v_max3_f32 v9, v12, v13, v14", "v_max3_f32 v10, v169, v170, v171", "v_max3_f32 v9, v9, v15, v168", "v_max_f32 v44, v9, v10"]
    q2 += kfix(128, r0)
    q2 += ["v_sub_f32 v216, v216, v44", "v_exp_f32 v216, v216", f"v_add_f32 v47, 0x{f2u(float(g.o['thr'])):08x}, v44", "v_mul_f32 v217, v217, v216"]
    if cpre:
        for x in qr: emit(x)
        qr = []
        for x in lsum_ops(0): emit(x)
        flush_until(q2, "v_pk_sub_u16 v135,")
        for n, (kk, ct) in enumerate(order[:8*cpre]):
            if ct == 0: flush_until(q2, f"v_pk_sub_u16 v{128+4*kk+3},")
            pv0(kk, ct)
            fill(q2, 6 if ct == 0 else 4)
            if n % g.o["d3"] == 0: dpop()
            rq += [((kk, ct), x) for x in rdp_txt(kk, ct)]
        dpop(100)
        g("s_waitcnt vmcnt(0)")
        g("s_barrier")
    g.stamp(4)
    D = 6
    ids = {}
    def rdc(s):
        r = 176 + 4*(s % 8)
        ids[s] = L.op(f"ds_read_b128 v[{r}:{r+3}], v{16+(s&7)} offset:{(s>>3)*256}")
    for s in range(D): rdc(s)
    for s in range(32):
        L.wait(ids[s])
        r = 176 + 4*(s % 8)
        c = "0" if s == 0 else "v[48:63]"
        g(f"v_mfma_f32_32x32x16_bf16 v[48:63], v[{r}:{r+3}], {qreg(s)}, {c}")
        if s + D < 32: rdc(s + D)
        at = g.o["ats"]
        if s == at: g("buffer_load_dword v223, v218, s[44:47], s70 offen")
        elif s == at + 4: g("buffer_load_dword v223, v218, s[48:51], s70 offen")
        elif s == at + 8: g("buffer_load_dword v223, v219, s[52:55], s71 offen")
        elif qr: fill(qr, 2)
        elif q2 and (s >= 7 or cpre): fill(q2, 3)
        else: refill(2)
    fill(q2, 1000)
    g.stamp(5)
    q = sma_ops(1)
    r1 = {}
    qr = [rdop(r1, "x", "ds_read_b128 v[12:15], v40 offset:10240"), rdop(r1, "ref", "ds_read_b128 v[218:221], v46 offset:10240")]
    qr += [rdop(r1, k, f"ds_read_b128 v[{176+4*k}:{179+4*k}], v42 offset:{10240+1024*k}") for k in range(8)]
    state = 0; dist = 0
    for n, (kk, ct) in enumerate(order[8*cpre:]):
        pv0(kk, ct); dist += 1
        if state == 0:
            if dist < 12:
                k_ = refill(3); dist += k_
                if k_ < 3: g.nop(3 - k_); dist += 3 - k_
            else:
                fill(q, fb)
                if not q:
                    last_w = L.n; state = 1
        elif state == 1:
            L.wait(last_w); g("s_barrier"); state = 2
            fill(qr, 3)
        elif state == 2:
            if qr: fill(qr, 3)
            else: refill(3)
        rq += [((kk, ct), x) for x in rdp_txt(kk, ct)]
    if state == 0:
        if dist < 12: g.nop(12 - dist)
        fill(q, 1000); last_w = L.n; state = 1
    if state == 1:
        L.wait(last_w); g("s_barrier")
    fill(qr, 1000)
    L.wait(r1["ref"])
    g("v_max3_f32 v9, v12, v13, v14"); g("v_max3_f32 v10, v219, v220, v221"); g("v_max3_f32 v9, v9, v15, v218"); g("v_max_f32 v9, v9, v10")
    g("v_cmp_neq_f32 vcc, v9, v44")
    g("s_cbranch_vccnz L_A_slow")
    g("L_A_back:")
    slow = ["L_A_slow:", "s_waitcnt lgkmcnt(0)", "v_sub_f32 v47, v44, v9", "v_sub_f32 v222, v222, v9", "v_mov_b32 v44, v9", "v_exp_f32 v47, v47", "v_exp_f32 v222, v222"] + kfix(176) + \
           [f"v_mul_f32 v{64+k}, v47, v{64+k}" for k in range(64)] + ["v_mul_f32 v217, v47, v217"] + \
           [f"v_mul_f32 v{48+k}, v222, v{48+k}" for k in range(16)] + ["s_branch L_A_back"]
    g.slow = slow
    if fine: g.stamp(10)
    def epi_w(ct, qq):
        b = 128+8*(ct&1)+4*qq
        return [f"v_cvt_pk_bf16_f32 v{b+k}, v{64+16*ct+8*qq+2*k}, v{65+16*ct+8*qq+2*k}" for k in range(4)] + \
               [f"@ds_write_b128 v{208+2*(ct&1)+qq}, v[{b}:{b+3}] offset:{(ct>>1)*128}"]
    er = {}
    def epi_r(half):
        return [rdop(er, (half, n_), f"ds_read_b128 v[{224+16*half+4*n_}:{227+16*half+4*n_}], v212 offset:{n_*8192+half*128}") for n_ in range(4)]
    def epi_s(half, n_):
        def f():
            L.wait(er[(half, n_)])
            g(f"s_add_u32 s63, s65, {n_*8*32768}")
            g(f"buffer_store_dwordx4 v[{224+16*half+4*n_}:{227+16*half+4*n_}], v213, s[4:7], s63 offen offset:{half*128} sc1")
        f.c = g.o['sc']
        return f
    lw = {}
    def mark(): lw["w"] = L.n
    def lbar(): L.wait(lw["w"]); g("s_barrier")
    lbar.c = 2
    q = lsum_ops(1) + [mark]
    ql = [lbar, rdop(lw, "a", "ds_read_b128 v[52:55], v40 offset:1024"), rdop(lw, "b", "ds_read_b128 v[56:59], v46 offset:1024")]
    ql2 = [lambda: L.wait(lw["b"])] + [f"v_add_f32 v{52+w}, v{52+w}, v{56+w}" for w in range(4)] + \
        ["v_add_f32 v52, v52, v53", "v_add_f32 v54, v54, v55", "v_add_f32 v45, v52, v54"] + \
        [f"@ds_bpermute_b32 v{60+i}, v215, v{44+(i&1)}" for i in range(4)]
    wdone = 0
    for n, (kk, ct) in enumerate(order):
        r = pvreg(kk, ct)
        while (kk, ct) not in pvid or any(k == (kk, ct) for k, _ in rq): refill(1)
        if ct == 0: L.wait(r1[kk])
        L.wait(pvid[(kk, ct)])
        g(f"v_mfma_f32_32x32x16_bf16 v[{64+16*ct}:{79+16*ct}], a[{r}:{r+3}], v[{176+4*kk}:{179+4*kk}], v[{64+16*ct}:{79+16*ct}]")
        b = 4 - refill(3)
        if kk == 0: since = 0
        if not rq and wdone < ct and since >= 11:
            q += epi_w(wdone, 0) + epi_w(wdone, 1)
            if wdone == 0: q += ql
            if wdone == 1: q += epi_r(0) + ql2 + [epi_s(0, n_) for n_ in range(4)]
            wdone += 1
        n0_ = len(g.L)
        b = fill(q, b)
        if b > 0 and wdone < ct and since < 11:
            g.nop(b); since += b
        since += 1 + (4 - max(b, 0))
    while wdone < 3:
        q += epi_w(wdone, 0) + epi_w(wdone, 1)
        if wdone == 0: q += ql
        if wdone == 1: q += epi_r(0) + ql2 + [epi_s(0, n_) for n_ in range(4)]
        wdone += 1
    n0_ = len(g.L)
    fill(q, 1000)
    if g.o["fine2"]: g.stamp(1)
    g.nop(max(0, 12 - (len(g.L) - n0_)))
    for x in epi_w(3, 0) + epi_w(3, 1) + epi_r(1) + [epi_s(1, n_) for n_ in range(4)]: emit(x)
    g.stamp(9)
    if g.o["fsb"]: ffn_setup(g)
    g("s_waitcnt vmcnt(0)")
    g("s_barrier")
    g("buffer_store_dwordx4 v[60:63], v214, s[4:7], s79 offen sc1")
    if not fine: g.stamp(10)

def gen(opts):
    g = G(opts)
    g("s_load_dwordx16 s[16:31], s[0:1], 0")
    g("s_load_dwordx8 s[32:39], s[0:1], 64")
    g("s_load_dwordx2 s[40:41], s[0:1], 96")
    g("s_cmp_ge_u32 s2, 256"); g("s_cbranch_scc1 L_end")
    g.stamp(0)
    g("s_getpc_b64 s[4:5]")
    g("s_and_b32 s5, s5, 0xffff"); g("s_mov_b32 s6, L_end - L_pcv"); g("s_mov_b32 s7, 0x20000")
    g("L_pcv:")
    g("s_bfe_u32 s62, s2, 0x40003"); g("s_lshl_b32 s62, s62, 12")
    g("v_lshlrev_b32 v1, 4, v0")
    g("buffer_load_dwordx4 v[252:255], v1, s[4:7], s62 offen")
    g("v_lshrrev_b32 v2, 6, v0"); g("v_and_b32 v1, 63, v0")
    g("v_readfirstlane_b32 s3, v2")
    g("v_and_b32 v2, 15, v0"); g("v_lshrrev_b32 v3, 4, v1")
    g("s_and_b32 s62, s2, 7"); g("s_lshr_b32 s43, s2, 4"); g("s_lshl_b32 s42, s43, 3"); g("s_or_b32 s42, s42, s62")
    g("s_and_b32 s73, s43, 3")
    g("s_lshr_b32 s43, s43, 2")
    g("s_lshl_b32 s72, s62, 2"); g("s_or_b32 s72, s72, s43")
    g("s_lshl_b32 s43, s43, 3"); g("s_or_b32 s43, s43, s62")
    g("s_mov_b32 s60, 0x05040100"); g("s_mov_b32 s61, 0x07060302")
    if opts.get("stamps"):
        for k in range(82, 102): g(f"s_mov_b32 s{k}, 0")
    g("s_bitcmp1_b32 s2, 3")
    g("s_cbranch_scc1 L_A")
    tcu(g)
    g("L_A:")
    acu(g)
    if not g.o["fsb"]: ffn_setup(g)
    g(f"s_cmp_lt_u32 s66, {NSL}"); g("s_cbranch_scc1 L_FW")
    g("s_cmp_lg_u32 s66, 31"); g("s_cbranch_scc1 L_fin")
    x_issue(g); g("s_waitcnt vmcnt(0)"); x_finish(g)
    g("s_branch L_FFN")
    g("L_FW:")
    x_issue(g); ffn_issue(g); ffn_finish(g)
    if not g.o["fine"]: g.stamp(6)
    g("L_FFN:")
    ffn_stage(g)
    g("L_fin:")
    if opts["probe"]:
        wg, k = [int(x) for x in opts["probe"].split(",")]
        g("s_waitcnt lgkmcnt(0)")
        g(f"s_cmp_lg_u32 s2, {wg}"); g("s_cbranch_scc1 L_end")
        g("s_cmp_lg_u32 s3, 0"); g("s_cbranch_scc1 L_end")
        g(f"s_sub_u32 s64, s{80+2*k}, s80"); g("s_mul_i32 s64, s64, 20"); g("s_min_u32 s64, s64, 100000")
        g("s_memrealtime s[62:63]"); g("s_waitcnt lgkmcnt(0)"); g("s_add_u32 s64, s64, s62")
        g("L_pr:")
        g("s_sleep 2")
        g("s_memrealtime s[62:63]"); g("s_waitcnt lgkmcnt(0)")
        g("s_sub_u32 s62, s62, s64"); g("s_cmp_lt_i32 s62, 0"); g("s_cbranch_scc1 L_pr")
    elif opts.get("stamps"):
        nst = 11
        g("s_waitcnt lgkmcnt(0)")
        g("s_cmp_lg_u32 s3, 0"); g("s_cbranch_scc1 L_end")
        g("s_mov_b64 exec, 1")
        g(f"s_mul_i32 s62, s2, {nst*8}"); g(f"s_add_u32 s62, s62, {WS - 256*nst*8}")
        g("v_mov_b32 v3, 0")
        for k in range(nst):
            g(f"v_mov_b32 v4, s{80+2*k}"); g(f"v_mov_b32 v5, s{81+2*k}")
            g(f"buffer_store_dwordx2 v[4:5], v3, s[4:7], s62 offen offset:{8*k}")
            g("s_nop 1")
    g("L_end:")
    g("s_endpgm")
    for x in g.slow: g(x)
    hdr = open("hdr.txt").read()
    return hdr + "; @launch grid=(256,1,1) block=(256,1,1) lds=163840\n" + '.amdgcn_target "amdgcn-amd-amdhsa--gfx950"\n.text\n' + kstart(KN) + "\n".join(g.L) + "\n" + kdesc(KN, vgpr=512, accum=256).replace(".text\n", "")

if __name__ == "__main__":
    import argparse
    ap = argparse.ArgumentParser()
    ap.add_argument("out"); ap.add_argument("--stamps", action="store_true")
    ap.add_argument("--thr", type=float, default=30); ap.add_argument("--probe", default="")
    for k, v in (("fine", 0), ("fine2", 0), ("tsleep", 1), ("fsleep", 1), ("fb", 4), ("cpre", 2), ("d0", 8), ("dn", 12), ("d1", 4), ("d2", 4), ("d3", 1), ("sc", 4),
                 ("ats", 1), ("nb", 5), ("rep", 0), ("eg", 1), ("fsb", 0), ("xnp", 0), ("osc", 0), ("tord", 0)): ap.add_argument("--" + k, type=int, default=v)
    a = ap.parse_args()
    open(a.out, "w").write(gen(vars(a)))
```

```python
import sys, math, struct
from gen_common import *
def f2u(x): return struct.unpack("<I", struct.pack("<f", x))[0]
QABS = 0x000000
STAT = 0x040000
OPART = 0x100000
APART = 0x500000
FPART = 0x600000
OOB = 0x40000000
SCALE = (128 ** -0.5) * math.log2(math.e)
class G:
    def __init__(s, opts):
        s.L = []; s.o = opts; s.uid = 0
    def a(s, x): s.L.append(x)
    def __call__(s, x): s.L.append(x)
    def lab(s, p="L"):
        s.uid += 1; return f"{p}_{s.uid}"
    def nop(s, n):
        while n > 0:
            k = min(n, 16); s.a(f"s_nop {k-1}"); n -= k
    def stamp(s, k):
        if s.o.get("stamps"):
            s.a(f"s_memrealtime s[{80+2*k}:{81+2*k}]")
    def srd(s, d, p, size):
        s.a(f"s_mov_b32 s{d}, s{p}"); s.a(f"s_and_b32 s{d+1}, s{p+1}, 0xffff")
        s.a(f"s_mov_b32 s{d+2}, {size}"); s.a(f"s_mov_b32 s{d+3}, 0x20000")
    def dpp(s, op, v, ctrl):
        s.a("s_nop 1"); s.a(f"{op}_dpp v{v}, v{v}, v{v} {ctrl} row_mask:0xf bank_mask:0xf")
    def allred(s, op, v, t, width=64):
        for c in ("quad_perm:[1,0,3,2]", "quad_perm:[2,3,0,1]", "row_half_mirror", "row_mirror"):
            s.dpp(op, v, c)
        if width >= 32:
            s.a(f"v_mov_b32 v{t}, v{v}"); s.a("s_nop 1"); s.a(f"v_permlane16_swap_b32 v{v}, v{t}"); s.a(f"{op} v{v}, v{v}, v{t}")
        if width >= 64:
            s.a(f"v_mov_b32 v{t}, v{v}"); s.a("s_nop 1"); s.a(f"v_permlane32_swap_b32 v{v}, v{t}"); s.a(f"{op} v{v}, v{v}, v{t}")
    def bf16r(s, d, v):
        s.a(f"v_cvt_pk_bf16_f32 v{d}, v{v}, v{v}"); s.a(f"v_lshlrev_b32 v{d}, 16, v{d}")
    def maxtree(s, d, regs):
        regs = list(regs)
        s.a(f"v_max3_u32 v{d}, v{regs[0]}, v{regs[1]}, v{regs[2]}")
        i = 3
        while i + 1 < len(regs):
            s.a(f"v_max3_u32 v{d}, v{d}, v{regs[i]}, v{regs[i+1]}"); i += 2
        if i < len(regs):
            s.a(f"v_max_u32 v{d}, v{d}, v{regs[i]}")
    def perm8x8(s, R, T, acc=None):
        for t in range(8):
            for p in range(4):
                s.a(f"v_perm_b32 v{T+4*t+p}, v{R+4*(2*p+1)+(t>>1)}, v{R+4*(2*p)+(t>>1)}, s{60+(t&1)}")
        if acc is not None:
            for k in range(32):
                s.a(f"v_accvgpr_write_b32 a{acc+k}, v{T+k}")

def fswz(k):
    return ((k & 3) << 2) | ((k >> 2) & 3)

SPIN = 20000
LDS_XN = 0
LDS_QX = 8192
LDS_OT = 16384
LDS_FX = 49152
LDS_CX = 49664
LDS_CS = 51200
LDS_GX = 53248
LDS_FW = 57344
NSL = 29
LQ = 131072
LRF = LQ
LP = LQ + 2048
TS = 0x100000
SMF = "v_smfmac_f32_16x16x64_bf16"
M16 = "v_mfma_f32_16x16x32_bf16"

def poll_loop(g, body, cond, spin=SPIN, sleep=1):
    l = g.lab("pl"); e = g.lab("ple"); f = g.lab("plf")
    g(f"s_mov_b32 s64, {spin}")
    if sleep: g(f"s_branch {f}")
    g(f"{l}:")
    if sleep:
        g(f"s_sleep {sleep}")
        g(f"{f}:")
    body()
    g("s_sub_u32 s64, s64, 1"); g("s_cmp_eq_u32 s64, 0")
    g("s_waitcnt vmcnt(0)")
    g(f"s_cbranch_scc1 {e}")
    cond()
    g(f"s_cbranch_vccnz {l}")
    g(f"{e}:")

def cnt_wait(g, vt, vo, sleep=4):
    poll_loop(g, lambda: g(f"buffer_load_dword v{vt}, v{vo}, s[8:11], 0 offen sc1"),
              lambda: g(f"v_cmp_ne_u32 vcc, 16, v{vt}"), sleep=sleep)

def tile_setup(g, rot):
    g("v_lshlrev_b32 v8, 1, v3"); g("v_xor_b32 v8, v8, v2"); g("v_lshlrev_b32 v8, 4, v8"); g("v_lshl_add_u32 v8, v3, 10, v8")
    g("v_xor_b32 v9, 0x80, v8")
    g("s_lshl_b32 s68, s3, 13"); g(f"s_add_u32 s68, s68, {LDS_OT}")
    g("v_bfe_u32 v11, v1, 2, 2")
    g("v_lshl_add_u32 v10, v3, 3, v11"); g("v_lshlrev_b32 v10, 8, v10")
    g("v_and_b32 v12, 1, v3"); g("v_lshl_add_u32 v12, v12, 2, v11"); g("v_lshlrev_b32 v12, 1, v12")
    g("v_bfe_u32 v13, v1, 1, 1"); g("v_xor_b32 v12, v12, v13")
    g("v_lshl_add_u32 v10, v12, 4, v10")
    g("v_and_b32 v13, 1, v1"); g("v_lshl_add_u32 v10, v13, 3, v10")
    g("v_add_u32 v10, s68, v10")
    if rot:
        g("s_lshr_b32 s63, s73, 1"); g("s_lshl_b32 s63, s63, 7"); g("s_and_b32 s62, s73, 1"); g("s_lshl_b32 s62, s62, 4"); g("s_or_b32 s63, s63, s62")
        g("v_xor_b32 v10, s63, v10")
    for t in range(8): g(f"v_xor_b32 v{112+t}, {t<<5}, v10")
    g("s_mov_b32 s70, 0xaaaaaaaa"); g("s_mov_b32 s71, 0xaaaaaaaa")
    g("v_mov_b32 v29, 0x4444"); g("v_mov_b32 v28, 0xeeee"); g("v_cndmask_b32 v29, v29, v28, s[70:71]")

def tile_dma(g, sbase):
    g("s_mov_b32 m0, s68"); g(f"s_mov_b32 s63, s{sbase}")
    for n in range(8):
        g(f"buffer_load_dwordx4 v{8+((n>>1)&1)}, s[4:7], s63 offen sc1 lds")
        if n < 7:
            g("s_addk_i32 m0, 0x400"); g("s_addk_i32 s63, 0x1000")

def tile_read(g, A):
    for t in range(8):
        if t == 6: g("s_waitcnt lgkmcnt(8)")
        g(f"ds_read_b64_tr_b16 v[{A+4*t}:{A+4*t+1}], v{112+t}")
        g(f"ds_read_b64_tr_b16 v[{A+4*t+2}:{A+4*t+3}], v{112+t} offset:1024")

def ffn_setup(g):
    g("s_mov_b32 s66, s72"); g("s_mov_b32 s67, s73")
    g.srd(56, 16, 4096)
    for m in range(3):
        g(f"v_add_u32 v7, {64*m}, v1"); g("v_mul_u32_u24 v8, 43691, v7"); g("v_lshrrev_b32 v8, 18, v8")
        g(f"v_mul_u32_u24 v{4+m}, {2752-96}, v8"); g(f"v_lshl_add_u32 v{4+m}, v7, 4, v{4+m}")
    g("v_lshlrev_b32 v121, 11, v3"); g("v_lshl_add_u32 v121, v2, 4, v121")
    g("v_lshlrev_b32 v122, 3, v3")
    for k in range(4): g(f"v_mov_b32 v{24+k}, 0x3f803f80")
    tile_setup(g, False)
    g("v_and_b32 v10, 1, v3"); g("v_lshlrev_b32 v10, 5, v10"); g("v_lshrrev_b32 v12, 1, v3"); g("v_lshl_add_u32 v10, v12, 2, v10"); g("v_add_u32 v10, v10, v11")
    g("v_mul_u32_u24 v125, 96, v10"); g("v_and_b32 v28, 3, v1"); g("v_lshl_add_u32 v125, v28, 3, v125")
    g("s_mul_i32 s76, s3, 24576"); g(f"s_add_u32 s76, s76, {LDS_FW}"); g("v_add_u32 v125, s76, v125")
    for p in range(4):
        g(f"v_cmp_eq_u32 vcc, {p}, v28"); g("s_nop 1"); g(f"v_cndmask_b32 v{16+p}, 0, -1, vcc")
    for p in range(4): g(f"v_and_b32 v{20+p}, 0xffff, v{16+(p^1)}")
    g("v_xor_b32 v10, 1, v28"); g("v_lshlrev_b32 v10, 2, v10"); g("v_lshlrev_b32 v30, v10, 10"); g("v_or_b32 v30, 0x4444, v30")
    g("v_lshlrev_b32 v120, 5, v2"); g("s_lshl_b32 s62, s3, 9"); g(f"s_add_u32 s62, s62, {LDS_CS}"); g("v_add_u32 v120, s62, v120")
    g("v_lshl_add_u32 v7, v3, 2, v28"); g("v_lshlrev_b32 v7, 5, v7")
    rep = g.o["rep"]
    g("s_lshl_b32 s69, s67, 15"); g("s_lshl_b32 s63, s3, 8"); g("s_add_u32 s69, s69, s63"); g(f"s_add_u32 s69, s69, {APART}")
    if rep:
        g("s_and_b32 s63, s42, 7"); g("s_lshl_b32 s63, s63, 17"); g("s_add_u32 s69, s69, s63")
    g("v_lshrrev_b32 v13, 1, v1"); g("v_lshlrev_b32 v13, 10, v13"); g("v_and_b32 v14, 1, v1"); g("v_lshl_add_u32 v13, v14, 7, v13")
    g("v_lshlrev_b32 v123, 5, v2"); g("v_lshl_add_u32 v123, v3, 4, v123")
    g("s_lshl_b32 s74, s67, 5"); g("s_add_u32 s74, s74, s66"); g("s_lshl_b32 s74, s74, 11")
    g("s_lshl_b32 s63, s3, 9"); g("s_add_u32 s74, s74, s63"); g(f"s_add_u32 s74, s74, {FPART}")
    c1 = -2 * math.sqrt(2 / math.pi) * math.log2(math.e)
    g(f"s_mov_b32 s75, 0x{f2u(c1*0.044715):08x}"); g(f"v_mov_b32 v124, 0x{f2u(c1):08x}")
    for k in range(32): g(f"v_mov_b32 v{160+k}, 0")

def x_issue(g):
    g("s_lshl_b32 s62, s67, 10"); g("s_lshl_b32 s63, s3, 8"); g("s_add_u32 s62, s62, s63")
    for t in range(8):
        g(f"buffer_load_dwordx2 v[{96+2*t}:{97+2*t}], v122, s[56:59], s62 offen offset:{32*t}")

def x_finish(g):
    for t in range(8):
        for q in range(2):
            g(f"v_lshlrev_b32 v{128+4*t+2*q}, 16, v{96+2*t+q}")
            g(f"v_and_b32 v{128+4*t+2*q+1}, 0xffff0000, v{96+2*t+q}")

def ffn_issue(g):
    g(f"s_mul_i32 s62, s3, {128*2752}"); g("s_mul_i32 s63, s66, 96"); g("s_mov_b32 m0, s76"); g("s_add_u32 s62, s62, s63")
    for n in range(12):
        g(f"buffer_load_dwordx4 v{4+n%3}, s[44:47], s62 offen lds")
        g("s_addk_i32 m0, 0x3000"); g("s_nop 0")
        g(f"buffer_load_dwordx4 v{4+n%3}, s[48:51], s62 offen lds")
        if n < 11:
            g("s_addk_i32 m0, 0xd400")
            g(f"s_add_u32 s62, s62, {32*2752}" if n % 3 == 2 else "s_nop 0")
    g("s_mul_i32 s62, s66, 49152"); g("s_lshl_b32 s63, s3, 8"); g("s_add_u32 s62, s62, s63")
    for hb in range(2):
        for pos in range(3):
            g(f"s_add_u32 s63, s62, {(16*pos + 8*hb)*1024}")
            for q in range(2):
                r = 192 + 24*hb + 8*pos + 4*q
                g(f"buffer_load_dwordx4 v[{r}:{r+3}], v121, s[52:55], s63 offen offset:{(q if pos < 2 else q ^ 1)*1024}")

def ffn_finish(g):
    g("s_waitcnt vmcnt(36)")
    x_finish(g)
    for s2 in range(2):
        g(f"s_waitcnt vmcnt({12 + 12*(1-s2)})")
        for t in range(6):
            for hb in range(2):
                for hv in range(2):
                    r = 48*s2+8*t+4*hb+2*hv
                    g(f"ds_read_b64_tr_b16 a[{r}:{r+1}], v125 offset:{(64*s2+8*hb+16*hv)*96+(t%3)*32+(t//3)*12288}")
    g("s_waitcnt lgkmcnt(0)")
    for ks in range(4):
        for t in range(6):
            c = "0" if ks == 0 else f"v[{32+4*t}:{35+4*t}]"
            r = 48*(ks>>1)+8*t+4*(ks&1)
            g(f"{M16} v[{32+4*t}:{35+4*t}], v[24:27], a[{r}:{r+3}], {c}")
    g("s_waitcnt vmcnt(0)")
    for hb in range(2):
        for t in range(8):
            R = lambda pos, q: 192 + 24*hb + 8*pos + 4*q + (t>>1)
            for q in range(2):
                g(f"v_perm_b32 v{64+2*q}, v{R(1,q)}, v{R(0,q)}, s{60+(t&1)}")
                g(f"v_perm_b32 v{65+2*q}, v{R(2,q)}, v{R(2,q)}, s{60+(t&1)}")
            for p in range(4): g(f"v_accvgpr_write_b32 a{96+8*t+4*hb+p}, v{64+p}")
        if hb == 0:
            g("ds_write2_b32 v120, v32, v36 offset0:0 offset1:1"); g("ds_write2_b32 v120, v40, v44 offset0:2 offset1:4"); g("ds_write2_b32 v120, v48, v52 offset0:5 offset1:6")
    g("s_waitcnt lgkmcnt(0)")
    g("s_barrier")
    for w in range(4):
        g(f"ds_read_b128 v[{32+8*w}:{35+8*w}], v7 offset:{LDS_CS+512*w}"); g(f"ds_read_b128 v[{36+8*w}:{39+8*w}], v7 offset:{LDS_CS+512*w+16}")
    g(f"v_add_u32 v120, {LDS_GX-LDS_CS}, v120")
    g("s_waitcnt lgkmcnt(0)")
    for k in (0, 1, 2, 4, 5, 6):
        g(f"v_add_f32 v{32+k}, v{32+k}, v{40+k}"); g(f"v_add_f32 v{48+k}, v{48+k}, v{56+k}")
        g(f"v_add_f32 v{224+k}, v{32+k}, v{48+k}")

def ffn_stage(g):
    g(f"s_mov_b32 s65, {SPIN}")
    l = g.lab("fp"); e = g.lab("fpe")
    g(f"{l}:")
    for k in range(24): g(f"v_mov_b32 v{192+k}, 0")
    poll_loop(g, lambda: g("buffer_load_dword v14, v13, s[4:7], s69 offen sc1"), lambda: g("v_cmp_eq_u32 vcc, -1, v14"), spin=4*SPIN, sleep=g.o["fsleep"])
    tile_dma(g, 69)
    g.stamp(7)
    g("s_waitcnt vmcnt(0)")
    tile_read(g, 32)
    for t in range(8):
        g(f"s_waitcnt lgkmcnt({14-2*t})")
        g(f"{M16} v[{64+4*t}:{67+4*t}], v[{32+4*t}:{35+4*t}], v[24:27], v[{128+4*t}:{131+4*t}]")
    def cv(t):
        g(f"v_cvt_pk_bf16_f32 v{96+2*t}, v{64+4*t}, v{65+4*t}")
        g(f"v_cvt_pk_bf16_f32 v{97+2*t}, v{66+4*t}, v{67+4*t}")
        g(f"v_cndmask_b32 v{216+t}, v{96+2*t}, v{97+2*t}, s[70:71]")
    def st(ks, which):
        A = f"v[{96+4*ks}:{99+4*ks}]"; d = 56 + 4*which
        c = "0" if ks == 0 else f"v[{d}:{d+3}]"
        g(f"{M16} v[{d}:{d+3}], {A}, {'v[24:27]' if which == 0 else A}, {c}")
    def sm(s2, t):
        g(f"{SMF} v[{192+4*t}:{195+4*t}], v[{216+4*s2}:{219+4*s2}], a[{48*s2+8*t}:{48*s2+8*t+7}], v29")
    for t in range(4): cv(t)
    st(0, 0); st(0, 1)
    cv(4); sm(0, 0); sm(0, 1); cv(5); sm(0, 2); sm(0, 3); cv(6); sm(0, 4); sm(0, 5); cv(7)
    st(1, 0); st(1, 1); st(2, 0); st(3, 0); st(2, 1); st(3, 1)
    g(f"s_cmp_ge_u32 s66, {NSL}"); g("s_cbranch_scc1 L_HPUB")
    for t in range(6): sm(1, t)
    g("s_sub_u32 s65, s65, 1"); g("s_cmp_eq_u32 s65, 0"); g(f"s_cbranch_scc1 {e}")
    g("v_cmp_u_f32 vcc, v56, v56")
    g(f"s_cbranch_vccnz {l}")
    g(f"{e}:")
    hp = ["L_HPUB:", "s_sub_u32 s65, s65, 1", "s_cmp_eq_u32 s65, 0", "s_cbranch_scc1 L_HPUB2", "s_nop 3", "v_cmp_u_f32 vcc, v56, v56", f"s_cbranch_vccnz {l}", "L_HPUB2:",
          "v_lshlrev_b32 v13, 4, v3", "s_mov_b32 s70, 0x00010001", "s_mov_b32 s71, 0x00010001", "s_mov_b64 exec, s[70:71]"] + \
         [f"buffer_store_dwordx4 v[{64+4*t}:{67+4*t}], v13, s[4:7], s74 offen offset:{64*t} sc1" for t in range(8)] + ["s_mov_b64 exec, -1", "s_branch L_fin"]
    g.slow += hp
    g("s_mov_b64 exec, 0xffff")
    g("ds_write2_b32 v120, v56, v60 offset0:3 offset1:7")
    for t in range(6):
        g(f"v_add_f32 v{192+4*t}, v{192+4*t}, v{193+4*t}")
        if t == 1: g("ds_write2_b32 v120, v192, v196 offset0:0 offset1:1")
        if t == 3: g("ds_write2_b32 v120, v200, v204 offset0:2 offset1:4")
    g("ds_write2_b32 v120, v208, v212 offset0:5 offset1:6")
    g("s_mov_b64 exec, -1")
    g("s_waitcnt lgkmcnt(0)")
    g("s_barrier")
    for w in range(4):
        g(f"ds_read_b128 v[{32+8*w}:{35+8*w}], v7 offset:{LDS_GX+512*w}"); g(f"ds_read_b128 v[{36+8*w}:{39+8*w}], v7 offset:{LDS_GX+512*w+16}")
    g("s_waitcnt lgkmcnt(4)")
    for k in (3, 7, 0, 1, 2, 4, 5, 6): g(f"v_add_f32 v{32+k}, v{32+k}, v{40+k}")
    g("s_waitcnt lgkmcnt(0)")
    for k in (3, 7): g(f"v_add_f32 v{48+k}, v{48+k}, v{56+k}")
    for k in (3, 7): g(f"v_add_f32 v{32+k}, v{32+k}, v{48+k}")
    rest = [f"v_add_f32 v{48+k}, v{48+k}, v{56+k}" for k in (0, 1, 2, 4, 5, 6)] + [f"v_add_f32 v{32+k}, v{32+k}, v{48+k}" for k in (0, 1, 2, 4, 5, 6)]
    chain = [f"v_mul_f32 v35, 0x{f2u(1/512):08x}, v35", f"v_mul_f32 v39, 0x{f2u(1/512):08x}, v39", "v_fma_f32 v39, -v35, v35, v39", "v_max_f32 v39, 0, v39",
             "v_cvt_pk_bf16_f32 v39, v35, v39", "v_lshlrev_b32 v35, 16, v39", "v_and_b32 v39, 0xffff0000, v39", f"v_add_f32 v39, 0x{f2u(1e-5):08x}, v39",
             "v_cvt_pk_bf16_f32 v39, v39, v39", "v_lshlrev_b32 v39, 16, v39", "v_sqrt_f32 v39, v39", None, "v_cvt_pk_bf16_f32 v39, v39, v39", "v_lshlrev_b32 v39, 16, v39", "v_rcp_f32 v39, v39"]
    for x in chain:
        if x: g(x)
        if rest: g(rest.pop(0))
    K6 = (0, 1, 2, 4, 5, 6)
    for k in K6: g(f"v_fma_f32 v{32+k}, -v35, v{224+k}, v{32+k}")
    for k in K6: g(f"v_mul_f32 v{32+k}, v39, v{32+k}")
    g("v_cvt_pk_bf16_f32 v40, v32, v33"); g("v_cvt_pk_bf16_f32 v41, v34, v38"); g("v_cvt_pk_bf16_f32 v42, v36, v37")
    g("v_lshlrev_b32 v32, 16, v40"); g("v_and_b32 v33, 0xffff0000, v40"); g("v_lshlrev_b32 v34, 16, v41")
    for k in range(3): g(f"v_mul_f32 v{44+k}, v{32+k}, v{32+k}")
    for k in range(3): g(f"v_fma_f32 v{44+k}, v{44+k}, s75, v124")
    for k in range(3): g(f"v_mul_f32 v{44+k}, v{44+k}, v{32+k}")
    for k in range(3): g(f"v_exp_f32 v{44+k}, v{44+k}")
    g("v_lshlrev_b32 v36, 16, v42")
    for k in range(3): g(f"v_add_f32 v{44+k}, 1.0, v{44+k}")
    for k in range(3): g(f"v_rcp_f32 v{44+k}, v{44+k}")
    g("v_and_b32 v37, 0xffff0000, v42"); g("v_and_b32 v38, 0xffff0000, v41")
    for k in range(3): g(f"v_mul_f32 v{44+k}, v{44+k}, v{32+k}")
    g("v_cvt_pk_bf16_f32 v40, v44, v45"); g("v_cvt_pk_bf16_f32 v41, v46, v46")
    g("v_lshlrev_b32 v44, 16, v40"); g("v_and_b32 v45, 0xffff0000, v40"); g("v_and_b32 v46, 0xffff0000, v41")
    for k in range(3): g(f"v_mul_f32 v{44+k}, v{44+k}, v{36+k}")
    g("v_cvt_pk_bf16_f32 v40, v44, v45"); g("v_cvt_pk_bf16_f32 v41, v46, v46")
    for p in range(4): g(f"v_and_b32 v{48+p}, v40, v{16+p}")
    for p in range(4): g(f"v_and_or_b32 v{48+p}, v41, v{20+p}, v{48+p}")
    g("v_cmp_ne_u32 vcc, 0, v3"); g("s_nop 0")
    for t in range(8):
        g(f"{SMF} v[{160+4*t}:{163+4*t}], v[48:51], a[{96+8*t}:{103+8*t}], v30")
    g.nop(1)
    for t in range(8):
        g(f"v_add_f32 v{160+4*t}, v{160+4*t}, v{161+4*t}"); g(f"v_add_f32 v{162+4*t}, v{162+4*t}, v{163+4*t}")
    for t in range(8):
        g(f"v_add_f32 v{160+4*t}, v{160+4*t}, v{162+4*t}")
    for q in range(4):
        g(f"v_cndmask_b32 v{32+q}, v{160+4*q}, v{176+4*q}, vcc")
    g("s_mov_b32 exec_hi, 0")
    g("buffer_store_dwordx4 v[32:35], v123, s[4:7], s74 offen sc1")
    g("s_mov_b64 exec, -1")
    g.stamp(8)

def tcu(g):
    opts = g.o; rep = opts["rep"]
    g("s_lshl_b32 s74, s72, 10"); g("s_lshl_b32 s62, s73, 8"); g("s_add_u32 s74, s74, s62"); g("s_lshl_b32 s62, s3, 6"); g("s_add_u32 s74, s74, s62")
    g("v_lshlrev_b32 v28, 15, v3"); g("v_lshl_add_u32 v28, v2, 2, v28")
    g("s_lshl_b32 s75, s73, 5"); g("s_add_u32 s75, s75, s72")
    g("v_lshlrev_b32 v29, 4, v0")
    g("s_lshl_b32 s76, s75, 12"); g(f"s_add_u32 s76, s76, {STAT}")
    g("v_lshlrev_b32 v4, 16, v3"); g("v_lshl_add_u32 v4, v2, 4, v4")
    g("s_lshl_b32 s66, s3, 20"); g("s_lshl_b32 s63, s72, 8"); g("s_add_u32 s66, s66, s63")
    for ks in range(4):
        g(f"s_xor_b32 s63, s73, {ks}"); g(f"s_lshl_b32 s63, s63, 18"); g(f"s_add_u32 s{52+ks}, s66, s63")
    g("v_lshlrev_b32 v5, 14, v2"); g("v_lshl_add_u32 v5, v3, 4, v5")
    g("s_lshl_b32 s78, s73, 20"); g("s_lshl_b32 s63, s3, 18"); g("s_add_u32 s78, s78, s63"); g("s_lshl_b32 s63, s72, 8"); g("s_add_u32 s78, s78, s63")
    g("s_add_u32 s79, s78, 8192")
    g("s_mov_b32 s14, 0x400000"); g("s_mov_b32 s15, 0x20000"); g("s_mov_b32 s58, 4096"); g("s_mov_b32 s59, 0x20000")
    g("s_mov_b32 s46, 0x400000"); g("s_mov_b32 s47, 0x20000")
    g("s_waitcnt lgkmcnt(0)")
    g("s_mov_b32 s56, s16"); g("s_and_b32 s57, s17, 0xffff"); g("s_mov_b32 s12, s20"); g("s_and_b32 s13, s21, 0xffff")
    def wq(ks):
        for e in range(8):
            g(f"s_add_u32 s63, s{52+ks}, {e*8192}")
            r = 32 + 32*ks + 4*e
            g(f"buffer_load_dwordx4 v[{r}:{r+3}], v4, s[12:15], s63 offen")
    g("buffer_load_dwordx4 v[8:11], v29, s[56:59], 0 offen")
    wq(0)
    g("s_mov_b32 s44, s22"); g("s_and_b32 s45, s23, 0xffff")
    g("s_barrier")
    for tt in range(2):
        for ks in range(4):
            r = 160 + 16*tt + 4*ks
            g(f"buffer_load_dwordx4 v[{r}:{r+3}], v5, s[44:47], s{78+tt} offen offset:{64*ks}")
    g.srd(4, 40, WS); g.srd(8, 38, 256)
    for k in range(4): g(f"v_mov_b32 v{24+k}, -1")
    g("buffer_store_dwordx4 v[24:27], v29, s[4:7], s76 offen sc1")
    g("v_lshlrev_b32 v30, 3, v0"); g(f"s_lshl_b32 s62, s42, 11"); g(f"s_add_u32 s62, s62, {FPART}")
    g("buffer_store_dwordx2 v[24:25], v30, s[4:7], s62 offen sc1")
    if rep:
        g(f"s_lshl_b32 s62, s42, 13"); g(f"s_add_u32 s62, s62, {APART}"); g("s_add_u32 s63, s62, 4096")
        g("buffer_store_dwordx4 v[24:27], v29, s[4:7], s62 offen sc1"); g("buffer_store_dwordx4 v[24:27], v29, s[4:7], s63 offen sc1")
        nst = 4
    else:
        g("v_lshlrev_b32 v30, 2, v0"); g(f"s_lshl_b32 s62, s42, 10"); g(f"s_add_u32 s62, s62, {APART}")
        g("buffer_store_dword v24, v30, s[4:7], s62 offen sc1")
        nst = 3
    g("s_mul_i32 s62, s3, 1040"); g("v_lshlrev_b32 v6, 4, v1"); g("v_add_u32 v6, s62, v6")
    g("v_and_b32 v7, 3, v2"); g("v_mul_u32_u24 v7, 1040, v7"); g("v_lshl_add_u32 v7, v3, 4, v7")
    g("s_lshl_b32 s62, s3, 8"); g("v_add_u32 v7, s62, v7")
    g(f"s_waitcnt vmcnt({16+nst})")
    for q in range(4):
        g(f"v_lshlrev_b32 v{12+2*q}, 16, v{8+q}"); g(f"v_and_b32 v{13+2*q}, 0xffff0000, v{8+q}")
    g("v_add_f32 v20, v12, v13"); g("v_add_f32 v21, v14, v15"); g("v_add_f32 v22, v16, v17"); g("v_add_f32 v23, v18, v19")
    g("v_add_f32 v20, v20, v21"); g("v_add_f32 v22, v22, v23"); g("v_add_f32 v20, v20, v22")
    g.allred("v_add_f32", 20, 21)
    g(f"v_mul_f32 v20, 0x{f2u(1/512):08x}, v20")
    g("v_sub_f32 v22, v12, v20"); g("v_mul_f32 v21, v22, v22")
    for k in range(1, 8):
        g(f"v_sub_f32 v22, v{12+k}, v20"); g("v_fmac_f32 v21, v22, v22")
    g.allred("v_add_f32", 21, 22)
    g(f"v_mul_f32 v21, 0x{f2u(1/512):08x}, v21")
    g.bf16r(20, 20); g.bf16r(21, 21)
    g(f"v_add_f32 v21, 0x{f2u(1e-5):08x}, v21"); g.bf16r(21, 21)
    g("v_sqrt_f32 v21, v21"); g("s_nop 0"); g.bf16r(21, 21)
    g("v_rcp_f32 v21, v21")
    for k in range(8): g(f"v_sub_f32 v{12+k}, v{12+k}, v20")
    for q in range(4): g(f"v_cvt_pk_bf16_f32 v{8+q}, v{12+2*q}, v{13+2*q}")
    for q in range(4):
        g(f"v_lshlrev_b32 v{12+2*q}, 16, v{8+q}"); g(f"v_and_b32 v{13+2*q}, 0xffff0000, v{8+q}")
    for k in range(8): g(f"v_mul_f32 v{12+k}, v{12+k}, v21")
    for q in range(4): g(f"v_cvt_pk_bf16_f32 v{8+q}, v{12+2*q}, v{13+2*q}")
    g(f"ds_write_b128 v6, v[8:11] offset:{LDS_XN}")
    g("v_mov_b32 v30, 0")
    g(f"s_waitcnt vmcnt({8+nst}) lgkmcnt(0)")
    g.stamp(1)
    wq(1)
    g("s_barrier")
    for ks in range(4):
        g(f"s_xor_b32 s63, s73, {ks}"); g("s_lshl_b32 s63, s63, 6"); g("v_add_u32 v6, s63, v7")
        g(f"ds_read_b128 v[{8+4*ks}:{11+4*ks}], v6 offset:{LDS_XN}")
    wq(2)
    g("s_mul_i32 s62, s3, 272"); g("v_lshlrev_b32 v6, 4, v2"); g("v_add_u32 v6, s62, v6")
    g("v_mul_u32_u24 v7, 272, v2"); g("v_lshl_add_u32 v7, v3, 4, v7")
    for ks in range(4):
        if ks == 1: wq(3)
        if ks: g(f"s_waitcnt vmcnt({8*(3-ks) + (1 if ks == 3 else 0)})")
        if ks == 2: g("buffer_load_dword v31, v30, s[8:11], 0 offen sc1")
        if ks == 3: g.stamp(7)
        R = 32+32*ks
        if ks == 0: g("s_waitcnt lgkmcnt(0)")
        def pm(t):
            for p in range(4):
                g(f"v_perm_b32 v{192+4*t+p}, v{R+4*(2*p+1)+(t>>1)}, v{R+4*(2*p)+(t>>1)}, s{60+(t&1)}")
        pm(0)
        for t in range(8):
            if t < 7: pm(t+1)
            else: g("s_nop 0")
            c = "0" if ks == 0 else f"v[{224+4*t}:{227+4*t}]"
            g(f"{M16} v[{224+4*t}:{227+4*t}], v[{8+4*ks}:{11+4*ks}], v[{192+4*t}:{195+4*t}], {c}")
    for p in range(4):
        for b in range(4):
            g(f"v_cvt_pk_bf16_f32 v{8+4*b+p}, v{224+8*p+b}, v{228+8*p+b}")
    g("s_mov_b64 exec, 0xffff")
    for b in range(4):
        g(f"ds_write_b128 v6, v[{8+4*b}:{11+4*b}] offset:{LDS_QX+4*272*b}")
    g("s_mov_b64 exec, -1")
    g("s_waitcnt lgkmcnt(0)")
    g("s_barrier")
    for ks in range(4):
        g(f"ds_read_b128 v[{8+4*ks}:{11+4*ks}], v7 offset:{LDS_QX+64*ks}")
    for ks in range(4):
        g(f"s_waitcnt lgkmcnt({3-ks})")
        for tt in range(2):
            c = "0" if ks == 0 else f"v[{224+4*tt}:{227+4*tt}]"
            g(f"{M16} v[{224+4*tt}:{227+4*tt}], v[{8+4*ks}:{11+4*ks}], v[{160+16*tt+4*ks}:{163+16*tt+4*ks}], {c}")
    g("s_waitcnt vmcnt(0)")
    g("v_cmp_ne_u32 vcc, 16, v31")
    g.srd(12, 18, 32 << 20)
    g("v_lshlrev_b32 v4, 7, v1"); g("s_lshr_b32 s62, s42, 5")
    for tt in range(2):
        r = 224 + 4*tt
        g(f"v_add_f32 v{r}, v{r}, v{r+1}"); g(f"v_add_f32 v{r+2}, v{r+2}, v{r+3}")
    for tt in range(2):
        r = 224 + 4*tt
        g(f"v_add_f32 v{r}, v{r}, v{r+2}")
    for tt in range(2):
        r = 224 + 4*tt
        g(f"v_mul_f32 v{r}, 0x{f2u(SCALE):08x}, v{r}")
    g("v_cvt_pk_bf16_f32 v8, v224, v228")
    g("s_cbranch_vccz L_T_c0ok")
    cnt_wait(g, 31, 30)
    g("L_T_c0ok:")
    g("buffer_store_dword v8, v28, s[4:7], s74 offen sc1")
    g.stamp(2)
    g("s_lshl_b32 s62, s62, 23"); g("s_and_b32 s63, s42, 31"); g("s_lshl_b32 s63, s63, 15"); g("s_add_u32 s62, s62, s63")
    g("s_lshl_b32 s63, s3, 13"); g("s_add_u32 s62, s62, s63")
    nc = opts["cls"]
    if nc:
        g("s_lshr_b32 s64, s42, 5")
        g("s_cmp_eq_u32 s64, 1"); g("s_cbranch_scc1 L_T_pfc")
        g("s_and_b32 s65, s42, 31"); g("s_lshl_b32 s65, s65, 15"); g(f"s_add_u32 s65, s65, {0x800000 + 4*TS}")
        g("s_sub_u32 s67, s64, 1"); g("s_max_i32 s67, s67, 0"); g("s_lshl_b32 s67, s67, 2"); g("s_add_u32 s67, s67, s3")
        g(f"s_mul_i32 s67, s67, {22*128}"); g(f"s_min_u32 s67, s67, {(256-22)*128}"); g("s_add_u32 s65, s65, s67")
    for i in range(4, 8):
        if nc and i == 4 + nc: g("L_T_pfc:")
        g(f"s_add_u32 s63, s62, {i*TS}")
        g(f"buffer_load_dword v31, v4, s[12:15], s63 offen")
        if i - 4 < nc:
            g("s_mov_b64 exec, 0x3fffff")
            g(f"buffer_load_dword v31, v4, s[12:15], s65 offen")
            g("s_mov_b64 exec, -1")
            g(f"s_add_u32 s65, s65, {TS}")
    g.srd(12, 24, 4 << 20); g.srd(44, 26, 4 << 20)
    for ks in range(4):
        g(f"s_xor_b32 s63, s73, {ks}"); g("s_lshr_b32 s62, s63, 1"); g("s_lshl_b32 s62, s62, 19"); g("s_and_b32 s63, s63, 1"); g("s_lshl_b32 s63, s63, 16")
        g(f"s_add_u32 s{52+ks}, s66, s62"); g(f"s_add_u32 s{52+ks}, s{52+ks}, s63")
    g("v_and_b32 v6, 1, v3"); g("v_lshrrev_b32 v7, 1, v3")
    g("v_lshlrev_b32 v4, 18, v6"); g("v_lshl_add_u32 v4, v7, 15, v4"); g("v_lshl_add_u32 v4, v2, 4, v4")
    g("v_lshlrev_b32 v5, 14, v7"); g("v_lshl_add_u32 v5, v6, 12, v5"); g("v_lshl_add_u32 v5, v2, 4, v5")
    g("s_lshl_b32 s79, s72, 17"); g("s_lshl_b32 s63, s3, 8"); g("s_add_u32 s79, s79, s63")
    order = [[0, 4, 5, 6, 7, 1, 2, 3], [0, 4, 1, 5, 2, 6, 3, 7], [0, 4, 1, 2, 3, 5, 6, 7]][opts["tord"]]
    bufs = [128, 160, 192, 224, 32, 64][:opts["nb"]]
    NB = len(bufs)
    def tw_issue(i):
        n = order[i]; ks = n & 3
        if n >= 4:
            g(f"s_xor_b32 s62, s73, {ks}"); g("s_lshl_b32 s62, s62, 15"); g("s_add_u32 s62, s62, s79"); g("s_add_u32 s63, s62, 0x2000")
        for e in range(8):
            r = bufs[i % NB] + 4*e
            if n < 4:
                g(f"s_add_u32 s63, s{52+ks}, {(16*(e>>2)+(e&3))*8192}")
                g(f"buffer_load_dwordx4 v[{r}:{r+3}], v4, s[12:15], s63 offen")
            else:
                g(f"buffer_load_dwordx4 v[{r}:{r+3}], v5, s[44:47], s{62+((e>>1)&1)} offen offset:{(2*(e>>2)+(e&1))*1024}")
    issued = 2
    tw_issue(0); tw_issue(1)
    g.stamp(1)
    tile_setup(g, True)
    g("s_lshl_b32 s69, s75, 15"); g("s_lshl_b32 s63, s3, 8"); g("s_add_u32 s69, s69, s63"); g(f"s_add_u32 s69, s69, {OPART}")
    g("v_and_b32 v13, 31, v1"); g("v_lshlrev_b32 v14, 7, v13")
    g("s_lshl_b32 s62, s3, 6"); g("v_lshlrev_b32 v13, 1, v13"); g("v_add_u32 v13, s62, v13")
    g("v_lshlrev_b32 v15, 4, v3"); g("v_add_u32 v15, s62, v15")
    g("s_mul_i32 s62, s3, 272"); g("v_lshlrev_b32 v120, 4, v2"); g("v_add_u32 v121, s62, v120")
    g("v_bfe_u32 v10, v2, 2, 1"); g("v_lshlrev_b32 v11, 5, v3"); g("v_lshl_add_u32 v11, v10, 4, v11")
    g("s_lshl_b32 s62, s73, 6"); g("v_xor_b32 v11, s62, v11"); g("v_xor_b32 v12, 0x80, v11")
    g("v_and_b32 v122, 3, v2"); g("v_mul_u32_u24 v122, 272, v122"); g("v_add_u32 v123, v122, v12"); g("v_add_u32 v122, v122, v11")
    g("v_mul_u32_u24 v30, 0xaaaa, v10"); g("v_or_b32 v30, 0x4444, v30")
    g("v_lshl_add_u32 v120, v6, 3, v120")
    if rep: g("v_lshl_add_u32 v120, v7, 17, v120")
    g("s_lshl_b32 s78, s75, 10"); g("s_lshl_b32 s63, s3, 8"); g("s_add_u32 s78, s78, s63"); g(f"s_add_u32 s78, s78, {APART}")
    for i in range(8):
        g(f"s_waitcnt vmcnt({8*(issued-1-i)})")
        if i == 0: g.stamp(7)
        if i == 1: g.stamp(9)
        lim = min(8, i + NB) if i >= 1 else issued
        while issued < lim:
            tw_issue(issued); issued += 1
        R = bufs[i % NB]; n = order[i]; ks = n & 3
        acc = 128*(n>>2) + 64*(ks>>1) + 4*(ks&1)
        for t in range(8 if not opts["xnp"] else 1):
            for p in range(4):
                g(f"v_perm_b32 v{16+p+4*(t&1)}, v{R+4*(2*p+1)+(t>>1)}, v{R+4*(2*p)+(t>>1)}, s{60+(t&1)}")
            for p in range(4):
                g(f"v_accvgpr_write_b32 a{acc+8*t+p}, v{16+p+4*(t&1)}")
    g.stamp(3)
    first = [True]
    def pbody():
        g("buffer_load_dwordx2 v[32:33], v14, s[4:7], s76 offen sc1")
    def cond():
        g("v_max_u32 v34, v32, v33"); g("v_cmp_eq_u32 vcc, -1, v34")
    pbody()
    for k in range(64): g(f"v_mov_b32 v{128+k}, 0")
    g("s_waitcnt vmcnt(0)")
    cond()
    g("s_cbranch_vccz L_T_go")
    poll_loop(g, pbody, cond, spin=4*SPIN, sleep=opts["tsleep"])
    g("L_T_go:")
    tile_dma(g, 69)
    g.stamp(4)
    g("v_mov_b32 v34, v32")
    g.allred("v_max_f32", 34, 35, 32)
    g("v_sub_f32 v34, v32, v34"); g("v_cvt_i32_f32 v34, v34"); g("v_ldexp_f32 v34, 1.0, v34")
    g(f"ds_write_b16_d16_hi v13, v34 offset:{LDS_FX}")
    g("v_mul_f32 v31, v34, v33")
    g(f"ds_read_b128 v[24:27], v15 offset:{LDS_FX}")
    g.allred("v_add_f32", 31, 35, 32)
    g("v_rcp_f32 v31, v31")
    g(f"s_mov_b32 s64, {SPIN}")
    g("L_T_pay:")
    g("s_waitcnt vmcnt(0) lgkmcnt(0)")
    g.stamp(5)
    tile_read(g, 32)
    for t in range(8):
        g(f"s_waitcnt lgkmcnt({14-2*t})" if not opts.get("stamps") else "s_waitcnt lgkmcnt(0)")
        g(f"{M16} v[{64+4*t}:{67+4*t}], v[{32+4*t}:{35+4*t}], v[24:27], 0")
    def cv(t):
        g(f"v_cvt_pk_bf16_f32 v{96+t}, v{64+4*t}, v{65+4*t}")
        g(f"v_cvt_pk_bf16_f32 v{104+(t&1)}, v{66+4*t}, v{67+4*t}")
        g(f"v_cndmask_b32 v{96+t}, v{96+t}, v{104+(t&1)}, s[70:71]")
    for t in range(5): cv(t)
    for t in range(8):
        g(f"{SMF} v[{128+4*t}:{131+4*t}], v[96:99], a[{8*t}:{8*t+7}], v29")
        if t in (0, 2, 4): cv(5 + t//2)
    for t in range(8):
        g(f"{SMF} v[{128+4*t}:{131+4*t}], v[100:103], a[{64+8*t}:{64+8*t+7}], v29")
    g.nop(1)
    for t in range(8):
        g(f"v_add_f32 v{128+4*t}, v{128+4*t}, v{129+4*t}")
        if t == 1 and opts["oi"]: g("v_cmp_u_f32 vcc, v128, v128")
    if opts["oi"]:
        g("s_cbranch_vccnz L_T_retry")
        g("L_T_ok:")
        gl = g.L; g.L = []
        g("L_T_retry:")
        g("s_sub_u32 s64, s64, 1"); g("s_cmp_eq_u32 s64, 0"); g("s_cbranch_scc1 L_T_ok")
        tile_dma(g, 69)
        for k in range(32): g(f"v_mov_b32 v{128+k}, 0")
        g("s_branch L_T_pay")
        g.slow0 = g.L; g.L = gl
    for t in range(8):
        g(f"v_mul_f32 v{128+4*t}, v31, v{128+4*t}")
    for p in range(4):
        g(f"v_cvt_pk_bf16_f32 v{64+p}, v{128+8*p}, v{132+8*p}")
    g("s_mov_b64 exec, 0xffff")
    g(f"ds_write_b128 v121, v[64:67] offset:{LDS_CX}")
    g("s_mov_b64 exec, -1")
    g("s_waitcnt lgkmcnt(0)")
    g("s_barrier")
    for s2 in range(2):
        g(f"ds_read_b128 v[{96+4*s2}:{99+4*s2}], v{122+s2} offset:{LDS_CX}")
    for s2 in range(2):
        g(f"s_waitcnt lgkmcnt({1-s2})")
        for t in (0, 4, 1, 5, 2, 6, 3, 7):
            g(f"{SMF} v[{160+4*t}:{163+4*t}], v[{96+4*s2}:{99+4*s2}], a[{128+64*s2+8*t}:{128+64*s2+8*t+7}], v30")
    g.nop(1)
    for t in (0, 4, 1, 5, 2, 6, 3, 7):
        g(f"v_add_f32 v{160+4*t}, v{160+4*t}, v{161+4*t}"); g(f"v_add_f32 v{162+4*t}, v{162+4*t}, v{163+4*t}")
    for t in (0, 4, 1, 5, 2, 6, 3, 7):
        g(f"v_add_f32 v{160+4*t}, v{160+4*t}, v{162+4*t}")
    for t in range(4): g(f"v_permlane16_swap_b32 v{160+4*t}, v{176+4*t}")
    for t in range(4): g(f"v_add_f32 v{160+4*t}, v{160+4*t}, v{176+4*t}")
    g("v_cvt_pk_bf16_f32 v64, v160, v164"); g("v_cvt_pk_bf16_f32 v65, v168, v172")
    if rep:
        for c in range(4):
            g("buffer_store_dwordx2 v[64:65], v120, s[4:7], s78 offen sc1")
            if c < 3: g("s_add_u32 s78, s78, 0x40000")
    else:
        g("s_mov_b32 exec_hi, 0")
        g("buffer_store_dwordx2 v[64:65], v120, s[4:7], s78 offen sc1")
        g("s_mov_b64 exec, -1")
    g.stamp(6)
    g("s_cmp_lt_u32 s43, 16"); g("s_cbranch_scc1 L_fin")
    g("s_cmp_lg_u32 s3, 0"); g("s_cbranch_scc1 L_fin")
    g.srd(12, 36, 4096)
    g("v_lshrrev_b32 v4, 3, v1"); g("v_and_b32 v5, 7, v1")
    g("v_lshlrev_b32 v6, 11, v4"); g("v_lshl_add_u32 v6, v5, 4, v6")
    g(f"v_mov_b32 v7, {OOB}")
    g("v_cmp_gt_u32 vcc, 5, v4"); g("s_nop 1"); g("v_cndmask_b32 v7, v7, v6, vcc")
    g("v_lshlrev_b32 v8, 4, v5"); g("v_lshlrev_b32 v10, 3, v5")
    g(f"s_lshl_b32 s62, s73, 16"); g("s_sub_u32 s65, s43, 16"); g("s_lshl_b32 s63, s65, 7"); g("s_add_u32 s62, s62, s63"); g(f"s_add_u32 s62, s62, {FPART}")
    g("s_lshl_b32 s74, s73, 10"); g("s_lshl_b32 s63, s65, 6"); g("s_add_u32 s74, s74, s63")
    for n in range(1, 4): g(f"s_add_u32 s{75+n}, s62, {n*16384}")
    g(f"s_add_u32 s79, s62, {31*2048}")
    def body():
        for n in range(4):
            g(f"buffer_load_dwordx4 v[{32+4*n}:{35+4*n}], v{6 if n < 3 else 7}, s[4:7], s{62 if n == 0 else 75+n} offen sc1")
        g("buffer_load_dwordx4 v[56:59], v8, s[4:7], s79 offen sc1")
    def cond2():
        for k in range(4):
            g(f"v_add_f32 v{32+k}, v{32+k}, v{36+k}"); g(f"v_add_f32 v{40+k}, v{40+k}, v{44+k}")
        for k in range(4): g(f"v_add_f32 v{32+k}, v{32+k}, v{40+k}")
        g("v_add_f32 v40, v56, v57"); g("v_add_f32 v41, v58, v59"); g("v_add_f32 v42, v32, v33"); g("v_add_f32 v43, v34, v35")
        g("v_add_f32 v40, v40, v41"); g("v_add_f32 v42, v42, v43")
        g("v_cmp_u_f32 vcc, v40, v42")
    poll_loop(g, body, cond2, spin=4*SPIN, sleep=0)
    g.stamp(8)
    for k in range(4):
        g(f"v_add_f32_dpp v{32+k}, v{32+k}, v{32+k} row_ror:8 row_mask:0xf bank_mask:0xf")
    g("v_cvt_pk_bf16_f32 v44, v56, v57"); g("v_cvt_pk_bf16_f32 v45, v58, v59")
    for sw in ("v_permlane16_swap_b32", "v_permlane32_swap_b32"):
        for k in range(4): g(f"v_mov_b32 v{36+k}, v{32+k}")
        g("s_nop 0")
        for k in range(4): g(f"{sw} v{32+k}, v{36+k}")
        for k in range(4): g(f"v_add_f32 v{32+k}, v{32+k}, v{36+k}")
    g("v_cvt_pk_bf16_f32 v36, v32, v33"); g("v_cvt_pk_bf16_f32 v37, v34, v35")
    for q in range(2):
        g(f"v_lshlrev_b32 v{32+2*q}, 16, v{36+q}"); g(f"v_and_b32 v{33+2*q}, 0xffff0000, v{36+q}")
        g(f"v_lshlrev_b32 v{40+2*q}, 16, v{44+q}"); g(f"v_and_b32 v{41+2*q}, 0xffff0000, v{44+q}")
    for k in range(4): g(f"v_add_f32 v{32+k}, v{32+k}, v{40+k}")
    g("v_cvt_pk_bf16_f32 v36, v32, v33"); g("v_cvt_pk_bf16_f32 v37, v34, v35")
    g("s_mov_b64 exec, 0xff")
    g("buffer_store_dwordx2 v[36:37], v10, s[12:15], s74 offen" + (" sc0 sc1" if opts["osc"] else ""))
    g("s_mov_b64 exec, -1")
    g.stamp(10)
    g("s_branch L_fin")

QD = 8
def qreg(s):
    return f"v[{224+4*s}:{227+4*s}]" if s < QD else f"a[{128+4*(s-QD)}:{131+4*(s-QD)}]"

class Lds:
    def __init__(s, g): s.g = g; s.n = 0; s.done = 0
    def op(s, txt): s.g(txt); s.n += 1; return s.n
    def wait(s, i):
        if i <= s.done: return
        k = min(14, s.n - i); s.g(f"s_waitcnt lgkmcnt({k})"); s.done = s.n - k
    def all(s): s.wait(s.n)

def acu(g):
    fine = g.o["fine"]
    ea = ["v_and_b32 v8, 7, v5", "v_lshlrev_b32 v9, 1, v6", "v_xor_b32 v8, v8, v9", "v_lshlrev_b32 v208, 10, v5", "v_lshl_add_u32 v208, v8, 4, v208",
          "s_lshl_b32 s62, s3, 8", "v_add_u32 v208, s62, v208"] + [f"v_xor_b32 v{208+k}, {((4*(k>>1))|(k&1))<<4}, v208" for k in range(1, 4)] + \
         ["v_lshrrev_b32 v8, 3, v1", "v_and_b32 v9, 7, v1", "v_lshlrev_b32 v212, 10, v8", "v_lshl_add_u32 v212, v9, 4, v212", "v_add_u32 v212, s62, v212",
          "v_lshlrev_b32 v214, 12, v8", "v_lshl_add_u32 v214, v9, 4, v214", "v_xor_b32 v9, v9, v8", "v_lshlrev_b32 v213, 15, v8", "v_lshl_add_u32 v213, v9, 4, v213",
          "s_lshl_b32 s63, s3, 5", "v_lshl_add_u32 v215, v8, 2, s63",
          "s_lshl_b32 s65, s74, 20", "s_lshl_b32 s63, s75, 10", "s_add_u32 s65, s65, s63", "s_add_u32 s65, s65, s62", f"s_add_u32 s65, s65, {OPART}",
          "s_lshl_b32 s79, s74, 17", "s_lshl_b32 s63, s75, 7", "s_add_u32 s79, s79, s63", f"s_add_u32 s79, s79, {STAT}", "s_lshl_b32 s63, s3, 15", "s_add_u32 s79, s79, s63"]
    g("v_lshlrev_b32 v4, 4, v1")
    g("s_lshr_b32 s74, s42, 5"); g("s_and_b32 s75, s42, 31")
    g("s_lshl_b32 s76, s74, 23"); g("s_lshl_b32 s77, s75, 15"); g("s_add_u32 s76, s76, s77")
    g("s_lshl_b32 s77, s3, 13"); g("s_add_u32 s76, s76, s77")
    g("s_and_b32 s62, s3, 1"); g("s_lshl_b32 s62, s62, 5"); g("v_xor_b32 v7, s62, v4")
    for r in range(8):
        g(f"v_xor_b32 v{160+r}, {(fswz(r)<<4) | ((r>>2)<<12)}, v7")
    g(f"s_add_u32 s62, s77, {LQ}"); g("v_add_u32 v15, s62, v7")
    def dma_ops(slot, cf="nt"):
        ops = []
        for r in range(8):
            pre = []
            if r == 0: pre = [f"s_add_u32 m0, s77, {slot*32768}", "s_nop 0"]
            if r == 4: pre = ["s_addk_i32 m0, 0x1000", "s_nop 0"]
            post = [f"s_add_u32 s76, s76, {TS}"] if r == 7 else []
            ops.append(pre + [f"buffer_load_dwordx4 v{160+r}, s[12:15], s76 offen offset:{(r&3)*1024} {cf} lds"] + post)
        return ops
    def dma_tile(slot):
        for o in dma_ops(slot):
            for x in o: g(x)
    def setup():
        g("v_and_b32 v5, 31, v1"); g("v_lshrrev_b32 v6, 5, v1")
        g("v_and_b32 v8, 3, v5"); g("v_lshlrev_b32 v8, 2, v8"); g("v_bfe_u32 v9, v5, 2, 2"); g("v_or_b32 v8, v8, v9"); g("v_xor_b32 v8, v8, v6")
        g("v_lshlrev_b32 v10, 10, v5"); g("v_lshl_add_u32 v10, v8, 4, v10")
        g(f"v_add_u32 v11, {LQ}, v10")
        g("s_lshl_b32 s62, s3, 15"); g("v_add_u32 v10, s62, v10")
        for k in range(8): g(f"v_xor_b32 v{16+k}, {k<<5}, v10")
        for k in range(8): g(f"v_xor_b32 v{128+k}, {k<<5}, v11")
        g("v_bfe_u32 v8, v1, 2, 2")
        g("v_lshl_add_u32 v9, v6, 2, v8"); g("v_lshlrev_b32 v12, 10, v9")
        g("v_and_b32 v9, 1, v1"); g("v_lshlrev_b32 v9, 1, v9"); g("v_bfe_u32 v13, v1, 4, 1"); g("v_or_b32 v9, v9, v13")
        g("v_lshl_add_u32 v13, v8, 2, v6"); g("v_xor_b32 v9, v9, v13")
        g("v_lshl_add_u32 v12, v9, 4, v12")
        g("v_bfe_u32 v9, v1, 1, 1"); g("v_lshl_add_u32 v12, v9, 3, v12")
        g("s_lshl_b32 s62, s3, 8"); g("v_add_u32 v12, s62, v12")
        for ct in range(4):
            for hv in range(2):
                g(f"v_xor_b32 v{24+2*ct+hv}, {(ct<<6)|(hv<<5)}, v12")
                g(f"v_add_u32 v{32+2*ct+hv}, 0x10000, v{24+2*ct+hv}")
        g("v_lshlrev_b32 v40, 5, v5"); g("v_lshl_add_u32 v40, v6, 4, v40"); g(f"v_add_u32 v40, {LRF}, v40")
        g("v_xor_b32 v46, 16, v40")
        g("s_lshl_b32 s62, s3, 2"); g("v_add_u32 v41, s62, v40")
        g(f"v_add_u32 v42, {LP}, v4")
        g("s_lshl_b32 s62, s3, 11"); g("v_add_u32 v43, s62, v42")
        g("s_lshl_b32 s78, s74, 15"); g("s_add_u32 s78, s78, s77"); g("s_add_u32 s67, s78, 0x1000")
        g("v_mov_b32 v12, 0"); g("v_mov_b32 v13, 1")
        for r in range(8): g(f"v_xor_b32 v{168+r}, {fswz(r)<<4}, v15")
    for k in range(4): g(f"v_mov_b32 v{48+k}, -1")
    g("s_waitcnt lgkmcnt(0)")
    g.srd(4, 40, WS)
    g("s_cmp_ge_u32 s42, 16"); g("s_cbranch_scc1 L_A_ni")
    g("s_lshl_b32 s62, s42, 13"); g("s_lshl_b32 s63, s3, 11"); g("s_add_u32 s62, s62, s63")
    for k in range(2):
        g(f"buffer_store_dwordx4 v[48:51], v4, s[4:7], s62 offen offset:{k*1024} sc1")
    g("L_A_ni:")
    g.srd(12, 18, 32 << 20); g.srd(8, 38, 256)
    setup()
    o0 = dma_ops(0)
    for x in o0[0]: g(x)
    for x in ea: g(x)
    g.srd(44, 30, 512*2752); g.srd(48, 32, 512*2752); g.srd(52, 34, 1376*1024)
    g("v_mul_u32_u24 v218, 2752, v5"); g("v_mul_u32_u24 v9, 92, v6"); g("v_add_u32 v218, v218, v9")
    g("s_lshl_b32 s62, s73, 2"); g("s_add_u32 s62, s62, s3"); g(f"s_mul_i32 s70, s62, {32*2752}"); g("s_mul_i32 s64, s72, 96"); g("s_add_u32 s70, s70, s64")
    g("v_lshlrev_b32 v219, 6, v1"); g("s_mul_i32 s71, s62, 3072"); g("s_mul_i32 s64, s72, 49152"); g("s_add_u32 s71, s71, s64")
    g("s_cmp_ge_u32 s42, 16"); g("s_cbranch_scc1 L_A_ni2")
    g("s_waitcnt vmcnt(1)")
    g("s_barrier")
    g("s_cmp_lg_u32 s3, 0"); g("s_cbranch_scc1 L_A_ni2")
    g("s_mov_b64 exec, 1")
    g("buffer_atomic_add v13, v12, s[8:11], 0 offen sc1")
    g("s_mov_b64 exec, -1")
    g("s_branch L_A_ni3")
    g("L_A_ni2:")
    g("s_waitcnt vmcnt(0)")
    g("L_A_ni3:")
    for o in o0[1:]:
        for x in o: g(x)
    dma_tile(1)
    def pvreg(kk, ct): return 16*kk + 4*ct
    def rdp_txt(kk, ct):
        r = pvreg(kk, ct); row = 16*kk; ab = 24 if row < 64 else 32
        return [f"ds_read_b64_tr_b16 a[{r+2*hv}:{r+2*hv+1}], v{ab+2*ct+hv} offset:{((row % 64) + 8*hv)*1024}" for hv in range(2)]
    def gather():
        for r in range(8):
            g(f"buffer_load_dwordx4 v[{176+4*r}:{179+4*r}], v4, s[4:7], s{78 if r < 4 else 67} offen offset:{(r&3)*1024} sc1")
    for tl in range(4):
        g(f"s_waitcnt vmcnt({8 if tl < 3 else 0})")
        if tl == 1: g("buffer_load_dword v47, v12, s[8:11], 0 offen sc1")
        if tl < 2: dma_tile(tl+2)
        if tl == 3:
            g("v_cmp_ne_u32 vcc, 16, v47")
            g("s_cbranch_vccz L_A_c0")
            cnt_wait(g, 47, 12)
            g("L_A_c0:")
            if g.o["eg"]: gather()
        g("s_barrier")
        if tl == 0 and not fine: g.stamp(1)
        if tl == 3 and not fine: g.stamp(2)
        for ks in range(2):
            for ct in range(4):
                for x in rdp_txt(2*tl+ks, ct): g(x)
        sk = g.lab("p1c")
        g(f"s_cmp_lg_u32 s3, {tl}"); g(f"s_cbranch_scc1 {sk}")
        for s in range(32):
            g(f"ds_read_b128 a[{128+4*s}:{131+4*s}], v{16+(s&7)} offset:{(s>>3)*256}")
        g(f"{sk}:")
    g(f"s_mov_b32 s64, {SPIN}")
    if g.o["eg"]: g("s_branch L_A_g1")
    g("L_A_g0:")
    gather()
    g("L_A_g1:")
    for r in range(8):
        g(f"s_waitcnt vmcnt({7-r})")
        g(f"ds_write_b128 v{168+r}, v[{176+4*r}:{179+4*r}] offset:{r*1024}")
        if r == 0: g("v_max3_u32 v9, v176, v177, v178"); g("v_max_u32 v9, v9, v179")
        else: g(f"v_max3_u32 v9, v9, v{176+4*r}, v{177+4*r}"); g(f"v_max3_u32 v9, v9, v{178+4*r}, v{179+4*r}")
    g("s_sub_u32 s64, s64, 1"); g("s_cmp_eq_u32 s64, 0"); g("s_cbranch_scc1 L_A_gok")
    g("v_cmp_eq_u32 vcc, -1, v9")
    g("s_waitcnt lgkmcnt(0)")
    g("s_cbranch_vccnz L_A_g0")
    g("L_A_gok:")
    g("s_waitcnt lgkmcnt(0)")
    g("s_barrier")
    g.stamp(3)
    L = Lds(g)
    dq = []
    for t in range(4, 8): dq += dma_ops(t & 3, "")
    ids = {}
    def rdq(s): ids[s] = L.op(f"ds_read_b128 {qreg(s)}, v{128+(s&7)} offset:{(s>>3)*256}")
    for s in range(QD-1): rdq(s)
    def dpop(n=1):
        for _ in range(n):
            if dq:
                for y in dq.pop(0): g(y)
    dpop(g.o["d0"])
    dn = g.o["dn"]
    for s in range(32):
        L.wait(ids[s])
        c = "0" if s == 0 else "v[48:63]"
        g(f"v_mfma_f32_32x32x16_bf16 v[48:63], a[{128+4*s}:{131+4*s}], {qreg(s)}, {c}")
        if s + QD - 1 < 32: rdq(s + QD - 1)
        if (s + 1) * dn // 32 > s * dn // 32: dpop()
    cpre = g.o["cpre"]; fb = g.o["fb"]
    def sma_ops(ch):
        o = ch*10240
        R = 216 if ch == 0 else 222
        T = []
        T += ["v_max3_f32 v8, v48, v49, v50", "v_max3_f32 v9, v51, v52, v53", "v_max3_f32 v10, v54, v55, v56", "v_max3_f32 v11, v57, v58, v59",
              "v_max3_f32 v8, v8, v60, v61", "v_max3_f32 v9, v9, v62, v63", "v_max_f32 v10, v10, v11", "v_max3_f32 v8, v8, v9, v10"]
        if ch == 0: T += ["v_ceil_f32 v216, v8"]
        else: T += ["v_cmp_gt_f32 vcc, v8, v47", "v_ceil_f32 v8, v8", "s_nop 0", "v_cndmask_b32 v222, v44, v8, vcc"]
        for h in range(2):
            T += [f"v_sub_f32 v{48+8*h+k}, v{48+8*h+k}, v{R}" for k in range(8)]
            T += [f"v_exp_f32 v{48+8*h+k}, v{48+8*h+k}" for k in range(8)]
            if h == 0 and ch == 0: T += ["s_barrier"]
            if h == 0: T += [f"@ds_write_b32 v41, v{R} offset:{o}"]
            T += [f"v_cvt_pk_bf16_f32 v{168+4*h+k}, v{48+8*h+2*k}, v{49+8*h+2*k}" for k in range(4)]
            T += [f"@ds_write_b128 v43, v[{168+4*h}:{171+4*h}] offset:{o+1024*h}"]
        return T
    def lsum_ops(ch):
        T = [f"v_add_f32 v{48+k}, v{48+k}, v{56+k}" for k in range(8)]
        T += [f"v_add_f32 v{48+k}, v{48+k}, v{52+k}" for k in range(4)]
        T += ["v_add_f32 v48, v48, v50", "v_add_f32 v49, v49, v51"]
        if ch == 0: T += ["v_add_f32 v217, v48, v49"]
        else: T += ["v_add_f32 v48, v48, v49", "v_add_f32 v217, v217, v48", "@ds_write_b32 v41, v217 offset:1024"]
        return T
    def emit(x):
        if callable(x): return x()
        if x.startswith("@"): return L.op(x[1:])
        g(x)
    def kfix(P, waits=None):
        T = []
        for w in range(4):
            T += [f"v_sub_f32 v{12+w}, v44, v{12+w}", f"v_cvt_u32_f32 v{8+w}, v{12+w}", f"v_min_u32 v{8+w}, 0xff, v{8+w}", f"v_mul_u32_u24 v{8+w}, 0x800080, v{8+w}"]
            for kk in (2*w, 2*w+1):
                if waits is not None: T += [lambda kk=kk: L.wait(waits[kk])]
                T += [f"v_pk_sub_u16 v{P+4*kk+i}, v{P+4*kk+i}, v{8+w} clamp" for i in range(4)]
        return T
    def cost(x):
        if callable(x): return getattr(x, "c", 0)
        if x.startswith("v_exp"): return 2
        return 1
    def fill(q, budget):
        while q and budget > 0:
            x = q.pop(0); budget -= cost(x); emit(x)
        return budget
    def rdop(d, key, txt):
        def f(): d[key] = L.op(txt)
        f.c = 1
        return f
    order = [(kk, ct) for ct in range(4) for kk in range(8)]
    pvid = {}; rq = []
    def refill(cnt):
        n_ = 0
        while rq and n_ < cnt:
            key, x = rq.pop(0); pvid[key] = L.op(x); n_ += 1
        return n_
    def pv0(kk, ct):
        r = pvreg(kk, ct)
        c = "0" if kk == 0 else f"v[{64+16*ct}:{79+16*ct}]"
        g(f"v_mfma_f32_32x32x16_bf16 v[{64+16*ct}:{79+16*ct}], a[{r}:{r+3}], v[{128+4*kk}:{131+4*kk}], {c}")
    def flush_until(q, prefix):
        if any((not callable(x)) and x.startswith(prefix) for x in q):
            while True:
                x = q.pop(0); emit(x)
                if (not callable(x)) and x.startswith(prefix): break
            g("s_nop 1")
    if fine: g.stamp(1)
    n0_ = len(g.L); dpop(g.o["d1"]); g.nop(max(0, 12 - (len(g.L) - n0_)))
    for x in sma_ops(0): emit(x)
    dpop(g.o["d2"] if cpre else 100)
    if cpre == 0:
        for x in lsum_ops(0): emit(x)
    L.all()
    if cpre == 0: g("s_waitcnt vmcnt(0)")
    g("s_barrier")
    if fine: g.stamp(2)
    r0 = {}
    qr = [rdop(r0, "x", "ds_read_b128 v[12:15], v40"), rdop(r0, "ref", "ds_read_b128 v[168:171], v46")]
    qr += [rdop(r0, k, f"ds_read_b128 v[{128+4*k}:{131+4*k}], v42 offset:{1024*k}") for k in range(8)]
    q2 = [lambda: L.wait(r0["ref"]), "v_max3_f32 v9, v12, v13, v14", "v_max3_f32 v10, v169, v170, v171", "v_max3_f32 v9, v9, v15, v168", "v_max_f32 v44, v9, v10"]
    q2 += kfix(128, r0)
    q2 += ["v_sub_f32 v216, v216, v44", "v_exp_f32 v216, v216", f"v_add_f32 v47, 0x{f2u(float(g.o['thr'])):08x}, v44", "v_mul_f32 v217, v217, v216"]
    if cpre:
        for x in qr: emit(x)
        qr = []
        for x in lsum_ops(0): emit(x)
        flush_until(q2, "v_pk_sub_u16 v135,")
        for n, (kk, ct) in enumerate(order[:8*cpre]):
            if ct == 0: flush_until(q2, f"v_pk_sub_u16 v{128+4*kk+3},")
            pv0(kk, ct)
            fill(q2, 6 if ct == 0 else 4)
            if n % g.o["d3"] == 0: dpop()
            rq += [((kk, ct), x) for x in rdp_txt(kk, ct)]
        dpop(100)
        g("s_waitcnt vmcnt(0)")
        g("s_barrier")
    g.stamp(4)
    D = 6
    ids = {}
    def rdc(s):
        r = 176 + 4*(s % 8)
        ids[s] = L.op(f"ds_read_b128 v[{r}:{r+3}], v{16+(s&7)} offset:{(s>>3)*256}")
    for s in range(D): rdc(s)
    oi = g.o["oi"]
    if oi:
        for k in range(4): g(f"v_mov_b32 v{172+k}, -1")
    for s in range(32):
        L.wait(ids[s])
        r = 176 + 4*(s % 8)
        c = "0" if s == 0 else "v[48:63]"
        g(f"v_mfma_f32_32x32x16_bf16 v[48:63], v[{r}:{r+3}], {qreg(s)}, {c}")
        if s + D < 32: rdc(s + D)
        at = g.o["ats"]
        if oi and s % 3 == 0 and s < 24:
            n_ = s // 3
            g(f"s_add_u32 s63, s65, {(n_&3)*8*32768}")
            g(f"buffer_store_dwordx4 v[172:175], v213, s[4:7], s63 offen offset:{(n_>>2)*128} sc1")
        elif s == at: g("buffer_load_dword v223, v218, s[44:47], s70 offen")
        elif s == at + 3: g("buffer_load_dword v223, v218, s[48:51], s70 offen")
        elif s == at + 6: g("buffer_load_dword v223, v219, s[52:55], s71 offen")
        elif qr: fill(qr, 2)
        elif q2 and (s >= 7 or cpre): fill(q2, 3)
        else: refill(2)
    fill(q2, 1000)
    g.stamp(5)
    q = sma_ops(1)
    r1 = {}
    qr = [rdop(r1, "x", "ds_read_b128 v[12:15], v40 offset:10240"), rdop(r1, "ref", "ds_read_b128 v[218:221], v46 offset:10240")]
    qr += [rdop(r1, k, f"ds_read_b128 v[{176+4*k}:{179+4*k}], v42 offset:{10240+1024*k}") for k in range(8)]
    state = 0; dist = 0
    for n, (kk, ct) in enumerate(order[8*cpre:]):
        pv0(kk, ct); dist += 1
        if state == 0:
            if dist < 12:
                k_ = refill(3); dist += k_
                if k_ < 3: g.nop(3 - k_); dist += 3 - k_
            else:
                fill(q, fb)
                if not q:
                    last_w = L.n; state = 1
        elif state == 1:
            L.wait(last_w); g("s_barrier"); state = 2
            fill(qr, 3)
        elif state == 2:
            if qr: fill(qr, 3)
            else: refill(3)
        rq += [((kk, ct), x) for x in rdp_txt(kk, ct)]
    if state == 0:
        if dist < 12: g.nop(12 - dist)
        fill(q, 1000); last_w = L.n; state = 1
    if state == 1:
        L.wait(last_w); g("s_barrier")
    fill(qr, 1000)
    L.wait(r1["ref"])
    g("v_max3_f32 v9, v12, v13, v14"); g("v_max3_f32 v10, v219, v220, v221"); g("v_max3_f32 v9, v9, v15, v218"); g("v_max_f32 v9, v9, v10")
    g("v_cmp_neq_f32 vcc, v9, v44")
    g("s_cbranch_vccnz L_A_slow")
    g("L_A_back:")
    slow = ["L_A_slow:", "s_waitcnt lgkmcnt(0)", "v_sub_f32 v47, v44, v9", "v_sub_f32 v222, v222, v9", "v_mov_b32 v44, v9", "v_exp_f32 v47, v47", "v_exp_f32 v222, v222"] + kfix(176) + \
           [f"v_mul_f32 v{64+k}, v47, v{64+k}" for k in range(64)] + ["v_mul_f32 v217, v47, v217"] + \
           [f"v_mul_f32 v{48+k}, v222, v{48+k}" for k in range(16)] + ["s_branch L_A_back"]
    g.slow = slow
    if fine: g.stamp(10)
    def epi_w(ct, qq):
        b = 128+8*(ct&1)+4*qq
        return [f"v_cvt_pk_bf16_f32 v{b+k}, v{64+16*ct+8*qq+2*k}, v{65+16*ct+8*qq+2*k}" for k in range(4)] + \
               [f"@ds_write_b128 v{208+2*(ct&1)+qq}, v[{b}:{b+3}] offset:{(ct>>1)*128}"]
    er = {}
    def epi_r(half):
        return [rdop(er, (half, n_), f"ds_read_b128 v[{224+16*half+4*n_}:{227+16*half+4*n_}], v212 offset:{n_*8192+half*128}") for n_ in range(4)]
    def epi_s(half, n_):
        def f():
            L.wait(er[(half, n_)])
            if g.o["oi"] and half == 0 and n_ == 0: g("s_waitcnt vmcnt(0)")
            g(f"s_add_u32 s63, s65, {n_*8*32768}")
            g(f"buffer_store_dwordx4 v[{224+16*half+4*n_}:{227+16*half+4*n_}], v213, s[4:7], s63 offen offset:{half*128} sc1")
        f.c = g.o['sc']
        return f
    lw = {}
    def mark(): lw["w"] = L.n
    def lbar(): L.wait(lw["w"]); g("s_barrier")
    lbar.c = 2
    q = lsum_ops(1) + [mark]
    ql = [lbar, rdop(lw, "a", "ds_read_b128 v[52:55], v40 offset:1024"), rdop(lw, "b", "ds_read_b128 v[56:59], v46 offset:1024")]
    ql2 = [lambda: L.wait(lw["b"])] + [f"v_add_f32 v{52+w}, v{52+w}, v{56+w}" for w in range(4)] + \
        ["v_add_f32 v52, v52, v53", "v_add_f32 v54, v54, v55", "v_add_f32 v45, v52, v54"] + \
        [f"@ds_bpermute_b32 v{60+i}, v215, v{44+(i&1)}" for i in range(4)]
    wdone = 0
    for n, (kk, ct) in enumerate(order):
        r = pvreg(kk, ct)
        while (kk, ct) not in pvid or any(k == (kk, ct) for k, _ in rq): refill(1)
        if ct == 0: L.wait(r1[kk])
        L.wait(pvid[(kk, ct)])
        g(f"v_mfma_f32_32x32x16_bf16 v[{64+16*ct}:{79+16*ct}], a[{r}:{r+3}], v[{176+4*kk}:{179+4*kk}], v[{64+16*ct}:{79+16*ct}]")
        b = 4 - refill(3)
        if kk == 0: since = 0
        if not rq and wdone < ct and since >= 11:
            q += epi_w(wdone, 0) + epi_w(wdone, 1)
            if wdone == 0: q += ql
            if wdone == 1: q += epi_r(0) + ql2 + [epi_s(0, n_) for n_ in range(4)]
            wdone += 1
        n0_ = len(g.L)
        b = fill(q, b)
        if b > 0 and wdone < ct and since < 11:
            g.nop(b); since += b
        since += 1 + (4 - max(b, 0))
    while wdone < 3:
        q += epi_w(wdone, 0) + epi_w(wdone, 1)
        if wdone == 0: q += ql
        if wdone == 1: q += epi_r(0) + ql2 + [epi_s(0, n_) for n_ in range(4)]
        wdone += 1
    n0_ = len(g.L)
    fill(q, 1000)
    if g.o["fine2"]: g.stamp(1)
    g.nop(max(0, 12 - (len(g.L) - n0_)))
    for x in epi_w(3, 0) + epi_w(3, 1) + epi_r(1) + [epi_s(1, n_) for n_ in range(4)]: emit(x)
    g.stamp(9)
    if g.o["fsb"]: ffn_setup(g)
    if not g.o["oi"]: g("s_waitcnt vmcnt(0)")
    g("s_barrier")
    g("buffer_store_dwordx4 v[60:63], v214, s[4:7], s79 offen sc1")
    if not fine: g.stamp(10)

def gen(opts):
    g = G(opts)
    g("s_load_dwordx16 s[16:31], s[0:1], 0")
    g("s_load_dwordx8 s[32:39], s[0:1], 64")
    g("s_load_dwordx2 s[40:41], s[0:1], 96")
    g("s_cmp_ge_u32 s2, 256"); g("s_cbranch_scc1 L_end")
    g.stamp(0)
    g("s_getpc_b64 s[4:5]")
    g("s_and_b32 s5, s5, 0xffff"); g("s_mov_b32 s6, L_end - L_pcv"); g("s_mov_b32 s7, 0x20000")
    g("L_pcv:")
    g("s_bfe_u32 s62, s2, 0x40003"); g("s_lshl_b32 s62, s62, 12")
    g("v_lshlrev_b32 v1, 4, v0")
    g("buffer_load_dwordx4 v[252:255], v1, s[4:7], s62 offen")
    g("v_lshrrev_b32 v2, 6, v0"); g("v_and_b32 v1, 63, v0")
    g("v_readfirstlane_b32 s3, v2")
    g("v_and_b32 v2, 15, v0"); g("v_lshrrev_b32 v3, 4, v1")
    g("s_and_b32 s62, s2, 7"); g("s_lshr_b32 s43, s2, 4"); g("s_lshl_b32 s42, s43, 3"); g("s_or_b32 s42, s42, s62")
    g("s_and_b32 s73, s43, 3")
    g("s_lshr_b32 s43, s43, 2")
    g("s_lshl_b32 s72, s62, 2"); g("s_or_b32 s72, s72, s43")
    g("s_lshl_b32 s43, s43, 3"); g("s_or_b32 s43, s43, s62")
    g("s_mov_b32 s60, 0x05040100"); g("s_mov_b32 s61, 0x07060302")
    if opts.get("stamps"):
        for k in range(82, 102): g(f"s_mov_b32 s{k}, 0")
    g("s_bitcmp1_b32 s2, 3")
    g("s_cbranch_scc1 L_A")
    tcu(g)
    g("L_A:")
    acu(g)
    if not g.o["fsb"]: ffn_setup(g)
    g(f"s_cmp_lt_u32 s66, {NSL}"); g("s_cbranch_scc1 L_FW")
    g("s_cmp_lg_u32 s66, 31"); g("s_cbranch_scc1 L_fin")
    x_issue(g); g("s_waitcnt vmcnt(0)"); x_finish(g)
    g("s_branch L_FFN")
    g("L_FW:")
    x_issue(g); ffn_issue(g); ffn_finish(g)
    if not g.o["fine"]: g.stamp(6)
    g("L_FFN:")
    ffn_stage(g)
    g("L_fin:")
    if opts["probe"]:
        wg, k = [int(x) for x in opts["probe"].split(",")]
        g("s_waitcnt lgkmcnt(0)")
        g(f"s_cmp_lg_u32 s2, {wg}"); g("s_cbranch_scc1 L_end")
        g("s_cmp_lg_u32 s3, 0"); g("s_cbranch_scc1 L_end")
        g(f"s_sub_u32 s64, s{80+2*k}, s80"); g("s_mul_i32 s64, s64, 20"); g("s_min_u32 s64, s64, 100000")
        g("s_memrealtime s[62:63]"); g("s_waitcnt lgkmcnt(0)"); g("s_add_u32 s64, s64, s62")
        g("L_pr:")
        g("s_sleep 2")
        g("s_memrealtime s[62:63]"); g("s_waitcnt lgkmcnt(0)")
        g("s_sub_u32 s62, s62, s64"); g("s_cmp_lt_i32 s62, 0"); g("s_cbranch_scc1 L_pr")
    elif opts.get("stamps"):
        nst = 11
        g("s_waitcnt lgkmcnt(0)")
        g("s_cmp_lg_u32 s3, 0"); g("s_cbranch_scc1 L_end")
        g("s_mov_b64 exec, 1")
        g(f"s_mul_i32 s62, s2, {nst*8}"); g(f"s_add_u32 s62, s62, {WS - 256*nst*8}")
        g("v_mov_b32 v3, 0")
        for k in range(nst):
            g(f"v_mov_b32 v4, s{80+2*k}"); g(f"v_mov_b32 v5, s{81+2*k}")
            g(f"buffer_store_dwordx2 v[4:5], v3, s[4:7], s62 offen offset:{8*k}")
            g("s_nop 1")
    g("L_end:")
    g("s_endpgm")
    for x in g.slow + getattr(g, "slow0", []): g(x)
    hdr = open("hdr.txt").read()
    return hdr + "; @launch grid=(256,1,1) block=(256,1,1) lds=163840\n" + '.amdgcn_target "amdgcn-amd-amdhsa--gfx950"\n.text\n' + kstart(KN) + "\n".join(g.L) + "\n" + kdesc(KN, vgpr=512, accum=256).replace(".text\n", "")

if __name__ == "__main__":
    import argparse
    ap = argparse.ArgumentParser()
    ap.add_argument("out"); ap.add_argument("--stamps", action="store_true")
    ap.add_argument("--thr", type=float, default=30); ap.add_argument("--probe", default="")
    for k, v in (("fine", 0), ("fine2", 0), ("tsleep", 1), ("fsleep", 1), ("fb", 4), ("cpre", 2), ("d0", 8), ("dn", 12), ("d1", 4), ("d2", 4), ("d3", 1), ("sc", 4),
                 ("ats", 1), ("nb", 3), ("rep", 0), ("eg", 1), ("fsb", 0), ("xnp", 0), ("osc", 0), ("tord", 0), ("oi", 0), ("cls", 1)): ap.add_argument("--" + k, type=int, default=v)
    a = ap.parse_args()
    open(a.out, "w").write(gen(vars(a)))
```

```python
import sys, math, struct
from gen_common import *
def f2u(x): return struct.unpack("<I", struct.pack("<f", x))[0]
QABS = 0x000000
STAT = 0x040000
OPART = 0x100000
APART = 0x500000
FPART = 0x600000
OOB = 0x40000000
SCALE = (128 ** -0.5) * math.log2(math.e)
class G:
    def __init__(s, opts):
        s.L = []; s.o = opts; s.uid = 0
    def a(s, x): s.L.append(x)
    def __call__(s, x): s.L.append(x)
    def lab(s, p="L"):
        s.uid += 1; return f"{p}_{s.uid}"
    def nop(s, n):
        while n > 0:
            k = min(n, 16); s.a(f"s_nop {k-1}"); n -= k
    def stamp(s, k):
        if s.o.get("stamps"):
            s.a(f"s_memrealtime s[{80+2*k}:{81+2*k}]")
    def srd(s, d, p, size):
        s.a(f"s_mov_b32 s{d}, s{p}"); s.a(f"s_and_b32 s{d+1}, s{p+1}, 0xffff")
        s.a(f"s_mov_b32 s{d+2}, {size}"); s.a(f"s_mov_b32 s{d+3}, 0x20000")
    def dpp(s, op, v, ctrl):
        s.a("s_nop 1"); s.a(f"{op}_dpp v{v}, v{v}, v{v} {ctrl} row_mask:0xf bank_mask:0xf")
    def allred(s, op, v, t, width=64):
        for c in ("quad_perm:[1,0,3,2]", "quad_perm:[2,3,0,1]", "row_half_mirror", "row_mirror"):
            s.dpp(op, v, c)
        if width >= 32:
            s.a(f"v_mov_b32 v{t}, v{v}"); s.a("s_nop 1"); s.a(f"v_permlane16_swap_b32 v{v}, v{t}"); s.a(f"{op} v{v}, v{v}, v{t}")
        if width >= 64:
            s.a(f"v_mov_b32 v{t}, v{v}"); s.a("s_nop 1"); s.a(f"v_permlane32_swap_b32 v{v}, v{t}"); s.a(f"{op} v{v}, v{v}, v{t}")
    def bf16r(s, d, v):
        s.a(f"v_cvt_pk_bf16_f32 v{d}, v{v}, v{v}"); s.a(f"v_lshlrev_b32 v{d}, 16, v{d}")
    def maxtree(s, d, regs):
        regs = list(regs)
        s.a(f"v_max3_u32 v{d}, v{regs[0]}, v{regs[1]}, v{regs[2]}")
        i = 3
        while i + 1 < len(regs):
            s.a(f"v_max3_u32 v{d}, v{d}, v{regs[i]}, v{regs[i+1]}"); i += 2
        if i < len(regs):
            s.a(f"v_max_u32 v{d}, v{d}, v{regs[i]}")
    def perm8x8(s, R, T, acc=None):
        for t in range(8):
            for p in range(4):
                s.a(f"v_perm_b32 v{T+4*t+p}, v{R+4*(2*p+1)+(t>>1)}, v{R+4*(2*p)+(t>>1)}, s{60+(t&1)}")
        if acc is not None:
            for k in range(32):
                s.a(f"v_accvgpr_write_b32 a{acc+k}, v{T+k}")

def fswz(k):
    return ((k & 3) << 2) | ((k >> 2) & 3)

SPIN = 20000
LDS_XN = 0
LDS_QX = 8192
LDS_OT = 16384
LDS_FX = 49152
LDS_CX = 49664
LDS_CS = 51200
LDS_GX = 53248
LDS_FW = 57344
NSL = 29
LQ = 131072
LRF = LQ
LP = LQ + 2048
TS = 0x100000
SMF = "v_smfmac_f32_16x16x64_bf16"
M16 = "v_mfma_f32_16x16x32_bf16"

def poll_loop(g, body, cond, spin=SPIN, sleep=1):
    l = g.lab("pl"); e = g.lab("ple"); f = g.lab("plf")
    g(f"s_mov_b32 s64, {spin}")
    if sleep: g(f"s_branch {f}")
    g(f"{l}:")
    if sleep:
        g(f"s_sleep {sleep}")
        g(f"{f}:")
    body()
    g("s_sub_u32 s64, s64, 1"); g("s_cmp_eq_u32 s64, 0")
    g("s_waitcnt vmcnt(0)")
    g(f"s_cbranch_scc1 {e}")
    cond()
    g(f"s_cbranch_vccnz {l}")
    g(f"{e}:")

def cnt_wait(g, vt, vo, sleep=4):
    poll_loop(g, lambda: g(f"buffer_load_dword v{vt}, v{vo}, s[8:11], 0 offen sc1"),
              lambda: g(f"v_cmp_ne_u32 vcc, 16, v{vt}"), sleep=sleep)

def tile_setup(g, rot):
    g("v_lshlrev_b32 v8, 1, v3"); g("v_xor_b32 v8, v8, v2"); g("v_lshlrev_b32 v8, 4, v8"); g("v_lshl_add_u32 v8, v3, 10, v8")
    g("v_xor_b32 v9, 0x80, v8")
    g("s_lshl_b32 s68, s3, 13"); g(f"s_add_u32 s68, s68, {LDS_OT}")
    g("v_bfe_u32 v11, v1, 2, 2")
    g("v_lshl_add_u32 v10, v3, 3, v11"); g("v_lshlrev_b32 v10, 8, v10")
    g("v_and_b32 v12, 1, v3"); g("v_lshl_add_u32 v12, v12, 2, v11"); g("v_lshlrev_b32 v12, 1, v12")
    g("v_bfe_u32 v13, v1, 1, 1"); g("v_xor_b32 v12, v12, v13")
    g("v_lshl_add_u32 v10, v12, 4, v10")
    g("v_and_b32 v13, 1, v1"); g("v_lshl_add_u32 v10, v13, 3, v10")
    g("v_add_u32 v10, s68, v10")
    if rot:
        g("s_lshr_b32 s63, s73, 1"); g("s_lshl_b32 s63, s63, 7"); g("s_and_b32 s62, s73, 1"); g("s_lshl_b32 s62, s62, 4"); g("s_or_b32 s63, s63, s62")
        g("v_xor_b32 v10, s63, v10")
    for t in range(8): g(f"v_xor_b32 v{112+t}, {t<<5}, v10")
    g("s_mov_b32 s70, 0xaaaaaaaa"); g("s_mov_b32 s71, 0xaaaaaaaa")
    g("v_mov_b32 v29, 0x4444"); g("v_mov_b32 v28, 0xeeee"); g("v_cndmask_b32 v29, v29, v28, s[70:71]")

def tile_dma(g, sbase):
    g("s_mov_b32 m0, s68"); g(f"s_mov_b32 s63, s{sbase}")
    for n in range(8):
        g(f"buffer_load_dwordx4 v{8+((n>>1)&1)}, s[4:7], s63 offen sc1 lds")
        if n < 7:
            g("s_addk_i32 m0, 0x400"); g("s_addk_i32 s63, 0x1000")

def tile_read(g, A):
    for t in range(8):
        if t == 6: g("s_waitcnt lgkmcnt(8)")
        g(f"ds_read_b64_tr_b16 v[{A+4*t}:{A+4*t+1}], v{112+t}")
        g(f"ds_read_b64_tr_b16 v[{A+4*t+2}:{A+4*t+3}], v{112+t} offset:1024")

def ffn_setup(g):
    g("s_mov_b32 s66, s72"); g("s_mov_b32 s67, s73")
    g.srd(56, 16, 4096)
    for m in range(3):
        g(f"v_add_u32 v7, {64*m}, v1"); g("v_mul_u32_u24 v8, 43691, v7"); g("v_lshrrev_b32 v8, 18, v8")
        g(f"v_mul_u32_u24 v{4+m}, {2752-96}, v8"); g(f"v_lshl_add_u32 v{4+m}, v7, 4, v{4+m}")
    g("v_lshlrev_b32 v121, 11, v3"); g("v_lshl_add_u32 v121, v2, 4, v121")
    g("v_lshlrev_b32 v122, 3, v3")
    for k in range(4): g(f"v_mov_b32 v{24+k}, 0x3f803f80")
    tile_setup(g, False)
    g("v_and_b32 v10, 1, v3"); g("v_lshlrev_b32 v10, 5, v10"); g("v_lshrrev_b32 v12, 1, v3"); g("v_lshl_add_u32 v10, v12, 2, v10"); g("v_add_u32 v10, v10, v11")
    g("v_mul_u32_u24 v125, 96, v10"); g("v_and_b32 v28, 3, v1"); g("v_lshl_add_u32 v125, v28, 3, v125")
    g("s_mul_i32 s76, s3, 24576"); g(f"s_add_u32 s76, s76, {LDS_FW}"); g("v_add_u32 v125, s76, v125")
    for p in range(4):
        g(f"v_cmp_eq_u32 vcc, {p}, v28"); g("s_nop 1"); g(f"v_cndmask_b32 v{16+p}, 0, -1, vcc")
    for p in range(4): g(f"v_and_b32 v{20+p}, 0xffff, v{16+(p^1)}")
    g("v_xor_b32 v10, 1, v28"); g("v_lshlrev_b32 v10, 2, v10"); g("v_lshlrev_b32 v30, v10, 10"); g("v_or_b32 v30, 0x4444, v30")
    g("v_lshlrev_b32 v120, 5, v2"); g("s_lshl_b32 s62, s3, 9"); g(f"s_add_u32 s62, s62, {LDS_CS}"); g("v_add_u32 v120, s62, v120")
    g("v_lshl_add_u32 v7, v3, 2, v28"); g("v_lshlrev_b32 v7, 5, v7")
    rep = g.o["rep"]
    g("s_lshl_b32 s69, s67, 15"); g("s_lshl_b32 s63, s3, 8"); g("s_add_u32 s69, s69, s63"); g(f"s_add_u32 s69, s69, {APART}")
    if rep:
        g("s_and_b32 s63, s42, 7"); g("s_lshl_b32 s63, s63, 17"); g("s_add_u32 s69, s69, s63")
    g("v_lshrrev_b32 v13, 1, v1"); g("v_lshlrev_b32 v13, 10, v13"); g("v_and_b32 v14, 1, v1"); g("v_lshl_add_u32 v13, v14, 7, v13")
    g("v_lshlrev_b32 v123, 5, v2"); g("v_lshl_add_u32 v123, v3, 4, v123")
    g("s_lshl_b32 s74, s67, 5"); g("s_add_u32 s74, s74, s66"); g("s_lshl_b32 s74, s74, 11")
    g("s_lshl_b32 s63, s3, 9"); g("s_add_u32 s74, s74, s63"); g(f"s_add_u32 s74, s74, {FPART}")
    c1 = -2 * math.sqrt(2 / math.pi) * math.log2(math.e)
    g(f"s_mov_b32 s75, 0x{f2u(c1*0.044715):08x}"); g(f"v_mov_b32 v124, 0x{f2u(c1):08x}")
    for k in range(32): g(f"v_mov_b32 v{160+k}, 0")

def x_issue(g):
    g("s_lshl_b32 s62, s67, 10"); g("s_lshl_b32 s63, s3, 8"); g("s_add_u32 s62, s62, s63")
    for t in range(8):
        g(f"buffer_load_dwordx2 v[{96+2*t}:{97+2*t}], v122, s[56:59], s62 offen offset:{32*t}")

def x_finish(g):
    for t in range(8):
        for q in range(2):
            g(f"v_lshlrev_b32 v{128+4*t+2*q}, 16, v{96+2*t+q}")
            g(f"v_and_b32 v{128+4*t+2*q+1}, 0xffff0000, v{96+2*t+q}")

def ffn_issue(g):
    g(f"s_mul_i32 s62, s3, {128*2752}"); g("s_mul_i32 s63, s66, 96"); g("s_mov_b32 m0, s76"); g("s_add_u32 s62, s62, s63")
    for n in range(12):
        g(f"buffer_load_dwordx4 v{4+n%3}, s[44:47], s62 offen lds")
        g("s_addk_i32 m0, 0x3000"); g("s_nop 0")
        g(f"buffer_load_dwordx4 v{4+n%3}, s[48:51], s62 offen lds")
        if n < 11:
            g("s_addk_i32 m0, 0xd400")
            g(f"s_add_u32 s62, s62, {32*2752}" if n % 3 == 2 else "s_nop 0")
    g("s_mul_i32 s62, s66, 49152"); g("s_lshl_b32 s63, s3, 8"); g("s_add_u32 s62, s62, s63")
    for hb in range(2):
        for pos in range(3):
            g(f"s_add_u32 s63, s62, {(16*pos + 8*hb)*1024}")
            for q in range(2):
                r = 192 + 24*hb + 8*pos + 4*q
                g(f"buffer_load_dwordx4 v[{r}:{r+3}], v121, s[52:55], s63 offen offset:{(q if pos < 2 else q ^ 1)*1024}")

def ffn_finish(g):
    g("s_waitcnt vmcnt(36)")
    if g.o["fine2"]: g.stamp(3)
    x_finish(g)
    for s2 in range(2):
        g(f"s_waitcnt vmcnt({12 + 12*(1-s2)})")
        for t in range(6):
            for hb in range(2):
                for hv in range(2):
                    r = 48*s2+8*t+4*hb+2*hv
                    g(f"ds_read_b64_tr_b16 a[{r}:{r+1}], v125 offset:{(64*s2+8*hb+16*hv)*96+(t%3)*32+(t//3)*12288}")
    g("s_waitcnt lgkmcnt(0)")
    if g.o["fine2"]: g.stamp(4)
    for ks in range(4):
        for t in range(6):
            c = "0" if ks == 0 else f"v[{32+4*t}:{35+4*t}]"
            r = 48*(ks>>1)+8*t+4*(ks&1)
            g(f"{M16} v[{32+4*t}:{35+4*t}], v[24:27], a[{r}:{r+3}], {c}")
    g("s_waitcnt vmcnt(0)")
    for hb in range(2):
        for t in range(8):
            R = lambda pos, q: 192 + 24*hb + 8*pos + 4*q + (t>>1)
            for q in range(2):
                g(f"v_perm_b32 v{64+2*q}, v{R(1,q)}, v{R(0,q)}, s{60+(t&1)}")
                g(f"v_perm_b32 v{65+2*q}, v{R(2,q)}, v{R(2,q)}, s{60+(t&1)}")
            for p in range(4): g(f"v_accvgpr_write_b32 a{96+8*t+4*hb+p}, v{64+p}")
        if hb == 0:
            g("ds_write2_b32 v120, v32, v36 offset0:0 offset1:1"); g("ds_write2_b32 v120, v40, v44 offset0:2 offset1:4"); g("ds_write2_b32 v120, v48, v52 offset0:5 offset1:6")
    if g.o["fine2"]: g.stamp(5)
    g("s_waitcnt lgkmcnt(0)")
    g("s_barrier")
    for w in range(4):
        g(f"ds_read_b128 v[{32+8*w}:{35+8*w}], v7 offset:{LDS_CS+512*w}"); g(f"ds_read_b128 v[{36+8*w}:{39+8*w}], v7 offset:{LDS_CS+512*w+16}")
    g(f"v_add_u32 v120, {LDS_GX-LDS_CS}, v120")
    g("s_waitcnt lgkmcnt(0)")
    for k in (0, 1, 2, 4, 5, 6):
        g(f"v_add_f32 v{32+k}, v{32+k}, v{40+k}"); g(f"v_add_f32 v{48+k}, v{48+k}, v{56+k}")
        g(f"v_add_f32 v{224+k}, v{32+k}, v{48+k}")

def ffn_stage(g):
    g(f"s_mov_b32 s65, {SPIN}")
    l = g.lab("fp"); e = g.lab("fpe")
    g(f"{l}:")
    for k in range(24): g(f"v_mov_b32 v{192+k}, 0")
    poll_loop(g, lambda: g("buffer_load_dword v14, v13, s[4:7], s69 offen sc1"), lambda: g("v_cmp_eq_u32 vcc, -1, v14"), spin=4*SPIN, sleep=g.o["fsleep"])
    tile_dma(g, 69)
    g.stamp(7)
    g("s_waitcnt vmcnt(0)")
    tile_read(g, 32)
    for t in range(8):
        g(f"s_waitcnt lgkmcnt({14-2*t})")
        g(f"{M16} v[{64+4*t}:{67+4*t}], v[{32+4*t}:{35+4*t}], v[24:27], v[{128+4*t}:{131+4*t}]")
    def cv(t):
        g(f"v_cvt_pk_bf16_f32 v{96+2*t}, v{64+4*t}, v{65+4*t}")
        g(f"v_cvt_pk_bf16_f32 v{97+2*t}, v{66+4*t}, v{67+4*t}")
        g(f"v_cndmask_b32 v{216+t}, v{96+2*t}, v{97+2*t}, s[70:71]")
    def st(ks, which):
        A = f"v[{96+4*ks}:{99+4*ks}]"; d = 56 + 4*which
        c = "0" if ks == 0 else f"v[{d}:{d+3}]"
        g(f"{M16} v[{d}:{d+3}], {A}, {'v[24:27]' if which == 0 else A}, {c}")
    def sm(s2, t):
        g(f"{SMF} v[{192+4*t}:{195+4*t}], v[{216+4*s2}:{219+4*s2}], a[{48*s2+8*t}:{48*s2+8*t+7}], v29")
    for t in range(4): cv(t)
    st(0, 0); st(0, 1)
    cv(4); sm(0, 0); sm(0, 1); cv(5); sm(0, 2); sm(0, 3); cv(6); sm(0, 4); sm(0, 5); cv(7)
    st(1, 0); st(1, 1); st(2, 0); st(3, 0); st(2, 1); st(3, 1)
    g(f"s_cmp_ge_u32 s66, {NSL}"); g("s_cbranch_scc1 L_HPUB")
    for t in range(6): sm(1, t)
    g("s_sub_u32 s65, s65, 1"); g("s_cmp_eq_u32 s65, 0"); g(f"s_cbranch_scc1 {e}")
    g("v_cmp_u_f32 vcc, v56, v56")
    g(f"s_cbranch_vccnz {l}")
    g(f"{e}:")
    hp = ["L_HPUB:", "s_sub_u32 s65, s65, 1", "s_cmp_eq_u32 s65, 0", "s_cbranch_scc1 L_HPUB2", "s_nop 3", "v_cmp_u_f32 vcc, v56, v56", f"s_cbranch_vccnz {l}", "L_HPUB2:",
          "v_lshlrev_b32 v13, 4, v3", "s_mov_b32 s70, 0x00010001", "s_mov_b32 s71, 0x00010001", "s_mov_b64 exec, s[70:71]"] + \
         [f"buffer_store_dwordx4 v[{64+4*t}:{67+4*t}], v13, s[4:7], s74 offen offset:{64*t} sc1" for t in range(8)] + ["s_mov_b64 exec, -1", "s_branch L_fin"]
    g.slow += hp
    g("s_mov_b64 exec, 0xffff")
    g("ds_write2_b32 v120, v56, v60 offset0:3 offset1:7")
    for t in range(6):
        g(f"v_add_f32 v{192+4*t}, v{192+4*t}, v{193+4*t}")
        if t == 1: g("ds_write2_b32 v120, v192, v196 offset0:0 offset1:1")
        if t == 3: g("ds_write2_b32 v120, v200, v204 offset0:2 offset1:4")
    g("ds_write2_b32 v120, v208, v212 offset0:5 offset1:6")
    g("s_mov_b64 exec, -1")
    g("s_waitcnt lgkmcnt(0)")
    g("s_barrier")
    for w in range(4):
        g(f"ds_read_b128 v[{32+8*w}:{35+8*w}], v7 offset:{LDS_GX+512*w}"); g(f"ds_read_b128 v[{36+8*w}:{39+8*w}], v7 offset:{LDS_GX+512*w+16}")
    g("s_waitcnt lgkmcnt(4)")
    for k in (3, 7, 0, 1, 2, 4, 5, 6): g(f"v_add_f32 v{32+k}, v{32+k}, v{40+k}")
    g("s_waitcnt lgkmcnt(0)")
    for k in (3, 7): g(f"v_add_f32 v{48+k}, v{48+k}, v{56+k}")
    for k in (3, 7): g(f"v_add_f32 v{32+k}, v{32+k}, v{48+k}")
    rest = [f"v_add_f32 v{48+k}, v{48+k}, v{56+k}" for k in (0, 1, 2, 4, 5, 6)] + [f"v_add_f32 v{32+k}, v{32+k}, v{48+k}" for k in (0, 1, 2, 4, 5, 6)]
    chain = [f"v_mul_f32 v35, 0x{f2u(1/512):08x}, v35", f"v_mul_f32 v39, 0x{f2u(1/512):08x}, v39", "v_fma_f32 v39, -v35, v35, v39", "v_max_f32 v39, 0, v39",
             "v_cvt_pk_bf16_f32 v39, v35, v39", "v_lshlrev_b32 v35, 16, v39", "v_and_b32 v39, 0xffff0000, v39", f"v_add_f32 v39, 0x{f2u(1e-5):08x}, v39",
             "v_cvt_pk_bf16_f32 v39, v39, v39", "v_lshlrev_b32 v39, 16, v39", "v_sqrt_f32 v39, v39", None, "v_cvt_pk_bf16_f32 v39, v39, v39", "v_lshlrev_b32 v39, 16, v39", "v_rcp_f32 v39, v39"]
    for x in chain:
        if x: g(x)
        if rest: g(rest.pop(0))
    K6 = (0, 1, 2, 4, 5, 6)
    for k in K6: g(f"v_fma_f32 v{32+k}, -v35, v{224+k}, v{32+k}")
    for k in K6: g(f"v_mul_f32 v{32+k}, v39, v{32+k}")
    g("v_cvt_pk_bf16_f32 v40, v32, v33"); g("v_cvt_pk_bf16_f32 v41, v34, v38"); g("v_cvt_pk_bf16_f32 v42, v36, v37")
    g("v_lshlrev_b32 v32, 16, v40"); g("v_and_b32 v33, 0xffff0000, v40"); g("v_lshlrev_b32 v34, 16, v41")
    for k in range(3): g(f"v_mul_f32 v{44+k}, v{32+k}, v{32+k}")
    for k in range(3): g(f"v_fma_f32 v{44+k}, v{44+k}, s75, v124")
    for k in range(3): g(f"v_mul_f32 v{44+k}, v{44+k}, v{32+k}")
    for k in range(3): g(f"v_exp_f32 v{44+k}, v{44+k}")
    g("v_lshlrev_b32 v36, 16, v42")
    for k in range(3): g(f"v_add_f32 v{44+k}, 1.0, v{44+k}")
    for k in range(3): g(f"v_rcp_f32 v{44+k}, v{44+k}")
    g("v_and_b32 v37, 0xffff0000, v42"); g("v_and_b32 v38, 0xffff0000, v41")
    for k in range(3): g(f"v_mul_f32 v{44+k}, v{44+k}, v{32+k}")
    g("v_cvt_pk_bf16_f32 v40, v44, v45"); g("v_cvt_pk_bf16_f32 v41, v46, v46")
    g("v_lshlrev_b32 v44, 16, v40"); g("v_and_b32 v45, 0xffff0000, v40"); g("v_and_b32 v46, 0xffff0000, v41")
    for k in range(3): g(f"v_mul_f32 v{44+k}, v{44+k}, v{36+k}")
    g("v_cvt_pk_bf16_f32 v40, v44, v45"); g("v_cvt_pk_bf16_f32 v41, v46, v46")
    for p in range(4): g(f"v_and_b32 v{48+p}, v40, v{16+p}")
    for p in range(4): g(f"v_and_or_b32 v{48+p}, v41, v{20+p}, v{48+p}")
    g("v_cmp_ne_u32 vcc, 0, v3"); g("s_nop 0")
    for t in range(8):
        g(f"{SMF} v[{160+4*t}:{163+4*t}], v[48:51], a[{96+8*t}:{103+8*t}], v30")
    g.nop(1)
    for t in range(8):
        g(f"v_add_f32 v{160+4*t}, v{160+4*t}, v{161+4*t}"); g(f"v_add_f32 v{162+4*t}, v{162+4*t}, v{163+4*t}")
    for t in range(8):
        g(f"v_add_f32 v{160+4*t}, v{160+4*t}, v{162+4*t}")
    for q in range(4):
        g(f"v_cndmask_b32 v{32+q}, v{160+4*q}, v{176+4*q}, vcc")
    g("s_mov_b32 exec_hi, 0")
    g("buffer_store_dwordx4 v[32:35], v123, s[4:7], s74 offen sc1")
    g("s_mov_b64 exec, -1")
    g.stamp(8)

def tcu(g):
    opts = g.o; rep = opts["rep"]
    g("s_lshl_b32 s74, s72, 10"); g("s_lshl_b32 s62, s73, 8"); g("s_add_u32 s74, s74, s62"); g("s_lshl_b32 s62, s3, 6"); g("s_add_u32 s74, s74, s62")
    g("v_lshlrev_b32 v28, 15, v3"); g("v_lshl_add_u32 v28, v2, 2, v28")
    g("s_lshl_b32 s75, s73, 5"); g("s_add_u32 s75, s75, s72")
    g("v_lshlrev_b32 v29, 4, v0")
    g("s_lshl_b32 s76, s75, 12"); g(f"s_add_u32 s76, s76, {STAT}")
    g("v_lshlrev_b32 v4, 16, v3"); g("v_lshl_add_u32 v4, v2, 4, v4")
    g("s_lshl_b32 s66, s3, 20"); g("s_lshl_b32 s63, s72, 8"); g("s_add_u32 s66, s66, s63")
    for ks in range(4):
        g(f"s_xor_b32 s63, s73, {ks}"); g(f"s_lshl_b32 s63, s63, 18"); g(f"s_add_u32 s{52+ks}, s66, s63")
    g("v_lshlrev_b32 v5, 14, v2"); g("v_lshl_add_u32 v5, v3, 4, v5")
    g("s_lshl_b32 s78, s73, 20"); g("s_lshl_b32 s63, s3, 18"); g("s_add_u32 s78, s78, s63"); g("s_lshl_b32 s63, s72, 8"); g("s_add_u32 s78, s78, s63")
    g("s_add_u32 s79, s78, 8192")
    g("s_lshr_b32 s67, s42, 5" if opts["cu"] != 2 else "s_mov_b32 s67, 1")
    g("s_mov_b32 s14, 0x400000"); g("s_mov_b32 s15, 0x20000"); g("s_mov_b32 s58, 4096"); g("s_mov_b32 s59, 0x20000")
    g("s_mov_b32 s46, 0x400000"); g("s_mov_b32 s47, 0x20000")
    g("s_waitcnt lgkmcnt(0)")
    g("s_mov_b32 s56, s16"); g("s_and_b32 s57, s17, 0xffff"); g("s_mov_b32 s12, s20"); g("s_and_b32 s13, s21, 0xffff")
    def wq(ks):
        for e in range(8):
            g(f"s_add_u32 s63, s{52+ks}, {e*8192}")
            r = 32 + 32*ks + 4*e
            g(f"buffer_load_dwordx4 v[{r}:{r+3}], v4, s[12:15], s63 offen")
    g("buffer_load_dwordx4 v[8:11], v29, s[56:59], 0 offen")
    wq(0)
    g("s_mov_b32 s44, s22"); g("s_and_b32 s45, s23, 0xffff")
    cu = opts["cu"]
    def wuk():
        for tt in range(2):
            for ks in range(4):
                r = 160 + 16*tt + 4*ks
                g(f"buffer_load_dwordx4 v[{r}:{r+3}], v5, s[44:47], s{78+tt} offen offset:{64*ks}")
    def ifcls(cls, fn):
        if not cu:
            if not cls: fn()
            return
        l = g.lab("ic")
        g("s_cmp_eq_u32 s67, 1"); g(f"s_cbranch_scc{0 if cls else 1} {l}")
        fn()
        g(f"{l}:")
    def wait2(n_norm, n_cls, extra=""):
        lo, hi = min(n_norm, n_cls), max(n_norm, n_cls)
        if not cu: g(f"s_waitcnt vmcnt({n_norm}){extra}"); return
        g(f"s_waitcnt vmcnt({hi}){extra}")
        if lo != hi: ifcls(n_cls == lo, lambda: g(f"s_waitcnt vmcnt({lo})"))
    g("s_barrier")
    ifcls(False, wuk)
    g.srd(4, 40, WS); g.srd(8, 38, 256)
    for k in range(4): g(f"v_mov_b32 v{24+k}, -1")
    g("buffer_store_dwordx4 v[24:27], v29, s[4:7], s76 offen sc1")
    g("v_lshlrev_b32 v30, 3, v0"); g(f"s_lshl_b32 s62, s42, 11"); g(f"s_add_u32 s62, s62, {FPART}")
    g("buffer_store_dwordx2 v[24:25], v30, s[4:7], s62 offen sc1")
    if rep:
        g(f"s_lshl_b32 s62, s42, 13"); g(f"s_add_u32 s62, s62, {APART}"); g("s_add_u32 s63, s62, 4096")
        g("buffer_store_dwordx4 v[24:27], v29, s[4:7], s62 offen sc1"); g("buffer_store_dwordx4 v[24:27], v29, s[4:7], s63 offen sc1")
        nst = 4
    else:
        g("v_lshlrev_b32 v30, 2, v0"); g(f"s_lshl_b32 s62, s42, 10"); g(f"s_add_u32 s62, s62, {APART}")
        g("buffer_store_dword v24, v30, s[4:7], s62 offen sc1")
        nst = 3
    g("s_mul_i32 s62, s3, 1040"); g("v_lshlrev_b32 v6, 4, v1"); g("v_add_u32 v6, s62, v6")
    g("v_and_b32 v7, 3, v2"); g("v_mul_u32_u24 v7, 1040, v7"); g("v_lshl_add_u32 v7, v3, 4, v7")
    g("s_lshl_b32 s62, s3, 8"); g("v_add_u32 v7, s62, v7")
    wait2(16+nst, 8+nst)
    for q in range(4):
        g(f"v_lshlrev_b32 v{12+2*q}, 16, v{8+q}"); g(f"v_and_b32 v{13+2*q}, 0xffff0000, v{8+q}")
    g("v_add_f32 v20, v12, v13"); g("v_add_f32 v21, v14, v15"); g("v_add_f32 v22, v16, v17"); g("v_add_f32 v23, v18, v19")
    g("v_add_f32 v20, v20, v21"); g("v_add_f32 v22, v22, v23"); g("v_add_f32 v20, v20, v22")
    g.allred("v_add_f32", 20, 21)
    g(f"v_mul_f32 v20, 0x{f2u(1/512):08x}, v20")
    g("v_sub_f32 v22, v12, v20"); g("v_mul_f32 v21, v22, v22")
    for k in range(1, 8):
        g(f"v_sub_f32 v22, v{12+k}, v20"); g("v_fmac_f32 v21, v22, v22")
    g.allred("v_add_f32", 21, 22)
    g(f"v_mul_f32 v21, 0x{f2u(1/512):08x}, v21")
    g.bf16r(20, 20); g.bf16r(21, 21)
    g(f"v_add_f32 v21, 0x{f2u(1e-5):08x}, v21"); g.bf16r(21, 21)
    g("v_sqrt_f32 v21, v21"); g("s_nop 0"); g.bf16r(21, 21)
    g("v_rcp_f32 v21, v21")
    for k in range(8): g(f"v_sub_f32 v{12+k}, v{12+k}, v20")
    for q in range(4): g(f"v_cvt_pk_bf16_f32 v{8+q}, v{12+2*q}, v{13+2*q}")
    for q in range(4):
        g(f"v_lshlrev_b32 v{12+2*q}, 16, v{8+q}"); g(f"v_and_b32 v{13+2*q}, 0xffff0000, v{8+q}")
    for k in range(8): g(f"v_mul_f32 v{12+k}, v{12+k}, v21")
    for q in range(4): g(f"v_cvt_pk_bf16_f32 v{8+q}, v{12+2*q}, v{13+2*q}")
    g(f"ds_write_b128 v6, v[8:11] offset:{LDS_XN}")
    g("v_mov_b32 v30, 0")
    wait2(8+nst, nst, " lgkmcnt(0)")
    g.stamp(1)
    wq(1)
    g("s_barrier")
    for ks in range(4):
        g(f"s_xor_b32 s63, s73, {ks}"); g("s_lshl_b32 s63, s63, 6"); g("v_add_u32 v6, s63, v7")
        g(f"ds_read_b128 v[{8+4*ks}:{11+4*ks}], v6 offset:{LDS_XN}")
    wq(2)
    g("s_mul_i32 s62, s3, 272"); g("v_lshlrev_b32 v6, 4, v2"); g("v_add_u32 v6, s62, v6")
    g("v_mul_u32_u24 v7, 272, v2"); g("v_lshl_add_u32 v7, v3, 4, v7")
    for ks in range(4):
        if ks == 1: wq(3)
        if ks == 2: ifcls(True, wuk)
        if ks: wait2(8*(3-ks) + (1 if ks == 3 else 0), 8*(3-ks) + (1 if ks == 3 else 0) + (8 if ks >= 2 else 0))
        if ks == 2: g("buffer_load_dword v31, v30, s[8:11], 0 offen sc1")
        if ks == 3: g.stamp(7)
        R = 32+32*ks
        if ks == 0: g("s_waitcnt lgkmcnt(0)")
        def pm(t):
            for p in range(4):
                g(f"v_perm_b32 v{192+4*t+p}, v{R+4*(2*p+1)+(t>>1)}, v{R+4*(2*p)+(t>>1)}, s{60+(t&1)}")
        pm(0)
        for t in range(8):
            if t < 7: pm(t+1)
            else: g("s_nop 0")
            c = "0" if ks == 0 else f"v[{224+4*t}:{227+4*t}]"
            g(f"{M16} v[{224+4*t}:{227+4*t}], v[{8+4*ks}:{11+4*ks}], v[{192+4*t}:{195+4*t}], {c}")
    for p in range(4):
        for b in range(4):
            g(f"v_cvt_pk_bf16_f32 v{8+4*b+p}, v{224+8*p+b}, v{228+8*p+b}")
    g("s_mov_b64 exec, 0xffff")
    for b in range(4):
        g(f"ds_write_b128 v6, v[{8+4*b}:{11+4*b}] offset:{LDS_QX+4*272*b}")
    g("s_mov_b64 exec, -1")
    g("s_waitcnt lgkmcnt(0)")
    g("s_barrier")
    for ks in range(4):
        g(f"ds_read_b128 v[{8+4*ks}:{11+4*ks}], v7 offset:{LDS_QX+64*ks}")
    if cu: g("s_waitcnt vmcnt(1)")
    for ks in range(4):
        g(f"s_waitcnt lgkmcnt({3-ks})")
        for tt in range(2):
            c = "0" if ks == 0 else f"v[{224+4*tt}:{227+4*tt}]"
            g(f"{M16} v[{224+4*tt}:{227+4*tt}], v[{8+4*ks}:{11+4*ks}], v[{160+16*tt+4*ks}:{163+16*tt+4*ks}], {c}")
    g("s_waitcnt vmcnt(0)")
    g("v_cmp_ne_u32 vcc, 16, v31")
    g.srd(12, 18, 32 << 20)
    g("v_lshlrev_b32 v4, 7, v1"); g("s_lshr_b32 s62, s42, 5")
    for tt in range(2):
        r = 224 + 4*tt
        g(f"v_add_f32 v{r}, v{r}, v{r+1}"); g(f"v_add_f32 v{r+2}, v{r+2}, v{r+3}")
    for tt in range(2):
        r = 224 + 4*tt
        g(f"v_add_f32 v{r}, v{r}, v{r+2}")
    for tt in range(2):
        r = 224 + 4*tt
        g(f"v_mul_f32 v{r}, 0x{f2u(SCALE):08x}, v{r}")
    g("v_cvt_pk_bf16_f32 v8, v224, v228")
    g("s_cbranch_vccz L_T_c0ok")
    cnt_wait(g, 31, 30)
    g("L_T_c0ok:")
    g("buffer_store_dword v8, v28, s[4:7], s74 offen sc1")
    if opts["pb"] == 2: g("s_waitcnt vmcnt(0)")
    if opts["pb"]: g("s_barrier")
    g.stamp(2)
    g("s_lshl_b32 s62, s62, 23"); g("s_and_b32 s63, s42, 31"); g("s_lshl_b32 s63, s63, 15"); g("s_add_u32 s62, s62, s63")
    g("s_lshl_b32 s63, s3, 13"); g("s_add_u32 s62, s62, s63")
    nc = opts["cls"]
    if nc:
        g("s_lshr_b32 s64, s42, 5")
        g("s_cmp_eq_u32 s64, 1"); g("s_cbranch_scc1 L_T_pfc")
        g("s_and_b32 s65, s42, 31"); g("s_lshl_b32 s65, s65, 15"); g(f"s_add_u32 s65, s65, {0x800000 + 4*TS}")
        g("s_sub_u32 s67, s64, 1"); g("s_max_i32 s67, s67, 0"); g("s_lshl_b32 s67, s67, 2"); g("s_add_u32 s67, s67, s3")
        g(f"s_mul_i32 s67, s67, {22*128}"); g(f"s_min_u32 s67, s67, {(256-22)*128}"); g("s_add_u32 s65, s65, s67")
    for i in range(4, 8):
        if nc and i == 4 + nc: g("L_T_pfc:")
        g(f"s_add_u32 s63, s62, {i*TS}")
        g(f"buffer_load_dword v31, v4, s[12:15], s63 offen")
        if i - 4 < nc:
            g("s_mov_b64 exec, 0x3fffff")
            g(f"buffer_load_dword v31, v4, s[12:15], s65 offen")
            g("s_mov_b64 exec, -1")
            g(f"s_add_u32 s65, s65, {TS}")
    g.srd(12, 24, 4 << 20); g.srd(44, 26, 4 << 20)
    for ks in range(4):
        g(f"s_xor_b32 s63, s73, {ks}"); g("s_lshr_b32 s62, s63, 1"); g("s_lshl_b32 s62, s62, 19"); g("s_and_b32 s63, s63, 1"); g("s_lshl_b32 s63, s63, 16")
        g(f"s_add_u32 s{52+ks}, s66, s62"); g(f"s_add_u32 s{52+ks}, s{52+ks}, s63")
    g("v_and_b32 v6, 1, v3"); g("v_lshrrev_b32 v7, 1, v3")
    g("v_lshlrev_b32 v4, 18, v6"); g("v_lshl_add_u32 v4, v7, 15, v4"); g("v_lshl_add_u32 v4, v2, 4, v4")
    g("v_lshlrev_b32 v5, 14, v7"); g("v_lshl_add_u32 v5, v6, 12, v5"); g("v_lshl_add_u32 v5, v2, 4, v5")
    g("s_lshl_b32 s79, s72, 17"); g("s_lshl_b32 s63, s3, 8"); g("s_add_u32 s79, s79, s63")
    order = [[0, 4, 5, 6, 7, 1, 2, 3], [0, 4, 1, 5, 2, 6, 3, 7], [0, 4, 1, 2, 3, 5, 6, 7]][opts["tord"]]
    bufs = [128, 160, 192, 224, 32, 64][:opts["nb"]]
    NB = len(bufs)
    def tw_issue(i):
        n = order[i]; ks = n & 3
        if n >= 4:
            g(f"s_xor_b32 s62, s73, {ks}"); g("s_lshl_b32 s62, s62, 15"); g("s_add_u32 s62, s62, s79"); g("s_add_u32 s63, s62, 0x2000")
        for e in range(8):
            r = bufs[i % NB] + 4*e
            if n < 4:
                g(f"s_add_u32 s63, s{52+ks}, {(16*(e>>2)+(e&3))*8192}")
                g(f"buffer_load_dwordx4 v[{r}:{r+3}], v4, s[12:15], s63 offen")
            else:
                g(f"buffer_load_dwordx4 v[{r}:{r+3}], v5, s[44:47], s{62+((e>>1)&1)} offen offset:{(2*(e>>2)+(e&1))*1024}")
    issued = 2
    tw_issue(0); tw_issue(1)
    g.stamp(1)
    tile_setup(g, True)
    g("s_lshl_b32 s69, s75, 15"); g("s_lshl_b32 s63, s3, 8"); g("s_add_u32 s69, s69, s63"); g(f"s_add_u32 s69, s69, {OPART}")
    g("v_and_b32 v13, 31, v1"); g("v_lshlrev_b32 v14, 7, v13")
    g("s_lshl_b32 s62, s3, 6"); g("v_lshlrev_b32 v13, 1, v13"); g("v_add_u32 v13, s62, v13")
    g("v_lshlrev_b32 v15, 4, v3"); g("v_add_u32 v15, s62, v15")
    g("s_mul_i32 s62, s3, 272"); g("v_lshlrev_b32 v120, 4, v2"); g("v_add_u32 v121, s62, v120")
    g("v_bfe_u32 v10, v2, 2, 1"); g("v_lshlrev_b32 v11, 5, v3"); g("v_lshl_add_u32 v11, v10, 4, v11")
    g("s_lshl_b32 s62, s73, 6"); g("v_xor_b32 v11, s62, v11"); g("v_xor_b32 v12, 0x80, v11")
    g("v_and_b32 v122, 3, v2"); g("v_mul_u32_u24 v122, 272, v122"); g("v_add_u32 v123, v122, v12"); g("v_add_u32 v122, v122, v11")
    g("v_mul_u32_u24 v30, 0xaaaa, v10"); g("v_or_b32 v30, 0x4444, v30")
    g("v_lshl_add_u32 v120, v6, 3, v120")
    if rep: g("v_lshl_add_u32 v120, v7, 17, v120")
    g("s_lshl_b32 s78, s75, 10"); g("s_lshl_b32 s63, s3, 8"); g("s_add_u32 s78, s78, s63"); g(f"s_add_u32 s78, s78, {APART}")
    for i in range(8):
        g(f"s_waitcnt vmcnt({8*(issued-1-i)})")
        if i == 0: g.stamp(7)
        if i == 1: g.stamp(9)
        lim = min(8, i + NB) if i >= 1 else issued
        while issued < lim:
            tw_issue(issued); issued += 1
        R = bufs[i % NB]; n = order[i]; ks = n & 3
        acc = 128*(n>>2) + 64*(ks>>1) + 4*(ks&1)
        for t in range(8 if not opts["xnp"] else 1):
            for p in range(4):
                g(f"v_perm_b32 v{16+p+4*(t&1)}, v{R+4*(2*p+1)+(t>>1)}, v{R+4*(2*p)+(t>>1)}, s{60+(t&1)}")
            for p in range(4):
                g(f"v_accvgpr_write_b32 a{acc+8*t+p}, v{16+p+4*(t&1)}")
    g.stamp(3)
    first = [True]
    def pbody():
        g("buffer_load_dwordx2 v[32:33], v14, s[4:7], s76 offen sc1")
    def cond():
        g("v_max_u32 v34, v32, v33"); g("v_cmp_eq_u32 vcc, -1, v34")
    pbody()
    for k in range(64): g(f"v_mov_b32 v{128+k}, 0")
    g("s_waitcnt vmcnt(0)")
    cond()
    g("s_cbranch_vccz L_T_go")
    poll_loop(g, pbody, cond, spin=4*SPIN, sleep=opts["tsleep"])
    g("L_T_go:")
    tile_dma(g, 69)
    g.stamp(4)
    g("v_mov_b32 v34, v32")
    g.allred("v_max_f32", 34, 35, 32)
    g("v_sub_f32 v34, v32, v34"); g("v_cvt_i32_f32 v34, v34"); g("v_ldexp_f32 v34, 1.0, v34")
    g(f"ds_write_b16_d16_hi v13, v34 offset:{LDS_FX}")
    g("v_mul_f32 v31, v34, v33")
    g(f"ds_read_b128 v[24:27], v15 offset:{LDS_FX}")
    g.allred("v_add_f32", 31, 35, 32)
    g("v_rcp_f32 v31, v31")
    g(f"s_mov_b32 s64, {SPIN}")
    g("L_T_pay:")
    g("s_waitcnt vmcnt(0) lgkmcnt(0)")
    g.stamp(5)
    tile_read(g, 32)
    for t in range(8):
        g(f"s_waitcnt lgkmcnt({14-2*t})" if not opts.get("stamps") else "s_waitcnt lgkmcnt(0)")
        g(f"{M16} v[{64+4*t}:{67+4*t}], v[{32+4*t}:{35+4*t}], v[24:27], 0")
    def cv(t):
        g(f"v_cvt_pk_bf16_f32 v{96+t}, v{64+4*t}, v{65+4*t}")
        g(f"v_cvt_pk_bf16_f32 v{104+(t&1)}, v{66+4*t}, v{67+4*t}")
        g(f"v_cndmask_b32 v{96+t}, v{96+t}, v{104+(t&1)}, s[70:71]")
    for t in range(5): cv(t)
    for t in range(8):
        g(f"{SMF} v[{128+4*t}:{131+4*t}], v[96:99], a[{8*t}:{8*t+7}], v29")
        if t in (0, 2, 4): cv(5 + t//2)
    for t in range(8):
        g(f"{SMF} v[{128+4*t}:{131+4*t}], v[100:103], a[{64+8*t}:{64+8*t+7}], v29")
    g.nop(1)
    for t in range(8):
        g(f"v_add_f32 v{128+4*t}, v{128+4*t}, v{129+4*t}")
        if t == 1 and opts["oi"]: g("v_cmp_u_f32 vcc, v128, v128")
    if opts["oi"]:
        g("s_cbranch_vccnz L_T_retry")
        g("L_T_ok:")
        gl = g.L; g.L = []
        g("L_T_retry:")
        g("s_sub_u32 s64, s64, 1"); g("s_cmp_eq_u32 s64, 0"); g("s_cbranch_scc1 L_T_ok")
        tile_dma(g, 69)
        for k in range(32): g(f"v_mov_b32 v{128+k}, 0")
        g("s_branch L_T_pay")
        g.slow0 = g.L; g.L = gl
    for t in range(8):
        g(f"v_mul_f32 v{128+4*t}, v31, v{128+4*t}")
    for p in range(4):
        g(f"v_cvt_pk_bf16_f32 v{64+p}, v{128+8*p}, v{132+8*p}")
    g("s_mov_b64 exec, 0xffff")
    g(f"ds_write_b128 v121, v[64:67] offset:{LDS_CX}")
    g("s_mov_b64 exec, -1")
    g("s_waitcnt lgkmcnt(0)")
    g("s_barrier")
    for s2 in range(2):
        g(f"ds_read_b128 v[{96+4*s2}:{99+4*s2}], v{122+s2} offset:{LDS_CX}")
    for s2 in range(2):
        g(f"s_waitcnt lgkmcnt({1-s2})")
        for t in (0, 4, 1, 5, 2, 6, 3, 7):
            g(f"{SMF} v[{160+4*t}:{163+4*t}], v[{96+4*s2}:{99+4*s2}], a[{128+64*s2+8*t}:{128+64*s2+8*t+7}], v30")
    g.nop(1)
    for t in (0, 4, 1, 5, 2, 6, 3, 7):
        g(f"v_add_f32 v{160+4*t}, v{160+4*t}, v{161+4*t}"); g(f"v_add_f32 v{162+4*t}, v{162+4*t}, v{163+4*t}")
    for t in (0, 4, 1, 5, 2, 6, 3, 7):
        g(f"v_add_f32 v{160+4*t}, v{160+4*t}, v{162+4*t}")
    for t in range(4): g(f"v_permlane16_swap_b32 v{160+4*t}, v{176+4*t}")
    for t in range(4): g(f"v_add_f32 v{160+4*t}, v{160+4*t}, v{176+4*t}")
    g("v_cvt_pk_bf16_f32 v64, v160, v164"); g("v_cvt_pk_bf16_f32 v65, v168, v172")
    if rep:
        for c in range(4):
            g("buffer_store_dwordx2 v[64:65], v120, s[4:7], s78 offen sc1")
            if c < 3: g("s_add_u32 s78, s78, 0x40000")
    else:
        g("s_mov_b32 exec_hi, 0")
        g("buffer_store_dwordx2 v[64:65], v120, s[4:7], s78 offen sc1")
        g("s_mov_b64 exec, -1")
    g.stamp(6)
    g("s_cmp_lt_u32 s43, 16"); g("s_cbranch_scc1 L_fin")
    g("s_cmp_lg_u32 s3, 0"); g("s_cbranch_scc1 L_fin")
    g.srd(12, 36, 4096)
    g("v_lshrrev_b32 v4, 3, v1"); g("v_and_b32 v5, 7, v1")
    g("v_lshlrev_b32 v6, 11, v4"); g("v_lshl_add_u32 v6, v5, 4, v6")
    g(f"v_mov_b32 v7, {OOB}")
    g("v_cmp_gt_u32 vcc, 5, v4"); g("s_nop 1"); g("v_cndmask_b32 v7, v7, v6, vcc")
    g("v_lshlrev_b32 v8, 4, v5"); g("v_lshlrev_b32 v10, 3, v5")
    g(f"s_lshl_b32 s62, s73, 16"); g("s_sub_u32 s65, s43, 16"); g("s_lshl_b32 s63, s65, 7"); g("s_add_u32 s62, s62, s63"); g(f"s_add_u32 s62, s62, {FPART}")
    g("s_lshl_b32 s74, s73, 10"); g("s_lshl_b32 s63, s65, 6"); g("s_add_u32 s74, s74, s63")
    for n in range(1, 4): g(f"s_add_u32 s{75+n}, s62, {n*16384}")
    g(f"s_add_u32 s79, s62, {31*2048}")
    def body():
        for n in range(4):
            g(f"buffer_load_dwordx4 v[{32+4*n}:{35+4*n}], v{6 if n < 3 else 7}, s[4:7], s{62 if n == 0 else 75+n} offen sc1")
        g("buffer_load_dwordx4 v[56:59], v8, s[4:7], s79 offen sc1")
    def cond2():
        for k in range(4):
            g(f"v_add_f32 v{32+k}, v{32+k}, v{36+k}"); g(f"v_add_f32 v{40+k}, v{40+k}, v{44+k}")
        for k in range(4): g(f"v_add_f32 v{32+k}, v{32+k}, v{40+k}")
        g("v_add_f32 v40, v56, v57"); g("v_add_f32 v41, v58, v59"); g("v_add_f32 v42, v32, v33"); g("v_add_f32 v43, v34, v35")
        g("v_add_f32 v40, v40, v41"); g("v_add_f32 v42, v42, v43")
        g("v_cmp_u_f32 vcc, v40, v42")
    poll_loop(g, body, cond2, spin=4*SPIN, sleep=0)
    g.stamp(8)
    for k in range(4):
        g(f"v_add_f32_dpp v{32+k}, v{32+k}, v{32+k} row_ror:8 row_mask:0xf bank_mask:0xf")
    g("v_cvt_pk_bf16_f32 v44, v56, v57"); g("v_cvt_pk_bf16_f32 v45, v58, v59")
    for sw in ("v_permlane16_swap_b32", "v_permlane32_swap_b32"):
        for k in range(4): g(f"v_mov_b32 v{36+k}, v{32+k}")
        g("s_nop 0")
        for k in range(4): g(f"{sw} v{32+k}, v{36+k}")
        for k in range(4): g(f"v_add_f32 v{32+k}, v{32+k}, v{36+k}")
    g("v_cvt_pk_bf16_f32 v36, v32, v33"); g("v_cvt_pk_bf16_f32 v37, v34, v35")
    for q in range(2):
        g(f"v_lshlrev_b32 v{32+2*q}, 16, v{36+q}"); g(f"v_and_b32 v{33+2*q}, 0xffff0000, v{36+q}")
        g(f"v_lshlrev_b32 v{40+2*q}, 16, v{44+q}"); g(f"v_and_b32 v{41+2*q}, 0xffff0000, v{44+q}")
    for k in range(4): g(f"v_add_f32 v{32+k}, v{32+k}, v{40+k}")
    g("v_cvt_pk_bf16_f32 v36, v32, v33"); g("v_cvt_pk_bf16_f32 v37, v34, v35")
    g("s_mov_b64 exec, 0xff")
    g("buffer_store_dwordx2 v[36:37], v10, s[12:15], s74 offen" + (" sc0 sc1" if opts["osc"] else ""))
    g("s_mov_b64 exec, -1")
    g.stamp(10)
    g("s_branch L_fin")

QD = 8
def qreg(s):
    return f"v[{224+4*s}:{227+4*s}]" if s < QD else f"a[{128+4*(s-QD)}:{131+4*(s-QD)}]"

class Lds:
    def __init__(s, g): s.g = g; s.n = 0; s.done = 0
    def op(s, txt): s.g(txt); s.n += 1; return s.n
    def wait(s, i):
        if i <= s.done: return
        k = min(14, s.n - i); s.g(f"s_waitcnt lgkmcnt({k})"); s.done = s.n - k
    def all(s): s.wait(s.n)

def acu(g):
    fine = g.o["fine"]
    ea = ["v_and_b32 v8, 7, v5", "v_lshlrev_b32 v9, 1, v6", "v_xor_b32 v8, v8, v9", "v_lshlrev_b32 v208, 10, v5", "v_lshl_add_u32 v208, v8, 4, v208",
          "s_lshl_b32 s62, s3, 8", "v_add_u32 v208, s62, v208"] + [f"v_xor_b32 v{208+k}, {((4*(k>>1))|(k&1))<<4}, v208" for k in range(1, 4)] + \
         ["v_lshrrev_b32 v8, 3, v1", "v_and_b32 v9, 7, v1", "v_lshlrev_b32 v212, 10, v8", "v_lshl_add_u32 v212, v9, 4, v212", "v_add_u32 v212, s62, v212",
          "v_lshlrev_b32 v214, 12, v8", "v_lshl_add_u32 v214, v9, 4, v214", "v_xor_b32 v9, v9, v8", "v_lshlrev_b32 v213, 15, v8", "v_lshl_add_u32 v213, v9, 4, v213",
          "s_lshl_b32 s63, s3, 5", "v_lshl_add_u32 v215, v8, 2, s63",
          "s_lshl_b32 s65, s74, 20", "s_lshl_b32 s63, s75, 10", "s_add_u32 s65, s65, s63", "s_add_u32 s65, s65, s62", f"s_add_u32 s65, s65, {OPART}",
          "s_lshl_b32 s79, s74, 17", "s_lshl_b32 s63, s75, 7", "s_add_u32 s79, s79, s63", f"s_add_u32 s79, s79, {STAT}", "s_lshl_b32 s63, s3, 15", "s_add_u32 s79, s79, s63"]
    g("v_lshlrev_b32 v4, 4, v1")
    g("s_lshr_b32 s74, s42, 5"); g("s_and_b32 s75, s42, 31")
    g("s_lshl_b32 s76, s74, 23"); g("s_lshl_b32 s77, s75, 15"); g("s_add_u32 s76, s76, s77")
    g("s_lshl_b32 s77, s3, 13"); g("s_add_u32 s76, s76, s77")
    g("s_and_b32 s62, s3, 1"); g("s_lshl_b32 s62, s62, 5"); g("v_xor_b32 v7, s62, v4")
    for r in range(8):
        g(f"v_xor_b32 v{160+r}, {(fswz(r)<<4) | ((r>>2)<<12)}, v7")
    g(f"s_add_u32 s62, s77, {LQ}"); g("v_add_u32 v15, s62, v7")
    def dma_ops(slot, cf="nt"):
        ops = []
        for r in range(8):
            pre = []
            if r == 0: pre = [f"s_add_u32 m0, s77, {slot*32768}", "s_nop 0"]
            if r == 4: pre = ["s_addk_i32 m0, 0x1000", "s_nop 0"]
            post = [f"s_add_u32 s76, s76, {TS}"] if r == 7 else []
            ops.append(pre + [f"buffer_load_dwordx4 v{160+r}, s[12:15], s76 offen offset:{(r&3)*1024} {cf} lds"] + post)
        return ops
    def dma_tile(slot):
        for o in dma_ops(slot):
            for x in o: g(x)
    def setup():
        g("v_and_b32 v5, 31, v1"); g("v_lshrrev_b32 v6, 5, v1")
        g("v_and_b32 v8, 3, v5"); g("v_lshlrev_b32 v8, 2, v8"); g("v_bfe_u32 v9, v5, 2, 2"); g("v_or_b32 v8, v8, v9"); g("v_xor_b32 v8, v8, v6")
        g("v_lshlrev_b32 v10, 10, v5"); g("v_lshl_add_u32 v10, v8, 4, v10")
        g(f"v_add_u32 v11, {LQ}, v10")
        g("s_lshl_b32 s62, s3, 15"); g("v_add_u32 v10, s62, v10")
        for k in range(8): g(f"v_xor_b32 v{16+k}, {k<<5}, v10")
        for k in range(8): g(f"v_xor_b32 v{128+k}, {k<<5}, v11")
        g("v_bfe_u32 v8, v1, 2, 2")
        g("v_lshl_add_u32 v9, v6, 2, v8"); g("v_lshlrev_b32 v12, 10, v9")
        g("v_and_b32 v9, 1, v1"); g("v_lshlrev_b32 v9, 1, v9"); g("v_bfe_u32 v13, v1, 4, 1"); g("v_or_b32 v9, v9, v13")
        g("v_lshl_add_u32 v13, v8, 2, v6"); g("v_xor_b32 v9, v9, v13")
        g("v_lshl_add_u32 v12, v9, 4, v12")
        g("v_bfe_u32 v9, v1, 1, 1"); g("v_lshl_add_u32 v12, v9, 3, v12")
        g("s_lshl_b32 s62, s3, 8"); g("v_add_u32 v12, s62, v12")
        for ct in range(4):
            for hv in range(2):
                g(f"v_xor_b32 v{24+2*ct+hv}, {(ct<<6)|(hv<<5)}, v12")
                g(f"v_add_u32 v{32+2*ct+hv}, 0x10000, v{24+2*ct+hv}")
        g("v_lshlrev_b32 v40, 5, v5"); g("v_lshl_add_u32 v40, v6, 4, v40"); g(f"v_add_u32 v40, {LRF}, v40")
        g("v_xor_b32 v46, 16, v40")
        g("s_lshl_b32 s62, s3, 2"); g("v_add_u32 v41, s62, v40")
        g(f"v_add_u32 v42, {LP}, v4")
        g("s_lshl_b32 s62, s3, 11"); g("v_add_u32 v43, s62, v42")
        g("s_lshl_b32 s78, s74, 15"); g("s_add_u32 s78, s78, s77"); g("s_add_u32 s67, s78, 0x1000")
        g("v_mov_b32 v12, 0"); g("v_mov_b32 v13, 1")
        for r in range(8): g(f"v_xor_b32 v{168+r}, {fswz(r)<<4}, v15")
    for k in range(4): g(f"v_mov_b32 v{48+k}, -1")
    g("s_waitcnt lgkmcnt(0)")
    g.srd(4, 40, WS)
    g("s_cmp_ge_u32 s42, 16"); g("s_cbranch_scc1 L_A_ni")
    g("s_lshl_b32 s62, s42, 13"); g("s_lshl_b32 s63, s3, 11"); g("s_add_u32 s62, s62, s63")
    for k in range(2):
        g(f"buffer_store_dwordx4 v[48:51], v4, s[4:7], s62 offen offset:{k*1024} sc1")
    g("L_A_ni:")
    if g.o["cu"]:
        if g.o["cu"] != 2: g("s_cmp_lg_u32 s74, 1"); g("s_cbranch_scc1 L_A_nu")
        g.srd(44, 22, 4 << 20)
        g("v_lshrrev_b32 v8, 1, v1"); g("v_lshlrev_b32 v8, 13, v8"); g("v_and_b32 v9, 1, v1"); g("v_lshl_add_u32 v8, v9, 7, v8")
        g("s_lshl_b32 s62, s73, 20"); g("s_lshl_b32 s63, s3, 18"); g("s_add_u32 s62, s62, s63"); g("s_lshl_b32 s63, s72, 8"); g("s_add_u32 s62, s62, s63")
        g("buffer_load_dword v47, v8, s[44:47], s62 offen")
        g("L_A_nu:")
    g.srd(12, 18, 32 << 20); g.srd(8, 38, 256)
    setup()
    o0 = dma_ops(0)
    for x in o0[0]: g(x)
    for x in ea: g(x)
    g.srd(44, 30, 512*2752); g.srd(48, 32, 512*2752); g.srd(52, 34, 1376*1024)
    g("v_mul_u32_u24 v218, 2752, v5"); g("v_mul_u32_u24 v9, 92, v6"); g("v_add_u32 v218, v218, v9")
    g("s_lshl_b32 s62, s73, 2"); g("s_add_u32 s62, s62, s3"); g(f"s_mul_i32 s70, s62, {32*2752}"); g("s_mul_i32 s64, s72, 96"); g("s_add_u32 s70, s70, s64")
    g("v_lshlrev_b32 v219, 6, v1"); g("s_mul_i32 s71, s62, 3072"); g("s_mul_i32 s64, s72, 49152"); g("s_add_u32 s71, s71, s64")
    g("s_cmp_ge_u32 s42, 16"); g("s_cbranch_scc1 L_A_ni2")
    g(f"s_waitcnt vmcnt({2 if g.o['cu'] == 2 else 1})")
    g("s_barrier")
    g("s_cmp_lg_u32 s3, 0"); g("s_cbranch_scc1 L_A_ni2")
    g("s_mov_b64 exec, 1")
    g("buffer_atomic_add v13, v12, s[8:11], 0 offen sc1")
    g("s_mov_b64 exec, -1")
    g("s_branch L_A_ni3")
    g("L_A_ni2:")
    if g.o["sw"] == 1:
        g("s_cmp_eq_u32 s74, 1"); g("s_cbranch_scc1 L_A_ni3")
    if g.o["sw"] != 2: g("s_waitcnt vmcnt(0)")
    g("L_A_ni3:")
    for o in o0[1:]:
        for x in o: g(x)
    dma_tile(1)
    def pvreg(kk, ct): return 16*kk + 4*ct
    def rdp_txt(kk, ct):
        r = pvreg(kk, ct); row = 16*kk; ab = 24 if row < 64 else 32
        return [f"ds_read_b64_tr_b16 a[{r+2*hv}:{r+2*hv+1}], v{ab+2*ct+hv} offset:{((row % 64) + 8*hv)*1024}" for hv in range(2)]
    def gather():
        for r in range(8):
            g(f"buffer_load_dwordx4 v[{176+4*r}:{179+4*r}], v4, s[4:7], s{78 if r < 4 else 67} offen offset:{(r&3)*1024} sc1")
    for tl in range(4):
        g(f"s_waitcnt vmcnt({8 if tl < 3 else 0})")
        if tl == 1: g("buffer_load_dword v47, v12, s[8:11], 0 offen sc1")
        if tl < 2: dma_tile(tl+2)
        if tl == 3:
            g("v_cmp_ne_u32 vcc, 16, v47")
            g("s_cbranch_vccz L_A_c0")
            cnt_wait(g, 47, 12)
            g("L_A_c0:")
            if g.o["eg"]: gather()
        g("s_barrier")
        if tl == 0 and not fine: g.stamp(1)
        if tl == 3 and not fine: g.stamp(2)
        for ks in range(2):
            for ct in range(4):
                for x in rdp_txt(2*tl+ks, ct): g(x)
        sk = g.lab("p1c")
        g(f"s_cmp_lg_u32 s3, {tl}"); g(f"s_cbranch_scc1 {sk}")
        for s in range(32):
            g(f"ds_read_b128 a[{128+4*s}:{131+4*s}], v{16+(s&7)} offset:{(s>>3)*256}")
        g(f"{sk}:")
    g(f"s_mov_b32 s64, {SPIN}")
    if g.o["eg"]: g("s_branch L_A_g1")
    g("L_A_g0:")
    gather()
    g("L_A_g1:")
    for r in range(8):
        g(f"s_waitcnt vmcnt({7-r})")
        g(f"ds_write_b128 v{168+r}, v[{176+4*r}:{179+4*r}] offset:{r*1024}")
        if r == 0: g("v_max3_u32 v9, v176, v177, v178"); g("v_max_u32 v9, v9, v179")
        else: g(f"v_max3_u32 v9, v9, v{176+4*r}, v{177+4*r}"); g(f"v_max3_u32 v9, v9, v{178+4*r}, v{179+4*r}")
    g("s_sub_u32 s64, s64, 1"); g("s_cmp_eq_u32 s64, 0"); g("s_cbranch_scc1 L_A_gok")
    g("v_cmp_eq_u32 vcc, -1, v9")
    g("s_waitcnt lgkmcnt(0)")
    g("s_cbranch_vccnz L_A_g0")
    g("L_A_gok:")
    g("s_waitcnt lgkmcnt(0)")
    g("s_barrier")
    g.stamp(3)
    L = Lds(g)
    dq = []
    for t in range(4, 8): dq += dma_ops(t & 3, "")
    if g.o["atq"]:
        dq += [["buffer_load_dword v223, v218, s[44:47], s70 offen"], ["buffer_load_dword v223, v218, s[48:51], s70 offen"], ["buffer_load_dword v223, v219, s[52:55], s71 offen"]]
        g.o["ats"] = 100
    ids = {}
    def rdq(s): ids[s] = L.op(f"ds_read_b128 {qreg(s)}, v{128+(s&7)} offset:{(s>>3)*256}")
    for s in range(QD-1): rdq(s)
    def dpop(n=1):
        for _ in range(n):
            if dq:
                for y in dq.pop(0): g(y)
    dpop(g.o["d0"])
    dn = g.o["dn"]
    for s in range(32):
        L.wait(ids[s])
        c = "0" if s == 0 else "v[48:63]"
        g(f"v_mfma_f32_32x32x16_bf16 v[48:63], a[{128+4*s}:{131+4*s}], {qreg(s)}, {c}")
        if s + QD - 1 < 32: rdq(s + QD - 1)
        if (s + 1) * dn // 32 > s * dn // 32: dpop()
    cpre = g.o["cpre"]; fb = g.o["fb"]
    def sma_ops(ch):
        o = ch*10240
        R = 216 if ch == 0 else 222
        T = []
        T += ["v_max3_f32 v8, v48, v49, v50", "v_max3_f32 v9, v51, v52, v53", "v_max3_f32 v10, v54, v55, v56", "v_max3_f32 v11, v57, v58, v59",
              "v_max3_f32 v8, v8, v60, v61", "v_max3_f32 v9, v9, v62, v63", "v_max_f32 v10, v10, v11", "v_max3_f32 v8, v8, v9, v10"]
        if ch == 0: T += ["v_ceil_f32 v216, v8"]
        else: T += ["v_cmp_gt_f32 vcc, v8, v47", "v_ceil_f32 v8, v8", "s_nop 0", "v_cndmask_b32 v222, v44, v8, vcc"]
        for h in range(2):
            T += [f"v_sub_f32 v{48+8*h+k}, v{48+8*h+k}, v{R}" for k in range(8)]
            T += [f"v_exp_f32 v{48+8*h+k}, v{48+8*h+k}" for k in range(8)]
            if h == 0 and ch == 0: T += ["s_barrier"]
            if h == 0: T += [f"@ds_write_b32 v41, v{R} offset:{o}"]
            T += [f"v_cvt_pk_bf16_f32 v{168+4*h+k}, v{48+8*h+2*k}, v{49+8*h+2*k}" for k in range(4)]
            T += [f"@ds_write_b128 v43, v[{168+4*h}:{171+4*h}] offset:{o+1024*h}"]
        return T
    def lsum_ops(ch):
        T = [f"v_add_f32 v{48+k}, v{48+k}, v{56+k}" for k in range(8)]
        T += [f"v_add_f32 v{48+k}, v{48+k}, v{52+k}" for k in range(4)]
        T += ["v_add_f32 v48, v48, v50", "v_add_f32 v49, v49, v51"]
        if ch == 0: T += ["v_add_f32 v217, v48, v49"]
        else: T += ["v_add_f32 v48, v48, v49", "v_add_f32 v217, v217, v48", "@ds_write_b32 v41, v217 offset:1024"]
        return T
    def emit(x):
        if callable(x): return x()
        if x.startswith("@"): return L.op(x[1:])
        g(x)
    def kfix(P, waits=None):
        T = []
        for w in range(4):
            T += [f"v_sub_f32 v{12+w}, v44, v{12+w}", f"v_cvt_u32_f32 v{8+w}, v{12+w}", f"v_min_u32 v{8+w}, 0xff, v{8+w}", f"v_mul_u32_u24 v{8+w}, 0x800080, v{8+w}"]
            for kk in (2*w, 2*w+1):
                if waits is not None: T += [lambda kk=kk: L.wait(waits[kk])]
                T += [f"v_pk_sub_u16 v{P+4*kk+i}, v{P+4*kk+i}, v{8+w} clamp" for i in range(4)]
        return T
    def cost(x):
        if callable(x): return getattr(x, "c", 0)
        if x.startswith("v_exp"): return 2
        return 1
    def fill(q, budget):
        while q and budget > 0:
            x = q.pop(0); budget -= cost(x); emit(x)
        return budget
    def rdop(d, key, txt):
        def f(): d[key] = L.op(txt)
        f.c = 1
        return f
    order = [(kk, ct) for ct in range(4) for kk in range(8)]
    pvid = {}; rq = []
    def refill(cnt):
        n_ = 0
        while rq and n_ < cnt:
            key, x = rq.pop(0); pvid[key] = L.op(x); n_ += 1
        return n_
    def pv0(kk, ct):
        r = pvreg(kk, ct)
        c = "0" if kk == 0 else f"v[{64+16*ct}:{79+16*ct}]"
        g(f"v_mfma_f32_32x32x16_bf16 v[{64+16*ct}:{79+16*ct}], a[{r}:{r+3}], v[{128+4*kk}:{131+4*kk}], {c}")
    def flush_until(q, prefix):
        if any((not callable(x)) and x.startswith(prefix) for x in q):
            while True:
                x = q.pop(0); emit(x)
                if (not callable(x)) and x.startswith(prefix): break
            g("s_nop 1")
    if fine: g.stamp(1)
    n0_ = len(g.L); dpop(g.o["d1"]); g.nop(max(0, 12 - (len(g.L) - n0_)))
    for x in sma_ops(0): emit(x)
    dpop(g.o["d2"] if cpre else 100)
    if cpre == 0:
        for x in lsum_ops(0): emit(x)
    L.all()
    if cpre == 0: g("s_waitcnt vmcnt(0)")
    g("s_barrier")
    if fine: g.stamp(2)
    r0 = {}
    qr = [rdop(r0, "x", "ds_read_b128 v[12:15], v40"), rdop(r0, "ref", "ds_read_b128 v[168:171], v46")]
    qr += [rdop(r0, k, f"ds_read_b128 v[{128+4*k}:{131+4*k}], v42 offset:{1024*k}") for k in range(8)]
    q2 = [lambda: L.wait(r0["ref"]), "v_max3_f32 v9, v12, v13, v14", "v_max3_f32 v10, v169, v170, v171", "v_max3_f32 v9, v9, v15, v168", "v_max_f32 v44, v9, v10"]
    q2 += kfix(128, r0)
    q2 += ["v_sub_f32 v216, v216, v44", "v_exp_f32 v216, v216", f"v_add_f32 v47, 0x{f2u(float(g.o['thr'])):08x}, v44", "v_mul_f32 v217, v217, v216"]
    if cpre:
        for x in qr: emit(x)
        qr = []
        for x in lsum_ops(0): emit(x)
        flush_until(q2, "v_pk_sub_u16 v135,")
        for n, (kk, ct) in enumerate(order[:8*cpre]):
            if ct == 0: flush_until(q2, f"v_pk_sub_u16 v{128+4*kk+3},")
            pv0(kk, ct)
            fill(q2, 6 if ct == 0 else 4)
            if n % g.o["d3"] == 0: dpop()
            rq += [((kk, ct), x) for x in rdp_txt(kk, ct)]
        dpop(100)
        g(f"s_waitcnt vmcnt({3 if g.o['atq'] else 0})")
        g("s_barrier")
    g.stamp(4)
    D = 6
    ids = {}
    def rdc(s):
        r = 176 + 4*(s % 8)
        ids[s] = L.op(f"ds_read_b128 v[{r}:{r+3}], v{16+(s&7)} offset:{(s>>3)*256}")
    for s in range(D): rdc(s)
    oi = g.o["oi"]
    if oi:
        for k in range(4): g(f"v_mov_b32 v{172+k}, -1")
    for s in range(32):
        L.wait(ids[s])
        r = 176 + 4*(s % 8)
        c = "0" if s == 0 else "v[48:63]"
        g(f"v_mfma_f32_32x32x16_bf16 v[48:63], v[{r}:{r+3}], {qreg(s)}, {c}")
        if s + D < 32: rdc(s + D)
        at = g.o["ats"]
        if oi and s % 3 == 0 and s < 24:
            n_ = s // 3
            g(f"s_add_u32 s63, s65, {(n_&3)*8*32768}")
            g(f"buffer_store_dwordx4 v[172:175], v213, s[4:7], s63 offen offset:{(n_>>2)*128} sc1")
        elif s == at: g("buffer_load_dword v223, v218, s[44:47], s70 offen")
        elif s == at + 3: g("buffer_load_dword v223, v218, s[48:51], s70 offen")
        elif s == at + 6: g("buffer_load_dword v223, v219, s[52:55], s71 offen")
        elif qr: fill(qr, 2)
        elif q2 and (s >= 7 or cpre): fill(q2, 3)
        else: refill(2)
    fill(q2, 1000)
    g.stamp(5)
    q = sma_ops(1)
    r1 = {}
    qr = [rdop(r1, "x", "ds_read_b128 v[12:15], v40 offset:10240"), rdop(r1, "ref", "ds_read_b128 v[218:221], v46 offset:10240")]
    qr += [rdop(r1, k, f"ds_read_b128 v[{176+4*k}:{179+4*k}], v42 offset:{10240+1024*k}") for k in range(8)]
    state = 0; dist = 0
    for n, (kk, ct) in enumerate(order[8*cpre:]):
        pv0(kk, ct); dist += 1
        if state == 0:
            if dist < 12:
                k_ = refill(3); dist += k_
                if k_ < 3: g.nop(3 - k_); dist += 3 - k_
            else:
                fill(q, fb)
                if not q:
                    last_w = L.n; state = 1
        elif state == 1:
            L.wait(last_w); g("s_barrier"); state = 2
            fill(qr, 3)
        elif state == 2:
            if qr: fill(qr, 3)
            else: refill(3)
        rq += [((kk, ct), x) for x in rdp_txt(kk, ct)]
    if state == 0:
        if dist < 12: g.nop(12 - dist)
        fill(q, 1000); last_w = L.n; state = 1
    if state == 1:
        L.wait(last_w); g("s_barrier")
    fill(qr, 1000)
    L.wait(r1["ref"])
    g("v_max3_f32 v9, v12, v13, v14"); g("v_max3_f32 v10, v219, v220, v221"); g("v_max3_f32 v9, v9, v15, v218"); g("v_max_f32 v9, v9, v10")
    g("v_cmp_neq_f32 vcc, v9, v44")
    g("s_cbranch_vccnz L_A_slow")
    g("L_A_back:")
    slow = ["L_A_slow:", "s_waitcnt lgkmcnt(0)", "v_sub_f32 v47, v44, v9", "v_sub_f32 v222, v222, v9", "v_mov_b32 v44, v9", "v_exp_f32 v47, v47", "v_exp_f32 v222, v222"] + kfix(176) + \
           [f"v_mul_f32 v{64+k}, v47, v{64+k}" for k in range(64)] + ["v_mul_f32 v217, v47, v217"] + \
           [f"v_mul_f32 v{48+k}, v222, v{48+k}" for k in range(16)] + ["s_branch L_A_back"]
    g.slow = slow
    if fine: g.stamp(10)
    def epi_w(ct, qq):
        b = 128+8*(ct&1)+4*qq
        return [f"v_cvt_pk_bf16_f32 v{b+k}, v{64+16*ct+8*qq+2*k}, v{65+16*ct+8*qq+2*k}" for k in range(4)] + \
               [f"@ds_write_b128 v{208+2*(ct&1)+qq}, v[{b}:{b+3}] offset:{(ct>>1)*128}"]
    er = {}
    def epi_r(half):
        return [rdop(er, (half, n_), f"ds_read_b128 v[{224+16*half+4*n_}:{227+16*half+4*n_}], v212 offset:{n_*8192+half*128}") for n_ in range(4)]
    def epi_s(half, n_):
        def f():
            L.wait(er[(half, n_)])
            if g.o["oi"] and half == 0 and n_ == 0: g("s_waitcnt vmcnt(0)")
            g(f"s_add_u32 s63, s65, {n_*8*32768}")
            g(f"buffer_store_dwordx4 v[{224+16*half+4*n_}:{227+16*half+4*n_}], v213, s[4:7], s63 offen offset:{half*128} sc1")
        f.c = g.o['sc']
        return f
    lw = {}
    def mark(): lw["w"] = L.n
    def lbar(): L.wait(lw["w"]); g("s_barrier")
    lbar.c = 2
    q = lsum_ops(1) + [mark]
    ql = [lbar, rdop(lw, "a", "ds_read_b128 v[52:55], v40 offset:1024"), rdop(lw, "b", "ds_read_b128 v[56:59], v46 offset:1024")]
    ql2 = [lambda: L.wait(lw["b"])] + [f"v_add_f32 v{52+w}, v{52+w}, v{56+w}" for w in range(4)] + \
        ["v_add_f32 v52, v52, v53", "v_add_f32 v54, v54, v55", "v_add_f32 v45, v52, v54"] + \
        [f"@ds_bpermute_b32 v{60+i}, v215, v{44+(i&1)}" for i in range(4)]
    wdone = 0
    for n, (kk, ct) in enumerate(order):
        r = pvreg(kk, ct)
        while (kk, ct) not in pvid or any(k == (kk, ct) for k, _ in rq): refill(1)
        if ct == 0: L.wait(r1[kk])
        L.wait(pvid[(kk, ct)])
        g(f"v_mfma_f32_32x32x16_bf16 v[{64+16*ct}:{79+16*ct}], a[{r}:{r+3}], v[{176+4*kk}:{179+4*kk}], v[{64+16*ct}:{79+16*ct}]")
        b = 4 - refill(3)
        if kk == 0: since = 0
        if not rq and wdone < ct and since >= 11:
            q += epi_w(wdone, 0) + epi_w(wdone, 1)
            if wdone == 0: q += ql
            if wdone == 1: q += epi_r(0) + ql2 + [epi_s(0, n_) for n_ in range(4)]
            wdone += 1
        n0_ = len(g.L)
        b = fill(q, b)
        if b > 0 and wdone < ct and since < 11:
            g.nop(b); since += b
        since += 1 + (4 - max(b, 0))
    while wdone < 3:
        q += epi_w(wdone, 0) + epi_w(wdone, 1)
        if wdone == 0: q += ql
        if wdone == 1: q += epi_r(0) + ql2 + [epi_s(0, n_) for n_ in range(4)]
        wdone += 1
    n0_ = len(g.L)
    fill(q, 1000)
    if g.o["fine2"]: g.stamp(1)
    g.nop(max(0, 12 - (len(g.L) - n0_)))
    for x in epi_w(3, 0) + epi_w(3, 1) + epi_r(1) + [epi_s(1, n_) for n_ in range(4)]: emit(x)
    g.stamp(9)
    if g.o["fsb"]: ffn_setup(g)
    if not g.o["oi"]: g("s_waitcnt vmcnt(0)")
    g("s_barrier")
    g("buffer_store_dwordx4 v[60:63], v214, s[4:7], s79 offen sc1")
    if not fine: g.stamp(10)

def gen(opts):
    g = G(opts)
    g("s_load_dwordx16 s[16:31], s[0:1], 0")
    g("s_load_dwordx8 s[32:39], s[0:1], 64")
    g("s_load_dwordx2 s[40:41], s[0:1], 96")
    g("s_cmp_ge_u32 s2, 256"); g("s_cbranch_scc1 L_end")
    g.stamp(0)
    g("s_getpc_b64 s[4:5]")
    g("s_and_b32 s5, s5, 0xffff"); g("s_mov_b32 s6, L_end - L_pcv"); g("s_mov_b32 s7, 0x20000")
    g("L_pcv:")
    g("s_bfe_u32 s62, s2, 0x40003"); g("s_lshl_b32 s62, s62, 12")
    g("v_lshlrev_b32 v1, 4, v0")
    g("buffer_load_dwordx4 v[252:255], v1, s[4:7], s62 offen")
    g("v_lshrrev_b32 v2, 6, v0"); g("v_and_b32 v1, 63, v0")
    g("v_readfirstlane_b32 s3, v2")
    g("v_and_b32 v2, 15, v0"); g("v_lshrrev_b32 v3, 4, v1")
    g("s_and_b32 s62, s2, 7"); g("s_lshr_b32 s43, s2, 4"); g("s_lshl_b32 s42, s43, 3"); g("s_or_b32 s42, s42, s62")
    g("s_and_b32 s73, s43, 3")
    g("s_lshr_b32 s43, s43, 2")
    g("s_lshl_b32 s72, s62, 2"); g("s_or_b32 s72, s72, s43")
    g("s_lshl_b32 s43, s43, 3"); g("s_or_b32 s43, s43, s62")
    g("s_mov_b32 s60, 0x05040100"); g("s_mov_b32 s61, 0x07060302")
    if opts.get("stamps"):
        for k in range(82, 102): g(f"s_mov_b32 s{k}, 0")
    g("s_bitcmp1_b32 s2, 3")
    g("s_cbranch_scc1 L_A")
    tcu(g)
    g("L_A:")
    acu(g)
    if not g.o["fsb"]: ffn_setup(g)
    g(f"s_cmp_lt_u32 s66, {NSL}"); g("s_cbranch_scc1 L_FW")
    g("s_cmp_lg_u32 s66, 31"); g("s_cbranch_scc1 L_fin")
    x_issue(g); g("s_waitcnt vmcnt(0)"); x_finish(g)
    g("s_branch L_FFN")
    g("L_FW:")
    if g.o["fine2"]: g.stamp(1)
    x_issue(g); ffn_issue(g)
    if g.o["fine2"]: g.stamp(2)
    ffn_finish(g)
    if not g.o["fine"]: g.stamp(6)
    g("L_FFN:")
    ffn_stage(g)
    g("L_fin:")
    if opts["probe"]:
        wg, k = [int(x) for x in opts["probe"].split(",")]
        g("s_waitcnt lgkmcnt(0)")
        g(f"s_cmp_lg_u32 s2, {wg}"); g("s_cbranch_scc1 L_end")
        g("s_cmp_lg_u32 s3, 0"); g("s_cbranch_scc1 L_end")
        g(f"s_sub_u32 s64, s{80+2*k}, s80"); g("s_mul_i32 s64, s64, 20"); g("s_min_u32 s64, s64, 100000")
        g("s_memrealtime s[62:63]"); g("s_waitcnt lgkmcnt(0)"); g("s_add_u32 s64, s64, s62")
        g("L_pr:")
        g("s_sleep 2")
        g("s_memrealtime s[62:63]"); g("s_waitcnt lgkmcnt(0)")
        g("s_sub_u32 s62, s62, s64"); g("s_cmp_lt_i32 s62, 0"); g("s_cbranch_scc1 L_pr")
    elif opts.get("stamps"):
        nst = 11
        g("s_waitcnt lgkmcnt(0)")
        g("s_cmp_lg_u32 s3, 0"); g("s_cbranch_scc1 L_end")
        g("s_mov_b64 exec, 1")
        g(f"s_mul_i32 s62, s2, {nst*8}"); g(f"s_add_u32 s62, s62, {WS - 256*nst*8}")
        g("v_mov_b32 v3, 0")
        for k in range(nst):
            g(f"v_mov_b32 v4, s{80+2*k}"); g(f"v_mov_b32 v5, s{81+2*k}")
            g(f"buffer_store_dwordx2 v[4:5], v3, s[4:7], s62 offen offset:{8*k}")
            g("s_nop 1")
    g("L_end:")
    g("s_endpgm")
    for x in g.slow + getattr(g, "slow0", []): g(x)
    hdr = open("hdr.txt").read()
    return hdr + "; @launch grid=(256,1,1) block=(256,1,1) lds=163840\n" + '.amdgcn_target "amdgcn-amd-amdhsa--gfx950"\n.text\n' + kstart(KN) + "\n".join(g.L) + "\n" + kdesc(KN, vgpr=512, accum=256).replace(".text\n", "")

if __name__ == "__main__":
    import argparse
    ap = argparse.ArgumentParser()
    ap.add_argument("out"); ap.add_argument("--stamps", action="store_true")
    ap.add_argument("--thr", type=float, default=30); ap.add_argument("--probe", default="")
    for k, v in (("fine", 0), ("fine2", 0), ("tsleep", 1), ("fsleep", 1), ("fb", 4), ("cpre", 2), ("d0", 8), ("dn", 12), ("d1", 4), ("d2", 4), ("d3", 1), ("sc", 4),
                 ("ats", 1), ("nb", 3), ("rep", 0), ("eg", 1), ("fsb", 0), ("xnp", 0), ("osc", 0), ("tord", 0), ("oi", 0), ("cls", 1), ("cu", 1), ("pb", 1), ("sw", 1), ("atq", 0)): ap.add_argument("--" + k, type=int, default=v)
    a = ap.parse_args()
    open(a.out, "w").write(gen(vars(a)))
```

```python
import sys, math, struct
from gen_common import *
def f2u(x): return struct.unpack("<I", struct.pack("<f", x))[0]
QABS = 0x000000
STAT = 0x040000
OPART = 0x100000
APART = 0x500000
FPART = 0x600000
OOB = 0x40000000
SCALE = (128 ** -0.5) * math.log2(math.e)
class G:
    def __init__(s, opts):
        s.L = []; s.o = opts; s.uid = 0
    def a(s, x): s.L.append(x)
    def __call__(s, x): s.L.append(x)
    def lab(s, p="L"):
        s.uid += 1; return f"{p}_{s.uid}"
    def nop(s, n):
        while n > 0:
            k = min(n, 16); s.a(f"s_nop {k-1}"); n -= k
    def stamp(s, k):
        if s.o.get("stamps"):
            s.a(f"s_memrealtime s[{80+2*k}:{81+2*k}]")
    def srd(s, d, p, size):
        s.a(f"s_mov_b32 s{d}, s{p}"); s.a(f"s_and_b32 s{d+1}, s{p+1}, 0xffff")
        s.a(f"s_mov_b32 s{d+2}, {size}"); s.a(f"s_mov_b32 s{d+3}, 0x20000")
    def dpp(s, op, v, ctrl):
        s.a("s_nop 1"); s.a(f"{op}_dpp v{v}, v{v}, v{v} {ctrl} row_mask:0xf bank_mask:0xf")
    def allred(s, op, v, t, width=64):
        for c in ("quad_perm:[1,0,3,2]", "quad_perm:[2,3,0,1]", "row_half_mirror", "row_mirror"):
            s.dpp(op, v, c)
        if width >= 32:
            s.a(f"v_mov_b32 v{t}, v{v}"); s.a("s_nop 1"); s.a(f"v_permlane16_swap_b32 v{v}, v{t}"); s.a(f"{op} v{v}, v{v}, v{t}")
        if width >= 64:
            s.a(f"v_mov_b32 v{t}, v{v}"); s.a("s_nop 1"); s.a(f"v_permlane32_swap_b32 v{v}, v{t}"); s.a(f"{op} v{v}, v{v}, v{t}")
    def bf16r(s, d, v):
        s.a(f"v_cvt_pk_bf16_f32 v{d}, v{v}, v{v}"); s.a(f"v_lshlrev_b32 v{d}, 16, v{d}")
    def maxtree(s, d, regs):
        regs = list(regs)
        s.a(f"v_max3_u32 v{d}, v{regs[0]}, v{regs[1]}, v{regs[2]}")
        i = 3
        while i + 1 < len(regs):
            s.a(f"v_max3_u32 v{d}, v{d}, v{regs[i]}, v{regs[i+1]}"); i += 2
        if i < len(regs):
            s.a(f"v_max_u32 v{d}, v{d}, v{regs[i]}")
    def perm8x8(s, R, T, acc=None):
        for t in range(8):
            for p in range(4):
                s.a(f"v_perm_b32 v{T+4*t+p}, v{R+4*(2*p+1)+(t>>1)}, v{R+4*(2*p)+(t>>1)}, s{60+(t&1)}")
        if acc is not None:
            for k in range(32):
                s.a(f"v_accvgpr_write_b32 a{acc+k}, v{T+k}")

def fswz(k):
    return ((k & 3) << 2) | ((k >> 2) & 3)

SPIN = 20000
LDS_XN = 0
LDS_QX = 8192
LDS_OT = 16384
LDS_FX = 49152
LDS_CX = 49664
LDS_CS = 51200
LDS_GX = 53248
LDS_FW = 57344
NSL = 29
LQ = 131072
LRF = LQ
LP = LQ + 2048
TS = 0x100000
SMF = "v_smfmac_f32_16x16x64_bf16"
M16 = "v_mfma_f32_16x16x32_bf16"

def poll_loop(g, body, cond, spin=SPIN, sleep=1):
    l = g.lab("pl"); e = g.lab("ple"); f = g.lab("plf")
    g(f"s_mov_b32 s64, {spin}")
    if sleep: g(f"s_branch {f}")
    g(f"{l}:")
    if sleep:
        g(f"s_sleep {sleep}")
        g(f"{f}:")
    body()
    g("s_sub_u32 s64, s64, 1"); g("s_cmp_eq_u32 s64, 0")
    g("s_waitcnt vmcnt(0)")
    g(f"s_cbranch_scc1 {e}")
    cond()
    g(f"s_cbranch_vccnz {l}")
    g(f"{e}:")

def cnt_wait(g, vt, vo, sleep=4):
    poll_loop(g, lambda: g(f"buffer_load_dword v{vt}, v{vo}, s[8:11], 0 offen sc1"),
              lambda: g(f"v_cmp_ne_u32 vcc, 16, v{vt}"), sleep=sleep)

def tile_setup(g, rot):
    g("v_lshlrev_b32 v8, 1, v3"); g("v_xor_b32 v8, v8, v2"); g("v_lshlrev_b32 v8, 4, v8"); g("v_lshl_add_u32 v8, v3, 10, v8")
    g("v_xor_b32 v9, 0x80, v8")
    g("s_lshl_b32 s68, s3, 13"); g(f"s_add_u32 s68, s68, {LDS_OT}")
    g("v_bfe_u32 v11, v1, 2, 2")
    g("v_lshl_add_u32 v10, v3, 3, v11"); g("v_lshlrev_b32 v10, 8, v10")
    g("v_and_b32 v12, 1, v3"); g("v_lshl_add_u32 v12, v12, 2, v11"); g("v_lshlrev_b32 v12, 1, v12")
    g("v_bfe_u32 v13, v1, 1, 1"); g("v_xor_b32 v12, v12, v13")
    g("v_lshl_add_u32 v10, v12, 4, v10")
    g("v_and_b32 v13, 1, v1"); g("v_lshl_add_u32 v10, v13, 3, v10")
    g("v_add_u32 v10, s68, v10")
    if rot:
        g("s_lshr_b32 s63, s73, 1"); g("s_lshl_b32 s63, s63, 7"); g("s_and_b32 s62, s73, 1"); g("s_lshl_b32 s62, s62, 4"); g("s_or_b32 s63, s63, s62")
        g("v_xor_b32 v10, s63, v10")
    for t in range(8): g(f"v_xor_b32 v{112+t}, {t<<5}, v10")
    g("s_mov_b32 s70, 0xaaaaaaaa"); g("s_mov_b32 s71, 0xaaaaaaaa")
    g("v_mov_b32 v29, 0x4444"); g("v_mov_b32 v28, 0xeeee"); g("v_cndmask_b32 v29, v29, v28, s[70:71]")

def tile_dma(g, sbase):
    g("s_mov_b32 m0, s68"); g(f"s_mov_b32 s63, s{sbase}")
    for n in range(8):
        g(f"buffer_load_dwordx4 v{8+((n>>1)&1)}, s[4:7], s63 offen sc1 lds")
        if n < 7:
            g("s_addk_i32 m0, 0x400"); g("s_addk_i32 s63, 0x1000")

def tile_read(g, A):
    for t in range(8):
        if t == 6: g("s_waitcnt lgkmcnt(8)")
        g(f"ds_read_b64_tr_b16 v[{A+4*t}:{A+4*t+1}], v{112+t}")
        g(f"ds_read_b64_tr_b16 v[{A+4*t+2}:{A+4*t+3}], v{112+t} offset:1024")

def ffn_setup(g):
    g("s_mov_b32 s66, s72"); g("s_mov_b32 s67, s73")
    g.srd(56, 16, 4096)
    for m in range(3):
        g(f"v_add_u32 v7, {64*m}, v1"); g("v_mul_u32_u24 v8, 43691, v7"); g("v_lshrrev_b32 v8, 18, v8")
        g(f"v_mul_u32_u24 v{4+m}, {2752-96}, v8"); g(f"v_lshl_add_u32 v{4+m}, v7, 4, v{4+m}")
    g("v_lshlrev_b32 v121, 11, v3"); g("v_lshl_add_u32 v121, v2, 4, v121")
    g("v_lshlrev_b32 v122, 3, v3")
    for k in range(4): g(f"v_mov_b32 v{24+k}, 0x3f803f80")
    tile_setup(g, False)
    g("v_and_b32 v10, 1, v3"); g("v_lshlrev_b32 v10, 5, v10"); g("v_lshrrev_b32 v12, 1, v3"); g("v_lshl_add_u32 v10, v12, 2, v10"); g("v_add_u32 v10, v10, v11")
    g("v_mul_u32_u24 v125, 96, v10"); g("v_and_b32 v28, 3, v1"); g("v_lshl_add_u32 v125, v28, 3, v125")
    g("s_mul_i32 s76, s3, 24576"); g(f"s_add_u32 s76, s76, {LDS_FW}"); g("v_add_u32 v125, s76, v125")
    for p in range(4):
        g(f"v_cmp_eq_u32 vcc, {p}, v28"); g("s_nop 1"); g(f"v_cndmask_b32 v{16+p}, 0, -1, vcc")
    for p in range(4): g(f"v_and_b32 v{20+p}, 0xffff, v{16+(p^1)}")
    g("v_xor_b32 v10, 1, v28"); g("v_lshlrev_b32 v10, 2, v10"); g("v_lshlrev_b32 v30, v10, 10"); g("v_or_b32 v30, 0x4444, v30")
    g("v_lshlrev_b32 v120, 5, v2"); g("s_lshl_b32 s62, s3, 9"); g(f"s_add_u32 s62, s62, {LDS_CS}"); g("v_add_u32 v120, s62, v120")
    g("v_lshl_add_u32 v7, v3, 2, v28"); g("v_lshlrev_b32 v7, 5, v7")
    rep = g.o["rep"]
    g("s_lshl_b32 s69, s67, 15"); g("s_lshl_b32 s63, s3, 8"); g("s_add_u32 s69, s69, s63"); g(f"s_add_u32 s69, s69, {APART}")
    if rep:
        g("s_and_b32 s63, s42, 7"); g("s_lshl_b32 s63, s63, 17"); g("s_add_u32 s69, s69, s63")
    g("v_lshrrev_b32 v13, 1, v1"); g("v_lshlrev_b32 v13, 10, v13"); g("v_and_b32 v14, 1, v1"); g("v_lshl_add_u32 v13, v14, 7, v13")
    g("v_lshlrev_b32 v123, 5, v2"); g("v_lshl_add_u32 v123, v3, 4, v123")
    g("s_lshl_b32 s74, s67, 5"); g("s_add_u32 s74, s74, s66"); g("s_lshl_b32 s74, s74, 11")
    g("s_lshl_b32 s63, s3, 9"); g("s_add_u32 s74, s74, s63"); g(f"s_add_u32 s74, s74, {FPART}")
    c1 = -2 * math.sqrt(2 / math.pi) * math.log2(math.e)
    g(f"s_mov_b32 s75, 0x{f2u(c1*0.044715):08x}"); g(f"v_mov_b32 v124, 0x{f2u(c1):08x}")
    for k in range(32): g(f"v_mov_b32 v{160+k}, 0")

def x_issue(g):
    g("s_lshl_b32 s62, s67, 10"); g("s_lshl_b32 s63, s3, 8"); g("s_add_u32 s62, s62, s63")
    for t in range(8):
        g(f"buffer_load_dwordx2 v[{96+2*t}:{97+2*t}], v122, s[56:59], s62 offen offset:{32*t}")

def x_finish(g):
    for t in range(8):
        for q in range(2):
            g(f"v_lshlrev_b32 v{128+4*t+2*q}, 16, v{96+2*t+q}")
            g(f"v_and_b32 v{128+4*t+2*q+1}, 0xffff0000, v{96+2*t+q}")

def ffn_issue(g):
    g(f"s_mul_i32 s62, s3, {128*2752}"); g("s_mul_i32 s63, s66, 96"); g("s_mov_b32 m0, s76"); g("s_add_u32 s62, s62, s63")
    for n in range(12):
        g(f"buffer_load_dwordx4 v{4+n%3}, s[44:47], s62 offen lds")
        g("s_addk_i32 m0, 0x3000"); g("s_nop 0")
        g(f"buffer_load_dwordx4 v{4+n%3}, s[48:51], s62 offen lds")
        if n < 11:
            g("s_addk_i32 m0, 0xd400")
            g(f"s_add_u32 s62, s62, {32*2752}" if n % 3 == 2 else "s_nop 0")
    g("s_mul_i32 s62, s66, 49152"); g("s_lshl_b32 s63, s3, 8"); g("s_add_u32 s62, s62, s63")
    for hb in range(2):
        for pos in range(3):
            g(f"s_add_u32 s63, s62, {(16*pos + 8*hb)*1024}")
            for q in range(2):
                r = 192 + 24*hb + 8*pos + 4*q
                g(f"buffer_load_dwordx4 v[{r}:{r+3}], v121, s[52:55], s63 offen offset:{(q if pos < 2 else q ^ 1)*1024}")

def ffn_finish(g):
    g("s_waitcnt vmcnt(36)")
    if g.o["fine2"]: g.stamp(3)
    x_finish(g)
    for s2 in range(2):
        g(f"s_waitcnt vmcnt({12 + 12*(1-s2)})")
        for t in range(6):
            for hb in range(2):
                for hv in range(2):
                    r = 48*s2+8*t+4*hb+2*hv
                    g(f"ds_read_b64_tr_b16 a[{r}:{r+1}], v125 offset:{(64*s2+8*hb+16*hv)*96+(t%3)*32+(t//3)*12288}")
    g("s_waitcnt lgkmcnt(0)")
    if g.o["fine2"]: g.stamp(4)
    for ks in range(4):
        for t in range(6):
            c = "0" if ks == 0 else f"v[{32+4*t}:{35+4*t}]"
            r = 48*(ks>>1)+8*t+4*(ks&1)
            g(f"{M16} v[{32+4*t}:{35+4*t}], v[24:27], a[{r}:{r+3}], {c}")
    g("s_waitcnt vmcnt(0)")
    if g.o["ec"]: g("buffer_load_dword v14, v13, s[4:7], s69 offen sc1")
    for hb in range(2):
        for t in range(8):
            R = lambda pos, q: 192 + 24*hb + 8*pos + 4*q + (t>>1)
            for q in range(2):
                g(f"v_perm_b32 v{64+2*q}, v{R(1,q)}, v{R(0,q)}, s{60+(t&1)}")
                g(f"v_perm_b32 v{65+2*q}, v{R(2,q)}, v{R(2,q)}, s{60+(t&1)}")
            for p in range(4): g(f"v_accvgpr_write_b32 a{96+8*t+4*hb+p}, v{64+p}")
        if hb == 0:
            g("ds_write2_b32 v120, v32, v36 offset0:0 offset1:1"); g("ds_write2_b32 v120, v40, v44 offset0:2 offset1:4"); g("ds_write2_b32 v120, v48, v52 offset0:5 offset1:6")
    if g.o["fine2"]: g.stamp(5)
    g("s_waitcnt lgkmcnt(0)")
    g("s_barrier")
    for w in range(4):
        g(f"ds_read_b128 v[{32+8*w}:{35+8*w}], v7 offset:{LDS_CS+512*w}"); g(f"ds_read_b128 v[{36+8*w}:{39+8*w}], v7 offset:{LDS_CS+512*w+16}")
    g(f"v_add_u32 v120, {LDS_GX-LDS_CS}, v120")
    g("s_waitcnt lgkmcnt(0)")
    for k in (0, 1, 2, 4, 5, 6):
        g(f"v_add_f32 v{32+k}, v{32+k}, v{40+k}"); g(f"v_add_f32 v{48+k}, v{48+k}, v{56+k}")
        g(f"v_add_f32 v{224+k}, v{32+k}, v{48+k}")

def ffn_issue2(g):
    g("s_mul_i32 s62, s66, 49152"); g("s_lshl_b32 s63, s3, 8"); g("s_add_u32 s62, s62, s63")
    for hb in range(2):
        for pos in range(3):
            g(f"s_add_u32 s63, s62, {(16*pos + 8*hb)*1024}")
            for q in range(2):
                r = 192 + 24*hb + 8*pos + 4*q
                g(f"buffer_load_dwordx4 v[{r}:{r+3}], v121, s[52:55], s63 offen offset:{(q if pos < 2 else q ^ 1)*1024}")
    g(f"s_mul_i32 s62, s3, {128*2752}"); g("s_mul_i32 s63, s66, 96"); g("s_mov_b32 m0, s76"); g("s_add_u32 s62, s62, s63")
    def dperm(hb, ts):
        for t in ts:
            R = lambda pos, q: 192 + 24*hb + 8*pos + 4*q + (t>>1)
            for q in range(2):
                g(f"v_perm_b32 v{64+2*q}, v{R(1,q)}, v{R(0,q)}, s{60+(t&1)}")
                g(f"v_perm_b32 v{65+2*q}, v{R(2,q)}, v{R(2,q)}, s{60+(t&1)}")
            for p in range(4): g(f"v_accvgpr_write_b32 a{96+8*t+4*hb+p}, v{64+p}")
    def trs(s2):
        for t in range(6):
            for hb in range(2):
                for hv in range(2):
                    r = 48*s2+8*t+4*hb+2*hv
                    g(f"ds_read_b64_tr_b16 a[{r}:{r+1}], v125 offset:{(64*s2+8*hb+16*hv)*96+(t%3)*32+(t//3)*12288}")
    def cs(s2):
        for hb in range(2):
            for t in range(6):
                c = "0" if s2 + hb == 0 else f"v[{32+4*t}:{35+4*t}]"
                r = 48*s2+8*t+4*hb
                g(f"{M16} v[{32+4*t}:{35+4*t}], v[24:27], a[{r}:{r+3}], {c}")
    for n in range(12):
        g(f"buffer_load_dwordx4 v{4+n%3}, s[44:47], s62 offen lds")
        g("s_addk_i32 m0, 0x3000"); g("s_nop 0")
        g(f"buffer_load_dwordx4 v{4+n%3}, s[48:51], s62 offen lds")
        if n < 11:
            g("s_addk_i32 m0, 0xd400")
            g(f"s_add_u32 s62, s62, {32*2752}" if n % 3 == 2 else "s_nop 0")
        k = 2*(n+1)
        if n == 2: g(f"s_waitcnt vmcnt({12+k})"); x_finish(g)
        if n == 4: g(f"s_waitcnt vmcnt({6+k})"); dperm(0, range(4))
        if n == 5: dperm(0, range(4, 8))
        if n == 6: g(f"s_waitcnt vmcnt({k})"); dperm(1, range(4))
        if n == 7: dperm(1, range(4, 8))
        if n == 10:
            g(f"s_waitcnt vmcnt({k-12})"); trs(0)
    g("s_waitcnt lgkmcnt(0)")
    cs(0)
    g("s_waitcnt vmcnt(0)")
    if g.o["ec"]: g("buffer_load_dword v14, v13, s[4:7], s69 offen sc1")
    trs(1)
    g("s_waitcnt lgkmcnt(0)")
    cs(1)
    g.nop(4)
    g("ds_write2_b32 v120, v32, v36 offset0:0 offset1:1"); g("s_nop 0"); g("ds_write2_b32 v120, v40, v44 offset0:2 offset1:4"); g("s_nop 0"); g("ds_write2_b32 v120, v48, v52 offset0:5 offset1:6")
    g("s_waitcnt lgkmcnt(0)")
    g("s_barrier")
    for w in range(4):
        g(f"ds_read_b128 v[{32+8*w}:{35+8*w}], v7 offset:{LDS_CS+512*w}"); g(f"ds_read_b128 v[{36+8*w}:{39+8*w}], v7 offset:{LDS_CS+512*w+16}")
    g(f"v_add_u32 v120, {LDS_GX-LDS_CS}, v120")
    g("s_waitcnt lgkmcnt(0)")
    for k in (0, 1, 2, 4, 5, 6):
        g(f"v_add_f32 v{32+k}, v{32+k}, v{40+k}"); g(f"v_add_f32 v{48+k}, v{48+k}, v{56+k}")
        g(f"v_add_f32 v{224+k}, v{32+k}, v{48+k}")

def ffn_stage(g):
    g(f"s_mov_b32 s65, {SPIN}")
    l = g.lab("fp"); e = g.lab("fpe")
    g(f"{l}:")
    for k in range(24): g(f"v_mov_b32 v{192+k}, 0")
    poll_loop(g, lambda: g("buffer_load_dword v14, v13, s[4:7], s69 offen sc1"), lambda: g("v_cmp_eq_u32 vcc, -1, v14"), spin=4*SPIN, sleep=g.o["fsleep"])
    g("L_FGO:")
    tile_dma(g, 69)
    g.stamp(7)
    g("s_waitcnt vmcnt(0)")
    tile_read(g, 32)
    for t in range(8):
        g(f"s_waitcnt lgkmcnt({14-2*t})")
        g(f"{M16} v[{64+4*t}:{67+4*t}], v[{32+4*t}:{35+4*t}], v[24:27], v[{128+4*t}:{131+4*t}]")
    def cv(t):
        g(f"v_cvt_pk_bf16_f32 v{96+2*t}, v{64+4*t}, v{65+4*t}")
        g(f"v_cvt_pk_bf16_f32 v{97+2*t}, v{66+4*t}, v{67+4*t}")
        g(f"v_cndmask_b32 v{216+t}, v{96+2*t}, v{97+2*t}, s[70:71]")
    def st(ks, which):
        A = f"v[{96+4*ks}:{99+4*ks}]"; d = 56 + 4*which
        c = "0" if ks == 0 else f"v[{d}:{d+3}]"
        g(f"{M16} v[{d}:{d+3}], {A}, {'v[24:27]' if which == 0 else A}, {c}")
    def sm(s2, t):
        g(f"{SMF} v[{192+4*t}:{195+4*t}], v[{216+4*s2}:{219+4*s2}], a[{48*s2+8*t}:{48*s2+8*t+7}], v29")
    for t in range(4): cv(t)
    st(0, 0); st(0, 1)
    cv(4); sm(0, 0); sm(0, 1); cv(5); sm(0, 2); sm(0, 3); cv(6); sm(0, 4); sm(0, 5); cv(7)
    st(1, 0); st(1, 1); st(2, 0); st(3, 0); st(2, 1); st(3, 1)
    g(f"s_cmp_ge_u32 s66, {NSL}"); g("s_cbranch_scc1 L_HPUB")
    for t in range(6): sm(1, t)
    g("s_sub_u32 s65, s65, 1"); g("s_cmp_eq_u32 s65, 0"); g(f"s_cbranch_scc1 {e}")
    g("v_cmp_u_f32 vcc, v56, v56")
    g(f"s_cbranch_vccnz {l}")
    g(f"{e}:")
    hp = ["L_HPUB:", "s_sub_u32 s65, s65, 1", "s_cmp_eq_u32 s65, 0", "s_cbranch_scc1 L_HPUB2", "s_nop 3", "v_cmp_u_f32 vcc, v56, v56", f"s_cbranch_vccnz {l}", "L_HPUB2:",
          "v_lshlrev_b32 v13, 4, v3", "s_mov_b32 s70, 0x00010001", "s_mov_b32 s71, 0x00010001", "s_mov_b64 exec, s[70:71]"] + \
         [f"buffer_store_dwordx4 v[{64+4*t}:{67+4*t}], v13, s[4:7], s74 offen offset:{64*t} sc1" for t in range(8)] + ["s_mov_b64 exec, -1", "s_branch L_fin"]
    g.slow += hp
    g("s_mov_b64 exec, 0xffff")
    g("ds_write2_b32 v120, v56, v60 offset0:3 offset1:7")
    for t in range(6):
        g(f"v_add_f32 v{192+4*t}, v{192+4*t}, v{193+4*t}")
        if t == 1: g("ds_write2_b32 v120, v192, v196 offset0:0 offset1:1")
        if t == 3: g("ds_write2_b32 v120, v200, v204 offset0:2 offset1:4")
    g("ds_write2_b32 v120, v208, v212 offset0:5 offset1:6")
    g("s_mov_b64 exec, -1")
    g("s_waitcnt lgkmcnt(0)")
    g("s_barrier")
    for w in range(4):
        g(f"ds_read_b128 v[{32+8*w}:{35+8*w}], v7 offset:{LDS_GX+512*w}"); g(f"ds_read_b128 v[{36+8*w}:{39+8*w}], v7 offset:{LDS_GX+512*w+16}")
    g("s_waitcnt lgkmcnt(4)")
    for k in (3, 7, 0, 1, 2, 4, 5, 6): g(f"v_add_f32 v{32+k}, v{32+k}, v{40+k}")
    g("s_waitcnt lgkmcnt(0)")
    for k in (3, 7): g(f"v_add_f32 v{48+k}, v{48+k}, v{56+k}")
    for k in (3, 7): g(f"v_add_f32 v{32+k}, v{32+k}, v{48+k}")
    rest = [f"v_add_f32 v{48+k}, v{48+k}, v{56+k}" for k in (0, 1, 2, 4, 5, 6)] + [f"v_add_f32 v{32+k}, v{32+k}, v{48+k}" for k in (0, 1, 2, 4, 5, 6)]
    chain = [f"v_mul_f32 v35, 0x{f2u(1/512):08x}, v35", f"v_mul_f32 v39, 0x{f2u(1/512):08x}, v39", "v_fma_f32 v39, -v35, v35, v39", "v_max_f32 v39, 0, v39",
             "v_cvt_pk_bf16_f32 v39, v35, v39", "v_lshlrev_b32 v35, 16, v39", "v_and_b32 v39, 0xffff0000, v39", f"v_add_f32 v39, 0x{f2u(1e-5):08x}, v39",
             "v_cvt_pk_bf16_f32 v39, v39, v39", "v_lshlrev_b32 v39, 16, v39", "v_sqrt_f32 v39, v39", None, "v_cvt_pk_bf16_f32 v39, v39, v39", "v_lshlrev_b32 v39, 16, v39", "v_rcp_f32 v39, v39"]
    for x in chain:
        if x: g(x)
        if rest: g(rest.pop(0))
    K6 = (0, 1, 2, 4, 5, 6)
    for k in K6: g(f"v_fma_f32 v{32+k}, -v35, v{224+k}, v{32+k}")
    for k in K6: g(f"v_mul_f32 v{32+k}, v39, v{32+k}")
    g("v_cvt_pk_bf16_f32 v40, v32, v33"); g("v_cvt_pk_bf16_f32 v41, v34, v38"); g("v_cvt_pk_bf16_f32 v42, v36, v37")
    g("v_lshlrev_b32 v32, 16, v40"); g("v_and_b32 v33, 0xffff0000, v40"); g("v_lshlrev_b32 v34, 16, v41")
    for k in range(3): g(f"v_mul_f32 v{44+k}, v{32+k}, v{32+k}")
    for k in range(3): g(f"v_fma_f32 v{44+k}, v{44+k}, s75, v124")
    for k in range(3): g(f"v_mul_f32 v{44+k}, v{44+k}, v{32+k}")
    for k in range(3): g(f"v_exp_f32 v{44+k}, v{44+k}")
    g("v_lshlrev_b32 v36, 16, v42")
    for k in range(3): g(f"v_add_f32 v{44+k}, 1.0, v{44+k}")
    for k in range(3): g(f"v_rcp_f32 v{44+k}, v{44+k}")
    g("v_and_b32 v37, 0xffff0000, v42"); g("v_and_b32 v38, 0xffff0000, v41")
    for k in range(3): g(f"v_mul_f32 v{44+k}, v{44+k}, v{32+k}")
    g("v_cvt_pk_bf16_f32 v40, v44, v45"); g("v_cvt_pk_bf16_f32 v41, v46, v46")
    g("v_lshlrev_b32 v44, 16, v40"); g("v_and_b32 v45, 0xffff0000, v40"); g("v_and_b32 v46, 0xffff0000, v41")
    for k in range(3): g(f"v_mul_f32 v{44+k}, v{44+k}, v{36+k}")
    g("v_cvt_pk_bf16_f32 v40, v44, v45"); g("v_cvt_pk_bf16_f32 v41, v46, v46")
    for p in range(4): g(f"v_and_b32 v{48+p}, v40, v{16+p}")
    for p in range(4): g(f"v_and_or_b32 v{48+p}, v41, v{20+p}, v{48+p}")
    g("v_cmp_ne_u32 vcc, 0, v3"); g("s_nop 0")
    for t in range(8):
        g(f"{SMF} v[{160+4*t}:{163+4*t}], v[48:51], a[{96+8*t}:{103+8*t}], v30")
    g.nop(1)
    for t in range(8):
        g(f"v_add_f32 v{160+4*t}, v{160+4*t}, v{161+4*t}"); g(f"v_add_f32 v{162+4*t}, v{162+4*t}, v{163+4*t}")
    for t in range(8):
        g(f"v_add_f32 v{160+4*t}, v{160+4*t}, v{162+4*t}")
    for q in range(4):
        g(f"v_cndmask_b32 v{32+q}, v{160+4*q}, v{176+4*q}, vcc")
    g("s_mov_b32 exec_hi, 0")
    g("buffer_store_dwordx4 v[32:35], v123, s[4:7], s74 offen sc1")
    g("s_mov_b64 exec, -1")
    g.stamp(8)

def tcu(g):
    opts = g.o; rep = opts["rep"]
    g("s_lshl_b32 s74, s72, 10"); g("s_lshl_b32 s62, s73, 8"); g("s_add_u32 s74, s74, s62"); g("s_lshl_b32 s62, s3, 6"); g("s_add_u32 s74, s74, s62")
    g("v_lshlrev_b32 v28, 15, v3"); g("v_lshl_add_u32 v28, v2, 2, v28")
    g("s_lshl_b32 s75, s73, 5"); g("s_add_u32 s75, s75, s72")
    g("v_lshlrev_b32 v29, 4, v0")
    g("s_lshl_b32 s76, s75, 12"); g(f"s_add_u32 s76, s76, {STAT}")
    g("v_lshlrev_b32 v4, 16, v3"); g("v_lshl_add_u32 v4, v2, 4, v4")
    g("s_lshl_b32 s66, s3, 20"); g("s_lshl_b32 s63, s72, 8"); g("s_add_u32 s66, s66, s63")
    for ks in range(4):
        g(f"s_xor_b32 s63, s73, {ks}"); g(f"s_lshl_b32 s63, s63, 18"); g(f"s_add_u32 s{52+ks}, s66, s63")
    g("v_lshlrev_b32 v5, 14, v2"); g("v_lshl_add_u32 v5, v3, 4, v5")
    g("s_lshl_b32 s78, s73, 20"); g("s_lshl_b32 s63, s3, 18"); g("s_add_u32 s78, s78, s63"); g("s_lshl_b32 s63, s72, 8"); g("s_add_u32 s78, s78, s63")
    g("s_add_u32 s79, s78, 8192")
    g("s_lshr_b32 s67, s42, 5" if opts["cu"] != 2 else "s_mov_b32 s67, 1")
    g("s_mov_b32 s14, 0x400000"); g("s_mov_b32 s15, 0x20000"); g("s_mov_b32 s58, 4096"); g("s_mov_b32 s59, 0x20000")
    g("s_mov_b32 s46, 0x400000"); g("s_mov_b32 s47, 0x20000")
    g("s_waitcnt lgkmcnt(0)")
    g("s_mov_b32 s56, s16"); g("s_and_b32 s57, s17, 0xffff"); g("s_mov_b32 s12, s20"); g("s_and_b32 s13, s21, 0xffff")
    def wq(ks):
        for e in range(8):
            g(f"s_add_u32 s63, s{52+ks}, {e*8192}")
            r = 32 + 32*ks + 4*e
            g(f"buffer_load_dwordx4 v[{r}:{r+3}], v4, s[12:15], s63 offen")
    g("buffer_load_dwordx4 v[8:11], v29, s[56:59], 0 offen")
    wq(0)
    g("s_mov_b32 s44, s22"); g("s_and_b32 s45, s23, 0xffff")
    cu = opts["cu"]
    def wuk():
        for tt in range(2):
            for ks in range(4):
                r = 160 + 16*tt + 4*ks
                g(f"buffer_load_dwordx4 v[{r}:{r+3}], v5, s[44:47], s{78+tt} offen offset:{64*ks}")
    def ifcls(cls, fn):
        if not cu:
            if not cls: fn()
            return
        l = g.lab("ic")
        g("s_cmp_eq_u32 s67, 1"); g(f"s_cbranch_scc{0 if cls else 1} {l}")
        fn()
        g(f"{l}:")
    def wait2(n_norm, n_cls, extra=""):
        lo, hi = min(n_norm, n_cls), max(n_norm, n_cls)
        if not cu: g(f"s_waitcnt vmcnt({n_norm}){extra}"); return
        g(f"s_waitcnt vmcnt({hi}){extra}")
        if lo != hi: ifcls(n_cls == lo, lambda: g(f"s_waitcnt vmcnt({lo})"))
    g("s_barrier")
    ifcls(False, wuk)
    g.srd(4, 40, WS); g.srd(8, 38, 256)
    for k in range(4): g(f"v_mov_b32 v{24+k}, -1")
    g("buffer_store_dwordx4 v[24:27], v29, s[4:7], s76 offen sc1")
    g("v_lshlrev_b32 v30, 3, v0"); g(f"s_lshl_b32 s62, s42, 11"); g(f"s_add_u32 s62, s62, {FPART}")
    g("buffer_store_dwordx2 v[24:25], v30, s[4:7], s62 offen sc1")
    if rep:
        g(f"s_lshl_b32 s62, s42, 13"); g(f"s_add_u32 s62, s62, {APART}"); g("s_add_u32 s63, s62, 4096")
        g("buffer_store_dwordx4 v[24:27], v29, s[4:7], s62 offen sc1"); g("buffer_store_dwordx4 v[24:27], v29, s[4:7], s63 offen sc1")
        nst = 4
    else:
        g("v_lshlrev_b32 v30, 2, v0"); g(f"s_lshl_b32 s62, s42, 10"); g(f"s_add_u32 s62, s62, {APART}")
        g("buffer_store_dword v24, v30, s[4:7], s62 offen sc1")
        nst = 3
    g("s_mul_i32 s62, s3, 1040"); g("v_lshlrev_b32 v6, 4, v1"); g("v_add_u32 v6, s62, v6")
    g("v_and_b32 v7, 3, v2"); g("v_mul_u32_u24 v7, 1040, v7"); g("v_lshl_add_u32 v7, v3, 4, v7")
    g("s_lshl_b32 s62, s3, 8"); g("v_add_u32 v7, s62, v7")
    wait2(16+nst, 8+nst)
    for q in range(4):
        g(f"v_lshlrev_b32 v{12+2*q}, 16, v{8+q}"); g(f"v_and_b32 v{13+2*q}, 0xffff0000, v{8+q}")
    g("v_add_f32 v20, v12, v13"); g("v_add_f32 v21, v14, v15"); g("v_add_f32 v22, v16, v17"); g("v_add_f32 v23, v18, v19")
    g("v_add_f32 v20, v20, v21"); g("v_add_f32 v22, v22, v23"); g("v_add_f32 v20, v20, v22")
    g.allred("v_add_f32", 20, 21)
    g(f"v_mul_f32 v20, 0x{f2u(1/512):08x}, v20")
    g("v_sub_f32 v22, v12, v20"); g("v_mul_f32 v21, v22, v22")
    for k in range(1, 8):
        g(f"v_sub_f32 v22, v{12+k}, v20"); g("v_fmac_f32 v21, v22, v22")
    g.allred("v_add_f32", 21, 22)
    g(f"v_mul_f32 v21, 0x{f2u(1/512):08x}, v21")
    g.bf16r(20, 20); g.bf16r(21, 21)
    g(f"v_add_f32 v21, 0x{f2u(1e-5):08x}, v21"); g.bf16r(21, 21)
    g("v_sqrt_f32 v21, v21"); g("s_nop 0"); g.bf16r(21, 21)
    g("v_rcp_f32 v21, v21")
    for k in range(8): g(f"v_sub_f32 v{12+k}, v{12+k}, v20")
    for q in range(4): g(f"v_cvt_pk_bf16_f32 v{8+q}, v{12+2*q}, v{13+2*q}")
    for q in range(4):
        g(f"v_lshlrev_b32 v{12+2*q}, 16, v{8+q}"); g(f"v_and_b32 v{13+2*q}, 0xffff0000, v{8+q}")
    for k in range(8): g(f"v_mul_f32 v{12+k}, v{12+k}, v21")
    for q in range(4): g(f"v_cvt_pk_bf16_f32 v{8+q}, v{12+2*q}, v{13+2*q}")
    g(f"ds_write_b128 v6, v[8:11] offset:{LDS_XN}")
    g("v_mov_b32 v30, 0")
    wait2(8+nst, nst, " lgkmcnt(0)")
    g.stamp(1)
    wq(1)
    g("s_barrier")
    for ks in range(4):
        g(f"s_xor_b32 s63, s73, {ks}"); g("s_lshl_b32 s63, s63, 6"); g("v_add_u32 v6, s63, v7")
        g(f"ds_read_b128 v[{8+4*ks}:{11+4*ks}], v6 offset:{LDS_XN}")
    wq(2)
    g("s_mul_i32 s62, s3, 272"); g("v_lshlrev_b32 v6, 4, v2"); g("v_add_u32 v6, s62, v6")
    g("v_mul_u32_u24 v7, 272, v2"); g("v_lshl_add_u32 v7, v3, 4, v7")
    for ks in range(4):
        if ks == 1: wq(3)
        if ks == 2: ifcls(True, wuk)
        if ks: wait2(8*(3-ks) + (1 if ks == 3 else 0), 8*(3-ks) + (1 if ks == 3 else 0) + (8 if ks >= 2 else 0))
        if ks == 2: g("buffer_load_dword v31, v30, s[8:11], 0 offen sc1")
        if ks == 3: g.stamp(7)
        R = 32+32*ks
        if ks == 0: g("s_waitcnt lgkmcnt(0)")
        def pm(t):
            for p in range(4):
                g(f"v_perm_b32 v{192+4*t+p}, v{R+4*(2*p+1)+(t>>1)}, v{R+4*(2*p)+(t>>1)}, s{60+(t&1)}")
        pm(0)
        for t in range(8):
            if t < 7: pm(t+1)
            else: g("s_nop 0")
            c = "0" if ks == 0 else f"v[{224+4*t}:{227+4*t}]"
            g(f"{M16} v[{224+4*t}:{227+4*t}], v[{8+4*ks}:{11+4*ks}], v[{192+4*t}:{195+4*t}], {c}")
    for p in range(4):
        for b in range(4):
            g(f"v_cvt_pk_bf16_f32 v{8+4*b+p}, v{224+8*p+b}, v{228+8*p+b}")
    g("s_mov_b64 exec, 0xffff")
    for b in range(4):
        g(f"ds_write_b128 v6, v[{8+4*b}:{11+4*b}] offset:{LDS_QX+4*272*b}")
    g("s_mov_b64 exec, -1")
    g("s_waitcnt lgkmcnt(0)")
    g("s_barrier")
    for ks in range(4):
        g(f"ds_read_b128 v[{8+4*ks}:{11+4*ks}], v7 offset:{LDS_QX+64*ks}")
    if cu: g("s_waitcnt vmcnt(1)")
    for ks in range(4):
        g(f"s_waitcnt lgkmcnt({3-ks})")
        for tt in range(2):
            c = "0" if ks == 0 else f"v[{224+4*tt}:{227+4*tt}]"
            g(f"{M16} v[{224+4*tt}:{227+4*tt}], v[{8+4*ks}:{11+4*ks}], v[{160+16*tt+4*ks}:{163+16*tt+4*ks}], {c}")
    g("s_waitcnt vmcnt(0)")
    g("v_cmp_ne_u32 vcc, 16, v31")
    g.srd(12, 18, 32 << 20)
    g("v_lshlrev_b32 v4, 7, v1"); g("s_lshr_b32 s62, s42, 5")
    for tt in range(2):
        r = 224 + 4*tt
        g(f"v_add_f32 v{r}, v{r}, v{r+1}"); g(f"v_add_f32 v{r+2}, v{r+2}, v{r+3}")
    for tt in range(2):
        r = 224 + 4*tt
        g(f"v_add_f32 v{r}, v{r}, v{r+2}")
    for tt in range(2):
        r = 224 + 4*tt
        g(f"v_mul_f32 v{r}, 0x{f2u(SCALE):08x}, v{r}")
    g("v_cvt_pk_bf16_f32 v8, v224, v228")
    g("s_cbranch_vccz L_T_c0ok")
    cnt_wait(g, 31, 30)
    g("L_T_c0ok:")
    g("buffer_store_dword v8, v28, s[4:7], s74 offen sc1")
    if opts["pb"] == 2: g("s_waitcnt vmcnt(0)")
    if opts["pb"]: g("s_barrier")
    g.stamp(2)
    g("s_lshl_b32 s62, s62, 23"); g("s_and_b32 s63, s42, 31"); g("s_lshl_b32 s63, s63, 15"); g("s_add_u32 s62, s62, s63")
    g("s_lshl_b32 s63, s3, 13"); g("s_add_u32 s62, s62, s63")
    nc = opts["cls"]
    if nc:
        g("s_lshr_b32 s64, s42, 5")
        g("s_cmp_eq_u32 s64, 1"); g("s_cbranch_scc1 L_T_pfc")
        g("s_and_b32 s65, s42, 31"); g("s_lshl_b32 s65, s65, 15"); g(f"s_add_u32 s65, s65, {0x800000}")
        g("s_sub_u32 s67, s64, 1"); g("s_max_i32 s67, s67, 0"); g("s_lshl_b32 s67, s67, 2"); g("s_add_u32 s67, s67, s3")
        g(f"s_mul_i32 s67, s67, {22*128}"); g(f"s_min_u32 s67, s67, {(256-22)*128}"); g("s_add_u32 s65, s65, s67")
    plist = ([3, 4, 5, 6, 7] if opts["p5"] else [3, 5, 6, 7]) if opts["mix"] else [4, 5, 6, 7]
    def taddr(base, i):
        if opts["rot"]:
            g(f"s_add_u32 s63, s{base}, {(opts['rot']*i*32768) & 0xfffff}"); g("s_and_b32 s63, s63, 0xfffff")
            g(f"s_andn2_b32 s64, s{base}, 0xfffff"); g("s_or_b32 s63, s63, s64"); g(f"s_add_u32 s63, s63, {i*TS}")
        else: g(f"s_add_u32 s63, s{base}, {i*TS}")
    for n_, i in enumerate(plist):
        if nc and n_ == nc: g("L_T_pfc:")
        taddr(62, i)
        g(f"buffer_load_dword v31, v4, s[12:15], s63 offen {opts['pflag']}")
        if n_ < nc:
            taddr(65, i)
            g("s_mov_b64 exec, 0x3fffff")
            g(f"buffer_load_dword v31, v4, s[12:15], s63 offen {opts['pflag']}")
            g("s_mov_b64 exec, -1")
    g.srd(12, 24, 4 << 20); g.srd(44, 26, 4 << 20)
    for ks in range(4):
        g(f"s_xor_b32 s63, s73, {ks}"); g("s_lshr_b32 s62, s63, 1"); g("s_lshl_b32 s62, s62, 19"); g("s_and_b32 s63, s63, 1"); g("s_lshl_b32 s63, s63, 16")
        g(f"s_add_u32 s{52+ks}, s66, s62"); g(f"s_add_u32 s{52+ks}, s{52+ks}, s63")
    g("v_and_b32 v6, 1, v3"); g("v_lshrrev_b32 v7, 1, v3")
    g("v_lshlrev_b32 v4, 18, v6"); g("v_lshl_add_u32 v4, v7, 15, v4"); g("v_lshl_add_u32 v4, v2, 4, v4")
    g("v_lshlrev_b32 v5, 14, v7"); g("v_lshl_add_u32 v5, v6, 12, v5"); g("v_lshl_add_u32 v5, v2, 4, v5")
    g("s_lshl_b32 s79, s72, 17"); g("s_lshl_b32 s63, s3, 8"); g("s_add_u32 s79, s79, s63")
    order = [[0, 4, 5, 6, 7, 1, 2, 3], [0, 4, 1, 5, 2, 6, 3, 7], [0, 4, 1, 2, 3, 5, 6, 7]][opts["tord"]]
    bufs = [192, 224, 64, 32][:opts["nb"]]
    NB = len(bufs)
    def tw_issue(i):
        n = order[i]; ks = n & 3
        if n >= 4:
            g(f"s_xor_b32 s62, s73, {ks}"); g("s_lshl_b32 s62, s62, 15"); g("s_add_u32 s62, s62, s79"); g("s_add_u32 s63, s62, 0x2000")
        for e in range(8):
            r = bufs[i % NB] + 4*e
            if n < 4:
                g(f"s_add_u32 s63, s{52+ks}, {(16*(e>>2)+(e&3))*8192}")
                g(f"buffer_load_dwordx4 v[{r}:{r+3}], v4, s[12:15], s63 offen")
            else:
                g(f"buffer_load_dwordx4 v[{r}:{r+3}], v5, s[44:47], s{62+((e>>1)&1)} offen offset:{(2*(e>>2)+(e&1))*1024}")
    issued = 2
    tw_issue(0); tw_issue(1)
    g.stamp(1)
    tile_setup(g, True)
    g("s_lshl_b32 s69, s75, 15"); g("s_lshl_b32 s63, s3, 8"); g("s_add_u32 s69, s69, s63"); g(f"s_add_u32 s69, s69, {OPART}")
    g("v_and_b32 v13, 31, v1"); g("v_lshlrev_b32 v14, 7, v13")
    g("s_lshl_b32 s62, s3, 6"); g("v_lshlrev_b32 v13, 1, v13"); g("v_add_u32 v13, s62, v13")
    g("v_lshlrev_b32 v15, 4, v3"); g("v_add_u32 v15, s62, v15")
    g("s_mul_i32 s62, s3, 272"); g("v_lshlrev_b32 v120, 4, v2"); g("v_add_u32 v121, s62, v120")
    g("v_bfe_u32 v10, v2, 2, 1"); g("v_lshlrev_b32 v11, 5, v3"); g("v_lshl_add_u32 v11, v10, 4, v11")
    g("s_lshl_b32 s62, s73, 6"); g("v_xor_b32 v11, s62, v11"); g("v_xor_b32 v12, 0x80, v11")
    g("v_and_b32 v122, 3, v2"); g("v_mul_u32_u24 v122, 272, v122"); g("v_add_u32 v123, v122, v12"); g("v_add_u32 v122, v122, v11")
    g("v_mul_u32_u24 v30, 0xaaaa, v10"); g("v_or_b32 v30, 0x4444, v30")
    g("v_lshl_add_u32 v120, v6, 3, v120")
    if rep: g("v_lshl_add_u32 v120, v7, 17, v120")
    g("s_lshl_b32 s78, s75, 10"); g("s_lshl_b32 s63, s3, 8"); g("s_add_u32 s78, s78, s63"); g(f"s_add_u32 s78, s78, {APART}")
    for k in range(64): g(f"v_mov_b32 v{128+k}, 0")
    def pbody():
        g("buffer_load_dwordx2 v[106:107], v14, s[4:7], s76 offen sc1")
    def cond():
        g("v_max_u32 v108, v106, v107"); g("v_cmp_eq_u32 vcc, -1, v108")
    pp = opts["pp"]
    for i in range(8):
        extra = 1 if (i > pp and i < 7) else 0
        g(f"s_waitcnt vmcnt({8*(issued-1-i) + extra})")
        if i == 0: g.stamp(7)
        if i == 1: g.stamp(9)
        lim = min(8, i + NB) if i >= 1 else issued
        while issued < lim:
            tw_issue(issued); issued += 1
        if i == pp:
            assert issued == 8
            pbody()
        if i == 7:
            g.stamp(3)
            cond()
            g("s_cbranch_vccnz L_T_nd")
            tile_dma(g, 69)
            g("L_T_nd:")
        R = bufs[i % NB]; n = order[i]; ks = n & 3
        acc = 128*(n>>2) + 64*(ks>>1) + 4*(ks&1)
        for t in range(8):
            for p in range(4):
                g(f"v_perm_b32 v{16+p+4*(t&1)}, v{R+4*(2*p+1)+(t>>1)}, v{R+4*(2*p)+(t>>1)}, s{60+(t&1)}")
            for p in range(4):
                g(f"v_accvgpr_write_b32 a{acc+8*t+p}, v{16+p+4*(t&1)}")
    g("s_cbranch_vccz L_T_go")
    poll_loop(g, pbody, cond, spin=4*SPIN, sleep=opts["tsleep"])
    tile_dma(g, 69)
    g("L_T_go:")
    g.stamp(4)
    g("v_mov_b32 v34, v106")
    g.allred("v_max_f32", 34, 35, 32)
    g("v_sub_f32 v34, v106, v34"); g("v_cvt_i32_f32 v34, v34"); g("v_ldexp_f32 v34, 1.0, v34")
    g(f"ds_write_b16_d16_hi v13, v34 offset:{LDS_FX}")
    g("v_mul_f32 v31, v34, v107")
    g(f"ds_read_b128 v[24:27], v15 offset:{LDS_FX}")
    g.allred("v_add_f32", 31, 35, 32)
    g("v_rcp_f32 v31, v31")
    g(f"s_mov_b32 s64, {SPIN}")
    g("L_T_pay:")
    g("s_waitcnt vmcnt(0) lgkmcnt(0)")
    g.stamp(5)
    tile_read(g, 32)
    for t in range(8):
        g(f"s_waitcnt lgkmcnt({14-2*t})" if not opts.get("stamps") else "s_waitcnt lgkmcnt(0)")
        g(f"{M16} v[{64+4*t}:{67+4*t}], v[{32+4*t}:{35+4*t}], v[24:27], 0")
    def cv(t):
        g(f"v_cvt_pk_bf16_f32 v{96+t}, v{64+4*t}, v{65+4*t}")
        g(f"v_cvt_pk_bf16_f32 v{104+(t&1)}, v{66+4*t}, v{67+4*t}")
        g(f"v_cndmask_b32 v{96+t}, v{96+t}, v{104+(t&1)}, s[70:71]")
    for t in range(5): cv(t)
    for t in range(8):
        g(f"{SMF} v[{128+4*t}:{131+4*t}], v[96:99], a[{8*t}:{8*t+7}], v29")
        if t in (0, 2, 4): cv(5 + t//2)
    for t in range(8):
        g(f"{SMF} v[{128+4*t}:{131+4*t}], v[100:103], a[{64+8*t}:{64+8*t+7}], v29")
    g.nop(1)
    for t in range(8):
        g(f"v_add_f32 v{128+4*t}, v{128+4*t}, v{129+4*t}")
        if t == 1 and opts["oi"]: g("v_cmp_u_f32 vcc, v128, v128")
    if opts["oi"]:
        g("s_cbranch_vccnz L_T_retry")
        g("L_T_ok:")
        gl = g.L; g.L = []
        g("L_T_retry:")
        g("s_sub_u32 s64, s64, 1"); g("s_cmp_eq_u32 s64, 0"); g("s_cbranch_scc1 L_T_ok")
        tile_dma(g, 69)
        for k in range(32): g(f"v_mov_b32 v{128+k}, 0")
        g("s_branch L_T_pay")
        g.slow0 = g.L; g.L = gl
    for t in range(8):
        g(f"v_mul_f32 v{128+4*t}, v31, v{128+4*t}")
    for p in range(4):
        g(f"v_cvt_pk_bf16_f32 v{64+p}, v{128+8*p}, v{132+8*p}")
    g("s_mov_b64 exec, 0xffff")
    g(f"ds_write_b128 v121, v[64:67] offset:{LDS_CX}")
    g("s_mov_b64 exec, -1")
    g("s_waitcnt lgkmcnt(0)")
    g("s_barrier")
    for s2 in range(2):
        g(f"ds_read_b128 v[{96+4*s2}:{99+4*s2}], v{122+s2} offset:{LDS_CX}")
    for s2 in range(2):
        g(f"s_waitcnt lgkmcnt({1-s2})")
        for t in (0, 4, 1, 5, 2, 6, 3, 7):
            g(f"{SMF} v[{160+4*t}:{163+4*t}], v[{96+4*s2}:{99+4*s2}], a[{128+64*s2+8*t}:{128+64*s2+8*t+7}], v30")
    g.nop(1)
    for t in (0, 4, 1, 5, 2, 6, 3, 7):
        g(f"v_add_f32 v{160+4*t}, v{160+4*t}, v{161+4*t}"); g(f"v_add_f32 v{162+4*t}, v{162+4*t}, v{163+4*t}")
    for t in (0, 4, 1, 5, 2, 6, 3, 7):
        g(f"v_add_f32 v{160+4*t}, v{160+4*t}, v{162+4*t}")
    for t in range(4): g(f"v_permlane16_swap_b32 v{160+4*t}, v{176+4*t}")
    for t in range(4): g(f"v_add_f32 v{160+4*t}, v{160+4*t}, v{176+4*t}")
    g("v_cvt_pk_bf16_f32 v64, v160, v164"); g("v_cvt_pk_bf16_f32 v65, v168, v172")
    if rep:
        for c in range(4):
            g("buffer_store_dwordx2 v[64:65], v120, s[4:7], s78 offen sc1")
            if c < 3: g("s_add_u32 s78, s78, 0x40000")
    else:
        g("s_mov_b32 exec_hi, 0")
        g("buffer_store_dwordx2 v[64:65], v120, s[4:7], s78 offen sc1")
        g("s_mov_b64 exec, -1")
    g.stamp(6)
    g("s_cmp_lt_u32 s43, 16"); g("s_cbranch_scc1 L_fin")
    g("s_cmp_lg_u32 s3, 0"); g("s_cbranch_scc1 L_fin")
    g.srd(12, 36, 4096)
    g("v_lshrrev_b32 v4, 3, v1"); g("v_and_b32 v5, 7, v1")
    g("v_lshlrev_b32 v6, 11, v4"); g("v_lshl_add_u32 v6, v5, 4, v6")
    g(f"v_mov_b32 v7, {OOB}")
    g("v_cmp_gt_u32 vcc, 5, v4"); g("s_nop 1"); g("v_cndmask_b32 v7, v7, v6, vcc")
    g("v_lshlrev_b32 v8, 4, v5"); g("v_lshlrev_b32 v10, 3, v5")
    g(f"s_lshl_b32 s62, s73, 16"); g("s_sub_u32 s65, s43, 16"); g("s_lshl_b32 s63, s65, 7"); g("s_add_u32 s62, s62, s63"); g(f"s_add_u32 s62, s62, {FPART}")
    g("s_lshl_b32 s74, s73, 10"); g("s_lshl_b32 s63, s65, 6"); g("s_add_u32 s74, s74, s63")
    for n in range(1, 4): g(f"s_add_u32 s{75+n}, s62, {n*16384}")
    g(f"s_add_u32 s79, s62, {31*2048}")
    def body():
        for n in range(4):
            g(f"buffer_load_dwordx4 v[{32+4*n}:{35+4*n}], v{6 if n < 3 else 7}, s[4:7], s{62 if n == 0 else 75+n} offen sc1")
        g("buffer_load_dwordx4 v[56:59], v8, s[4:7], s79 offen sc1")
    def cond2():
        for k in range(4):
            g(f"v_add_f32 v{32+k}, v{32+k}, v{36+k}"); g(f"v_add_f32 v{40+k}, v{40+k}, v{44+k}")
        for k in range(4): g(f"v_add_f32 v{32+k}, v{32+k}, v{40+k}")
        g("v_add_f32 v40, v56, v57"); g("v_add_f32 v41, v58, v59"); g("v_add_f32 v42, v32, v33"); g("v_add_f32 v43, v34, v35")
        g("v_add_f32 v40, v40, v41"); g("v_add_f32 v42, v42, v43")
        g("v_cmp_u_f32 vcc, v40, v42")
    poll_loop(g, body, cond2, spin=4*SPIN, sleep=0)
    g.stamp(8)
    for k in range(4):
        g(f"v_add_f32_dpp v{32+k}, v{32+k}, v{32+k} row_ror:8 row_mask:0xf bank_mask:0xf")
    g("v_cvt_pk_bf16_f32 v44, v56, v57"); g("v_cvt_pk_bf16_f32 v45, v58, v59")
    for sw in ("v_permlane16_swap_b32", "v_permlane32_swap_b32"):
        for k in range(4): g(f"v_mov_b32 v{36+k}, v{32+k}")
        g("s_nop 0")
        for k in range(4): g(f"{sw} v{32+k}, v{36+k}")
        for k in range(4): g(f"v_add_f32 v{32+k}, v{32+k}, v{36+k}")
    g("v_cvt_pk_bf16_f32 v36, v32, v33"); g("v_cvt_pk_bf16_f32 v37, v34, v35")
    for q in range(2):
        g(f"v_lshlrev_b32 v{32+2*q}, 16, v{36+q}"); g(f"v_and_b32 v{33+2*q}, 0xffff0000, v{36+q}")
        g(f"v_lshlrev_b32 v{40+2*q}, 16, v{44+q}"); g(f"v_and_b32 v{41+2*q}, 0xffff0000, v{44+q}")
    for k in range(4): g(f"v_add_f32 v{32+k}, v{32+k}, v{40+k}")
    g("v_cvt_pk_bf16_f32 v36, v32, v33"); g("v_cvt_pk_bf16_f32 v37, v34, v35")
    g("s_mov_b64 exec, 0xff")
    g("buffer_store_dwordx2 v[36:37], v10, s[12:15], s74 offen" + (" sc0 sc1" if opts["osc"] else ""))
    g("s_mov_b64 exec, -1")
    g.stamp(10)
    g("s_branch L_fin")

QD = 8
def qreg(s):
    return f"v[{224+4*s}:{227+4*s}]" if s < QD else f"a[{128+4*(s-QD)}:{131+4*(s-QD)}]"

class Lds:
    def __init__(s, g): s.g = g; s.n = 0; s.done = 0
    def op(s, txt): s.g(txt); s.n += 1; return s.n
    def wait(s, i):
        if i <= s.done: return
        k = min(14, s.n - i); s.g(f"s_waitcnt lgkmcnt({k})"); s.done = s.n - k
    def all(s): s.wait(s.n)

def acu(g):
    fine = g.o["fine"]
    ea = ["v_and_b32 v8, 7, v5", "v_lshlrev_b32 v9, 1, v6", "v_xor_b32 v8, v8, v9", "v_lshlrev_b32 v208, 10, v5", "v_lshl_add_u32 v208, v8, 4, v208",
          "s_lshl_b32 s62, s3, 8", "v_add_u32 v208, s62, v208"] + [f"v_xor_b32 v{208+k}, {((4*(k>>1))|(k&1))<<4}, v208" for k in range(1, 4)] + \
         ["v_lshrrev_b32 v8, 3, v1", "v_and_b32 v9, 7, v1", "v_lshlrev_b32 v212, 10, v8", "v_lshl_add_u32 v212, v9, 4, v212", "v_add_u32 v212, s62, v212",
          "v_lshlrev_b32 v214, 12, v8", "v_lshl_add_u32 v214, v9, 4, v214", "v_xor_b32 v9, v9, v8", "v_lshlrev_b32 v213, 15, v8", "v_lshl_add_u32 v213, v9, 4, v213",
          "s_lshl_b32 s63, s3, 5", "v_lshl_add_u32 v215, v8, 2, s63",
          "s_lshl_b32 s65, s74, 20", "s_lshl_b32 s63, s75, 10", "s_add_u32 s65, s65, s63", "s_add_u32 s65, s65, s62", f"s_add_u32 s65, s65, {OPART}",
          "s_lshl_b32 s79, s74, 17", "s_lshl_b32 s63, s75, 7", "s_add_u32 s79, s79, s63", f"s_add_u32 s79, s79, {STAT}", "s_lshl_b32 s63, s3, 15", "s_add_u32 s79, s79, s63"]
    g("v_lshlrev_b32 v4, 4, v1")
    g("s_lshr_b32 s74, s42, 5"); g("s_and_b32 s75, s42, 31")
    g("s_lshl_b32 s76, s74, 23"); g("s_lshl_b32 s77, s75, 15"); g("s_add_u32 s76, s76, s77")
    g("s_lshl_b32 s77, s3, 13"); g("s_add_u32 s76, s76, s77")
    g("s_and_b32 s62, s3, 1"); g("s_lshl_b32 s62, s62, 5"); g("v_xor_b32 v7, s62, v4")
    for r in range(8):
        g(f"v_xor_b32 v{160+r}, {(fswz(r)<<4) | ((r>>2)<<12)}, v7")
    g(f"s_add_u32 s62, s77, {LQ}"); g("v_add_u32 v15, s62, v7")
    def dma_ops(slot, cf=g.o["cf0"]):
        ops = []
        for r in range(8):
            pre = []
            if r == 0: pre = [f"s_add_u32 m0, s77, {slot*32768}", "s_nop 0"]
            if r == 4: pre = ["s_addk_i32 m0, 0x1000", "s_nop 0"]
            post = ([f"s_add_u32 s69, s76, {g.o['rot']*32768}", "s_and_b32 s69, s69, 0xfffff", "s_andn2_b32 s76, s76, 0xfffff", "s_or_b32 s76, s76, s69"] if g.o["rot"] else []) + [f"s_add_u32 s76, s76, {TS}"] if r == 7 else []
            ops.append(pre + [f"buffer_load_dwordx4 v{160+r}, s[12:15], s76 offen offset:{(r&3)*1024} {cf} lds"] + post)
        return ops
    def dma_tile(slot):
        for o in dma_ops(slot):
            for x in o: g(x)
    def setup():
        g("v_and_b32 v5, 31, v1"); g("v_lshrrev_b32 v6, 5, v1")
        g("v_and_b32 v8, 3, v5"); g("v_lshlrev_b32 v8, 2, v8"); g("v_bfe_u32 v9, v5, 2, 2"); g("v_or_b32 v8, v8, v9"); g("v_xor_b32 v8, v8, v6")
        g("v_lshlrev_b32 v10, 10, v5"); g("v_lshl_add_u32 v10, v8, 4, v10")
        g(f"v_add_u32 v11, {LQ}, v10")
        g("s_lshl_b32 s62, s3, 15"); g("v_add_u32 v10, s62, v10")
        for k in range(8): g(f"v_xor_b32 v{16+k}, {k<<5}, v10")
        for k in range(8): g(f"v_xor_b32 v{128+k}, {k<<5}, v11")
        g("v_bfe_u32 v8, v1, 2, 2")
        g("v_lshl_add_u32 v9, v6, 2, v8"); g("v_lshlrev_b32 v12, 10, v9")
        g("v_and_b32 v9, 1, v1"); g("v_lshlrev_b32 v9, 1, v9"); g("v_bfe_u32 v13, v1, 4, 1"); g("v_or_b32 v9, v9, v13")
        g("v_lshl_add_u32 v13, v8, 2, v6"); g("v_xor_b32 v9, v9, v13")
        g("v_lshl_add_u32 v12, v9, 4, v12")
        g("v_bfe_u32 v9, v1, 1, 1"); g("v_lshl_add_u32 v12, v9, 3, v12")
        g("s_lshl_b32 s62, s3, 8"); g("v_add_u32 v12, s62, v12")
        for ct in range(4):
            for hv in range(2):
                g(f"v_xor_b32 v{24+2*ct+hv}, {(ct<<6)|(hv<<5)}, v12")
                g(f"v_add_u32 v{32+2*ct+hv}, 0x10000, v{24+2*ct+hv}")
        g("v_lshlrev_b32 v40, 5, v5"); g("v_lshl_add_u32 v40, v6, 4, v40"); g(f"v_add_u32 v40, {LRF}, v40")
        g("v_xor_b32 v46, 16, v40")
        g("s_lshl_b32 s62, s3, 2"); g("v_add_u32 v41, s62, v40")
        g(f"v_add_u32 v42, {LP}, v4")
        g("s_lshl_b32 s62, s3, 11"); g("v_add_u32 v43, s62, v42")
        g("s_lshl_b32 s78, s74, 15"); g("s_add_u32 s78, s78, s77"); g("s_add_u32 s67, s78, 0x1000")
        g("v_mov_b32 v12, 0"); g("v_mov_b32 v13, 1")
        for r in range(8): g(f"v_xor_b32 v{168+r}, {fswz(r)<<4}, v15")
    for k in range(4): g(f"v_mov_b32 v{48+k}, -1")
    g("s_waitcnt lgkmcnt(0)")
    g.srd(4, 40, WS)
    g("s_cmp_ge_u32 s42, 16"); g("s_cbranch_scc1 L_A_ni")
    g("s_lshl_b32 s62, s42, 13"); g("s_lshl_b32 s63, s3, 11"); g("s_add_u32 s62, s62, s63")
    for k in range(2):
        g(f"buffer_store_dwordx4 v[48:51], v4, s[4:7], s62 offen offset:{k*1024} sc1")
    g("L_A_ni:")
    if g.o["cu"]:
        if g.o["cu"] != 2: g("s_cmp_lg_u32 s74, 1"); g("s_cbranch_scc1 L_A_nu")
        g.srd(44, 22, 4 << 20)
        g("v_lshrrev_b32 v8, 1, v1"); g("v_lshlrev_b32 v8, 13, v8"); g("v_and_b32 v9, 1, v1"); g("v_lshl_add_u32 v8, v9, 7, v8")
        g("s_lshl_b32 s62, s73, 20"); g("s_lshl_b32 s63, s3, 18"); g("s_add_u32 s62, s62, s63"); g("s_lshl_b32 s63, s72, 8"); g("s_add_u32 s62, s62, s63")
        g("buffer_load_dword v47, v8, s[44:47], s62 offen")
        g("L_A_nu:")
    g.srd(12, 18, 32 << 20); g.srd(8, 38, 256)
    setup()
    o0 = dma_ops(0)
    for x in o0[0]: g(x)
    for x in ea: g(x)
    if g.o["skew"]:
        g("v_and_b32 v9, 3, v8"); g("v_lshl_add_u32 v9, v9, 3, v8"); g("v_xor_b32 v9, s75, v9")
        g("v_lshl_add_u32 v213, v9, 10, v213"); g("v_lshl_add_u32 v214, v9, 7, v214")
        g("s_lshl_b32 s63, s75, 10"); g("s_sub_u32 s65, s65, s63"); g("s_lshl_b32 s63, s75, 7"); g("s_sub_u32 s79, s79, s63")
    g.srd(44, 30, 512*2752); g.srd(48, 32, 512*2752); g.srd(52, 34, 1376*1024)
    g("v_mul_u32_u24 v218, 2752, v5"); g("v_mul_u32_u24 v9, 92, v6"); g("v_add_u32 v218, v218, v9")
    g("s_lshl_b32 s62, s73, 2"); g("s_add_u32 s62, s62, s3"); g(f"s_mul_i32 s70, s62, {32*2752}"); g("s_mul_i32 s64, s72, 96"); g("s_add_u32 s70, s70, s64")
    g("v_lshlrev_b32 v219, 6, v1"); g("s_mul_i32 s71, s62, 3072"); g("s_mul_i32 s64, s72, 49152"); g("s_add_u32 s71, s71, s64")
    g("s_cmp_ge_u32 s42, 16"); g("s_cbranch_scc1 L_A_ni2")
    g(f"s_waitcnt vmcnt({2 if g.o['cu'] == 2 else 1})")
    g("s_barrier")
    g("s_cmp_lg_u32 s3, 0"); g("s_cbranch_scc1 L_A_ni2")
    g("s_mov_b64 exec, 1")
    g("buffer_atomic_add v13, v12, s[8:11], 0 offen sc1")
    g("s_mov_b64 exec, -1")
    g("s_branch L_A_ni3")
    g("L_A_ni2:")
    if g.o["sw"] == 1:
        g("s_cmp_eq_u32 s74, 1"); g("s_cbranch_scc1 L_A_ni3")
    if g.o["sw"] != 2: g("s_waitcnt vmcnt(0)")
    g("L_A_ni3:")
    for o in o0[1:]:
        for x in o: g(x)
    dma_tile(1)
    def pvreg(kk, ct): return 16*kk + 4*ct
    def rdp_txt(kk, ct):
        r = pvreg(kk, ct); row = 16*kk; ab = 24 if row < 64 else 32
        return [f"ds_read_b64_tr_b16 a[{r+2*hv}:{r+2*hv+1}], v{ab+2*ct+hv} offset:{((row % 64) + 8*hv)*1024}" for hv in range(2)]
    def gather():
        for r in range(8):
            g(f"buffer_load_dwordx4 v[{176+4*r}:{179+4*r}], v4, s[4:7], s{78 if r < 4 else 67} offen offset:{(r&3)*1024} sc1")
    mix = g.o["mix"]
    def c0chk():
        g("v_cmp_ne_u32 vcc, 16, v47")
        g("s_cbranch_vccz L_A_c0")
        cnt_wait(g, 47, 12)
        g("L_A_c0:")
    for tl in range(4):
        if not mix:
            g(f"s_waitcnt vmcnt({8 if tl < 3 else 0})")
            if tl == 1: g("buffer_load_dword v47, v12, s[8:11], 0 offen sc1")
            if tl < 2: dma_tile(tl+2)
            if tl == 3:
                c0chk()
                if g.o["eg"]: gather()
        else:
            if tl == 0:
                g("s_waitcnt vmcnt(8)"); g("buffer_load_dword v47, v12, s[8:11], 0 offen sc1"); dma_tile(2)
            if tl == 1: g("s_waitcnt vmcnt(9)")
            if tl == 2:
                g(f"s_waitcnt vmcnt({g.o['mw']})")
                for o in dma_ops(3, ""):
                    for x in o: g(x)
                if mix == 2: c0chk(); gather()
                g(f"s_waitcnt vmcnt({16 if mix == 2 else 8})")
            if tl == 3:
                if mix == 1:
                    g("s_waitcnt vmcnt(0)"); c0chk(); gather()
                else: g("s_waitcnt vmcnt(8)")
        g("s_barrier")
        if tl == 0 and not fine: g.stamp(1)
        if tl == 3 and not fine: g.stamp(2)
        for ks in range(2):
            for ct in range(4):
                for x in rdp_txt(2*tl+ks, ct): g(x)
        sk = g.lab("p1c")
        g(f"s_cmp_lg_u32 s3, {tl}"); g(f"s_cbranch_scc1 {sk}")
        for s in range(32):
            g(f"ds_read_b128 a[{128+4*s}:{131+4*s}], v{16+(s&7)} offset:{(s>>3)*256}")
        g(f"{sk}:")
    g(f"s_mov_b32 s64, {SPIN}")
    if g.o["eg"]: g("s_branch L_A_g1")
    g("L_A_g0:")
    gather()
    g("L_A_g1:")
    for r in range(8):
        g(f"s_waitcnt vmcnt({7-r})")
        g(f"ds_write_b128 v{168+r}, v[{176+4*r}:{179+4*r}] offset:{r*1024}")
        if r == 0: g("v_max3_u32 v9, v176, v177, v178"); g("v_max_u32 v9, v9, v179")
        else: g(f"v_max3_u32 v9, v9, v{176+4*r}, v{177+4*r}"); g(f"v_max3_u32 v9, v9, v{178+4*r}, v{179+4*r}")
    g("s_sub_u32 s64, s64, 1"); g("s_cmp_eq_u32 s64, 0"); g("s_cbranch_scc1 L_A_gok")
    g("v_cmp_eq_u32 vcc, -1, v9")
    g("s_waitcnt lgkmcnt(0)")
    g("s_cbranch_vccnz L_A_g0")
    g("L_A_gok:")
    g("s_waitcnt lgkmcnt(0)")
    g("s_barrier")
    g.stamp(3)
    L = Lds(g)
    dq = []
    for t in range(4, 8): dq += dma_ops(t & 3, "nt" if (mix and t == 4 and not g.o["p5"]) else "")
    if g.o["atq"]:
        dq += [["buffer_load_dword v223, v218, s[44:47], s70 offen"], ["buffer_load_dword v223, v218, s[48:51], s70 offen"], ["buffer_load_dword v223, v219, s[52:55], s71 offen"]]
        g.o["ats"] = 100
    ids = {}
    def rdq(s): ids[s] = L.op(f"ds_read_b128 {qreg(s)}, v{128+(s&7)} offset:{(s>>3)*256}")
    for s in range(QD-1): rdq(s)
    def dpop(n=1):
        for _ in range(n):
            if dq:
                for y in dq.pop(0): g(y)
    dpop(g.o["d0"])
    dn = g.o["dn"]
    for s in range(32):
        L.wait(ids[s])
        c = "0" if s == 0 else "v[48:63]"
        g(f"v_mfma_f32_32x32x16_bf16 v[48:63], a[{128+4*s}:{131+4*s}], {qreg(s)}, {c}")
        if s + QD - 1 < 32: rdq(s + QD - 1)
        if (s + 1) * dn // 32 > s * dn // 32: dpop()
    cpre = g.o["cpre"]; fb = g.o["fb"]
    def sma_ops(ch):
        o = ch*10240
        R = 216 if ch == 0 else 222
        T = []
        T += ["v_max3_f32 v8, v48, v49, v50", "v_max3_f32 v9, v51, v52, v53", "v_max3_f32 v10, v54, v55, v56", "v_max3_f32 v11, v57, v58, v59",
              "v_max3_f32 v8, v8, v60, v61", "v_max3_f32 v9, v9, v62, v63", "v_max_f32 v10, v10, v11", "v_max3_f32 v8, v8, v9, v10"]
        if ch == 0: T += ["v_ceil_f32 v216, v8"]
        else: T += ["v_cmp_gt_f32 vcc, v8, v47", "v_ceil_f32 v8, v8", "s_nop 0", "v_cndmask_b32 v222, v44, v8, vcc"]
        for h in range(2):
            T += [f"v_sub_f32 v{48+8*h+k}, v{48+8*h+k}, v{R}" for k in range(8)]
            T += [f"v_exp_f32 v{48+8*h+k}, v{48+8*h+k}" for k in range(8)]
            if h == 0 and ch == 0: T += ["s_barrier"]
            if h == 0: T += [f"@ds_write_b32 v41, v{R} offset:{o}"]
            T += [f"v_cvt_pk_bf16_f32 v{168+4*h+k}, v{48+8*h+2*k}, v{49+8*h+2*k}" for k in range(4)]
            T += [f"@ds_write_b128 v43, v[{168+4*h}:{171+4*h}] offset:{o+1024*h}"]
        return T
    def lsum_ops(ch):
        T = [f"v_add_f32 v{48+k}, v{48+k}, v{56+k}" for k in range(8)]
        T += [f"v_add_f32 v{48+k}, v{48+k}, v{52+k}" for k in range(4)]
        T += ["v_add_f32 v48, v48, v50", "v_add_f32 v49, v49, v51"]
        if ch == 0: T += ["v_add_f32 v217, v48, v49"]
        else: T += ["v_add_f32 v48, v48, v49", "v_add_f32 v217, v217, v48", "@ds_write_b32 v41, v217 offset:1024"]
        return T
    def emit(x):
        if callable(x): return x()
        if x.startswith("@"): return L.op(x[1:])
        g(x)
    def kfix(P, waits=None):
        T = []
        for w in range(4):
            T += [f"v_sub_f32 v{12+w}, v44, v{12+w}", f"v_cvt_u32_f32 v{8+w}, v{12+w}", f"v_min_u32 v{8+w}, 0xff, v{8+w}", f"v_mul_u32_u24 v{8+w}, 0x800080, v{8+w}"]
            for kk in (2*w, 2*w+1):
                if waits is not None: T += [lambda kk=kk: L.wait(waits[kk])]
                T += [f"v_pk_sub_u16 v{P+4*kk+i}, v{P+4*kk+i}, v{8+w} clamp" for i in range(4)]
        return T
    def cost(x):
        if callable(x): return getattr(x, "c", 0)
        if x.startswith("v_exp"): return 2
        return 1
    def fill(q, budget):
        while q and budget > 0:
            x = q.pop(0); budget -= cost(x); emit(x)
        return budget
    def rdop(d, key, txt):
        def f(): d[key] = L.op(txt)
        f.c = 1
        return f
    order = [(kk, ct) for ct in range(4) for kk in range(8)]
    pvid = {}; rq = []
    def refill(cnt):
        n_ = 0
        while rq and n_ < cnt:
            key, x = rq.pop(0); pvid[key] = L.op(x); n_ += 1
        return n_
    def pv0(kk, ct):
        r = pvreg(kk, ct)
        c = "0" if kk == 0 else f"v[{64+16*ct}:{79+16*ct}]"
        g(f"v_mfma_f32_32x32x16_bf16 v[{64+16*ct}:{79+16*ct}], a[{r}:{r+3}], v[{128+4*kk}:{131+4*kk}], {c}")
    def flush_until(q, prefix):
        if any((not callable(x)) and x.startswith(prefix) for x in q):
            while True:
                x = q.pop(0); emit(x)
                if (not callable(x)) and x.startswith(prefix): break
            g("s_nop 1")
    if fine: g.stamp(1)
    n0_ = len(g.L); dpop(g.o["d1"]); g.nop(max(0, 12 - (len(g.L) - n0_)))
    for x in sma_ops(0): emit(x)
    dpop(g.o["d2"] if cpre else 100)
    if cpre == 0:
        for x in lsum_ops(0): emit(x)
    L.all()
    if cpre == 0: g("s_waitcnt vmcnt(0)")
    g("s_barrier")
    if fine: g.stamp(2)
    r0 = {}
    qr = [rdop(r0, "x", "ds_read_b128 v[12:15], v40"), rdop(r0, "ref", "ds_read_b128 v[168:171], v46")]
    qr += [rdop(r0, k, f"ds_read_b128 v[{128+4*k}:{131+4*k}], v42 offset:{1024*k}") for k in range(8)]
    q2 = [lambda: L.wait(r0["ref"]), "v_max3_f32 v9, v12, v13, v14", "v_max3_f32 v10, v169, v170, v171", "v_max3_f32 v9, v9, v15, v168", "v_max_f32 v44, v9, v10"]
    q2 += kfix(128, r0)
    q2 += ["v_sub_f32 v216, v216, v44", "v_exp_f32 v216, v216", f"v_add_f32 v47, 0x{f2u(float(g.o['thr'])):08x}, v44", "v_mul_f32 v217, v217, v216"]
    if cpre:
        for x in qr: emit(x)
        qr = []
        for x in lsum_ops(0): emit(x)
        flush_until(q2, "v_pk_sub_u16 v135,")
        for n, (kk, ct) in enumerate(order[:8*cpre]):
            if ct == 0: flush_until(q2, f"v_pk_sub_u16 v{128+4*kk+3},")
            pv0(kk, ct)
            fill(q2, 6 if ct == 0 else 4)
            if n % g.o["d3"] == 0: dpop()
            rq += [((kk, ct), x) for x in rdp_txt(kk, ct)]
        dpop(100)
        g(f"s_waitcnt vmcnt({3 if g.o['atq'] else 0})")
        g("s_barrier")
    g.stamp(4)
    D = 6
    ids = {}
    def rdc(s):
        r = 176 + 4*(s % 8)
        ids[s] = L.op(f"ds_read_b128 v[{r}:{r+3}], v{16+(s&7)} offset:{(s>>3)*256}")
    for s in range(D): rdc(s)
    oi = g.o["oi"]
    if oi:
        for k in range(4): g(f"v_mov_b32 v{172+k}, -1")
    for s in range(32):
        L.wait(ids[s])
        r = 176 + 4*(s % 8)
        c = "0" if s == 0 else "v[48:63]"
        g(f"v_mfma_f32_32x32x16_bf16 v[48:63], v[{r}:{r+3}], {qreg(s)}, {c}")
        if s + D < 32: rdc(s + D)
        at = g.o["ats"]
        if oi and s % 3 == 0 and s < 24:
            n_ = s // 3
            g(f"s_add_u32 s63, s65, {(n_&3)*8*32768}")
            g(f"buffer_store_dwordx4 v[172:175], v213, s[4:7], s63 offen offset:{(n_>>2)*128} sc1")
        elif s == at: g("buffer_load_dword v223, v218, s[44:47], s70 offen")
        elif s == at + 3: g("buffer_load_dword v223, v218, s[48:51], s70 offen")
        elif s == at + 6: g("buffer_load_dword v223, v219, s[52:55], s71 offen")
        elif qr: fill(qr, 2)
        elif q2 and (s >= 7 or cpre): fill(q2, 3)
        else: refill(2)
    fill(q2, 1000)
    g.stamp(5)
    q = sma_ops(1)
    r1 = {}
    qr = [rdop(r1, "x", "ds_read_b128 v[12:15], v40 offset:10240"), rdop(r1, "ref", "ds_read_b128 v[218:221], v46 offset:10240")]
    qr += [rdop(r1, k, f"ds_read_b128 v[{176+4*k}:{179+4*k}], v42 offset:{10240+1024*k}") for k in range(8)]
    state = 0; dist = 0
    for n, (kk, ct) in enumerate(order[8*cpre:]):
        pv0(kk, ct); dist += 1
        if state == 0:
            if dist < 12:
                k_ = refill(3); dist += k_
                if k_ < 3: g.nop(3 - k_); dist += 3 - k_
            else:
                fill(q, fb)
                if not q:
                    last_w = L.n; state = 1
        elif state == 1:
            L.wait(last_w); g("s_barrier"); state = 2
            fill(qr, 3)
        elif state == 2:
            if qr: fill(qr, 3)
            else: refill(3)
        rq += [((kk, ct), x) for x in rdp_txt(kk, ct)]
    if state == 0:
        if dist < 12: g.nop(12 - dist)
        fill(q, 1000); last_w = L.n; state = 1
    if state == 1:
        L.wait(last_w); g("s_barrier")
    fill(qr, 1000)
    L.wait(r1["ref"])
    g("v_max3_f32 v9, v12, v13, v14"); g("v_max3_f32 v10, v219, v220, v221"); g("v_max3_f32 v9, v9, v15, v218"); g("v_max_f32 v9, v9, v10")
    g("v_cmp_neq_f32 vcc, v9, v44")
    g("s_cbranch_vccnz L_A_slow")
    g("L_A_back:")
    slow = ["L_A_slow:", "s_waitcnt lgkmcnt(0)", "v_sub_f32 v47, v44, v9", "v_sub_f32 v222, v222, v9", "v_mov_b32 v44, v9", "v_exp_f32 v47, v47", "v_exp_f32 v222, v222"] + kfix(176) + \
           [f"v_mul_f32 v{64+k}, v47, v{64+k}" for k in range(64)] + ["v_mul_f32 v217, v47, v217"] + \
           [f"v_mul_f32 v{48+k}, v222, v{48+k}" for k in range(16)] + ["s_branch L_A_back"]
    g.slow = slow
    if fine: g.stamp(10)
    def epi_w(ct, qq):
        b = 128+8*(ct&1)+4*qq
        return [f"v_cvt_pk_bf16_f32 v{b+k}, v{64+16*ct+8*qq+2*k}, v{65+16*ct+8*qq+2*k}" for k in range(4)] + \
               [f"@ds_write_b128 v{208+2*(ct&1)+qq}, v[{b}:{b+3}] offset:{(ct>>1)*128}"]
    er = {}
    def epi_r(half):
        return [rdop(er, (half, n_), f"ds_read_b128 v[{224+16*half+4*n_}:{227+16*half+4*n_}], v212 offset:{n_*8192+half*128}") for n_ in range(4)]
    def epi_s(half, n_):
        def f():
            L.wait(er[(half, n_)])
            if g.o["oi"] and half == 0 and n_ == 0: g("s_waitcnt vmcnt(0)")
            g(f"s_add_u32 s63, s65, {n_*8*32768}")
            g(f"buffer_store_dwordx4 v[{224+16*half+4*n_}:{227+16*half+4*n_}], v213, s[4:7], s63 offen offset:{half*128} sc1")
        f.c = g.o['sc']
        return f
    lw = {}
    def mark(): lw["w"] = L.n
    def lbar(): L.wait(lw["w"]); g("s_barrier")
    lbar.c = 2
    q = lsum_ops(1) + [mark]
    ql = [lbar, rdop(lw, "a", "ds_read_b128 v[52:55], v40 offset:1024"), rdop(lw, "b", "ds_read_b128 v[56:59], v46 offset:1024")]
    ql2 = [lambda: L.wait(lw["b"])] + [f"v_add_f32 v{52+w}, v{52+w}, v{56+w}" for w in range(4)] + \
        ["v_add_f32 v52, v52, v53", "v_add_f32 v54, v54, v55", "v_add_f32 v45, v52, v54"] + \
        [f"@ds_bpermute_b32 v{60+i}, v215, v{44+(i&1)}" for i in range(4)]
    wdone = 0
    for n, (kk, ct) in enumerate(order):
        r = pvreg(kk, ct)
        while (kk, ct) not in pvid or any(k == (kk, ct) for k, _ in rq): refill(1)
        if ct == 0: L.wait(r1[kk])
        L.wait(pvid[(kk, ct)])
        g(f"v_mfma_f32_32x32x16_bf16 v[{64+16*ct}:{79+16*ct}], a[{r}:{r+3}], v[{176+4*kk}:{179+4*kk}], v[{64+16*ct}:{79+16*ct}]")
        b = 4 - refill(3)
        if kk == 0: since = 0
        if not rq and wdone < ct and since >= 11:
            q += epi_w(wdone, 0) + epi_w(wdone, 1)
            if wdone == 0: q += ql
            if wdone == 1: q += epi_r(0) + ql2 + [epi_s(0, n_) for n_ in range(4)]
            wdone += 1
        n0_ = len(g.L)
        b = fill(q, b)
        if b > 0 and wdone < ct and since < 11:
            g.nop(b); since += b
        since += 1 + (4 - max(b, 0))
    while wdone < 3:
        q += epi_w(wdone, 0) + epi_w(wdone, 1)
        if wdone == 0: q += ql
        if wdone == 1: q += epi_r(0) + ql2 + [epi_s(0, n_) for n_ in range(4)]
        wdone += 1
    n0_ = len(g.L)
    fill(q, 1000)
    if g.o["fine2"]: g.stamp(1)
    g.nop(max(0, 12 - (len(g.L) - n0_)))
    for x in epi_w(3, 0) + epi_w(3, 1) + epi_r(1) + [epi_s(1, n_) for n_ in range(4)]: emit(x)
    g.stamp(9)
    if g.o["fsb"]: ffn_setup(g)
    if not g.o["oi"]: g("s_waitcnt vmcnt(0)")
    g("s_barrier")
    g("buffer_store_dwordx4 v[60:63], v214, s[4:7], s79 offen sc1")
    if not fine: g.stamp(10)

def gen(opts):
    g = G(opts)
    g("s_load_dwordx16 s[16:31], s[0:1], 0")
    g("s_load_dwordx8 s[32:39], s[0:1], 64")
    g("s_load_dwordx2 s[40:41], s[0:1], 96")
    g("s_cmp_ge_u32 s2, 256"); g("s_cbranch_scc1 L_end")
    g.stamp(0)
    g("s_getpc_b64 s[4:5]")
    g("s_and_b32 s5, s5, 0xffff"); g("s_mov_b32 s6, L_end - L_pcv"); g("s_mov_b32 s7, 0x20000")
    g("L_pcv:")
    g("s_bfe_u32 s62, s2, 0x40003"); g("s_lshl_b32 s62, s62, 12")
    g("v_lshlrev_b32 v1, 4, v0")
    g("buffer_load_dwordx4 v[252:255], v1, s[4:7], s62 offen")
    g("v_lshrrev_b32 v2, 6, v0"); g("v_and_b32 v1, 63, v0")
    g("v_readfirstlane_b32 s3, v2")
    g("v_and_b32 v2, 15, v0"); g("v_lshrrev_b32 v3, 4, v1")
    g("s_and_b32 s62, s2, 7"); g("s_lshr_b32 s43, s2, 4"); g("s_lshl_b32 s42, s43, 3"); g("s_or_b32 s42, s42, s62")
    g("s_and_b32 s73, s43, 3")
    g("s_lshr_b32 s43, s43, 2")
    g("s_lshl_b32 s72, s62, 2"); g("s_or_b32 s72, s72, s43")
    g("s_lshl_b32 s43, s43, 3"); g("s_or_b32 s43, s43, s62")
    g("s_mov_b32 s60, 0x05040100"); g("s_mov_b32 s61, 0x07060302")
    if opts.get("stamps"):
        for k in range(82, 102): g(f"s_mov_b32 s{k}, 0")
    g("s_bitcmp1_b32 s2, 3")
    g("s_cbranch_scc1 L_A")
    tcu(g)
    g("L_A:")
    acu(g)
    if not g.o["fsb"]: ffn_setup(g)
    g(f"s_cmp_lt_u32 s66, {NSL}"); g("s_cbranch_scc1 L_FW")
    g("s_cmp_lg_u32 s66, 31"); g("s_cbranch_scc1 L_fin")
    x_issue(g); g("s_waitcnt vmcnt(0)"); x_finish(g)
    g("s_branch L_FFN")
    g("L_FW:")
    x_issue(g)
    if g.o["fw"]: g("s_waitcnt vmcnt(0)")
    if g.o["fi"]: ffn_issue2(g)
    else: ffn_issue(g); ffn_finish(g)
    if not g.o["fine"]: g.stamp(6)
    if g.o["ec"]:
        g(f"s_mov_b32 s65, {SPIN}")
        for k in range(24): g(f"v_mov_b32 v{192+k}, 0")
        g("s_waitcnt vmcnt(0)")
        g("v_cmp_eq_u32 vcc, -1, v14")
        g("s_cbranch_vccz L_FGO")
    g("L_FFN:")
    ffn_stage(g)
    g("L_fin:")
    if opts["probe"]:
        wg, k = [int(x) for x in opts["probe"].split(",")]
        g("s_waitcnt lgkmcnt(0)")
        g(f"s_cmp_lg_u32 s2, {wg}"); g("s_cbranch_scc1 L_end")
        g("s_cmp_lg_u32 s3, 0"); g("s_cbranch_scc1 L_end")
        g(f"s_sub_u32 s64, s{80+2*k}, s80"); g("s_mul_i32 s64, s64, 20"); g("s_min_u32 s64, s64, 100000")
        g("s_memrealtime s[62:63]"); g("s_waitcnt lgkmcnt(0)"); g("s_add_u32 s64, s64, s62")
        g("L_pr:")
        g("s_sleep 2")
        g("s_memrealtime s[62:63]"); g("s_waitcnt lgkmcnt(0)")
        g("s_sub_u32 s62, s62, s64"); g("s_cmp_lt_i32 s62, 0"); g("s_cbranch_scc1 L_pr")
    elif opts.get("stamps"):
        nst = 11
        g("s_waitcnt lgkmcnt(0)")
        g("s_cmp_lg_u32 s3, 0"); g("s_cbranch_scc1 L_end")
        g("s_mov_b64 exec, 1")
        g(f"s_mul_i32 s62, s2, {nst*8}"); g(f"s_add_u32 s62, s62, {WS - 256*nst*8}")
        g("v_mov_b32 v3, 0")
        for k in range(nst):
            g(f"v_mov_b32 v4, s{80+2*k}"); g(f"v_mov_b32 v5, s{81+2*k}")
            g(f"buffer_store_dwordx2 v[4:5], v3, s[4:7], s62 offen offset:{8*k}")
            g("s_nop 1")
    g("L_end:")
    g("s_endpgm")
    for x in g.slow + getattr(g, "slow0", []): g(x)
    hdr = open("hdr.txt").read()
    return hdr + "; @launch grid=(256,1,1) block=(256,1,1) lds=163840\n" + '.amdgcn_target "amdgcn-amd-amdhsa--gfx950"\n.text\n' + kstart(KN) + "\n".join(g.L) + "\n" + kdesc(KN, vgpr=512, accum=256).replace(".text\n", "")

if __name__ == "__main__":
    import argparse
    ap = argparse.ArgumentParser()
    ap.add_argument("out"); ap.add_argument("--stamps", action="store_true")
    ap.add_argument("--thr", type=float, default=30); ap.add_argument("--probe", default=""); ap.add_argument("--pflag", default=""); ap.add_argument("--cf0", default="nt")
    for k, v in (("fine", 0), ("fine2", 0), ("tsleep", 1), ("fsleep", 1), ("fb", 4), ("cpre", 2), ("d0", 8), ("dn", 12), ("d1", 4), ("d2", 4), ("d3", 1), ("sc", 4),
                 ("ats", 1), ("nb", 3), ("rep", 0), ("eg", 1), ("fsb", 0), ("xnp", 0), ("osc", 0), ("tord", 0), ("oi", 0), ("cls", 0), ("cu", 1), ("pb", 1), ("sw", 1), ("atq", 0), ("fi", 0), ("mix", 0), ("mw", 0), ("p5", 1), ("pp", 6), ("rot", 11), ("skew", 0), ("fw", 1), ("ec", 0)): ap.add_argument("--" + k, type=int, default=v)
    a = ap.parse_args()
    open(a.out, "w").write(gen(vars(a)))
```

```python
import sys, math, struct
from gen_common import *
def f2u(x): return struct.unpack("<I", struct.pack("<f", x))[0]
QABS = 0x000000
STAT = 0x040000
OPART = 0x100000
APART = 0x500000
FPART = 0x600000
OOB = 0x40000000
SCALE = (128 ** -0.5) * math.log2(math.e)
class G:
    def __init__(s, opts):
        s.L = []; s.o = opts; s.uid = 0
    def a(s, x): s.L.append(x)
    def __call__(s, x): s.L.append(x)
    def lab(s, p="L"):
        s.uid += 1; return f"{p}_{s.uid}"
    def nop(s, n):
        while n > 0:
            k = min(n, 16); s.a(f"s_nop {k-1}"); n -= k
    def stamp(s, k):
        if s.o.get("stamps"):
            s.a(f"s_memrealtime s[{80+2*k}:{81+2*k}]")
    def srd(s, d, p, size):
        s.a(f"s_mov_b32 s{d}, s{p}"); s.a(f"s_and_b32 s{d+1}, s{p+1}, 0xffff")
        s.a(f"s_mov_b32 s{d+2}, {size}"); s.a(f"s_mov_b32 s{d+3}, 0x20000")
    def dpp(s, op, v, ctrl):
        s.a("s_nop 1"); s.a(f"{op}_dpp v{v}, v{v}, v{v} {ctrl} row_mask:0xf bank_mask:0xf")
    def allred(s, op, v, t, width=64):
        for c in ("quad_perm:[1,0,3,2]", "quad_perm:[2,3,0,1]", "row_half_mirror", "row_mirror"):
            s.dpp(op, v, c)
        if width >= 32:
            s.a(f"v_mov_b32 v{t}, v{v}"); s.a("s_nop 1"); s.a(f"v_permlane16_swap_b32 v{v}, v{t}"); s.a(f"{op} v{v}, v{v}, v{t}")
        if width >= 64:
            s.a(f"v_mov_b32 v{t}, v{v}"); s.a("s_nop 1"); s.a(f"v_permlane32_swap_b32 v{v}, v{t}"); s.a(f"{op} v{v}, v{v}, v{t}")
    def bf16r(s, d, v):
        s.a(f"v_cvt_pk_bf16_f32 v{d}, v{v}, v{v}"); s.a(f"v_lshlrev_b32 v{d}, 16, v{d}")
    def maxtree(s, d, regs):
        regs = list(regs)
        s.a(f"v_max3_u32 v{d}, v{regs[0]}, v{regs[1]}, v{regs[2]}")
        i = 3
        while i + 1 < len(regs):
            s.a(f"v_max3_u32 v{d}, v{d}, v{regs[i]}, v{regs[i+1]}"); i += 2
        if i < len(regs):
            s.a(f"v_max_u32 v{d}, v{d}, v{regs[i]}")
    def perm8x8(s, R, T, acc=None):
        for t in range(8):
            for p in range(4):
                s.a(f"v_perm_b32 v{T+4*t+p}, v{R+4*(2*p+1)+(t>>1)}, v{R+4*(2*p)+(t>>1)}, s{60+(t&1)}")
        if acc is not None:
            for k in range(32):
                s.a(f"v_accvgpr_write_b32 a{acc+k}, v{T+k}")

def fswz(k):
    return ((k & 3) << 2) | ((k >> 2) & 3)

SPIN = 20000
LDS_XN = 0
LDS_QX = 8192
LDS_OT = 16384
LDS_FX = 49152
LDS_CX = 49664
LDS_CS = 51200
LDS_GX = 53248
LDS_FW = 57344
NSL = 29
LQ = 131072
LRF = LQ
LP = LQ + 2048
TS = 0x100000
SMF = "v_smfmac_f32_16x16x64_bf16"
M16 = "v_mfma_f32_16x16x32_bf16"

def poll_loop(g, body, cond, spin=SPIN, sleep=1):
    l = g.lab("pl"); e = g.lab("ple"); f = g.lab("plf")
    g(f"s_mov_b32 s64, {spin}")
    if sleep: g(f"s_branch {f}")
    g(f"{l}:")
    if sleep:
        g(f"s_sleep {sleep}")
        g(f"{f}:")
    body()
    g("s_sub_u32 s64, s64, 1"); g("s_cmp_eq_u32 s64, 0")
    g("s_waitcnt vmcnt(0)")
    g(f"s_cbranch_scc1 {e}")
    cond()
    g(f"s_cbranch_vccnz {l}")
    g(f"{e}:")

def cnt_wait(g, vt, vo, sleep=4):
    poll_loop(g, lambda: g(f"buffer_load_dword v{vt}, v{vo}, s[8:11], 0 offen sc1"),
              lambda: g(f"v_cmp_ne_u32 vcc, 16, v{vt}"), sleep=sleep)

def tile_setup(g, rot):
    g("v_lshlrev_b32 v8, 1, v3"); g("v_xor_b32 v8, v8, v2"); g("v_lshlrev_b32 v8, 4, v8"); g("v_lshl_add_u32 v8, v3, 10, v8")
    g("v_xor_b32 v9, 0x80, v8")
    g("s_lshl_b32 s68, s3, 13"); g(f"s_add_u32 s68, s68, {LDS_OT}")
    g("v_bfe_u32 v11, v1, 2, 2")
    g("v_lshl_add_u32 v10, v3, 3, v11"); g("v_lshlrev_b32 v10, 8, v10")
    g("v_and_b32 v12, 1, v3"); g("v_lshl_add_u32 v12, v12, 2, v11"); g("v_lshlrev_b32 v12, 1, v12")
    g("v_bfe_u32 v13, v1, 1, 1"); g("v_xor_b32 v12, v12, v13")
    g("v_lshl_add_u32 v10, v12, 4, v10")
    g("v_and_b32 v13, 1, v1"); g("v_lshl_add_u32 v10, v13, 3, v10")
    g("v_add_u32 v10, s68, v10")
    if rot:
        g("s_lshr_b32 s63, s73, 1"); g("s_lshl_b32 s63, s63, 7"); g("s_and_b32 s62, s73, 1"); g("s_lshl_b32 s62, s62, 4"); g("s_or_b32 s63, s63, s62")
        g("v_xor_b32 v10, s63, v10")
    for t in range(8): g(f"v_xor_b32 v{112+t}, {t<<5}, v10")
    g("s_mov_b32 s70, 0xaaaaaaaa"); g("s_mov_b32 s71, 0xaaaaaaaa")
    g("v_mov_b32 v29, 0x4444"); g("v_mov_b32 v28, 0xeeee"); g("v_cndmask_b32 v29, v29, v28, s[70:71]")

def tile_dma(g, sbase):
    g("s_mov_b32 m0, s68"); g(f"s_mov_b32 s63, s{sbase}")
    for n in range(8):
        g(f"buffer_load_dwordx4 v{8+((n>>1)&1)}, s[4:7], s63 offen sc1 lds")
        if n < 7:
            g("s_addk_i32 m0, 0x400"); g("s_addk_i32 s63, 0x1000")

def tile_read(g, A):
    for t in range(8):
        if t == 6: g("s_waitcnt lgkmcnt(8)")
        g(f"ds_read_b64_tr_b16 v[{A+4*t}:{A+4*t+1}], v{112+t}")
        g(f"ds_read_b64_tr_b16 v[{A+4*t+2}:{A+4*t+3}], v{112+t} offset:1024")

def ffn_setup(g):
    g("s_mov_b32 s66, s72"); g("s_mov_b32 s67, s73")
    g.srd(56, 16, 4096)
    for m in range(3):
        g(f"v_add_u32 v7, {64*m}, v1"); g("v_mul_u32_u24 v8, 43691, v7"); g("v_lshrrev_b32 v8, 18, v8")
        g(f"v_mul_u32_u24 v{4+m}, {2752-96}, v8"); g(f"v_lshl_add_u32 v{4+m}, v7, 4, v{4+m}")
    g("v_lshlrev_b32 v121, 11, v3"); g("v_lshl_add_u32 v121, v2, 4, v121")
    g("v_lshlrev_b32 v122, 3, v3")
    for k in range(4): g(f"v_mov_b32 v{24+k}, 0x3f803f80")
    tile_setup(g, False)
    g("v_and_b32 v10, 1, v3"); g("v_lshlrev_b32 v10, 5, v10"); g("v_lshrrev_b32 v12, 1, v3"); g("v_lshl_add_u32 v10, v12, 2, v10"); g("v_add_u32 v10, v10, v11")
    g("v_mul_u32_u24 v125, 96, v10"); g("v_and_b32 v28, 3, v1"); g("v_lshl_add_u32 v125, v28, 3, v125")
    g("s_mul_i32 s76, s3, 24576"); g(f"s_add_u32 s76, s76, {LDS_FW}"); g("v_add_u32 v125, s76, v125")
    for p in range(4):
        g(f"v_cmp_eq_u32 vcc, {p}, v28"); g("s_nop 1"); g(f"v_cndmask_b32 v{16+p}, 0, -1, vcc")
    for p in range(4): g(f"v_and_b32 v{20+p}, 0xffff, v{16+(p^1)}")
    g("v_xor_b32 v10, 1, v28"); g("v_lshlrev_b32 v10, 2, v10"); g("v_lshlrev_b32 v30, v10, 10"); g("v_or_b32 v30, 0x4444, v30")
    g("v_lshlrev_b32 v120, 5, v2"); g("s_lshl_b32 s62, s3, 9"); g(f"s_add_u32 s62, s62, {LDS_CS}"); g("v_add_u32 v120, s62, v120")
    g("v_lshl_add_u32 v7, v3, 2, v28"); g("v_lshlrev_b32 v7, 5, v7")
    rep = g.o["rep"]
    g("s_lshl_b32 s69, s67, 15"); g("s_lshl_b32 s63, s3, 8"); g("s_add_u32 s69, s69, s63"); g(f"s_add_u32 s69, s69, {APART}")
    if rep:
        g("s_and_b32 s63, s42, 7"); g("s_lshl_b32 s63, s63, 17"); g("s_add_u32 s69, s69, s63")
    g("v_lshrrev_b32 v13, 1, v1"); g("v_lshlrev_b32 v13, 10, v13"); g("v_and_b32 v14, 1, v1"); g("v_lshl_add_u32 v13, v14, 7, v13")
    g("v_lshlrev_b32 v123, 5, v2"); g("v_lshl_add_u32 v123, v3, 4, v123")
    g("s_lshl_b32 s74, s67, 5"); g("s_add_u32 s74, s74, s66"); g("s_lshl_b32 s74, s74, 11")
    g("s_lshl_b32 s63, s3, 9"); g("s_add_u32 s74, s74, s63"); g(f"s_add_u32 s74, s74, {FPART}")
    c1 = -2 * math.sqrt(2 / math.pi) * math.log2(math.e)
    g(f"s_mov_b32 s75, 0x{f2u(c1*0.044715):08x}"); g(f"v_mov_b32 v124, 0x{f2u(c1):08x}")
    for k in range(32): g(f"v_mov_b32 v{160+k}, 0")

def x_issue(g):
    g("s_lshl_b32 s62, s67, 10"); g("s_lshl_b32 s63, s3, 8"); g("s_add_u32 s62, s62, s63")
    for t in range(8):
        g(f"buffer_load_dwordx2 v[{96+2*t}:{97+2*t}], v122, s[56:59], s62 offen offset:{32*t}")

def x_finish(g):
    for t in range(8):
        for q in range(2):
            g(f"v_lshlrev_b32 v{128+4*t+2*q}, 16, v{96+2*t+q}")
            g(f"v_and_b32 v{128+4*t+2*q+1}, 0xffff0000, v{96+2*t+q}")

def ffn_issue(g):
    g(f"s_mul_i32 s62, s3, {128*2752}"); g("s_mul_i32 s63, s66, 96"); g("s_mov_b32 m0, s76"); g("s_add_u32 s62, s62, s63")
    for n in range(12):
        g(f"buffer_load_dwordx4 v{4+n%3}, s[44:47], s62 offen lds")
        g("s_addk_i32 m0, 0x3000"); g("s_nop 0")
        g(f"buffer_load_dwordx4 v{4+n%3}, s[48:51], s62 offen lds")
        if n < 11:
            g("s_addk_i32 m0, 0xd400")
            g(f"s_add_u32 s62, s62, {32*2752}" if n % 3 == 2 else "s_nop 0")
    g("s_mul_i32 s62, s66, 49152"); g("s_lshl_b32 s63, s3, 8"); g("s_add_u32 s62, s62, s63")
    for hb in range(2):
        for pos in range(3):
            g(f"s_add_u32 s63, s62, {(16*pos + 8*hb)*1024}")
            for q in range(2):
                r = 192 + 24*hb + 8*pos + 4*q
                g(f"buffer_load_dwordx4 v[{r}:{r+3}], v121, s[52:55], s63 offen offset:{(q if pos < 2 else q ^ 1)*1024}")

def ffn_finish(g):
    g("s_waitcnt vmcnt(36)")
    if g.o["fine2"]: g.stamp(3)
    x_finish(g)
    for s2 in range(2):
        g(f"s_waitcnt vmcnt({12 + 12*(1-s2)})")
        for t in range(6):
            for hb in range(2):
                for hv in range(2):
                    r = 48*s2+8*t+4*hb+2*hv
                    g(f"ds_read_b64_tr_b16 a[{r}:{r+1}], v125 offset:{(64*s2+8*hb+16*hv)*96+(t%3)*32+(t//3)*12288}")
    g("s_waitcnt lgkmcnt(0)")
    if g.o["fine2"]: g.stamp(4)
    for ks in range(4):
        for t in range(6):
            c = "0" if ks == 0 else f"v[{32+4*t}:{35+4*t}]"
            r = 48*(ks>>1)+8*t+4*(ks&1)
            g(f"{M16} v[{32+4*t}:{35+4*t}], v[24:27], a[{r}:{r+3}], {c}")
    g("s_waitcnt vmcnt(0)")
    if g.o["ec"]: g("buffer_load_dword v14, v13, s[4:7], s69 offen sc1")
    for hb in range(2):
        for t in range(8):
            R = lambda pos, q: 192 + 24*hb + 8*pos + 4*q + (t>>1)
            for q in range(2):
                g(f"v_perm_b32 v{64+2*q}, v{R(1,q)}, v{R(0,q)}, s{60+(t&1)}")
                g(f"v_perm_b32 v{65+2*q}, v{R(2,q)}, v{R(2,q)}, s{60+(t&1)}")
            for p in range(4): g(f"v_accvgpr_write_b32 a{96+8*t+4*hb+p}, v{64+p}")
        if hb == 0:
            g("ds_write2_b32 v120, v32, v36 offset0:0 offset1:1"); g("ds_write2_b32 v120, v40, v44 offset0:2 offset1:4"); g("ds_write2_b32 v120, v48, v52 offset0:5 offset1:6")
    if g.o["fine2"]: g.stamp(5)
    g("s_waitcnt lgkmcnt(0)")
    g("s_barrier")
    for w in range(4):
        g(f"ds_read_b128 v[{32+8*w}:{35+8*w}], v7 offset:{LDS_CS+512*w}"); g(f"ds_read_b128 v[{36+8*w}:{39+8*w}], v7 offset:{LDS_CS+512*w+16}")
    g(f"v_add_u32 v120, {LDS_GX-LDS_CS}, v120")
    g("s_waitcnt lgkmcnt(0)")
    for k in (0, 1, 2, 4, 5, 6):
        g(f"v_add_f32 v{32+k}, v{32+k}, v{40+k}"); g(f"v_add_f32 v{48+k}, v{48+k}, v{56+k}")
        g(f"v_add_f32 v{224+k}, v{32+k}, v{48+k}")

def ffn_issue2(g):
    g("s_mul_i32 s62, s66, 49152"); g("s_lshl_b32 s63, s3, 8"); g("s_add_u32 s62, s62, s63")
    for hb in range(2):
        for pos in range(3):
            g(f"s_add_u32 s63, s62, {(16*pos + 8*hb)*1024}")
            for q in range(2):
                r = 192 + 24*hb + 8*pos + 4*q
                g(f"buffer_load_dwordx4 v[{r}:{r+3}], v121, s[52:55], s63 offen offset:{(q if pos < 2 else q ^ 1)*1024}")
    g(f"s_mul_i32 s62, s3, {128*2752}"); g("s_mul_i32 s63, s66, 96"); g("s_mov_b32 m0, s76"); g("s_add_u32 s62, s62, s63")
    def dperm(hb, ts):
        for t in ts:
            R = lambda pos, q: 192 + 24*hb + 8*pos + 4*q + (t>>1)
            for q in range(2):
                g(f"v_perm_b32 v{64+2*q}, v{R(1,q)}, v{R(0,q)}, s{60+(t&1)}")
                g(f"v_perm_b32 v{65+2*q}, v{R(2,q)}, v{R(2,q)}, s{60+(t&1)}")
            for p in range(4): g(f"v_accvgpr_write_b32 a{96+8*t+4*hb+p}, v{64+p}")
    def trs(s2):
        for t in range(6):
            for hb in range(2):
                for hv in range(2):
                    r = 48*s2+8*t+4*hb+2*hv
                    g(f"ds_read_b64_tr_b16 a[{r}:{r+1}], v125 offset:{(64*s2+8*hb+16*hv)*96+(t%3)*32+(t//3)*12288}")
    def cs(s2):
        for hb in range(2):
            for t in range(6):
                c = "0" if s2 + hb == 0 else f"v[{32+4*t}:{35+4*t}]"
                r = 48*s2+8*t+4*hb
                g(f"{M16} v[{32+4*t}:{35+4*t}], v[24:27], a[{r}:{r+3}], {c}")
    for n in range(12):
        g(f"buffer_load_dwordx4 v{4+n%3}, s[44:47], s62 offen lds")
        g("s_addk_i32 m0, 0x3000"); g("s_nop 0")
        g(f"buffer_load_dwordx4 v{4+n%3}, s[48:51], s62 offen lds")
        if n < 11:
            g("s_addk_i32 m0, 0xd400")
            g(f"s_add_u32 s62, s62, {32*2752}" if n % 3 == 2 else "s_nop 0")
        k = 2*(n+1)
        if n == 2: g(f"s_waitcnt vmcnt({12+k})"); x_finish(g)
        if n == 4: g(f"s_waitcnt vmcnt({6+k})"); dperm(0, range(4))
        if n == 5: dperm(0, range(4, 8))
        if n == 6: g(f"s_waitcnt vmcnt({k})"); dperm(1, range(4))
        if n == 7: dperm(1, range(4, 8))
        if n == 10:
            g(f"s_waitcnt vmcnt({k-12})"); trs(0)
    g("s_waitcnt lgkmcnt(0)")
    cs(0)
    g("s_waitcnt vmcnt(0)")
    if g.o["ec"]: g("buffer_load_dword v14, v13, s[4:7], s69 offen sc1")
    trs(1)
    g("s_waitcnt lgkmcnt(0)")
    cs(1)
    g.nop(4)
    g("ds_write2_b32 v120, v32, v36 offset0:0 offset1:1"); g("s_nop 0"); g("ds_write2_b32 v120, v40, v44 offset0:2 offset1:4"); g("s_nop 0"); g("ds_write2_b32 v120, v48, v52 offset0:5 offset1:6")
    g("s_waitcnt lgkmcnt(0)")
    g("s_barrier")
    for w in range(4):
        g(f"ds_read_b128 v[{32+8*w}:{35+8*w}], v7 offset:{LDS_CS+512*w}"); g(f"ds_read_b128 v[{36+8*w}:{39+8*w}], v7 offset:{LDS_CS+512*w+16}")
    g(f"v_add_u32 v120, {LDS_GX-LDS_CS}, v120")
    g("s_waitcnt lgkmcnt(0)")
    for k in (0, 1, 2, 4, 5, 6):
        g(f"v_add_f32 v{32+k}, v{32+k}, v{40+k}"); g(f"v_add_f32 v{48+k}, v{48+k}, v{56+k}")
        g(f"v_add_f32 v{224+k}, v{32+k}, v{48+k}")

def ffn_stage(g):
    g(f"s_mov_b32 s65, {SPIN}")
    l = g.lab("fp"); e = g.lab("fpe")
    g(f"{l}:")
    for k in range(24): g(f"v_mov_b32 v{192+k}, 0")
    poll_loop(g, lambda: g("buffer_load_dword v14, v13, s[4:7], s69 offen sc1"), lambda: g("v_cmp_eq_u32 vcc, -1, v14"), spin=4*SPIN, sleep=g.o["fsleep"])
    g("L_FGO:")
    tile_dma(g, 69)
    if not g.o["cyc"]: g.stamp(7)
    g("s_waitcnt vmcnt(0)")
    tile_read(g, 32)
    for t in range(8):
        g(f"s_waitcnt lgkmcnt({14-2*t})")
        g(f"{M16} v[{64+4*t}:{67+4*t}], v[{32+4*t}:{35+4*t}], v[24:27], v[{128+4*t}:{131+4*t}]")
    def cv(t):
        g(f"v_cvt_pk_bf16_f32 v{96+2*t}, v{64+4*t}, v{65+4*t}")
        g(f"v_cvt_pk_bf16_f32 v{97+2*t}, v{66+4*t}, v{67+4*t}")
        g(f"v_cndmask_b32 v{216+t}, v{96+2*t}, v{97+2*t}, s[70:71]")
    def st(ks, which):
        A = f"v[{96+4*ks}:{99+4*ks}]"; d = 56 + 4*which
        c = "0" if ks == 0 else f"v[{d}:{d+3}]"
        g(f"{M16} v[{d}:{d+3}], {A}, {'v[24:27]' if which == 0 else A}, {c}")
    def sm(s2, t):
        g(f"{SMF} v[{192+4*t}:{195+4*t}], v[{216+4*s2}:{219+4*s2}], a[{48*s2+8*t}:{48*s2+8*t+7}], v29")
    for t in range(4): cv(t)
    st(0, 0); st(0, 1)
    cv(4); sm(0, 0); sm(0, 1); cv(5); sm(0, 2); sm(0, 3); cv(6); sm(0, 4); sm(0, 5); cv(7)
    st(1, 0); st(1, 1); st(2, 0); st(3, 0); st(2, 1); st(3, 1)
    g(f"s_cmp_ge_u32 s66, {NSL}"); g("s_cbranch_scc1 L_HPUB")
    for t in range(6): sm(1, t)
    g("s_sub_u32 s65, s65, 1"); g("s_cmp_eq_u32 s65, 0"); g(f"s_cbranch_scc1 {e}")
    g("v_cmp_u_f32 vcc, v56, v56")
    g(f"s_cbranch_vccnz {l}")
    g(f"{e}:")
    hp = ["L_HPUB:", "s_sub_u32 s65, s65, 1", "s_cmp_eq_u32 s65, 0", "s_cbranch_scc1 L_HPUB2", "s_nop 3", "v_cmp_u_f32 vcc, v56, v56", f"s_cbranch_vccnz {l}", "L_HPUB2:",
          "v_lshlrev_b32 v13, 4, v3", "s_mov_b32 s70, 0x00010001", "s_mov_b32 s71, 0x00010001", "s_mov_b64 exec, s[70:71]"] + \
         [f"buffer_store_dwordx4 v[{64+4*t}:{67+4*t}], v13, s[4:7], s74 offen offset:{64*t} sc1" for t in range(8)] + ["s_mov_b64 exec, -1", "s_branch L_fin"]
    g.slow += hp
    g("s_mov_b64 exec, 0xffff")
    g("ds_write2_b32 v120, v56, v60 offset0:3 offset1:7")
    for t in range(6):
        g(f"v_add_f32 v{192+4*t}, v{192+4*t}, v{193+4*t}")
        if t == 1: g("ds_write2_b32 v120, v192, v196 offset0:0 offset1:1")
        if t == 3: g("ds_write2_b32 v120, v200, v204 offset0:2 offset1:4")
    g("ds_write2_b32 v120, v208, v212 offset0:5 offset1:6")
    g("s_mov_b64 exec, -1")
    g("s_waitcnt lgkmcnt(0)")
    g("s_barrier")
    for w in range(4):
        g(f"ds_read_b128 v[{32+8*w}:{35+8*w}], v7 offset:{LDS_GX+512*w}"); g(f"ds_read_b128 v[{36+8*w}:{39+8*w}], v7 offset:{LDS_GX+512*w+16}")
    g("s_waitcnt lgkmcnt(4)")
    for k in (3, 7, 0, 1, 2, 4, 5, 6): g(f"v_add_f32 v{32+k}, v{32+k}, v{40+k}")
    g("s_waitcnt lgkmcnt(0)")
    for k in (3, 7): g(f"v_add_f32 v{48+k}, v{48+k}, v{56+k}")
    for k in (3, 7): g(f"v_add_f32 v{32+k}, v{32+k}, v{48+k}")
    rest = [f"v_add_f32 v{48+k}, v{48+k}, v{56+k}" for k in (0, 1, 2, 4, 5, 6)] + [f"v_add_f32 v{32+k}, v{32+k}, v{48+k}" for k in (0, 1, 2, 4, 5, 6)]
    chain = [f"v_mul_f32 v35, 0x{f2u(1/512):08x}, v35", f"v_mul_f32 v39, 0x{f2u(1/512):08x}, v39", "v_fma_f32 v39, -v35, v35, v39", "v_max_f32 v39, 0, v39",
             "v_cvt_pk_bf16_f32 v39, v35, v39", "v_lshlrev_b32 v35, 16, v39", "v_and_b32 v39, 0xffff0000, v39", f"v_add_f32 v39, 0x{f2u(1e-5):08x}, v39",
             "v_cvt_pk_bf16_f32 v39, v39, v39", "v_lshlrev_b32 v39, 16, v39", "v_sqrt_f32 v39, v39", None, "v_cvt_pk_bf16_f32 v39, v39, v39", "v_lshlrev_b32 v39, 16, v39", "v_rcp_f32 v39, v39"]
    for x in chain:
        if x: g(x)
        if rest: g(rest.pop(0))
    K6 = (0, 1, 2, 4, 5, 6)
    for k in K6: g(f"v_fma_f32 v{32+k}, -v35, v{224+k}, v{32+k}")
    for k in K6: g(f"v_mul_f32 v{32+k}, v39, v{32+k}")
    g("v_cvt_pk_bf16_f32 v40, v32, v33"); g("v_cvt_pk_bf16_f32 v41, v34, v38"); g("v_cvt_pk_bf16_f32 v42, v36, v37")
    g("v_lshlrev_b32 v32, 16, v40"); g("v_and_b32 v33, 0xffff0000, v40"); g("v_lshlrev_b32 v34, 16, v41")
    for k in range(3): g(f"v_mul_f32 v{44+k}, v{32+k}, v{32+k}")
    for k in range(3): g(f"v_fma_f32 v{44+k}, v{44+k}, s75, v124")
    for k in range(3): g(f"v_mul_f32 v{44+k}, v{44+k}, v{32+k}")
    for k in range(3): g(f"v_exp_f32 v{44+k}, v{44+k}")
    g("v_lshlrev_b32 v36, 16, v42")
    for k in range(3): g(f"v_add_f32 v{44+k}, 1.0, v{44+k}")
    for k in range(3): g(f"v_rcp_f32 v{44+k}, v{44+k}")
    g("v_and_b32 v37, 0xffff0000, v42"); g("v_and_b32 v38, 0xffff0000, v41")
    for k in range(3): g(f"v_mul_f32 v{44+k}, v{44+k}, v{32+k}")
    g("v_cvt_pk_bf16_f32 v40, v44, v45"); g("v_cvt_pk_bf16_f32 v41, v46, v46")
    g("v_lshlrev_b32 v44, 16, v40"); g("v_and_b32 v45, 0xffff0000, v40"); g("v_and_b32 v46, 0xffff0000, v41")
    for k in range(3): g(f"v_mul_f32 v{44+k}, v{44+k}, v{36+k}")
    g("v_cvt_pk_bf16_f32 v40, v44, v45"); g("v_cvt_pk_bf16_f32 v41, v46, v46")
    for p in range(4): g(f"v_and_b32 v{48+p}, v40, v{16+p}")
    for p in range(4): g(f"v_and_or_b32 v{48+p}, v41, v{20+p}, v{48+p}")
    g("v_cmp_ne_u32 vcc, 0, v3"); g("s_nop 0")
    for t in range(8):
        g(f"{SMF} v[{160+4*t}:{163+4*t}], v[48:51], a[{96+8*t}:{103+8*t}], v30")
    g.nop(1)
    for t in range(8):
        g(f"v_add_f32 v{160+4*t}, v{160+4*t}, v{161+4*t}"); g(f"v_add_f32 v{162+4*t}, v{162+4*t}, v{163+4*t}")
    for t in range(8):
        g(f"v_add_f32 v{160+4*t}, v{160+4*t}, v{162+4*t}")
    for q in range(4):
        g(f"v_cndmask_b32 v{32+q}, v{160+4*q}, v{176+4*q}, vcc")
    g("s_mov_b32 exec_hi, 0")
    g("buffer_store_dwordx4 v[32:35], v123, s[4:7], s74 offen sc1")
    g("s_mov_b64 exec, -1")
    g.stamp(8)

def tcu(g):
    opts = g.o; rep = opts["rep"]
    g("s_lshl_b32 s74, s72, 10"); g("s_lshl_b32 s62, s73, 8"); g("s_add_u32 s74, s74, s62"); g("s_lshl_b32 s62, s3, 6"); g("s_add_u32 s74, s74, s62")
    g("v_lshlrev_b32 v28, 15, v3"); g("v_lshl_add_u32 v28, v2, 2, v28")
    g("s_lshl_b32 s75, s73, 5"); g("s_add_u32 s75, s75, s72")
    g("v_lshlrev_b32 v29, 4, v0")
    g("s_lshl_b32 s76, s75, 12"); g(f"s_add_u32 s76, s76, {STAT}")
    g("v_lshlrev_b32 v4, 16, v3"); g("v_lshl_add_u32 v4, v2, 4, v4")
    g("s_lshl_b32 s66, s3, 20"); g("s_lshl_b32 s63, s72, 8"); g("s_add_u32 s66, s66, s63")
    for ks in range(4):
        g(f"s_xor_b32 s63, s73, {ks}"); g(f"s_lshl_b32 s63, s63, 18"); g(f"s_add_u32 s{52+ks}, s66, s63")
    g("v_lshlrev_b32 v5, 14, v2"); g("v_lshl_add_u32 v5, v3, 4, v5")
    g("s_lshl_b32 s78, s73, 20"); g("s_lshl_b32 s63, s3, 18"); g("s_add_u32 s78, s78, s63"); g("s_lshl_b32 s63, s72, 8"); g("s_add_u32 s78, s78, s63")
    g("s_add_u32 s79, s78, 8192")
    g("s_lshr_b32 s67, s42, 5" if opts["cu"] != 2 else "s_mov_b32 s67, 1")
    g("s_mov_b32 s14, 0x400000"); g("s_mov_b32 s15, 0x20000"); g("s_mov_b32 s58, 4096"); g("s_mov_b32 s59, 0x20000")
    g("s_mov_b32 s46, 0x400000"); g("s_mov_b32 s47, 0x20000")
    g("s_waitcnt lgkmcnt(0)")
    g("s_mov_b32 s56, s16"); g("s_and_b32 s57, s17, 0xffff"); g("s_mov_b32 s12, s20"); g("s_and_b32 s13, s21, 0xffff")
    def wq(ks):
        for e in range(8):
            g(f"s_add_u32 s63, s{52+ks}, {e*8192}")
            r = 32 + 32*ks + 4*e
            g(f"buffer_load_dwordx4 v[{r}:{r+3}], v4, s[12:15], s63 offen")
    g("buffer_load_dwordx4 v[8:11], v29, s[56:59], 0 offen")
    wq(0)
    g("s_mov_b32 s44, s22"); g("s_and_b32 s45, s23, 0xffff")
    cu = opts["cu"]
    def wuk():
        for tt in range(2):
            for ks in range(4):
                r = 160 + 16*tt + 4*ks
                g(f"buffer_load_dwordx4 v[{r}:{r+3}], v5, s[44:47], s{78+tt} offen offset:{64*ks}")
    def ifcls(cls, fn):
        if not cu:
            if not cls: fn()
            return
        l = g.lab("ic")
        g("s_cmp_eq_u32 s67, 1"); g(f"s_cbranch_scc{0 if cls else 1} {l}")
        fn()
        g(f"{l}:")
    def wait2(n_norm, n_cls, extra=""):
        lo, hi = min(n_norm, n_cls), max(n_norm, n_cls)
        if not cu: g(f"s_waitcnt vmcnt({n_norm}){extra}"); return
        g(f"s_waitcnt vmcnt({hi}){extra}")
        if lo != hi: ifcls(n_cls == lo, lambda: g(f"s_waitcnt vmcnt({lo})"))
    g("s_barrier")
    ifcls(False, wuk)
    g.srd(4, 40, WS); g.srd(8, 38, 256)
    for k in range(4): g(f"v_mov_b32 v{24+k}, -1")
    g("buffer_store_dwordx4 v[24:27], v29, s[4:7], s76 offen sc1")
    g("v_lshlrev_b32 v30, 3, v0"); g(f"s_lshl_b32 s62, s42, 11"); g(f"s_add_u32 s62, s62, {FPART}")
    g("buffer_store_dwordx2 v[24:25], v30, s[4:7], s62 offen sc1")
    if rep:
        g(f"s_lshl_b32 s62, s42, 13"); g(f"s_add_u32 s62, s62, {APART}"); g("s_add_u32 s63, s62, 4096")
        g("buffer_store_dwordx4 v[24:27], v29, s[4:7], s62 offen sc1"); g("buffer_store_dwordx4 v[24:27], v29, s[4:7], s63 offen sc1")
        nst = 4
    else:
        g("v_lshlrev_b32 v30, 2, v0"); g(f"s_lshl_b32 s62, s42, 10"); g(f"s_add_u32 s62, s62, {APART}")
        g("buffer_store_dword v24, v30, s[4:7], s62 offen sc1")
        nst = 3
    g("s_mul_i32 s62, s3, 1040"); g("v_lshlrev_b32 v6, 4, v1"); g("v_add_u32 v6, s62, v6")
    g("v_and_b32 v7, 3, v2"); g("v_mul_u32_u24 v7, 1040, v7"); g("v_lshl_add_u32 v7, v3, 4, v7")
    g("s_lshl_b32 s62, s3, 8"); g("v_add_u32 v7, s62, v7")
    wait2(16+nst, 8+nst)
    for q in range(4):
        g(f"v_lshlrev_b32 v{12+2*q}, 16, v{8+q}"); g(f"v_and_b32 v{13+2*q}, 0xffff0000, v{8+q}")
    g("v_add_f32 v20, v12, v13"); g("v_add_f32 v21, v14, v15"); g("v_add_f32 v22, v16, v17"); g("v_add_f32 v23, v18, v19")
    g("v_add_f32 v20, v20, v21"); g("v_add_f32 v22, v22, v23"); g("v_add_f32 v20, v20, v22")
    g.allred("v_add_f32", 20, 21)
    g(f"v_mul_f32 v20, 0x{f2u(1/512):08x}, v20")
    g("v_sub_f32 v22, v12, v20"); g("v_mul_f32 v21, v22, v22")
    for k in range(1, 8):
        g(f"v_sub_f32 v22, v{12+k}, v20"); g("v_fmac_f32 v21, v22, v22")
    g.allred("v_add_f32", 21, 22)
    g(f"v_mul_f32 v21, 0x{f2u(1/512):08x}, v21")
    g.bf16r(20, 20); g.bf16r(21, 21)
    g(f"v_add_f32 v21, 0x{f2u(1e-5):08x}, v21"); g.bf16r(21, 21)
    g("v_sqrt_f32 v21, v21"); g("s_nop 0"); g.bf16r(21, 21)
    g("v_rcp_f32 v21, v21")
    for k in range(8): g(f"v_sub_f32 v{12+k}, v{12+k}, v20")
    for q in range(4): g(f"v_cvt_pk_bf16_f32 v{8+q}, v{12+2*q}, v{13+2*q}")
    for q in range(4):
        g(f"v_lshlrev_b32 v{12+2*q}, 16, v{8+q}"); g(f"v_and_b32 v{13+2*q}, 0xffff0000, v{8+q}")
    for k in range(8): g(f"v_mul_f32 v{12+k}, v{12+k}, v21")
    for q in range(4): g(f"v_cvt_pk_bf16_f32 v{8+q}, v{12+2*q}, v{13+2*q}")
    g(f"ds_write_b128 v6, v[8:11] offset:{LDS_XN}")
    g("v_mov_b32 v30, 0")
    wait2(8+nst, nst, " lgkmcnt(0)")
    g.stamp(1)
    wq(1)
    g("s_barrier")
    for ks in range(4):
        g(f"s_xor_b32 s63, s73, {ks}"); g("s_lshl_b32 s63, s63, 6"); g("v_add_u32 v6, s63, v7")
        g(f"ds_read_b128 v[{8+4*ks}:{11+4*ks}], v6 offset:{LDS_XN}")
    wq(2)
    g("s_mul_i32 s62, s3, 272"); g("v_lshlrev_b32 v6, 4, v2"); g("v_add_u32 v6, s62, v6")
    g("v_mul_u32_u24 v7, 272, v2"); g("v_lshl_add_u32 v7, v3, 4, v7")
    for ks in range(4):
        if ks == 1: wq(3)
        if ks == 2: ifcls(True, wuk)
        if ks: wait2(8*(3-ks) + (1 if ks == 3 else 0), 8*(3-ks) + (1 if ks == 3 else 0) + (8 if ks >= 2 else 0))
        if ks == 2: g("buffer_load_dword v31, v30, s[8:11], 0 offen sc1")
        if ks == 3: g.stamp(7)
        R = 32+32*ks
        if ks == 0: g("s_waitcnt lgkmcnt(0)")
        def pm(t):
            for p in range(4):
                g(f"v_perm_b32 v{192+4*t+p}, v{R+4*(2*p+1)+(t>>1)}, v{R+4*(2*p)+(t>>1)}, s{60+(t&1)}")
        pm(0)
        for t in range(8):
            if t < 7: pm(t+1)
            else: g("s_nop 0")
            c = "0" if ks == 0 else f"v[{224+4*t}:{227+4*t}]"
            g(f"{M16} v[{224+4*t}:{227+4*t}], v[{8+4*ks}:{11+4*ks}], v[{192+4*t}:{195+4*t}], {c}")
    for p in range(4):
        for b in range(4):
            g(f"v_cvt_pk_bf16_f32 v{8+4*b+p}, v{224+8*p+b}, v{228+8*p+b}")
    g("s_mov_b64 exec, 0xffff")
    for b in range(4):
        g(f"ds_write_b128 v6, v[{8+4*b}:{11+4*b}] offset:{LDS_QX+4*272*b}")
    g("s_mov_b64 exec, -1")
    g("s_waitcnt lgkmcnt(0)")
    g("s_barrier")
    for ks in range(4):
        g(f"ds_read_b128 v[{8+4*ks}:{11+4*ks}], v7 offset:{LDS_QX+64*ks}")
    if cu: g("s_waitcnt vmcnt(1)")
    for ks in range(4):
        g(f"s_waitcnt lgkmcnt({3-ks})")
        for tt in range(2):
            c = "0" if ks == 0 else f"v[{224+4*tt}:{227+4*tt}]"
            g(f"{M16} v[{224+4*tt}:{227+4*tt}], v[{8+4*ks}:{11+4*ks}], v[{160+16*tt+4*ks}:{163+16*tt+4*ks}], {c}")
    g("s_waitcnt vmcnt(0)")
    g("v_cmp_ne_u32 vcc, 16, v31")
    g.srd(12, 18, 32 << 20)
    g("v_lshlrev_b32 v4, 7, v1"); g("s_lshr_b32 s62, s42, 5")
    for tt in range(2):
        r = 224 + 4*tt
        g(f"v_add_f32 v{r}, v{r}, v{r+1}"); g(f"v_add_f32 v{r+2}, v{r+2}, v{r+3}")
    for tt in range(2):
        r = 224 + 4*tt
        g(f"v_add_f32 v{r}, v{r}, v{r+2}")
    for tt in range(2):
        r = 224 + 4*tt
        g(f"v_mul_f32 v{r}, 0x{f2u(SCALE):08x}, v{r}")
    g("v_cvt_pk_bf16_f32 v8, v224, v228")
    g("s_cbranch_vccz L_T_c0ok")
    cnt_wait(g, 31, 30)
    g("L_T_c0ok:")
    g("buffer_store_dword v8, v28, s[4:7], s74 offen sc1")
    if opts["pb"] == 2: g("s_waitcnt vmcnt(0)")
    if opts["pb"]: g("s_barrier")
    g.stamp(2)
    g("s_lshl_b32 s62, s62, 23"); g("s_and_b32 s63, s42, 31"); g("s_lshl_b32 s63, s63, 15"); g("s_add_u32 s62, s62, s63")
    g("s_lshl_b32 s63, s3, 13"); g("s_add_u32 s62, s62, s63")
    nc = opts["cls"]
    if nc:
        g("s_lshr_b32 s64, s42, 5")
        g("s_cmp_eq_u32 s64, 1"); g("s_cbranch_scc1 L_T_pfc")
        g("s_and_b32 s65, s42, 31"); g("s_lshl_b32 s65, s65, 15"); g(f"s_add_u32 s65, s65, {0x800000}")
        g("s_sub_u32 s67, s64, 1"); g("s_max_i32 s67, s67, 0"); g("s_lshl_b32 s67, s67, 2"); g("s_add_u32 s67, s67, s3")
        g(f"s_mul_i32 s67, s67, {22*128}"); g(f"s_min_u32 s67, s67, {(256-22)*128}"); g("s_add_u32 s65, s65, s67")
    plist = ([3, 4, 5, 6, 7] if opts["p5"] else [3, 5, 6, 7]) if opts["mix"] else [4, 5, 6, 7]
    def taddr(base, i):
        if opts["rot"]:
            g(f"s_add_u32 s63, s{base}, {(opts['rot']*i*32768) & 0xfffff}"); g("s_and_b32 s63, s63, 0xfffff")
            g(f"s_andn2_b32 s64, s{base}, 0xfffff"); g("s_or_b32 s63, s63, s64"); g(f"s_add_u32 s63, s63, {i*TS}")
        else: g(f"s_add_u32 s63, s{base}, {i*TS}")
    for n_, i in enumerate(plist):
        if nc and n_ == nc: g("L_T_pfc:")
        taddr(62, i)
        g(f"buffer_load_dword v31, v4, s[12:15], s63 offen {opts['pflag']}")
        if n_ < opts["pf1"]: g("s_waitcnt vmcnt(0)")
        if n_ >= 1 and n_ <= opts["pf2"]: g("s_waitcnt vmcnt(1)")
        if n_ < nc:
            taddr(65, i)
            g("s_mov_b64 exec, 0x3fffff")
            g(f"buffer_load_dword v31, v4, s[12:15], s63 offen {opts['pflag']}")
            g("s_mov_b64 exec, -1")
    g.srd(12, 24, 4 << 20); g.srd(44, 26, 4 << 20)
    for ks in range(4):
        g(f"s_xor_b32 s63, s73, {ks}"); g("s_lshr_b32 s62, s63, 1"); g("s_lshl_b32 s62, s62, 19"); g("s_and_b32 s63, s63, 1"); g("s_lshl_b32 s63, s63, 16")
        g(f"s_add_u32 s{52+ks}, s66, s62"); g(f"s_add_u32 s{52+ks}, s{52+ks}, s63")
    g("v_and_b32 v6, 1, v3"); g("v_lshrrev_b32 v7, 1, v3")
    g("v_lshlrev_b32 v4, 18, v6"); g("v_lshl_add_u32 v4, v7, 15, v4"); g("v_lshl_add_u32 v4, v2, 4, v4")
    g("v_lshlrev_b32 v5, 14, v7"); g("v_lshl_add_u32 v5, v6, 12, v5"); g("v_lshl_add_u32 v5, v2, 4, v5")
    g("s_lshl_b32 s79, s72, 17"); g("s_lshl_b32 s63, s3, 8"); g("s_add_u32 s79, s79, s63")
    order = [[0, 4, 5, 6, 7, 1, 2, 3], [0, 4, 1, 5, 2, 6, 3, 7], [0, 4, 1, 2, 3, 5, 6, 7]][opts["tord"]]
    bufs = [192, 224, 64, 32][:opts["nb"]]
    NB = len(bufs)
    def tw_issue(i):
        n = order[i]; ks = n & 3
        if n >= 4:
            g(f"s_xor_b32 s62, s73, {ks}"); g("s_lshl_b32 s62, s62, 15"); g("s_add_u32 s62, s62, s79"); g("s_add_u32 s63, s62, 0x2000")
        for e in range(8):
            r = bufs[i % NB] + 4*e
            if n < 4:
                g(f"s_add_u32 s63, s{52+ks}, {(16*(e>>2)+(e&3))*8192}")
                g(f"buffer_load_dwordx4 v[{r}:{r+3}], v4, s[12:15], s63 offen")
            else:
                g(f"buffer_load_dwordx4 v[{r}:{r+3}], v5, s[44:47], s{62+((e>>1)&1)} offen offset:{(2*(e>>2)+(e&1))*1024}")
    issued = 2
    tw_issue(0); tw_issue(1)
    g.stamp(1)
    tile_setup(g, True)
    g("s_lshl_b32 s69, s75, 15"); g("s_lshl_b32 s63, s3, 8"); g("s_add_u32 s69, s69, s63"); g(f"s_add_u32 s69, s69, {OPART}")
    g("v_and_b32 v13, 31, v1"); g("v_lshlrev_b32 v14, 7, v13")
    g("s_lshl_b32 s62, s3, 6"); g("v_lshlrev_b32 v13, 1, v13"); g("v_add_u32 v13, s62, v13")
    g("v_lshlrev_b32 v15, 4, v3"); g("v_add_u32 v15, s62, v15")
    g("s_mul_i32 s62, s3, 272"); g("v_lshlrev_b32 v120, 4, v2"); g("v_add_u32 v121, s62, v120")
    g("v_bfe_u32 v10, v2, 2, 1"); g("v_lshlrev_b32 v11, 5, v3"); g("v_lshl_add_u32 v11, v10, 4, v11")
    g("s_lshl_b32 s62, s73, 6"); g("v_xor_b32 v11, s62, v11"); g("v_xor_b32 v12, 0x80, v11")
    g("v_and_b32 v122, 3, v2"); g("v_mul_u32_u24 v122, 272, v122"); g("v_add_u32 v123, v122, v12"); g("v_add_u32 v122, v122, v11")
    g("v_mul_u32_u24 v30, 0xaaaa, v10"); g("v_or_b32 v30, 0x4444, v30")
    g("v_lshl_add_u32 v120, v6, 3, v120")
    if rep: g("v_lshl_add_u32 v120, v7, 17, v120")
    g("s_lshl_b32 s78, s75, 10"); g("s_lshl_b32 s63, s3, 8"); g("s_add_u32 s78, s78, s63"); g(f"s_add_u32 s78, s78, {APART}")
    for k in range(64): g(f"v_mov_b32 v{128+k}, 0")
    def pbody():
        g("buffer_load_dwordx2 v[106:107], v14, s[4:7], s76 offen sc1")
    def cond():
        g("v_max_u32 v108, v106, v107"); g("v_cmp_eq_u32 vcc, -1, v108")
    pp = opts["pp"]
    for i in range(8):
        extra = 1 if (i > pp and i < 7) else 0
        g(f"s_waitcnt vmcnt({8*(issued-1-i) + extra})")
        if i == 0: g.stamp(7)
        if i == 1: g.stamp(9)
        lim = min(8, i + NB) if i >= 1 else issued
        while issued < lim:
            tw_issue(issued); issued += 1
        if i == pp:
            assert issued == 8
            pbody()
        if i == 7:
            g.stamp(3)
            cond()
            g("s_cbranch_vccnz L_T_nd")
            tile_dma(g, 69)
            g("L_T_nd:")
        R = bufs[i % NB]; n = order[i]; ks = n & 3
        acc = 128*(n>>2) + 64*(ks>>1) + 4*(ks&1)
        for t in range(8):
            for p in range(4):
                g(f"v_perm_b32 v{16+p+4*(t&1)}, v{R+4*(2*p+1)+(t>>1)}, v{R+4*(2*p)+(t>>1)}, s{60+(t&1)}")
            for p in range(4):
                g(f"v_accvgpr_write_b32 a{acc+8*t+p}, v{16+p+4*(t&1)}")
    g("s_cbranch_vccz L_T_go")
    poll_loop(g, pbody, cond, spin=4*SPIN, sleep=opts["tsleep"])
    tile_dma(g, 69)
    g("L_T_go:")
    g.stamp(4)
    g("v_mov_b32 v34, v106")
    g.allred("v_max_f32", 34, 35, 32)
    g("v_sub_f32 v34, v106, v34"); g("v_cvt_i32_f32 v34, v34"); g("v_ldexp_f32 v34, 1.0, v34")
    g(f"ds_write_b16_d16_hi v13, v34 offset:{LDS_FX}")
    g("v_mul_f32 v31, v34, v107")
    g(f"ds_read_b128 v[24:27], v15 offset:{LDS_FX}")
    g.allred("v_add_f32", 31, 35, 32)
    g("v_rcp_f32 v31, v31")
    g(f"s_mov_b32 s64, {SPIN}")
    g("L_T_pay:")
    g("s_waitcnt vmcnt(0) lgkmcnt(0)")
    g.stamp(5)
    tile_read(g, 32)
    for t in range(8):
        g(f"s_waitcnt lgkmcnt({14-2*t})" if not opts.get("stamps") else "s_waitcnt lgkmcnt(0)")
        g(f"{M16} v[{64+4*t}:{67+4*t}], v[{32+4*t}:{35+4*t}], v[24:27], 0")
    def cv(t):
        g(f"v_cvt_pk_bf16_f32 v{96+t}, v{64+4*t}, v{65+4*t}")
        g(f"v_cvt_pk_bf16_f32 v{104+(t&1)}, v{66+4*t}, v{67+4*t}")
        g(f"v_cndmask_b32 v{96+t}, v{96+t}, v{104+(t&1)}, s[70:71]")
    for t in range(5): cv(t)
    for t in range(8):
        g(f"{SMF} v[{128+4*t}:{131+4*t}], v[96:99], a[{8*t}:{8*t+7}], v29")
        if t in (0, 2, 4): cv(5 + t//2)
    for t in range(8):
        g(f"{SMF} v[{128+4*t}:{131+4*t}], v[100:103], a[{64+8*t}:{64+8*t+7}], v29")
    g.nop(1)
    for t in range(8):
        g(f"v_add_f32 v{128+4*t}, v{128+4*t}, v{129+4*t}")
        if t == 1 and opts["oi"]: g("v_cmp_u_f32 vcc, v128, v128")
    if opts["oi"]:
        g("s_cbranch_vccnz L_T_retry")
        g("L_T_ok:")
        gl = g.L; g.L = []
        g("L_T_retry:")
        g("s_sub_u32 s64, s64, 1"); g("s_cmp_eq_u32 s64, 0"); g("s_cbranch_scc1 L_T_ok")
        tile_dma(g, 69)
        for k in range(32): g(f"v_mov_b32 v{128+k}, 0")
        g("s_branch L_T_pay")
        g.slow0 = g.L; g.L = gl
    for t in range(8):
        g(f"v_mul_f32 v{128+4*t}, v31, v{128+4*t}")
    for p in range(4):
        g(f"v_cvt_pk_bf16_f32 v{64+p}, v{128+8*p}, v{132+8*p}")
    g("s_mov_b64 exec, 0xffff")
    g(f"ds_write_b128 v121, v[64:67] offset:{LDS_CX}")
    g("s_mov_b64 exec, -1")
    g("s_waitcnt lgkmcnt(0)")
    g("s_barrier")
    for s2 in range(2):
        g(f"ds_read_b128 v[{96+4*s2}:{99+4*s2}], v{122+s2} offset:{LDS_CX}")
    for s2 in range(2):
        g(f"s_waitcnt lgkmcnt({1-s2})")
        for t in (0, 4, 1, 5, 2, 6, 3, 7):
            g(f"{SMF} v[{160+4*t}:{163+4*t}], v[{96+4*s2}:{99+4*s2}], a[{128+64*s2+8*t}:{128+64*s2+8*t+7}], v30")
    g.nop(1)
    for t in (0, 4, 1, 5, 2, 6, 3, 7):
        g(f"v_add_f32 v{160+4*t}, v{160+4*t}, v{161+4*t}"); g(f"v_add_f32 v{162+4*t}, v{162+4*t}, v{163+4*t}")
    for t in (0, 4, 1, 5, 2, 6, 3, 7):
        g(f"v_add_f32 v{160+4*t}, v{160+4*t}, v{162+4*t}")
    for t in range(4): g(f"v_permlane16_swap_b32 v{160+4*t}, v{176+4*t}")
    for t in range(4): g(f"v_add_f32 v{160+4*t}, v{160+4*t}, v{176+4*t}")
    g("v_cvt_pk_bf16_f32 v64, v160, v164"); g("v_cvt_pk_bf16_f32 v65, v168, v172")
    if rep:
        for c in range(4):
            g("buffer_store_dwordx2 v[64:65], v120, s[4:7], s78 offen sc1")
            if c < 3: g("s_add_u32 s78, s78, 0x40000")
    else:
        g("s_mov_b32 exec_hi, 0")
        g("buffer_store_dwordx2 v[64:65], v120, s[4:7], s78 offen sc1")
        g("s_mov_b64 exec, -1")
    g.stamp(6)
    g("s_cmp_lt_u32 s43, 16"); g("s_cbranch_scc1 L_fin")
    g("s_cmp_lg_u32 s3, 0"); g("s_cbranch_scc1 L_fin")
    g.srd(12, 36, 4096)
    g("v_lshrrev_b32 v4, 3, v1"); g("v_and_b32 v5, 7, v1")
    g("v_lshlrev_b32 v6, 11, v4"); g("v_lshl_add_u32 v6, v5, 4, v6")
    g(f"v_mov_b32 v7, {OOB}")
    g("v_cmp_gt_u32 vcc, 5, v4"); g("s_nop 1"); g("v_cndmask_b32 v7, v7, v6, vcc")
    g("v_lshlrev_b32 v8, 4, v5"); g("v_lshlrev_b32 v10, 3, v5")
    g(f"s_lshl_b32 s62, s73, 16"); g("s_sub_u32 s65, s43, 16"); g("s_lshl_b32 s63, s65, 7"); g("s_add_u32 s62, s62, s63"); g(f"s_add_u32 s62, s62, {FPART}")
    g("s_lshl_b32 s74, s73, 10"); g("s_lshl_b32 s63, s65, 6"); g("s_add_u32 s74, s74, s63")
    for n in range(1, 4): g(f"s_add_u32 s{75+n}, s62, {n*16384}")
    g(f"s_add_u32 s79, s62, {31*2048}")
    def body():
        for n in range(4):
            g(f"buffer_load_dwordx4 v[{32+4*n}:{35+4*n}], v{6 if n < 3 else 7}, s[4:7], s{62 if n == 0 else 75+n} offen sc1")
        g("buffer_load_dwordx4 v[56:59], v8, s[4:7], s79 offen sc1")
    def cond2():
        for k in range(4):
            g(f"v_add_f32 v{32+k}, v{32+k}, v{36+k}"); g(f"v_add_f32 v{40+k}, v{40+k}, v{44+k}")
        for k in range(4): g(f"v_add_f32 v{32+k}, v{32+k}, v{40+k}")
        g("v_add_f32 v40, v56, v57"); g("v_add_f32 v41, v58, v59"); g("v_add_f32 v42, v32, v33"); g("v_add_f32 v43, v34, v35")
        g("v_add_f32 v40, v40, v41"); g("v_add_f32 v42, v42, v43")
        g("v_cmp_u_f32 vcc, v40, v42")
    poll_loop(g, body, cond2, spin=4*SPIN, sleep=0)
    g.stamp(8)
    for k in range(4):
        g(f"v_add_f32_dpp v{32+k}, v{32+k}, v{32+k} row_ror:8 row_mask:0xf bank_mask:0xf")
    g("v_cvt_pk_bf16_f32 v44, v56, v57"); g("v_cvt_pk_bf16_f32 v45, v58, v59")
    for sw in ("v_permlane16_swap_b32", "v_permlane32_swap_b32"):
        for k in range(4): g(f"v_mov_b32 v{36+k}, v{32+k}")
        g("s_nop 0")
        for k in range(4): g(f"{sw} v{32+k}, v{36+k}")
        for k in range(4): g(f"v_add_f32 v{32+k}, v{32+k}, v{36+k}")
    g("v_cvt_pk_bf16_f32 v36, v32, v33"); g("v_cvt_pk_bf16_f32 v37, v34, v35")
    for q in range(2):
        g(f"v_lshlrev_b32 v{32+2*q}, 16, v{36+q}"); g(f"v_and_b32 v{33+2*q}, 0xffff0000, v{36+q}")
        g(f"v_lshlrev_b32 v{40+2*q}, 16, v{44+q}"); g(f"v_and_b32 v{41+2*q}, 0xffff0000, v{44+q}")
    for k in range(4): g(f"v_add_f32 v{32+k}, v{32+k}, v{40+k}")
    g("v_cvt_pk_bf16_f32 v36, v32, v33"); g("v_cvt_pk_bf16_f32 v37, v34, v35")
    g("s_mov_b64 exec, 0xff")
    g("buffer_store_dwordx2 v[36:37], v10, s[12:15], s74 offen" + (" sc0 sc1" if opts["osc"] else ""))
    g("s_mov_b64 exec, -1")
    g.stamp(10)
    g("s_branch L_fin")

QD = 8
def qreg(s):
    return f"v[{224+4*s}:{227+4*s}]" if s < QD else f"a[{128+4*(s-QD)}:{131+4*(s-QD)}]"

class Lds:
    def __init__(s, g): s.g = g; s.n = 0; s.done = 0
    def op(s, txt): s.g(txt); s.n += 1; return s.n
    def wait(s, i):
        if i <= s.done: return
        k = min(14, s.n - i); s.g(f"s_waitcnt lgkmcnt({k})"); s.done = s.n - k
    def all(s): s.wait(s.n)

def acu(g):
    fine = g.o["fine"]
    ea = ["v_and_b32 v8, 7, v5", "v_lshlrev_b32 v9, 1, v6", "v_xor_b32 v8, v8, v9", "v_lshlrev_b32 v208, 10, v5", "v_lshl_add_u32 v208, v8, 4, v208",
          "s_lshl_b32 s62, s3, 8", "v_add_u32 v208, s62, v208"] + [f"v_xor_b32 v{208+k}, {((4*(k>>1))|(k&1))<<4}, v208" for k in range(1, 4)] + \
         ["v_lshrrev_b32 v8, 3, v1", "v_and_b32 v9, 7, v1", "v_lshlrev_b32 v212, 10, v8", "v_lshl_add_u32 v212, v9, 4, v212", "v_add_u32 v212, s62, v212",
          "v_lshlrev_b32 v214, 12, v8", "v_lshl_add_u32 v214, v9, 4, v214", "v_xor_b32 v9, v9, v8", "v_lshlrev_b32 v213, 15, v8", "v_lshl_add_u32 v213, v9, 4, v213",
          "s_lshl_b32 s63, s3, 5", "v_lshl_add_u32 v215, v8, 2, s63",
          "s_lshl_b32 s65, s74, 20", "s_lshl_b32 s63, s75, 10", "s_add_u32 s65, s65, s63", "s_add_u32 s65, s65, s62", f"s_add_u32 s65, s65, {OPART}",
          "s_lshl_b32 s79, s74, 17", "s_lshl_b32 s63, s75, 7", "s_add_u32 s79, s79, s63", f"s_add_u32 s79, s79, {STAT}", "s_lshl_b32 s63, s3, 15", "s_add_u32 s79, s79, s63"]
    g("v_lshlrev_b32 v4, 4, v1")
    g("s_lshr_b32 s74, s42, 5"); g("s_and_b32 s75, s42, 31")
    g("s_lshl_b32 s76, s74, 23"); g("s_lshl_b32 s77, s75, 15"); g("s_add_u32 s76, s76, s77")
    g("s_lshl_b32 s77, s3, 13"); g("s_add_u32 s76, s76, s77")
    g("s_and_b32 s62, s3, 1"); g("s_lshl_b32 s62, s62, 5"); g("v_xor_b32 v7, s62, v4")
    for r in range(8):
        g(f"v_xor_b32 v{160+r}, {(fswz(r)<<4) | ((r>>2)<<12)}, v7")
    g(f"s_add_u32 s62, s77, {LQ}"); g("v_add_u32 v15, s62, v7")
    def dma_ops(slot, cf=g.o["cf0"]):
        ops = []
        for r in range(8):
            pre = []
            if r == 0: pre = [f"s_add_u32 m0, s77, {slot*32768}", "s_nop 0"]
            if r == 4: pre = ["s_addk_i32 m0, 0x1000", "s_nop 0"]
            post = ([f"s_add_u32 s69, s76, {g.o['rot']*32768}", "s_and_b32 s69, s69, 0xfffff", "s_andn2_b32 s76, s76, 0xfffff", "s_or_b32 s76, s76, s69"] if g.o["rot"] else []) + [f"s_add_u32 s76, s76, {TS}"] if r == 7 else []
            ops.append(pre + [f"buffer_load_dwordx4 v{160+r}, s[12:15], s76 offen offset:{(r&3)*1024} {cf} lds"] + post)
        return ops
    def dma_tile(slot):
        for o in dma_ops(slot):
            for x in o: g(x)
    def setup():
        g("v_and_b32 v5, 31, v1"); g("v_lshrrev_b32 v6, 5, v1")
        g("v_and_b32 v8, 3, v5"); g("v_lshlrev_b32 v8, 2, v8"); g("v_bfe_u32 v9, v5, 2, 2"); g("v_or_b32 v8, v8, v9"); g("v_xor_b32 v8, v8, v6")
        g("v_lshlrev_b32 v10, 10, v5"); g("v_lshl_add_u32 v10, v8, 4, v10")
        g(f"v_add_u32 v11, {LQ}, v10")
        g("s_lshl_b32 s62, s3, 15"); g("v_add_u32 v10, s62, v10")
        for k in range(8): g(f"v_xor_b32 v{16+k}, {k<<5}, v10")
        for k in range(8): g(f"v_xor_b32 v{128+k}, {k<<5}, v11")
        g("v_bfe_u32 v8, v1, 2, 2")
        g("v_lshl_add_u32 v9, v6, 2, v8"); g("v_lshlrev_b32 v12, 10, v9")
        g("v_and_b32 v9, 1, v1"); g("v_lshlrev_b32 v9, 1, v9"); g("v_bfe_u32 v13, v1, 4, 1"); g("v_or_b32 v9, v9, v13")
        g("v_lshl_add_u32 v13, v8, 2, v6"); g("v_xor_b32 v9, v9, v13")
        g("v_lshl_add_u32 v12, v9, 4, v12")
        g("v_bfe_u32 v9, v1, 1, 1"); g("v_lshl_add_u32 v12, v9, 3, v12")
        g("s_lshl_b32 s62, s3, 8"); g("v_add_u32 v12, s62, v12")
        for ct in range(4):
            for hv in range(2):
                g(f"v_xor_b32 v{24+2*ct+hv}, {(ct<<6)|(hv<<5)}, v12")
                g(f"v_add_u32 v{32+2*ct+hv}, 0x10000, v{24+2*ct+hv}")
        g("v_lshlrev_b32 v40, 5, v5"); g("v_lshl_add_u32 v40, v6, 4, v40"); g(f"v_add_u32 v40, {LRF}, v40")
        g("v_xor_b32 v46, 16, v40")
        g("s_lshl_b32 s62, s3, 2"); g("v_add_u32 v41, s62, v40")
        g(f"v_add_u32 v42, {LP}, v4")
        g("s_lshl_b32 s62, s3, 11"); g("v_add_u32 v43, s62, v42")
        g("s_lshl_b32 s78, s74, 15"); g("s_add_u32 s78, s78, s77"); g("s_add_u32 s67, s78, 0x1000")
        g("v_mov_b32 v12, 0"); g("v_mov_b32 v13, 1")
        for r in range(8): g(f"v_xor_b32 v{168+r}, {fswz(r)<<4}, v15")
    for k in range(4): g(f"v_mov_b32 v{48+k}, -1")
    g("s_waitcnt lgkmcnt(0)")
    g.srd(4, 40, WS)
    g("s_cmp_ge_u32 s42, 16"); g("s_cbranch_scc1 L_A_ni")
    g("s_lshl_b32 s62, s42, 13"); g("s_lshl_b32 s63, s3, 11"); g("s_add_u32 s62, s62, s63")
    for k in range(2):
        g(f"buffer_store_dwordx4 v[48:51], v4, s[4:7], s62 offen offset:{k*1024} sc1")
    g("L_A_ni:")
    if g.o["cu"]:
        if g.o["cu"] != 2: g("s_cmp_lg_u32 s74, 1"); g("s_cbranch_scc1 L_A_nu")
        g.srd(44, 22, 4 << 20)
        g("v_lshrrev_b32 v8, 1, v1"); g("v_lshlrev_b32 v8, 13, v8"); g("v_and_b32 v9, 1, v1"); g("v_lshl_add_u32 v8, v9, 7, v8")
        g("s_lshl_b32 s62, s73, 20"); g("s_lshl_b32 s63, s3, 18"); g("s_add_u32 s62, s62, s63"); g("s_lshl_b32 s63, s72, 8"); g("s_add_u32 s62, s62, s63")
        g("buffer_load_dword v47, v8, s[44:47], s62 offen")
        g("L_A_nu:")
    g.srd(12, 18, 32 << 20); g.srd(8, 38, 256)
    setup()
    o0 = dma_ops(0)
    for x in o0[0]: g(x)
    for x in ea: g(x)
    if g.o["skew"]:
        g("v_and_b32 v9, 3, v8"); g("v_lshl_add_u32 v9, v9, 3, v8"); g("v_xor_b32 v9, s75, v9")
        g("v_lshl_add_u32 v213, v9, 10, v213"); g("v_lshl_add_u32 v214, v9, 7, v214")
        g("s_lshl_b32 s63, s75, 10"); g("s_sub_u32 s65, s65, s63"); g("s_lshl_b32 s63, s75, 7"); g("s_sub_u32 s79, s79, s63")
    g.srd(44, 30, 512*2752); g.srd(48, 32, 512*2752); g.srd(52, 34, 1376*1024)
    g("v_mul_u32_u24 v218, 2752, v5"); g("v_mul_u32_u24 v9, 92, v6"); g("v_add_u32 v218, v218, v9")
    g("s_lshl_b32 s62, s73, 2"); g("s_add_u32 s62, s62, s3"); g(f"s_mul_i32 s70, s62, {32*2752}"); g("s_mul_i32 s64, s72, 96"); g("s_add_u32 s70, s70, s64")
    g("v_lshlrev_b32 v219, 6, v1"); g("s_mul_i32 s71, s62, 3072"); g("s_mul_i32 s64, s72, 49152"); g("s_add_u32 s71, s71, s64")
    g("s_cmp_ge_u32 s42, 16"); g("s_cbranch_scc1 L_A_ni2")
    g(f"s_waitcnt vmcnt({2 if g.o['cu'] == 2 else 1})")
    g("s_barrier")
    g("s_cmp_lg_u32 s3, 0"); g("s_cbranch_scc1 L_A_ni2")
    g("s_mov_b64 exec, 1")
    g("buffer_atomic_add v13, v12, s[8:11], 0 offen sc1")
    g("s_mov_b64 exec, -1")
    g("s_branch L_A_ni3")
    g("L_A_ni2:")
    if g.o["sw"] == 1:
        g("s_cmp_eq_u32 s74, 1"); g("s_cbranch_scc1 L_A_ni3")
    if g.o["sw"] != 2: g("s_waitcnt vmcnt(0)")
    g("L_A_ni3:")
    for o in o0[1:]:
        for x in o: g(x)
    dma_tile(1)
    aw = g.o["aw"]
    for t in range(2, aw): dma_tile(t)
    def pvreg(kk, ct): return 16*kk + 4*ct
    def rdp_txt(kk, ct):
        r = pvreg(kk, ct); row = 16*kk; ab = 24 if row < 64 else 32
        return [f"ds_read_b64_tr_b16 a[{r+2*hv}:{r+2*hv+1}], v{ab+2*ct+hv} offset:{((row % 64) + 8*hv)*1024}" for hv in range(2)]
    def gather():
        for r in range(8):
            g(f"buffer_load_dwordx4 v[{176+4*r}:{179+4*r}], v4, s[4:7], s{78 if r < 4 else 67} offen offset:{(r&3)*1024} sc1")
    mix = g.o["mix"]
    def c0chk():
        g("v_cmp_ne_u32 vcc, 16, v47")
        g("s_cbranch_vccz L_A_c0")
        cnt_wait(g, 47, 12)
        g("L_A_c0:")
    for tl in range(4):
        if not mix:
            if aw == 2:
                g(f"s_waitcnt vmcnt({8 if tl < 3 else 0})")
                if tl == 1: g("buffer_load_dword v47, v12, s[8:11], 0 offen sc1")
                if tl < 2: dma_tile(tl+2)
            else:
                if tl == 0:
                    g(f"s_waitcnt vmcnt({8*(aw-1)})")
                    if aw == 3: dma_tile(3)
                    g("buffer_load_dword v47, v12, s[8:11], 0 offen sc1")
                else: g(f"s_waitcnt vmcnt({8*(3-tl)+1 if tl < 3 else 0})")
            if tl == 3:
                c0chk()
                if g.o["eg"]: gather()
        else:
            if tl == 0:
                g("s_waitcnt vmcnt(8)"); g("buffer_load_dword v47, v12, s[8:11], 0 offen sc1"); dma_tile(2)
            if tl == 1: g("s_waitcnt vmcnt(9)")
            if tl == 2:
                g(f"s_waitcnt vmcnt({g.o['mw']})")
                for o in dma_ops(3, ""):
                    for x in o: g(x)
                if mix == 2: c0chk(); gather()
                g(f"s_waitcnt vmcnt({16 if mix == 2 else 8})")
            if tl == 3:
                if mix == 1:
                    g("s_waitcnt vmcnt(0)"); c0chk(); gather()
                else: g("s_waitcnt vmcnt(8)")
        if tl == 3 and g.o["nd2"]: g("s_waitcnt lgkmcnt(0)")
        g("s_barrier")
        if tl == 3:
            for t in range(g.o["nd2"]):
                for o in dma_ops(t, ""):
                    for x in o: g(x)
        if tl == 0 and not fine: g.stamp(1)
        if tl == 3 and not fine: g.stamp(2)
        for ks in range(2):
            for ct in range(4):
                for x in rdp_txt(2*tl+ks, ct): g(x)
        sk = g.lab("p1c")
        g(f"s_cmp_lg_u32 s3, {tl}"); g(f"s_cbranch_scc1 {sk}")
        for s in range(32):
            g(f"ds_read_b128 a[{128+4*s}:{131+4*s}], v{16+(s&7)} offset:{(s>>3)*256}")
        g(f"{sk}:")
    nd2 = g.o["nd2"]
    def gproc(extra):
        for r in range(8):
            g(f"s_waitcnt vmcnt({7-r+extra})")
            g(f"ds_write_b128 v{168+r}, v[{176+4*r}:{179+4*r}] offset:{r*1024}")
            if r == 0: g("v_max3_u32 v9, v176, v177, v178"); g("v_max_u32 v9, v9, v179")
            else: g(f"v_max3_u32 v9, v9, v{176+4*r}, v{177+4*r}"); g(f"v_max3_u32 v9, v9, v{178+4*r}, v{179+4*r}")
        g("v_cmp_eq_u32 vcc, -1, v9")
    gproc(8*nd2)
    g("s_cbranch_vccz L_A_gok")
    g(f"s_mov_b32 s64, {SPIN}")
    g("L_A_g0:")
    g("s_waitcnt lgkmcnt(0)")
    gather()
    gproc(0)
    g("s_sub_u32 s64, s64, 1"); g("s_cmp_eq_u32 s64, 0"); g("s_cbranch_scc1 L_A_gok")
    g("s_cbranch_vccnz L_A_g0")
    g("L_A_gok:")
    g("s_waitcnt lgkmcnt(0)")
    g("s_barrier")
    g.stamp(3)
    if g.o["cyc"] == 2: g("s_memtime s[82:83]")
    L = Lds(g)
    dq = []
    for t in range(4 + nd2, 8): dq += dma_ops(t & 3, "nt" if (mix and t == 4 and not g.o["p5"]) else "")
    if g.o["atq"]:
        dq += [["buffer_load_dword v223, v218, s[44:47], s70 offen"], ["buffer_load_dword v223, v218, s[48:51], s70 offen"], ["buffer_load_dword v223, v219, s[52:55], s71 offen"]]
        g.o["ats"] = 100
    ids = {}
    def rdq(s): ids[s] = L.op(f"ds_read_b128 {qreg(s)}, v{128+(s&7)} offset:{(s>>3)*256}")
    for s in range(QD-1): rdq(s)
    def dpop(n=1):
        for _ in range(n):
            if dq:
                for y in dq.pop(0): g(y)
    dpop(g.o["d0"])
    dn = g.o["dn"]
    for s in range(32):
        L.wait(ids[s])
        c = "0" if s == 0 else "v[48:63]"
        g(f"v_mfma_f32_32x32x16_bf16 v[48:63], a[{128+4*s}:{131+4*s}], {qreg(s)}, {c}")
        if s + QD - 1 < 32: rdq(s + QD - 1)
        if (s + 1) * dn // 32 > s * dn // 32: dpop()
    cpre = g.o["cpre"]; fb = g.o["fb"]
    def sma_ops(ch):
        o = ch*10240
        R = 216 if ch == 0 else 222
        T = []
        T += ["v_max3_f32 v8, v48, v49, v50", "v_max3_f32 v9, v51, v52, v53", "v_max3_f32 v10, v54, v55, v56", "v_max3_f32 v11, v57, v58, v59",
              "v_max3_f32 v8, v8, v60, v61", "v_max3_f32 v9, v9, v62, v63", "v_max_f32 v10, v10, v11", "v_max3_f32 v8, v8, v9, v10"]
        if ch == 0: T += ["v_ceil_f32 v216, v8"]
        else: T += ["v_cmp_gt_f32 vcc, v8, v47", "v_ceil_f32 v8, v8", "s_nop 0", "v_cndmask_b32 v222, v44, v8, vcc"]
        for h in range(2):
            T += [f"v_sub_f32 v{48+8*h+k}, v{48+8*h+k}, v{R}" for k in range(8)]
            T += [f"v_exp_f32 v{48+8*h+k}, v{48+8*h+k}" for k in range(8)]
            if h == 0 and ch == 0: T += ["s_barrier"]
            if h == 0: T += [f"@ds_write_b32 v41, v{R} offset:{o}"]
            T += [f"v_cvt_pk_bf16_f32 v{168+4*h+k}, v{48+8*h+2*k}, v{49+8*h+2*k}" for k in range(4)]
            T += [f"@ds_write_b128 v43, v[{168+4*h}:{171+4*h}] offset:{o+1024*h}"]
        return T
    def lsum_ops(ch):
        T = [f"v_add_f32 v{48+k}, v{48+k}, v{56+k}" for k in range(8)]
        T += [f"v_add_f32 v{48+k}, v{48+k}, v{52+k}" for k in range(4)]
        T += ["v_add_f32 v48, v48, v50", "v_add_f32 v49, v49, v51"]
        if ch == 0: T += ["v_add_f32 v217, v48, v49"]
        else: T += ["v_add_f32 v48, v48, v49", "v_add_f32 v217, v217, v48", "@ds_write_b32 v41, v217 offset:1024"]
        return T
    def emit(x):
        if callable(x): return x()
        if x.startswith("@"): return L.op(x[1:])
        g(x)
    def kfix(P, waits=None):
        T = []
        for w in range(4):
            T += [f"v_sub_f32 v{12+w}, v44, v{12+w}", f"v_cvt_u32_f32 v{8+w}, v{12+w}", f"v_min_u32 v{8+w}, 0xff, v{8+w}", f"v_mul_u32_u24 v{8+w}, 0x800080, v{8+w}"]
            for kk in (2*w, 2*w+1):
                if waits is not None: T += [lambda kk=kk: L.wait(waits[kk])]
                T += [f"v_pk_sub_u16 v{P+4*kk+i}, v{P+4*kk+i}, v{8+w} clamp" for i in range(4)]
        return T
    def cost(x):
        if callable(x): return getattr(x, "c", 0)
        if x.startswith("v_exp"): return 2
        return 1
    def fill(q, budget):
        while q and budget > 0:
            x = q.pop(0); budget -= cost(x); emit(x)
        return budget
    def rdop(d, key, txt):
        def f(): d[key] = L.op(txt)
        f.c = 1
        return f
    order = [(kk, ct) for ct in range(4) for kk in range(8)]
    pvid = {}; rq = []
    def refill(cnt):
        n_ = 0
        while rq and n_ < cnt:
            key, x = rq.pop(0); pvid[key] = L.op(x); n_ += 1
        return n_
    def pv0(kk, ct):
        r = pvreg(kk, ct)
        c = "0" if kk == 0 else f"v[{64+16*ct}:{79+16*ct}]"
        g(f"v_mfma_f32_32x32x16_bf16 v[{64+16*ct}:{79+16*ct}], a[{r}:{r+3}], v[{128+4*kk}:{131+4*kk}], {c}")
    def flush_until(q, prefix):
        if any((not callable(x)) and x.startswith(prefix) for x in q):
            while True:
                x = q.pop(0); emit(x)
                if (not callable(x)) and x.startswith(prefix): break
            g("s_nop 1")
    if fine: g.stamp(1)
    if g.o["cyc"] == 2: g("s_memtime s[84:85]")
    n0_ = len(g.L); dpop(g.o["d1"]); g.nop(max(0, 12 - (len(g.L) - n0_)))
    acc_ = 0
    for x in sma_ops(0):
        emit(x); acc_ += cost(x)
        if g.o["dk"] and acc_ >= g.o["dk"]: dpop(); acc_ = 0
    dpop(g.o["d2"] if cpre else 100)
    if cpre == 0:
        for x in lsum_ops(0): emit(x)
    L.all()
    if cpre == 0: g("s_waitcnt vmcnt(0)")
    g("s_barrier")
    if fine: g.stamp(2)
    if g.o["cyc"] == 2: g("s_memtime s[86:87]")
    r0 = {}
    qr = [rdop(r0, "x", "ds_read_b128 v[12:15], v40"), rdop(r0, "ref", "ds_read_b128 v[168:171], v46")]
    qr += [rdop(r0, k, f"ds_read_b128 v[{128+4*k}:{131+4*k}], v42 offset:{1024*k}") for k in range(8)]
    q2 = [lambda: L.wait(r0["ref"]), "v_max3_f32 v9, v12, v13, v14", "v_max3_f32 v10, v169, v170, v171", "v_max3_f32 v9, v9, v15, v168", "v_max_f32 v44, v9, v10"]
    q2 += kfix(128, r0)
    q2 += ["v_sub_f32 v216, v216, v44", "v_exp_f32 v216, v216", f"v_add_f32 v47, 0x{f2u(float(g.o['thr'])):08x}, v44", "v_mul_f32 v217, v217, v216"]
    if cpre:
        for x in qr: emit(x)
        qr = []
        if g.o["dk"]: dpop()
        for x in lsum_ops(0): emit(x)
        if g.o["dk"]: dpop()
        flush_until(q2, "v_pk_sub_u16 v135,")
        for n, (kk, ct) in enumerate(order[:8*cpre]):
            if ct == 0: flush_until(q2, f"v_pk_sub_u16 v{128+4*kk+3},")
            pv0(kk, ct)
            fill(q2, 6 if ct == 0 else 4)
            if n % g.o["d3"] == 0: dpop()
            rq += [((kk, ct), x) for x in rdp_txt(kk, ct)]
        dpop(100)
        if g.o["cyc"] == 2: g("s_memtime s[94:95]")
        g(f"s_waitcnt vmcnt({3 if g.o['atq'] else 0})")
        g("s_barrier")
    if not g.o["cyc"]: g.stamp(4)
    if g.o["cyc"] == 2: g("s_memtime s[88:89]")
    D = 6
    ids = {}
    def rdc(s):
        r = 176 + 4*(s % 8)
        ids[s] = L.op(f"ds_read_b128 v[{r}:{r+3}], v{16+(s&7)} offset:{(s>>3)*256}")
    for s in range(D): rdc(s)
    oi = g.o["oi"]
    if oi:
        for k in range(4): g(f"v_mov_b32 v{172+k}, -1")
    for s in range(32):
        L.wait(ids[s])
        r = 176 + 4*(s % 8)
        c = "0" if s == 0 else "v[48:63]"
        g(f"v_mfma_f32_32x32x16_bf16 v[48:63], v[{r}:{r+3}], {qreg(s)}, {c}")
        if s + D < 32: rdc(s + D)
        at = g.o["ats"]
        if oi and s % 3 == 0 and s < 24:
            n_ = s // 3
            g(f"s_add_u32 s63, s65, {(n_&3)*8*32768}")
            g(f"buffer_store_dwordx4 v[172:175], v213, s[4:7], s63 offen offset:{(n_>>2)*128} sc1")
        elif s == at: g("buffer_load_dword v223, v218, s[44:47], s70 offen")
        elif s == at + 3: g("buffer_load_dword v223, v218, s[48:51], s70 offen")
        elif s == at + 6: g("buffer_load_dword v223, v219, s[52:55], s71 offen")
        elif qr: fill(qr, 2)
        elif q2 and (s >= 7 or cpre): fill(q2, 3)
        else: refill(2)
    fill(q2, 1000)
    if not g.o["cyc"]: g.stamp(5)
    if g.o["cyc"] == 2: g("s_memtime s[90:91]")
    q = sma_ops(1)
    r1 = {}
    qr = [rdop(r1, "x", "ds_read_b128 v[12:15], v40 offset:10240"), rdop(r1, "ref", "ds_read_b128 v[218:221], v46 offset:10240")]
    qr += [rdop(r1, k, f"ds_read_b128 v[{176+4*k}:{179+4*k}], v42 offset:{10240+1024*k}") for k in range(8)]
    state = 0; dist = 0
    for n, (kk, ct) in enumerate(order[8*cpre:]):
        pv0(kk, ct); dist += 1
        if state == 0:
            if dist < 12:
                k_ = refill(3); dist += k_
                if k_ < 3: g.nop(3 - k_); dist += 3 - k_
            else:
                fill(q, fb)
                if not q:
                    last_w = L.n; state = 1
        elif state == 1:
            L.wait(last_w); g("s_barrier"); state = 2
            fill(qr, 3)
        elif state == 2:
            if qr: fill(qr, 3)
            else: refill(3)
        rq += [((kk, ct), x) for x in rdp_txt(kk, ct)]
    if state == 0:
        if dist < 12: g.nop(12 - dist)
        fill(q, 1000); last_w = L.n; state = 1
    if state == 1:
        L.wait(last_w); g("s_barrier")
    fill(qr, 1000)
    L.wait(r1["ref"])
    g("v_max3_f32 v9, v12, v13, v14"); g("v_max3_f32 v10, v219, v220, v221"); g("v_max3_f32 v9, v9, v15, v218"); g("v_max_f32 v9, v9, v10")
    g("v_cmp_neq_f32 vcc, v9, v44")
    g("s_cbranch_vccnz L_A_slow")
    g("L_A_back:")
    slow = ["L_A_slow:", "s_waitcnt lgkmcnt(0)", "v_sub_f32 v47, v44, v9", "v_sub_f32 v222, v222, v9", "v_mov_b32 v44, v9", "v_exp_f32 v47, v47", "v_exp_f32 v222, v222"] + kfix(176) + \
           [f"v_mul_f32 v{64+k}, v47, v{64+k}" for k in range(64)] + ["v_mul_f32 v217, v47, v217"] + \
           [f"v_mul_f32 v{48+k}, v222, v{48+k}" for k in range(16)] + ["s_branch L_A_back"]
    g.slow = slow
    if fine: g.stamp(10)
    if g.o["cyc"] == 2: g("s_memtime s[92:93]")
    def epi_w(ct, qq):
        b = 128+8*(ct&1)+4*qq
        return [f"v_cvt_pk_bf16_f32 v{b+k}, v{64+16*ct+8*qq+2*k}, v{65+16*ct+8*qq+2*k}" for k in range(4)] + \
               [f"@ds_write_b128 v{208+2*(ct&1)+qq}, v[{b}:{b+3}] offset:{(ct>>1)*128}"]
    er = {}
    def epi_r(half):
        return [rdop(er, (half, n_), f"ds_read_b128 v[{224+16*half+4*n_}:{227+16*half+4*n_}], v212 offset:{n_*8192+half*128}") for n_ in range(4)]
    def epi_s(half, n_):
        def f():
            L.wait(er[(half, n_)])
            if g.o["oi"] and half == 0 and n_ == 0: g("s_waitcnt vmcnt(0)")
            g(f"s_add_u32 s63, s65, {n_*8*32768}")
            g(f"buffer_store_dwordx4 v[{224+16*half+4*n_}:{227+16*half+4*n_}], v213, s[4:7], s63 offen offset:{half*128} sc1")
        f.c = g.o['sc']
        return f
    def pad():
        pass
    pad.c = 4
    lw = {}
    def mark(): lw["w"] = L.n
    def lbar(): L.wait(lw["w"]); g("s_barrier")
    lbar.c = 2
    q = lsum_ops(1) + [mark]
    ql = [lbar, rdop(lw, "a", "ds_read_b128 v[52:55], v40 offset:1024"), rdop(lw, "b", "ds_read_b128 v[56:59], v46 offset:1024")]
    ql2 = [lambda: L.wait(lw["b"])] + [f"v_add_f32 v{52+w}, v{52+w}, v{56+w}" for w in range(4)] + \
        ["v_add_f32 v52, v52, v53", "v_add_f32 v54, v54, v55", "v_add_f32 v45, v52, v54"] + \
        [f"@ds_bpermute_b32 v{60+i}, v215, v{44+(i&1)}" for i in range(4)]
    wdone = 0
    ld = g.o["ld"]
    if ld:
        qlate = (q if ld == 2 else []) + ql + ql2
        if ld == 2: q = []
        ql = []; ql2 = []
    def cyc(k):
        if g.o["cyc"] == 1: g(f"s_memtime s[{80+2*k}:{81+2*k}]")
    for n, (kk, ct) in enumerate(order):
        r = pvreg(kk, ct)
        if kk == 0: cyc(1 + ct)
        while (kk, ct) not in pvid or any(k == (kk, ct) for k, _ in rq): refill(1)
        if ct == 0: L.wait(r1[kk])
        L.wait(pvid[(kk, ct)])
        g(f"v_mfma_f32_32x32x16_bf16 v[{64+16*ct}:{79+16*ct}], a[{r}:{r+3}], v[{176+4*kk}:{179+4*kk}], v[{64+16*ct}:{79+16*ct}]")
        nm_ = len(g.L)
        b = 4 - refill(g.o["rf"])
        if kk == 0: since = 0
        if not rq and wdone < ct and since >= 11:
            q += epi_w(wdone, 0) + epi_w(wdone, 1)
            if wdone == 0: q += ql
            if wdone == 1: q += epi_r(0) + ql2 + [pad] * g.o["sp"] + [epi_s(0, n_) for n_ in range(4)]
            wdone += 1
        b = fill(q, b)
        em = len(g.L) - nm_
        if em < 4 and wdone < ct and since + em < 11:
            g.nop(4 - em); em = 4
        since += 1 + em
    while wdone < 3:
        q += epi_w(wdone, 0) + epi_w(wdone, 1)
        if wdone == 0: q += ql
        if wdone == 1: q += epi_r(0) + ql2 + [pad] * g.o["sp"] + [epi_s(0, n_) for n_ in range(4)]
        wdone += 1
    n0_ = len(g.L)
    fill(q, 1000)
    if g.o["fine2"]: g.stamp(1)
    cyc(5)
    g.nop(max(0, 12 - (len(g.L) - n0_)))
    for x in epi_w(3, 0) + epi_w(3, 1) + epi_r(1) + [epi_s(1, n_) for n_ in range(4)]: emit(x)
    g.stamp(9)
    cyc(6)
    if ld:
        for x in qlate: emit(x)
        L.all()
    if g.o["fsb"]: ffn_setup(g)
    if not g.o["oi"]: g("s_waitcnt vmcnt(0)")
    g("s_barrier")
    g("buffer_store_dwordx4 v[60:63], v214, s[4:7], s79 offen sc1")
    if not fine: g.stamp(10)

def gen(opts):
    g = G(opts)
    g("s_load_dwordx16 s[16:31], s[0:1], 0")
    g("s_load_dwordx8 s[32:39], s[0:1], 64")
    g("s_load_dwordx2 s[40:41], s[0:1], 96")
    g("s_cmp_ge_u32 s2, 256"); g("s_cbranch_scc1 L_end")
    g.stamp(0)
    g("s_getpc_b64 s[4:5]")
    g("s_and_b32 s5, s5, 0xffff"); g("s_mov_b32 s6, L_end - L_pcv"); g("s_mov_b32 s7, 0x20000")
    g("L_pcv:")
    g("s_bfe_u32 s62, s2, 0x40003"); g("s_lshl_b32 s62, s62, 12")
    g("v_lshlrev_b32 v1, 4, v0")
    g("buffer_load_dwordx4 v[252:255], v1, s[4:7], s62 offen")
    g("v_lshrrev_b32 v2, 6, v0"); g("v_and_b32 v1, 63, v0")
    g("v_readfirstlane_b32 s3, v2")
    g("v_and_b32 v2, 15, v0"); g("v_lshrrev_b32 v3, 4, v1")
    g("s_and_b32 s62, s2, 7"); g("s_lshr_b32 s43, s2, 4"); g("s_lshl_b32 s42, s43, 3"); g("s_or_b32 s42, s42, s62")
    g("s_and_b32 s73, s43, 3")
    g("s_lshr_b32 s43, s43, 2")
    g("s_lshl_b32 s72, s62, 2"); g("s_or_b32 s72, s72, s43")
    g("s_lshl_b32 s43, s43, 3"); g("s_or_b32 s43, s43, s62")
    g("s_mov_b32 s60, 0x05040100"); g("s_mov_b32 s61, 0x07060302")
    if opts.get("stamps"):
        for k in range(82, 102): g(f"s_mov_b32 s{k}, 0")
    g("s_bitcmp1_b32 s2, 3")
    g("s_cbranch_scc1 L_A")
    tcu(g)
    g("L_A:")
    acu(g)
    if not g.o["fsb"]: ffn_setup(g)
    g(f"s_cmp_lt_u32 s66, {NSL}"); g("s_cbranch_scc1 L_FW")
    g("s_cmp_lg_u32 s66, 31"); g("s_cbranch_scc1 L_fin")
    x_issue(g); g("s_waitcnt vmcnt(0)"); x_finish(g)
    g("s_branch L_FFN")
    g("L_FW:")
    x_issue(g)
    if g.o["fw"]: g("s_waitcnt vmcnt(0)")
    if g.o["fi"]: ffn_issue2(g)
    else: ffn_issue(g); ffn_finish(g)
    if not g.o["fine"] and not g.o["cyc"]: g.stamp(6)
    if g.o["ec"]:
        g(f"s_mov_b32 s65, {SPIN}")
        for k in range(24): g(f"v_mov_b32 v{192+k}, 0")
        g("s_waitcnt vmcnt(0)")
        g("v_cmp_eq_u32 vcc, -1, v14")
        g("s_cbranch_vccz L_FGO")
    g("L_FFN:")
    ffn_stage(g)
    g("L_fin:")
    if opts["probe"]:
        wg, k = [int(x) for x in opts["probe"].split(",")]
        g("s_waitcnt lgkmcnt(0)")
        g(f"s_cmp_lg_u32 s2, {wg}"); g("s_cbranch_scc1 L_end")
        g("s_cmp_lg_u32 s3, 0"); g("s_cbranch_scc1 L_end")
        g(f"s_sub_u32 s64, s{80+2*k}, s80"); g("s_mul_i32 s64, s64, 20"); g("s_min_u32 s64, s64, 100000")
        g("s_memrealtime s[62:63]"); g("s_waitcnt lgkmcnt(0)"); g("s_add_u32 s64, s64, s62")
        g("L_pr:")
        g("s_sleep 2")
        g("s_memrealtime s[62:63]"); g("s_waitcnt lgkmcnt(0)")
        g("s_sub_u32 s62, s62, s64"); g("s_cmp_lt_i32 s62, 0"); g("s_cbranch_scc1 L_pr")
    elif opts.get("stamps"):
        nst = 11
        g("s_waitcnt lgkmcnt(0)")
        g("s_cmp_lg_u32 s3, 0"); g("s_cbranch_scc1 L_end")
        g("s_mov_b64 exec, 1")
        g(f"s_mul_i32 s62, s2, {nst*8}"); g(f"s_add_u32 s62, s62, {WS - 256*nst*8}")
        g("v_mov_b32 v3, 0")
        for k in range(nst):
            g(f"v_mov_b32 v4, s{80+2*k}"); g(f"v_mov_b32 v5, s{81+2*k}")
            g(f"buffer_store_dwordx2 v[4:5], v3, s[4:7], s62 offen offset:{8*k}")
            g("s_nop 1")
    g("L_end:")
    g("s_endpgm")
    for x in g.slow + getattr(g, "slow0", []): g(x)
    hdr = open("hdr.txt").read()
    return hdr + "; @launch grid=(256,1,1) block=(256,1,1) lds=163840\n" + '.amdgcn_target "amdgcn-amd-amdhsa--gfx950"\n.text\n' + kstart(KN) + "\n".join(g.L) + "\n" + kdesc(KN, vgpr=512, accum=256).replace(".text\n", "")

if __name__ == "__main__":
    import argparse
    ap = argparse.ArgumentParser()
    ap.add_argument("out"); ap.add_argument("--stamps", action="store_true")
    ap.add_argument("--thr", type=float, default=30); ap.add_argument("--probe", default=""); ap.add_argument("--pflag", default=""); ap.add_argument("--cf0", default="nt")
    for k, v in (("fine", 0), ("fine2", 0), ("tsleep", 1), ("fsleep", 1), ("fb", 7), ("cpre", 2), ("d0", 8), ("dn", 12), ("d1", 4), ("d2", 4), ("d3", 1), ("sc", 4),
                 ("ats", 1), ("nb", 3), ("rep", 0), ("eg", 1), ("fsb", 0), ("xnp", 0), ("osc", 0), ("tord", 0), ("oi", 0), ("cls", 0), ("cu", 1), ("pb", 1), ("sw", 1), ("atq", 0), ("fi", 0), ("mix", 0), ("mw", 0), ("p5", 1), ("pp", 6), ("rot", 11), ("skew", 0), ("fw", 1), ("ec", 0), ("pf1", 0), ("pf2", 0), ("aw", 3), ("ld", 2), ("sp", 0), ("dk", 0), ("nd2", 0), ("cyc", 0), ("rf", 3)): ap.add_argument("--" + k, type=int, default=v)
    a = ap.parse_args()
    open(a.out, "w").write(gen(vars(a)))
```

```python
import sys, math, struct
from gen_common import *
def f2u(x): return struct.unpack("<I", struct.pack("<f", x))[0]
QABS = 0x000000
STAT = 0x040000
OPART = 0x100000
APART = 0x500000
FPART = 0x600000
OOB = 0x40000000
SCALE = (128 ** -0.5) * math.log2(math.e)
class G:
    def __init__(s, opts):
        s.L = []; s.o = opts; s.uid = 0
    def a(s, x): s.L.append(x)
    def __call__(s, x): s.L.append(x)
    def lab(s, p="L"):
        s.uid += 1; return f"{p}_{s.uid}"
    def nop(s, n):
        while n > 0:
            k = min(n, 16); s.a(f"s_nop {k-1}"); n -= k
    def stamp(s, k):
        if s.o.get("stamps"):
            s.a(f"s_memrealtime s[{80+2*k}:{81+2*k}]")
    def srd(s, d, p, size):
        s.a(f"s_mov_b32 s{d}, s{p}"); s.a(f"s_and_b32 s{d+1}, s{p+1}, 0xffff")
        s.a(f"s_mov_b32 s{d+2}, {size}"); s.a(f"s_mov_b32 s{d+3}, 0x20000")
    def dpp(s, op, v, ctrl):
        s.a("s_nop 1"); s.a(f"{op}_dpp v{v}, v{v}, v{v} {ctrl} row_mask:0xf bank_mask:0xf")
    def allred(s, op, v, t, width=64):
        for c in ("quad_perm:[1,0,3,2]", "quad_perm:[2,3,0,1]", "row_half_mirror", "row_mirror"):
            s.dpp(op, v, c)
        if width >= 32:
            s.a(f"v_mov_b32 v{t}, v{v}"); s.a("s_nop 1"); s.a(f"v_permlane16_swap_b32 v{v}, v{t}"); s.a(f"{op} v{v}, v{v}, v{t}")
        if width >= 64:
            s.a(f"v_mov_b32 v{t}, v{v}"); s.a("s_nop 1"); s.a(f"v_permlane32_swap_b32 v{v}, v{t}"); s.a(f"{op} v{v}, v{v}, v{t}")
    def bf16r(s, d, v):
        s.a(f"v_cvt_pk_bf16_f32 v{d}, v{v}, v{v}"); s.a(f"v_lshlrev_b32 v{d}, 16, v{d}")
    def maxtree(s, d, regs):
        regs = list(regs)
        s.a(f"v_max3_u32 v{d}, v{regs[0]}, v{regs[1]}, v{regs[2]}")
        i = 3
        while i + 1 < len(regs):
            s.a(f"v_max3_u32 v{d}, v{d}, v{regs[i]}, v{regs[i+1]}"); i += 2
        if i < len(regs):
            s.a(f"v_max_u32 v{d}, v{d}, v{regs[i]}")
    def perm8x8(s, R, T, acc=None):
        for t in range(8):
            for p in range(4):
                s.a(f"v_perm_b32 v{T+4*t+p}, v{R+4*(2*p+1)+(t>>1)}, v{R+4*(2*p)+(t>>1)}, s{60+(t&1)}")
        if acc is not None:
            for k in range(32):
                s.a(f"v_accvgpr_write_b32 a{acc+k}, v{T+k}")

def fswz(k):
    return ((k & 3) << 2) | ((k >> 2) & 3)

SPIN = 20000
LDS_XN = 0
LDS_QX = 8192
LDS_OT = 16384
LDS_FX = 49152
LDS_CX = 49664
LDS_CS = 51200
LDS_GX = 53248
LDS_FW = 57344
NSL = 29
LQ = 131072
LRF = LQ
LP = LQ + 2048
TS = 0x100000
SMF = "v_smfmac_f32_16x16x64_bf16"
M16 = "v_mfma_f32_16x16x32_bf16"

def poll_loop(g, body, cond, spin=SPIN, sleep=1):
    l = g.lab("pl"); e = g.lab("ple"); f = g.lab("plf")
    g(f"s_mov_b32 s64, {spin}")
    if sleep: g(f"s_branch {f}")
    g(f"{l}:")
    if sleep:
        g(f"s_sleep {sleep}")
        g(f"{f}:")
    body()
    g("s_sub_u32 s64, s64, 1"); g("s_cmp_eq_u32 s64, 0")
    g("s_waitcnt vmcnt(0)")
    g(f"s_cbranch_scc1 {e}")
    cond()
    g(f"s_cbranch_vccnz {l}")
    g(f"{e}:")

def cnt_wait(g, vt, vo, sleep=4):
    poll_loop(g, lambda: g(f"buffer_load_dword v{vt}, v{vo}, s[8:11], 0 offen sc1"),
              lambda: g(f"v_cmp_ne_u32 vcc, 16, v{vt}"), sleep=sleep)

def tile_setup(g, rot):
    g("v_lshlrev_b32 v8, 1, v3"); g("v_xor_b32 v8, v8, v2"); g("v_lshlrev_b32 v8, 4, v8"); g("v_lshl_add_u32 v8, v3, 10, v8")
    g("v_xor_b32 v9, 0x80, v8")
    g("s_lshl_b32 s68, s3, 13"); g(f"s_add_u32 s68, s68, {LDS_OT}")
    g("v_bfe_u32 v11, v1, 2, 2")
    g("v_lshl_add_u32 v10, v3, 3, v11"); g("v_lshlrev_b32 v10, 8, v10")
    g("v_and_b32 v12, 1, v3"); g("v_lshl_add_u32 v12, v12, 2, v11"); g("v_lshlrev_b32 v12, 1, v12")
    g("v_bfe_u32 v13, v1, 1, 1"); g("v_xor_b32 v12, v12, v13")
    g("v_lshl_add_u32 v10, v12, 4, v10")
    g("v_and_b32 v13, 1, v1"); g("v_lshl_add_u32 v10, v13, 3, v10")
    g("v_add_u32 v10, s68, v10")
    if rot:
        g("s_lshr_b32 s63, s73, 1"); g("s_lshl_b32 s63, s63, 7"); g("s_and_b32 s62, s73, 1"); g("s_lshl_b32 s62, s62, 4"); g("s_or_b32 s63, s63, s62")
        g("v_xor_b32 v10, s63, v10")
    for t in range(8): g(f"v_xor_b32 v{112+t}, {t<<5}, v10")
    g("s_mov_b32 s70, 0xaaaaaaaa"); g("s_mov_b32 s71, 0xaaaaaaaa")
    g("v_mov_b32 v29, 0x4444"); g("v_mov_b32 v28, 0xeeee"); g("v_cndmask_b32 v29, v29, v28, s[70:71]")

def tile_dma(g, sbase):
    g("s_mov_b32 m0, s68"); g(f"s_mov_b32 s63, s{sbase}")
    for n in range(8):
        g(f"buffer_load_dwordx4 v{8+((n>>1)&1)}, s[4:7], s63 offen sc1 lds")
        if n < 7:
            g("s_addk_i32 m0, 0x400"); g("s_addk_i32 s63, 0x1000")

def tile_read(g, A):
    for t in range(8):
        if t == 6: g("s_waitcnt lgkmcnt(8)")
        g(f"ds_read_b64_tr_b16 v[{A+4*t}:{A+4*t+1}], v{112+t}")
        g(f"ds_read_b64_tr_b16 v[{A+4*t+2}:{A+4*t+3}], v{112+t} offset:1024")

def ffn_setup(g):
    g("s_mov_b32 s66, s72"); g("s_mov_b32 s67, s73")
    g.srd(56, 16, 4096)
    for m in range(3):
        g(f"v_add_u32 v7, {64*m}, v1"); g("v_mul_u32_u24 v8, 43691, v7"); g("v_lshrrev_b32 v8, 18, v8")
        g(f"v_mul_u32_u24 v{4+m}, {2752-96}, v8"); g(f"v_lshl_add_u32 v{4+m}, v7, 4, v{4+m}")
    g("v_lshlrev_b32 v121, 11, v3"); g("v_lshl_add_u32 v121, v2, 4, v121")
    g("v_lshlrev_b32 v122, 3, v3")
    for k in range(4): g(f"v_mov_b32 v{24+k}, 0x3f803f80")
    tile_setup(g, False)
    g("v_and_b32 v10, 1, v3"); g("v_lshlrev_b32 v10, 5, v10"); g("v_lshrrev_b32 v12, 1, v3"); g("v_lshl_add_u32 v10, v12, 2, v10"); g("v_add_u32 v10, v10, v11")
    g("v_mul_u32_u24 v125, 96, v10"); g("v_and_b32 v28, 3, v1"); g("v_lshl_add_u32 v125, v28, 3, v125")
    g("s_mul_i32 s76, s3, 24576"); g(f"s_add_u32 s76, s76, {LDS_FW}"); g("v_add_u32 v125, s76, v125")
    for p in range(4):
        g(f"v_cmp_eq_u32 vcc, {p}, v28"); g("s_nop 1"); g(f"v_cndmask_b32 v{16+p}, 0, -1, vcc")
    for p in range(4): g(f"v_and_b32 v{20+p}, 0xffff, v{16+(p^1)}")
    g("v_xor_b32 v10, 1, v28"); g("v_lshlrev_b32 v10, 2, v10"); g("v_lshlrev_b32 v30, v10, 10"); g("v_or_b32 v30, 0x4444, v30")
    g("v_lshlrev_b32 v120, 5, v2"); g("s_lshl_b32 s62, s3, 9"); g(f"s_add_u32 s62, s62, {LDS_CS}"); g("v_add_u32 v120, s62, v120")
    g("v_lshl_add_u32 v7, v3, 2, v28"); g("v_lshlrev_b32 v7, 5, v7")
    rep = g.o["rep"]
    g("s_lshl_b32 s69, s67, 15"); g("s_lshl_b32 s63, s3, 8"); g("s_add_u32 s69, s69, s63"); g(f"s_add_u32 s69, s69, {APART}")
    if rep:
        g("s_and_b32 s63, s42, 7"); g("s_lshl_b32 s63, s63, 17"); g("s_add_u32 s69, s69, s63")
    g("v_lshrrev_b32 v13, 1, v1"); g("v_lshlrev_b32 v13, 10, v13"); g("v_and_b32 v14, 1, v1"); g("v_lshl_add_u32 v13, v14, 7, v13")
    g("v_lshlrev_b32 v123, 5, v2"); g("v_lshl_add_u32 v123, v3, 4, v123")
    g("s_lshl_b32 s74, s67, 5"); g("s_add_u32 s74, s74, s66"); g("s_lshl_b32 s74, s74, 11")
    g("s_lshl_b32 s63, s3, 9"); g("s_add_u32 s74, s74, s63"); g(f"s_add_u32 s74, s74, {FPART}")
    c1 = -2 * math.sqrt(2 / math.pi) * math.log2(math.e)
    g(f"s_mov_b32 s75, 0x{f2u(c1*0.044715):08x}"); g(f"v_mov_b32 v124, 0x{f2u(c1):08x}")
    for k in range(32): g(f"v_mov_b32 v{160+k}, 0")

def x_issue(g):
    g("s_lshl_b32 s62, s67, 10"); g("s_lshl_b32 s63, s3, 8"); g("s_add_u32 s62, s62, s63")
    for t in range(8):
        g(f"buffer_load_dwordx2 v[{96+2*t}:{97+2*t}], v122, s[56:59], s62 offen offset:{32*t}")

def x_finish(g):
    for t in range(8):
        for q in range(2):
            g(f"v_lshlrev_b32 v{128+4*t+2*q}, 16, v{96+2*t+q}")
            g(f"v_and_b32 v{128+4*t+2*q+1}, 0xffff0000, v{96+2*t+q}")

def ffn_issue(g):
    g(f"s_mul_i32 s62, s3, {128*2752}"); g("s_mul_i32 s63, s66, 96"); g("s_mov_b32 m0, s76"); g("s_add_u32 s62, s62, s63")
    for n in range(12):
        g(f"buffer_load_dwordx4 v{4+n%3}, s[44:47], s62 offen lds")
        g("s_addk_i32 m0, 0x3000"); g("s_nop 0")
        g(f"buffer_load_dwordx4 v{4+n%3}, s[48:51], s62 offen lds")
        if n < 11:
            g("s_addk_i32 m0, 0xd400")
            g(f"s_add_u32 s62, s62, {32*2752}" if n % 3 == 2 else "s_nop 0")
    g("s_mul_i32 s62, s66, 49152"); g("s_lshl_b32 s63, s3, 8"); g("s_add_u32 s62, s62, s63")
    for hb in range(2):
        for pos in range(3):
            g(f"s_add_u32 s63, s62, {(16*pos + 8*hb)*1024}")
            for q in range(2):
                r = 192 + 24*hb + 8*pos + 4*q
                g(f"buffer_load_dwordx4 v[{r}:{r+3}], v121, s[52:55], s63 offen offset:{(q if pos < 2 else q ^ 1)*1024}")

def ffn_finish(g):
    g("s_waitcnt vmcnt(36)")
    if g.o["fine2"]: g.stamp(3)
    x_finish(g)
    for s2 in range(2):
        g(f"s_waitcnt vmcnt({12 + 12*(1-s2)})")
        for t in range(6):
            for hb in range(2):
                for hv in range(2):
                    r = 48*s2+8*t+4*hb+2*hv
                    g(f"ds_read_b64_tr_b16 a[{r}:{r+1}], v125 offset:{(64*s2+8*hb+16*hv)*96+(t%3)*32+(t//3)*12288}")
    g("s_waitcnt lgkmcnt(0)")
    if g.o["fine2"]: g.stamp(4)
    for ks in range(4):
        for t in range(6):
            c = "0" if ks == 0 else f"v[{32+4*t}:{35+4*t}]"
            r = 48*(ks>>1)+8*t+4*(ks&1)
            g(f"{M16} v[{32+4*t}:{35+4*t}], v[24:27], a[{r}:{r+3}], {c}")
    g("s_waitcnt vmcnt(0)")
    if g.o["ec"]: g("buffer_load_dword v14, v13, s[4:7], s69 offen sc1")
    for hb in range(2):
        for t in range(8):
            R = lambda pos, q: 192 + 24*hb + 8*pos + 4*q + (t>>1)
            for q in range(2):
                g(f"v_perm_b32 v{64+2*q}, v{R(1,q)}, v{R(0,q)}, s{60+(t&1)}")
                g(f"v_perm_b32 v{65+2*q}, v{R(2,q)}, v{R(2,q)}, s{60+(t&1)}")
            for p in range(4): g(f"v_accvgpr_write_b32 a{96+8*t+4*hb+p}, v{64+p}")
        if hb == 0:
            g("ds_write2_b32 v120, v32, v36 offset0:0 offset1:1"); g("ds_write2_b32 v120, v40, v44 offset0:2 offset1:4"); g("ds_write2_b32 v120, v48, v52 offset0:5 offset1:6")
    if g.o["fine2"]: g.stamp(5)
    g("s_waitcnt lgkmcnt(0)")
    g("s_barrier")
    for w in range(4):
        g(f"ds_read_b128 v[{32+8*w}:{35+8*w}], v7 offset:{LDS_CS+512*w}"); g(f"ds_read_b128 v[{36+8*w}:{39+8*w}], v7 offset:{LDS_CS+512*w+16}")
    g(f"v_add_u32 v120, {LDS_GX-LDS_CS}, v120")
    g("s_waitcnt lgkmcnt(0)")
    for k in (0, 1, 2, 4, 5, 6):
        g(f"v_add_f32 v{32+k}, v{32+k}, v{40+k}"); g(f"v_add_f32 v{48+k}, v{48+k}, v{56+k}")
        g(f"v_add_f32 v{224+k}, v{32+k}, v{48+k}")

def ffn_issue2(g):
    g("s_mul_i32 s62, s66, 49152"); g("s_lshl_b32 s63, s3, 8"); g("s_add_u32 s62, s62, s63")
    for hb in range(2):
        for pos in range(3):
            g(f"s_add_u32 s63, s62, {(16*pos + 8*hb)*1024}")
            for q in range(2):
                r = 192 + 24*hb + 8*pos + 4*q
                g(f"buffer_load_dwordx4 v[{r}:{r+3}], v121, s[52:55], s63 offen offset:{(q if pos < 2 else q ^ 1)*1024}")
    g(f"s_mul_i32 s62, s3, {128*2752}"); g("s_mul_i32 s63, s66, 96"); g("s_mov_b32 m0, s76"); g("s_add_u32 s62, s62, s63")
    def dperm(hb, ts):
        for t in ts:
            R = lambda pos, q: 192 + 24*hb + 8*pos + 4*q + (t>>1)
            for q in range(2):
                g(f"v_perm_b32 v{64+2*q}, v{R(1,q)}, v{R(0,q)}, s{60+(t&1)}")
                g(f"v_perm_b32 v{65+2*q}, v{R(2,q)}, v{R(2,q)}, s{60+(t&1)}")
            for p in range(4): g(f"v_accvgpr_write_b32 a{96+8*t+4*hb+p}, v{64+p}")
    def trs(s2):
        for t in range(6):
            for hb in range(2):
                for hv in range(2):
                    r = 48*s2+8*t+4*hb+2*hv
                    g(f"ds_read_b64_tr_b16 a[{r}:{r+1}], v125 offset:{(64*s2+8*hb+16*hv)*96+(t%3)*32+(t//3)*12288}")
    def cs(s2):
        for hb in range(2):
            for t in range(6):
                c = "0" if s2 + hb == 0 else f"v[{32+4*t}:{35+4*t}]"
                r = 48*s2+8*t+4*hb
                g(f"{M16} v[{32+4*t}:{35+4*t}], v[24:27], a[{r}:{r+3}], {c}")
    for n in range(12):
        g(f"buffer_load_dwordx4 v{4+n%3}, s[44:47], s62 offen lds")
        g("s_addk_i32 m0, 0x3000"); g("s_nop 0")
        g(f"buffer_load_dwordx4 v{4+n%3}, s[48:51], s62 offen lds")
        if n < 11:
            g("s_addk_i32 m0, 0xd400")
            g(f"s_add_u32 s62, s62, {32*2752}" if n % 3 == 2 else "s_nop 0")
        k = 2*(n+1)
        if n == 2: g(f"s_waitcnt vmcnt({12+k})"); x_finish(g)
        if n == 4: g(f"s_waitcnt vmcnt({6+k})"); dperm(0, range(4))
        if n == 5: dperm(0, range(4, 8))
        if n == 6: g(f"s_waitcnt vmcnt({k})"); dperm(1, range(4))
        if n == 7: dperm(1, range(4, 8))
        if n == 10:
            g(f"s_waitcnt vmcnt({k-12})"); trs(0)
    g("s_waitcnt lgkmcnt(0)")
    cs(0)
    g("s_waitcnt vmcnt(0)")
    if g.o["ec"]: g("buffer_load_dword v14, v13, s[4:7], s69 offen sc1")
    trs(1)
    g("s_waitcnt lgkmcnt(0)")
    cs(1)
    g.nop(4)
    g("ds_write2_b32 v120, v32, v36 offset0:0 offset1:1"); g("s_nop 0"); g("ds_write2_b32 v120, v40, v44 offset0:2 offset1:4"); g("s_nop 0"); g("ds_write2_b32 v120, v48, v52 offset0:5 offset1:6")
    g("s_waitcnt lgkmcnt(0)")
    g("s_barrier")
    for w in range(4):
        g(f"ds_read_b128 v[{32+8*w}:{35+8*w}], v7 offset:{LDS_CS+512*w}"); g(f"ds_read_b128 v[{36+8*w}:{39+8*w}], v7 offset:{LDS_CS+512*w+16}")
    g(f"v_add_u32 v120, {LDS_GX-LDS_CS}, v120")
    g("s_waitcnt lgkmcnt(0)")
    for k in (0, 1, 2, 4, 5, 6):
        g(f"v_add_f32 v{32+k}, v{32+k}, v{40+k}"); g(f"v_add_f32 v{48+k}, v{48+k}, v{56+k}")
        g(f"v_add_f32 v{224+k}, v{32+k}, v{48+k}")

def ffn_stage(g):
    g(f"s_mov_b32 s65, {SPIN}")
    l = g.lab("fp"); e = g.lab("fpe")
    g(f"{l}:")
    for k in range(24): g(f"v_mov_b32 v{192+k}, 0")
    poll_loop(g, lambda: g("buffer_load_dword v14, v13, s[4:7], s69 offen sc1"), lambda: g("v_cmp_eq_u32 vcc, -1, v14"), spin=4*SPIN, sleep=g.o["fsleep"])
    g("L_FGO:")
    tile_dma(g, 69)
    if not g.o["cyc"]: g.stamp(7)
    g("s_waitcnt vmcnt(0)")
    tile_read(g, 32)
    for t in range(8):
        g(f"s_waitcnt lgkmcnt({14-2*t})")
        g(f"{M16} v[{64+4*t}:{67+4*t}], v[{32+4*t}:{35+4*t}], v[24:27], v[{128+4*t}:{131+4*t}]")
    def cv(t):
        g(f"v_cvt_pk_bf16_f32 v{96+2*t}, v{64+4*t}, v{65+4*t}")
        g(f"v_cvt_pk_bf16_f32 v{97+2*t}, v{66+4*t}, v{67+4*t}")
        g(f"v_cndmask_b32 v{216+t}, v{96+2*t}, v{97+2*t}, s[70:71]")
    def st(ks, which):
        A = f"v[{96+4*ks}:{99+4*ks}]"; d = 56 + 4*which
        c = "0" if ks == 0 else f"v[{d}:{d+3}]"
        g(f"{M16} v[{d}:{d+3}], {A}, {'v[24:27]' if which == 0 else A}, {c}")
    def sm(s2, t):
        g(f"{SMF} v[{192+4*t}:{195+4*t}], v[{216+4*s2}:{219+4*s2}], a[{48*s2+8*t}:{48*s2+8*t+7}], v29")
    for t in range(4): cv(t)
    st(0, 0); st(0, 1)
    cv(4); sm(0, 0); sm(0, 1); cv(5); sm(0, 2); sm(0, 3); cv(6); sm(0, 4); sm(0, 5); cv(7)
    st(1, 0); st(1, 1); st(2, 0); st(3, 0); st(2, 1); st(3, 1)
    g(f"s_cmp_ge_u32 s66, {NSL}"); g("s_cbranch_scc1 L_HPUB")
    for t in range(6): sm(1, t)
    g("s_sub_u32 s65, s65, 1"); g("s_cmp_eq_u32 s65, 0"); g(f"s_cbranch_scc1 {e}")
    g("v_cmp_u_f32 vcc, v56, v56")
    g(f"s_cbranch_vccnz {l}")
    g(f"{e}:")
    hp = ["L_HPUB:", "s_sub_u32 s65, s65, 1", "s_cmp_eq_u32 s65, 0", "s_cbranch_scc1 L_HPUB2", "s_nop 3", "v_cmp_u_f32 vcc, v56, v56", f"s_cbranch_vccnz {l}", "L_HPUB2:",
          "v_lshlrev_b32 v13, 4, v3", "s_mov_b32 s70, 0x00010001", "s_mov_b32 s71, 0x00010001", "s_mov_b64 exec, s[70:71]"] + \
         [f"buffer_store_dwordx4 v[{64+4*t}:{67+4*t}], v13, s[4:7], s74 offen offset:{64*t} sc1" for t in range(8)] + ["s_mov_b64 exec, -1", "s_branch L_fin"]
    g.slow += hp
    g("s_mov_b64 exec, 0xffff")
    g("ds_write2_b32 v120, v56, v60 offset0:3 offset1:7")
    for t in range(6):
        g(f"v_add_f32 v{192+4*t}, v{192+4*t}, v{193+4*t}")
        if t == 1: g("ds_write2_b32 v120, v192, v196 offset0:0 offset1:1")
        if t == 3: g("ds_write2_b32 v120, v200, v204 offset0:2 offset1:4")
    g("ds_write2_b32 v120, v208, v212 offset0:5 offset1:6")
    g("s_mov_b64 exec, -1")
    g("s_waitcnt lgkmcnt(0)")
    g("s_barrier")
    for w in range(4):
        g(f"ds_read_b128 v[{32+8*w}:{35+8*w}], v7 offset:{LDS_GX+512*w}"); g(f"ds_read_b128 v[{36+8*w}:{39+8*w}], v7 offset:{LDS_GX+512*w+16}")
    g("s_waitcnt lgkmcnt(4)")
    for k in (3, 7, 0, 1, 2, 4, 5, 6): g(f"v_add_f32 v{32+k}, v{32+k}, v{40+k}")
    g("s_waitcnt lgkmcnt(0)")
    for k in (3, 7): g(f"v_add_f32 v{48+k}, v{48+k}, v{56+k}")
    for k in (3, 7): g(f"v_add_f32 v{32+k}, v{32+k}, v{48+k}")
    rest = [f"v_add_f32 v{48+k}, v{48+k}, v{56+k}" for k in (0, 1, 2, 4, 5, 6)] + [f"v_add_f32 v{32+k}, v{32+k}, v{48+k}" for k in (0, 1, 2, 4, 5, 6)]
    chain = [f"v_mul_f32 v35, 0x{f2u(1/512):08x}, v35", f"v_mul_f32 v39, 0x{f2u(1/512):08x}, v39", "v_fma_f32 v39, -v35, v35, v39", "v_max_f32 v39, 0, v39",
             "v_cvt_pk_bf16_f32 v39, v35, v39", "v_lshlrev_b32 v35, 16, v39", "v_and_b32 v39, 0xffff0000, v39", f"v_add_f32 v39, 0x{f2u(1e-5):08x}, v39",
             "v_cvt_pk_bf16_f32 v39, v39, v39", "v_lshlrev_b32 v39, 16, v39", "v_sqrt_f32 v39, v39", None, "v_cvt_pk_bf16_f32 v39, v39, v39", "v_lshlrev_b32 v39, 16, v39", "v_rcp_f32 v39, v39"]
    for x in chain:
        if x: g(x)
        if rest: g(rest.pop(0))
    K6 = (0, 1, 2, 4, 5, 6)
    for k in K6: g(f"v_fma_f32 v{32+k}, -v35, v{224+k}, v{32+k}")
    for k in K6: g(f"v_mul_f32 v{32+k}, v39, v{32+k}")
    g("v_cvt_pk_bf16_f32 v40, v32, v33"); g("v_cvt_pk_bf16_f32 v41, v34, v38"); g("v_cvt_pk_bf16_f32 v42, v36, v37")
    g("v_lshlrev_b32 v32, 16, v40"); g("v_and_b32 v33, 0xffff0000, v40"); g("v_lshlrev_b32 v34, 16, v41")
    for k in range(3): g(f"v_mul_f32 v{44+k}, v{32+k}, v{32+k}")
    for k in range(3): g(f"v_fma_f32 v{44+k}, v{44+k}, s75, v124")
    for k in range(3): g(f"v_mul_f32 v{44+k}, v{44+k}, v{32+k}")
    for k in range(3): g(f"v_exp_f32 v{44+k}, v{44+k}")
    g("v_lshlrev_b32 v36, 16, v42")
    for k in range(3): g(f"v_add_f32 v{44+k}, 1.0, v{44+k}")
    for k in range(3): g(f"v_rcp_f32 v{44+k}, v{44+k}")
    g("v_and_b32 v37, 0xffff0000, v42"); g("v_and_b32 v38, 0xffff0000, v41")
    for k in range(3): g(f"v_mul_f32 v{44+k}, v{44+k}, v{32+k}")
    g("v_cvt_pk_bf16_f32 v40, v44, v45"); g("v_cvt_pk_bf16_f32 v41, v46, v46")
    g("v_lshlrev_b32 v44, 16, v40"); g("v_and_b32 v45, 0xffff0000, v40"); g("v_and_b32 v46, 0xffff0000, v41")
    for k in range(3): g(f"v_mul_f32 v{44+k}, v{44+k}, v{36+k}")
    g("v_cvt_pk_bf16_f32 v40, v44, v45"); g("v_cvt_pk_bf16_f32 v41, v46, v46")
    for p in range(4): g(f"v_and_b32 v{48+p}, v40, v{16+p}")
    for p in range(4): g(f"v_and_or_b32 v{48+p}, v41, v{20+p}, v{48+p}")
    g("v_cmp_ne_u32 vcc, 0, v3"); g("s_nop 0")
    for t in range(8):
        g(f"{SMF} v[{160+4*t}:{163+4*t}], v[48:51], a[{96+8*t}:{103+8*t}], v30")
    g.nop(1)
    for t in range(8):
        g(f"v_add_f32 v{160+4*t}, v{160+4*t}, v{161+4*t}"); g(f"v_add_f32 v{162+4*t}, v{162+4*t}, v{163+4*t}")
    for t in range(8):
        g(f"v_add_f32 v{160+4*t}, v{160+4*t}, v{162+4*t}")
    for q in range(4):
        g(f"v_cndmask_b32 v{32+q}, v{160+4*q}, v{176+4*q}, vcc")
    g("s_mov_b32 exec_hi, 0")
    g("buffer_store_dwordx4 v[32:35], v123, s[4:7], s74 offen sc1")
    g("s_mov_b64 exec, -1")
    g.stamp(8)

def tcu(g):
    opts = g.o; rep = opts["rep"]
    g("s_lshl_b32 s74, s72, 10"); g("s_lshl_b32 s62, s73, 8"); g("s_add_u32 s74, s74, s62"); g("s_lshl_b32 s62, s3, 6"); g("s_add_u32 s74, s74, s62")
    g("v_lshlrev_b32 v28, 15, v3"); g("v_lshl_add_u32 v28, v2, 2, v28")
    g("s_lshl_b32 s75, s73, 5"); g("s_add_u32 s75, s75, s72")
    g("v_lshlrev_b32 v29, 4, v0")
    g("s_lshl_b32 s76, s75, 12"); g(f"s_add_u32 s76, s76, {STAT}")
    g("v_lshlrev_b32 v4, 16, v3"); g("v_lshl_add_u32 v4, v2, 4, v4")
    g("s_lshl_b32 s66, s3, 20"); g("s_lshl_b32 s63, s72, 8"); g("s_add_u32 s66, s66, s63")
    for ks in range(4):
        g(f"s_xor_b32 s63, s73, {ks}"); g(f"s_lshl_b32 s63, s63, 18"); g(f"s_add_u32 s{52+ks}, s66, s63")
    g("v_lshlrev_b32 v5, 14, v2"); g("v_lshl_add_u32 v5, v3, 4, v5")
    g("s_lshl_b32 s78, s73, 20"); g("s_lshl_b32 s63, s3, 18"); g("s_add_u32 s78, s78, s63"); g("s_lshl_b32 s63, s72, 8"); g("s_add_u32 s78, s78, s63")
    g("s_add_u32 s79, s78, 8192")
    g("s_lshr_b32 s67, s42, 5" if opts["cu"] != 2 else "s_mov_b32 s67, 1")
    g("s_mov_b32 s14, 0x400000"); g("s_mov_b32 s15, 0x20000"); g("s_mov_b32 s58, 4096"); g("s_mov_b32 s59, 0x20000")
    g("s_mov_b32 s46, 0x400000"); g("s_mov_b32 s47, 0x20000")
    g("s_waitcnt lgkmcnt(0)")
    g("s_mov_b32 s56, s16"); g("s_and_b32 s57, s17, 0xffff"); g("s_mov_b32 s12, s20"); g("s_and_b32 s13, s21, 0xffff")
    def wq(ks):
        for e in range(8):
            g(f"s_add_u32 s63, s{52+ks}, {e*8192}")
            r = 32 + 32*ks + 4*e
            g(f"buffer_load_dwordx4 v[{r}:{r+3}], v4, s[12:15], s63 offen")
    g("buffer_load_dwordx4 v[8:11], v29, s[56:59], 0 offen")
    wq(0)
    g("s_mov_b32 s44, s22"); g("s_and_b32 s45, s23, 0xffff")
    cu = opts["cu"]
    def wuk():
        for tt in range(2):
            for ks in range(4):
                r = 160 + 16*tt + 4*ks
                g(f"buffer_load_dwordx4 v[{r}:{r+3}], v5, s[44:47], s{78+tt} offen offset:{64*ks}")
    def ifcls(cls, fn):
        if not cu:
            if not cls: fn()
            return
        l = g.lab("ic")
        g("s_cmp_eq_u32 s67, 1"); g(f"s_cbranch_scc{0 if cls else 1} {l}")
        fn()
        g(f"{l}:")
    def wait2(n_norm, n_cls, extra=""):
        lo, hi = min(n_norm, n_cls), max(n_norm, n_cls)
        if not cu: g(f"s_waitcnt vmcnt({n_norm}){extra}"); return
        g(f"s_waitcnt vmcnt({hi}){extra}")
        if lo != hi: ifcls(n_cls == lo, lambda: g(f"s_waitcnt vmcnt({lo})"))
    g("s_barrier")
    ifcls(False, wuk)
    g.srd(4, 40, WS); g.srd(8, 38, 256)
    for k in range(4): g(f"v_mov_b32 v{24+k}, -1")
    g("buffer_store_dwordx4 v[24:27], v29, s[4:7], s76 offen sc1")
    g("v_lshlrev_b32 v30, 3, v0"); g(f"s_lshl_b32 s62, s42, 11"); g(f"s_add_u32 s62, s62, {FPART}")
    g("buffer_store_dwordx2 v[24:25], v30, s[4:7], s62 offen sc1")
    if rep:
        g(f"s_lshl_b32 s62, s42, 13"); g(f"s_add_u32 s62, s62, {APART}"); g("s_add_u32 s63, s62, 4096")
        g("buffer_store_dwordx4 v[24:27], v29, s[4:7], s62 offen sc1"); g("buffer_store_dwordx4 v[24:27], v29, s[4:7], s63 offen sc1")
        nst = 4
    else:
        g("v_lshlrev_b32 v30, 2, v0"); g(f"s_lshl_b32 s62, s42, 10"); g(f"s_add_u32 s62, s62, {APART}")
        g("buffer_store_dword v24, v30, s[4:7], s62 offen sc1")
        nst = 3
    g("s_mul_i32 s62, s3, 1040"); g("v_lshlrev_b32 v6, 4, v1"); g("v_add_u32 v6, s62, v6")
    g("v_and_b32 v7, 3, v2"); g("v_mul_u32_u24 v7, 1040, v7"); g("v_lshl_add_u32 v7, v3, 4, v7")
    g("s_lshl_b32 s62, s3, 8"); g("v_add_u32 v7, s62, v7")
    wait2(16+nst, 8+nst)
    for q in range(4):
        g(f"v_lshlrev_b32 v{12+2*q}, 16, v{8+q}"); g(f"v_and_b32 v{13+2*q}, 0xffff0000, v{8+q}")
    g("v_add_f32 v20, v12, v13"); g("v_add_f32 v21, v14, v15"); g("v_add_f32 v22, v16, v17"); g("v_add_f32 v23, v18, v19")
    g("v_add_f32 v20, v20, v21"); g("v_add_f32 v22, v22, v23"); g("v_add_f32 v20, v20, v22")
    g.allred("v_add_f32", 20, 21)
    g(f"v_mul_f32 v20, 0x{f2u(1/512):08x}, v20")
    g("v_sub_f32 v22, v12, v20"); g("v_mul_f32 v21, v22, v22")
    for k in range(1, 8):
        g(f"v_sub_f32 v22, v{12+k}, v20"); g("v_fmac_f32 v21, v22, v22")
    g.allred("v_add_f32", 21, 22)
    g(f"v_mul_f32 v21, 0x{f2u(1/512):08x}, v21")
    g.bf16r(20, 20); g.bf16r(21, 21)
    g(f"v_add_f32 v21, 0x{f2u(1e-5):08x}, v21"); g.bf16r(21, 21)
    g("v_sqrt_f32 v21, v21"); g("s_nop 0"); g.bf16r(21, 21)
    g("v_rcp_f32 v21, v21")
    for k in range(8): g(f"v_sub_f32 v{12+k}, v{12+k}, v20")
    for q in range(4): g(f"v_cvt_pk_bf16_f32 v{8+q}, v{12+2*q}, v{13+2*q}")
    for q in range(4):
        g(f"v_lshlrev_b32 v{12+2*q}, 16, v{8+q}"); g(f"v_and_b32 v{13+2*q}, 0xffff0000, v{8+q}")
    for k in range(8): g(f"v_mul_f32 v{12+k}, v{12+k}, v21")
    for q in range(4): g(f"v_cvt_pk_bf16_f32 v{8+q}, v{12+2*q}, v{13+2*q}")
    g(f"ds_write_b128 v6, v[8:11] offset:{LDS_XN}")
    g("v_mov_b32 v30, 0")
    wait2(8+nst, nst, " lgkmcnt(0)")
    g.stamp(1)
    wq(1)
    g("s_barrier")
    for ks in range(4):
        g(f"s_xor_b32 s63, s73, {ks}"); g("s_lshl_b32 s63, s63, 6"); g("v_add_u32 v6, s63, v7")
        g(f"ds_read_b128 v[{8+4*ks}:{11+4*ks}], v6 offset:{LDS_XN}")
    wq(2)
    g("s_mul_i32 s62, s3, 272"); g("v_lshlrev_b32 v6, 4, v2"); g("v_add_u32 v6, s62, v6")
    g("v_mul_u32_u24 v7, 272, v2"); g("v_lshl_add_u32 v7, v3, 4, v7")
    for ks in range(4):
        if ks == 1: wq(3)
        if ks == 2: ifcls(True, wuk)
        if ks: wait2(8*(3-ks) + (1 if ks == 3 else 0), 8*(3-ks) + (1 if ks == 3 else 0) + (8 if ks >= 2 else 0))
        if ks == 2: g("buffer_load_dword v31, v30, s[8:11], 0 offen sc1")
        if ks == 3: g.stamp(7)
        R = 32+32*ks
        if ks == 0: g("s_waitcnt lgkmcnt(0)")
        def pm(t):
            for p in range(4):
                g(f"v_perm_b32 v{192+4*t+p}, v{R+4*(2*p+1)+(t>>1)}, v{R+4*(2*p)+(t>>1)}, s{60+(t&1)}")
        pm(0)
        for t in range(8):
            if t < 7: pm(t+1)
            else: g("s_nop 0")
            c = "0" if ks == 0 else f"v[{224+4*t}:{227+4*t}]"
            g(f"{M16} v[{224+4*t}:{227+4*t}], v[{8+4*ks}:{11+4*ks}], v[{192+4*t}:{195+4*t}], {c}")
    for p in range(4):
        for b in range(4):
            g(f"v_cvt_pk_bf16_f32 v{8+4*b+p}, v{224+8*p+b}, v{228+8*p+b}")
    g("s_mov_b64 exec, 0xffff")
    for b in range(4):
        g(f"ds_write_b128 v6, v[{8+4*b}:{11+4*b}] offset:{LDS_QX+4*272*b}")
    g("s_mov_b64 exec, -1")
    g("s_waitcnt lgkmcnt(0)")
    g("s_barrier")
    for ks in range(4):
        g(f"ds_read_b128 v[{8+4*ks}:{11+4*ks}], v7 offset:{LDS_QX+64*ks}")
    if cu: g("s_waitcnt vmcnt(1)")
    for ks in range(4):
        g(f"s_waitcnt lgkmcnt({3-ks})")
        for tt in range(2):
            c = "0" if ks == 0 else f"v[{224+4*tt}:{227+4*tt}]"
            g(f"{M16} v[{224+4*tt}:{227+4*tt}], v[{8+4*ks}:{11+4*ks}], v[{160+16*tt+4*ks}:{163+16*tt+4*ks}], {c}")
    g("s_waitcnt vmcnt(0)")
    g("v_cmp_ne_u32 vcc, 16, v31")
    g.srd(12, 18, 32 << 20)
    g("v_lshlrev_b32 v4, 7, v1"); g("s_lshr_b32 s62, s42, 5")
    for tt in range(2):
        r = 224 + 4*tt
        g(f"v_add_f32 v{r}, v{r}, v{r+1}"); g(f"v_add_f32 v{r+2}, v{r+2}, v{r+3}")
    for tt in range(2):
        r = 224 + 4*tt
        g(f"v_add_f32 v{r}, v{r}, v{r+2}")
    for tt in range(2):
        r = 224 + 4*tt
        g(f"v_mul_f32 v{r}, 0x{f2u(SCALE):08x}, v{r}")
    g("v_cvt_pk_bf16_f32 v8, v224, v228")
    g("s_cbranch_vccz L_T_c0ok")
    cnt_wait(g, 31, 30)
    g("L_T_c0ok:")
    g("buffer_store_dword v8, v28, s[4:7], s74 offen sc1")
    if opts["pb"] == 2: g("s_waitcnt vmcnt(0)")
    if opts["pb"]: g("s_barrier")
    g.stamp(2)
    g("s_lshl_b32 s62, s62, 23"); g("s_and_b32 s63, s42, 31"); g("s_lshl_b32 s63, s63, 15"); g("s_add_u32 s62, s62, s63")
    g("s_lshl_b32 s63, s3, 13"); g("s_add_u32 s62, s62, s63")
    nc = opts["cls"]
    if nc:
        g("s_lshr_b32 s64, s42, 5")
        g("s_cmp_eq_u32 s64, 1"); g("s_cbranch_scc1 L_T_pfc")
        g("s_and_b32 s65, s42, 31"); g("s_lshl_b32 s65, s65, 15"); g(f"s_add_u32 s65, s65, {0x800000}")
        g("s_sub_u32 s67, s64, 1"); g("s_max_i32 s67, s67, 0"); g("s_lshl_b32 s67, s67, 2"); g("s_add_u32 s67, s67, s3")
        g(f"s_mul_i32 s67, s67, {22*128}"); g(f"s_min_u32 s67, s67, {(256-22)*128}"); g("s_add_u32 s65, s65, s67")
    plist = ([3, 4, 5, 6, 7] if opts["p5"] else [3, 5, 6, 7]) if opts["mix"] else [4, 5, 6, 7]
    def taddr(base, i):
        if opts["rot"]:
            g(f"s_add_u32 s63, s{base}, {(opts['rot']*i*32768) & 0xfffff}"); g("s_and_b32 s63, s63, 0xfffff")
            g(f"s_andn2_b32 s64, s{base}, 0xfffff"); g("s_or_b32 s63, s63, s64"); g(f"s_add_u32 s63, s63, {i*TS}")
        else: g(f"s_add_u32 s63, s{base}, {i*TS}")
    for n_, i in enumerate(plist):
        if nc and n_ == nc: g("L_T_pfc:")
        taddr(62, i)
        g(f"buffer_load_dword v31, v4, s[12:15], s63 offen {opts['pflag']}")
        if n_ < opts["pf1"]: g("s_waitcnt vmcnt(0)")
        if n_ >= 1 and n_ <= opts["pf2"]: g("s_waitcnt vmcnt(1)")
        if n_ < nc:
            taddr(65, i)
            g("s_mov_b64 exec, 0x3fffff")
            g(f"buffer_load_dword v31, v4, s[12:15], s63 offen {opts['pflag']}")
            g("s_mov_b64 exec, -1")
    g.srd(12, 24, 4 << 20); g.srd(44, 26, 4 << 20)
    for ks in range(4):
        g(f"s_xor_b32 s63, s73, {ks}"); g("s_lshr_b32 s62, s63, 1"); g("s_lshl_b32 s62, s62, 19"); g("s_and_b32 s63, s63, 1"); g("s_lshl_b32 s63, s63, 16")
        g(f"s_add_u32 s{52+ks}, s66, s62"); g(f"s_add_u32 s{52+ks}, s{52+ks}, s63")
    g("v_and_b32 v6, 1, v3"); g("v_lshrrev_b32 v7, 1, v3")
    g("v_lshlrev_b32 v4, 18, v6"); g("v_lshl_add_u32 v4, v7, 15, v4"); g("v_lshl_add_u32 v4, v2, 4, v4")
    g("v_lshlrev_b32 v5, 14, v7"); g("v_lshl_add_u32 v5, v6, 12, v5"); g("v_lshl_add_u32 v5, v2, 4, v5")
    g("s_lshl_b32 s79, s72, 17"); g("s_lshl_b32 s63, s3, 8"); g("s_add_u32 s79, s79, s63")
    order = [[0, 4, 5, 6, 7, 1, 2, 3], [0, 4, 1, 5, 2, 6, 3, 7], [0, 4, 1, 2, 3, 5, 6, 7]][opts["tord"]]
    bufs = [192, 224, 64, 32][:opts["nb"]]
    NB = len(bufs)
    def tw_issue(i):
        n = order[i]; ks = n & 3
        if n >= 4:
            g(f"s_xor_b32 s62, s73, {ks}"); g("s_lshl_b32 s62, s62, 15"); g("s_add_u32 s62, s62, s79"); g("s_add_u32 s63, s62, 0x2000")
        for e in range(8):
            r = bufs[i % NB] + 4*e
            if n < 4:
                g(f"s_add_u32 s63, s{52+ks}, {(16*(e>>2)+(e&3))*8192}")
                g(f"buffer_load_dwordx4 v[{r}:{r+3}], v4, s[12:15], s63 offen")
            else:
                g(f"buffer_load_dwordx4 v[{r}:{r+3}], v5, s[44:47], s{62+((e>>1)&1)} offen offset:{(2*(e>>2)+(e&1))*1024}")
    issued = 2
    tw_issue(0); tw_issue(1)
    tf = opts["tf"]
    def ftouch():
        g.srd(48, 30, 512*2752); g.srd(56, 32, 512*2752); g.srd(8, 34, 1376*1024)
        g("v_lshrrev_b32 v109, 2, v1"); g("v_mul_u32_u24 v109, 2752, v109"); g("v_and_b32 v110, 3, v1"); g("v_lshlrev_b32 v110, 7, v110"); g("v_min_u32 v110, 380, v110"); g("v_add_u32 v109, v109, v110")
        g("v_lshlrev_b32 v110, 7, v1")
        g("s_lshr_b32 s62, s42, 3"); g("s_lshl_b32 s62, s62, 2"); g("s_add_u32 s62, s62, s3"); g("s_and_b32 s64, s42, 7")
        g(f"s_mul_i32 s63, s62, {8*2752}"); g("s_mul_i32 s65, s64, 384"); g("s_add_u32 s63, s63, s65")
        g("s_mov_b32 exec_hi, 0")
        g("buffer_load_dword v111, v109, s[48:51], s63 offen"); g("buffer_load_dword v111, v109, s[56:59], s63 offen")
        g("s_mul_i32 s63, s62, 3072"); g("s_mul_i32 s65, s64, 196608"); g("s_add_u32 s63, s63, s65")
        g("s_mov_b32 exec_lo, 0xffffff")
        g("buffer_load_dword v111, v110, s[8:11], s63 offen")
        g("s_mov_b64 exec, -1")
    tf_after = None
    if tf == 0: ftouch(); tf_after = issued
    g.stamp(1)
    tile_setup(g, True)
    g("s_lshl_b32 s69, s75, 15"); g("s_lshl_b32 s63, s3, 8"); g("s_add_u32 s69, s69, s63"); g(f"s_add_u32 s69, s69, {OPART}")
    g("v_and_b32 v13, 31, v1"); g("v_lshlrev_b32 v14, 7, v13")
    g("s_lshl_b32 s62, s3, 6"); g("v_lshlrev_b32 v13, 1, v13"); g("v_add_u32 v13, s62, v13")
    g("v_lshlrev_b32 v15, 4, v3"); g("v_add_u32 v15, s62, v15")
    g("s_mul_i32 s62, s3, 272"); g("v_lshlrev_b32 v120, 4, v2"); g("v_add_u32 v121, s62, v120")
    g("v_bfe_u32 v10, v2, 2, 1"); g("v_lshlrev_b32 v11, 5, v3"); g("v_lshl_add_u32 v11, v10, 4, v11")
    g("s_lshl_b32 s62, s73, 6"); g("v_xor_b32 v11, s62, v11"); g("v_xor_b32 v12, 0x80, v11")
    g("v_and_b32 v122, 3, v2"); g("v_mul_u32_u24 v122, 272, v122"); g("v_add_u32 v123, v122, v12"); g("v_add_u32 v122, v122, v11")
    g("v_mul_u32_u24 v30, 0xaaaa, v10"); g("v_or_b32 v30, 0x4444, v30")
    g("v_lshl_add_u32 v120, v6, 3, v120")
    if rep: g("v_lshl_add_u32 v120, v7, 17, v120")
    g("s_lshl_b32 s78, s75, 10"); g("s_lshl_b32 s63, s3, 8"); g("s_add_u32 s78, s78, s63"); g(f"s_add_u32 s78, s78, {APART}")
    for k in range(64): g(f"v_mov_b32 v{128+k}, 0")
    def pbody():
        g("buffer_load_dwordx2 v[106:107], v14, s[4:7], s76 offen sc1")
    def cond():
        g("v_max_u32 v108, v106, v107"); g("v_cmp_eq_u32 vcc, -1, v108")
    pp = opts["pp"]
    for i in range(8):
        extra = (1 if (i > pp and i < 7) else 0) + (3 if (tf_after is not None and i < tf_after) else 0)
        g(f"s_waitcnt vmcnt({8*(issued-1-i) + extra})")
        if i == 0: g.stamp(7)
        if i == 1: g.stamp(9)
        lim = min(8, i + NB) if i >= 1 else issued
        while issued < lim:
            tw_issue(issued); issued += 1
        if tf > 0 and i == tf - 1: ftouch(); tf_after = issued
        if i == pp:
            assert issued == 8
            pbody()
        if i == 7:
            g.stamp(3)
            cond()
            g("s_cbranch_vccnz L_T_nd")
            tile_dma(g, 69)
            g("L_T_nd:")
        R = bufs[i % NB]; n = order[i]; ks = n & 3
        acc = 128*(n>>2) + 64*(ks>>1) + 4*(ks&1)
        for t in range(8):
            for p in range(4):
                g(f"v_perm_b32 v{16+p+4*(t&1)}, v{R+4*(2*p+1)+(t>>1)}, v{R+4*(2*p)+(t>>1)}, s{60+(t&1)}")
            for p in range(4):
                g(f"v_accvgpr_write_b32 a{acc+8*t+p}, v{16+p+4*(t&1)}")
    g("s_cbranch_vccz L_T_go")
    poll_loop(g, pbody, cond, spin=4*SPIN, sleep=opts["tsleep"])
    tile_dma(g, 69)
    g("L_T_go:")
    g.stamp(4)
    g("v_mov_b32 v34, v106")
    g.allred("v_max_f32", 34, 35, 32)
    g("v_sub_f32 v34, v106, v34"); g("v_cvt_i32_f32 v34, v34"); g("v_ldexp_f32 v34, 1.0, v34")
    g(f"ds_write_b16_d16_hi v13, v34 offset:{LDS_FX}")
    g("v_mul_f32 v31, v34, v107")
    g(f"ds_read_b128 v[24:27], v15 offset:{LDS_FX}")
    g.allred("v_add_f32", 31, 35, 32)
    g("v_rcp_f32 v31, v31")
    g(f"s_mov_b32 s64, {SPIN}")
    g("L_T_pay:")
    g("s_waitcnt vmcnt(0) lgkmcnt(0)")
    g.stamp(5)
    tile_read(g, 32)
    for t in range(8):
        g(f"s_waitcnt lgkmcnt({14-2*t})" if not opts.get("stamps") else "s_waitcnt lgkmcnt(0)")
        g(f"{M16} v[{64+4*t}:{67+4*t}], v[{32+4*t}:{35+4*t}], v[24:27], 0")
    def cv(t):
        g(f"v_cvt_pk_bf16_f32 v{96+t}, v{64+4*t}, v{65+4*t}")
        g(f"v_cvt_pk_bf16_f32 v{104+(t&1)}, v{66+4*t}, v{67+4*t}")
        g(f"v_cndmask_b32 v{96+t}, v{96+t}, v{104+(t&1)}, s[70:71]")
    for t in range(5): cv(t)
    for t in range(8):
        g(f"{SMF} v[{128+4*t}:{131+4*t}], v[96:99], a[{8*t}:{8*t+7}], v29")
        if t in (0, 2, 4): cv(5 + t//2)
    for t in range(8):
        g(f"{SMF} v[{128+4*t}:{131+4*t}], v[100:103], a[{64+8*t}:{64+8*t+7}], v29")
    g.nop(1)
    for t in range(8):
        g(f"v_add_f32 v{128+4*t}, v{128+4*t}, v{129+4*t}")
        if t == 1 and opts["oi"]: g("v_cmp_u_f32 vcc, v128, v128")
    if opts["oi"]:
        g("s_cbranch_vccnz L_T_retry")
        g("L_T_ok:")
        gl = g.L; g.L = []
        g("L_T_retry:")
        g("s_sub_u32 s64, s64, 1"); g("s_cmp_eq_u32 s64, 0"); g("s_cbranch_scc1 L_T_ok")
        tile_dma(g, 69)
        for k in range(32): g(f"v_mov_b32 v{128+k}, 0")
        g("s_branch L_T_pay")
        g.slow0 = g.L; g.L = gl
    for t in range(8):
        g(f"v_mul_f32 v{128+4*t}, v31, v{128+4*t}")
    for p in range(4):
        g(f"v_cvt_pk_bf16_f32 v{64+p}, v{128+8*p}, v{132+8*p}")
    g("s_mov_b64 exec, 0xffff")
    g(f"ds_write_b128 v121, v[64:67] offset:{LDS_CX}")
    g("s_mov_b64 exec, -1")
    g("s_waitcnt lgkmcnt(0)")
    g("s_barrier")
    for s2 in range(2):
        g(f"ds_read_b128 v[{96+4*s2}:{99+4*s2}], v{122+s2} offset:{LDS_CX}")
    for s2 in range(2):
        g(f"s_waitcnt lgkmcnt({1-s2})")
        for t in (0, 4, 1, 5, 2, 6, 3, 7):
            g(f"{SMF} v[{160+4*t}:{163+4*t}], v[{96+4*s2}:{99+4*s2}], a[{128+64*s2+8*t}:{128+64*s2+8*t+7}], v30")
    g.nop(1)
    for t in (0, 4, 1, 5, 2, 6, 3, 7):
        g(f"v_add_f32 v{160+4*t}, v{160+4*t}, v{161+4*t}"); g(f"v_add_f32 v{162+4*t}, v{162+4*t}, v{163+4*t}")
    for t in (0, 4, 1, 5, 2, 6, 3, 7):
        g(f"v_add_f32 v{160+4*t}, v{160+4*t}, v{162+4*t}")
    for t in range(4): g(f"v_permlane16_swap_b32 v{160+4*t}, v{176+4*t}")
    for t in range(4): g(f"v_add_f32 v{160+4*t}, v{160+4*t}, v{176+4*t}")
    g("v_cvt_pk_bf16_f32 v64, v160, v164"); g("v_cvt_pk_bf16_f32 v65, v168, v172")
    if rep:
        for c in range(4):
            g("buffer_store_dwordx2 v[64:65], v120, s[4:7], s78 offen sc1")
            if c < 3: g("s_add_u32 s78, s78, 0x40000")
    else:
        g("s_mov_b32 exec_hi, 0")
        g("buffer_store_dwordx2 v[64:65], v120, s[4:7], s78 offen sc1")
        g("s_mov_b64 exec, -1")
    g.stamp(6)
    g("s_cmp_lt_u32 s43, 16"); g("s_cbranch_scc1 L_fin")
    g("s_cmp_lg_u32 s3, 0"); g("s_cbranch_scc1 L_fin")
    g.srd(12, 36, 4096)
    g("v_lshrrev_b32 v4, 3, v1"); g("v_and_b32 v5, 7, v1")
    g("v_lshlrev_b32 v6, 11, v4"); g("v_lshl_add_u32 v6, v5, 4, v6")
    g(f"v_mov_b32 v7, {OOB}")
    g("v_cmp_gt_u32 vcc, 5, v4"); g("s_nop 1"); g("v_cndmask_b32 v7, v7, v6, vcc")
    g("v_lshlrev_b32 v8, 4, v5"); g("v_lshlrev_b32 v10, 3, v5")
    g(f"s_lshl_b32 s62, s73, 16"); g("s_sub_u32 s65, s43, 16"); g("s_lshl_b32 s63, s65, 7"); g("s_add_u32 s62, s62, s63"); g(f"s_add_u32 s62, s62, {FPART}")
    g("s_lshl_b32 s74, s73, 10"); g("s_lshl_b32 s63, s65, 6"); g("s_add_u32 s74, s74, s63")
    for n in range(1, 4): g(f"s_add_u32 s{75+n}, s62, {n*16384}")
    g(f"s_add_u32 s79, s62, {31*2048}")
    def body():
        for n in range(4):
            g(f"buffer_load_dwordx4 v[{32+4*n}:{35+4*n}], v{6 if n < 3 else 7}, s[4:7], s{62 if n == 0 else 75+n} offen sc1")
        g("buffer_load_dwordx4 v[56:59], v8, s[4:7], s79 offen sc1")
    def cond2():
        for k in range(4):
            g(f"v_add_f32 v{32+k}, v{32+k}, v{36+k}"); g(f"v_add_f32 v{40+k}, v{40+k}, v{44+k}")
        for k in range(4): g(f"v_add_f32 v{32+k}, v{32+k}, v{40+k}")
        g("v_add_f32 v40, v56, v57"); g("v_add_f32 v41, v58, v59"); g("v_add_f32 v42, v32, v33"); g("v_add_f32 v43, v34, v35")
        g("v_add_f32 v40, v40, v41"); g("v_add_f32 v42, v42, v43")
        g("v_cmp_u_f32 vcc, v40, v42")
    poll_loop(g, body, cond2, spin=4*SPIN, sleep=0)
    g.stamp(8)
    for k in range(4):
        g(f"v_add_f32_dpp v{32+k}, v{32+k}, v{32+k} row_ror:8 row_mask:0xf bank_mask:0xf")
    g("v_cvt_pk_bf16_f32 v44, v56, v57"); g("v_cvt_pk_bf16_f32 v45, v58, v59")
    for sw in ("v_permlane16_swap_b32", "v_permlane32_swap_b32"):
        for k in range(4): g(f"v_mov_b32 v{36+k}, v{32+k}")
        g("s_nop 0")
        for k in range(4): g(f"{sw} v{32+k}, v{36+k}")
        for k in range(4): g(f"v_add_f32 v{32+k}, v{32+k}, v{36+k}")
    g("v_cvt_pk_bf16_f32 v36, v32, v33"); g("v_cvt_pk_bf16_f32 v37, v34, v35")
    for q in range(2):
        g(f"v_lshlrev_b32 v{32+2*q}, 16, v{36+q}"); g(f"v_and_b32 v{33+2*q}, 0xffff0000, v{36+q}")
        g(f"v_lshlrev_b32 v{40+2*q}, 16, v{44+q}"); g(f"v_and_b32 v{41+2*q}, 0xffff0000, v{44+q}")
    for k in range(4): g(f"v_add_f32 v{32+k}, v{32+k}, v{40+k}")
    g("v_cvt_pk_bf16_f32 v36, v32, v33"); g("v_cvt_pk_bf16_f32 v37, v34, v35")
    g("s_mov_b64 exec, 0xff")
    g("buffer_store_dwordx2 v[36:37], v10, s[12:15], s74 offen" + (" sc0 sc1" if opts["osc"] else ""))
    g("s_mov_b64 exec, -1")
    g.stamp(10)
    g("s_branch L_fin")

QD = 8
def qreg(s):
    return f"v[{224+4*s}:{227+4*s}]" if s < QD else f"a[{128+4*(s-QD)}:{131+4*(s-QD)}]"

class Lds:
    def __init__(s, g): s.g = g; s.n = 0; s.done = 0
    def op(s, txt): s.g(txt); s.n += 1; return s.n
    def wait(s, i):
        if i <= s.done: return
        k = min(14, s.n - i); s.g(f"s_waitcnt lgkmcnt({k})"); s.done = s.n - k
    def all(s): s.wait(s.n)

def acu(g):
    fine = g.o["fine"]
    ea = ["v_and_b32 v8, 7, v5", "v_lshlrev_b32 v9, 1, v6", "v_xor_b32 v8, v8, v9", "v_lshlrev_b32 v208, 10, v5", "v_lshl_add_u32 v208, v8, 4, v208",
          "s_lshl_b32 s62, s3, 8", "v_add_u32 v208, s62, v208"] + [f"v_xor_b32 v{208+k}, {((4*(k>>1))|(k&1))<<4}, v208" for k in range(1, 4)] + \
         ["v_lshrrev_b32 v8, 3, v1", "v_and_b32 v9, 7, v1", "v_lshlrev_b32 v212, 10, v8", "v_lshl_add_u32 v212, v9, 4, v212", "v_add_u32 v212, s62, v212",
          "v_lshlrev_b32 v214, 12, v8", "v_lshl_add_u32 v214, v9, 4, v214", "v_xor_b32 v9, v9, v8", "v_lshlrev_b32 v213, 15, v8", "v_lshl_add_u32 v213, v9, 4, v213",
          "s_lshl_b32 s63, s3, 5", "v_lshl_add_u32 v215, v8, 2, s63",
          "s_lshl_b32 s65, s74, 20", "s_lshl_b32 s63, s75, 10", "s_add_u32 s65, s65, s63", "s_add_u32 s65, s65, s62", f"s_add_u32 s65, s65, {OPART}",
          "s_lshl_b32 s79, s74, 17", "s_lshl_b32 s63, s75, 7", "s_add_u32 s79, s79, s63", f"s_add_u32 s79, s79, {STAT}", "s_lshl_b32 s63, s3, 15", "s_add_u32 s79, s79, s63"]
    g("v_lshlrev_b32 v4, 4, v1")
    g("s_lshr_b32 s74, s42, 5"); g("s_and_b32 s75, s42, 31")
    g("s_lshl_b32 s76, s74, 23"); g("s_lshl_b32 s77, s75, 15"); g("s_add_u32 s76, s76, s77")
    g("s_lshl_b32 s77, s3, 13"); g("s_add_u32 s76, s76, s77")
    g("s_and_b32 s62, s3, 1"); g("s_lshl_b32 s62, s62, 5"); g("v_xor_b32 v7, s62, v4")
    for r in range(8):
        g(f"v_xor_b32 v{160+r}, {(fswz(r)<<4) | ((r>>2)<<12)}, v7")
    g(f"s_add_u32 s62, s77, {LQ}"); g("v_add_u32 v15, s62, v7")
    def dma_ops(slot, cf=g.o["cf0"]):
        ops = []
        for r in range(8):
            pre = []
            if r == 0: pre = [f"s_add_u32 m0, s77, {slot*32768}", "s_nop 0"]
            if r == 4: pre = ["s_addk_i32 m0, 0x1000", "s_nop 0"]
            post = ([f"s_add_u32 s69, s76, {g.o['rot']*32768}", "s_and_b32 s69, s69, 0xfffff", "s_andn2_b32 s76, s76, 0xfffff", "s_or_b32 s76, s76, s69"] if g.o["rot"] else []) + [f"s_add_u32 s76, s76, {TS}"] if r == 7 else []
            ops.append(pre + [f"buffer_load_dwordx4 v{160+r}, s[12:15], s76 offen offset:{(r&3)*1024} {cf} lds"] + post)
        return ops
    def dma_tile(slot):
        for o in dma_ops(slot):
            for x in o: g(x)
    def setup():
        g("v_and_b32 v5, 31, v1"); g("v_lshrrev_b32 v6, 5, v1")
        g("v_and_b32 v8, 3, v5"); g("v_lshlrev_b32 v8, 2, v8"); g("v_bfe_u32 v9, v5, 2, 2"); g("v_or_b32 v8, v8, v9"); g("v_xor_b32 v8, v8, v6")
        g("v_lshlrev_b32 v10, 10, v5"); g("v_lshl_add_u32 v10, v8, 4, v10")
        g(f"v_add_u32 v11, {LQ}, v10")
        g("s_lshl_b32 s62, s3, 15"); g("v_add_u32 v10, s62, v10")
        for k in range(8): g(f"v_xor_b32 v{16+k}, {k<<5}, v10")
        for k in range(8): g(f"v_xor_b32 v{128+k}, {k<<5}, v11")
        g("v_bfe_u32 v8, v1, 2, 2")
        g("v_lshl_add_u32 v9, v6, 2, v8"); g("v_lshlrev_b32 v12, 10, v9")
        g("v_and_b32 v9, 1, v1"); g("v_lshlrev_b32 v9, 1, v9"); g("v_bfe_u32 v13, v1, 4, 1"); g("v_or_b32 v9, v9, v13")
        g("v_lshl_add_u32 v13, v8, 2, v6"); g("v_xor_b32 v9, v9, v13")
        g("v_lshl_add_u32 v12, v9, 4, v12")
        g("v_bfe_u32 v9, v1, 1, 1"); g("v_lshl_add_u32 v12, v9, 3, v12")
        g("s_lshl_b32 s62, s3, 8"); g("v_add_u32 v12, s62, v12")
        for ct in range(4):
            for hv in range(2):
                g(f"v_xor_b32 v{24+2*ct+hv}, {(ct<<6)|(hv<<5)}, v12")
                g(f"v_add_u32 v{32+2*ct+hv}, 0x10000, v{24+2*ct+hv}")
        g("v_lshlrev_b32 v40, 5, v5"); g("v_lshl_add_u32 v40, v6, 4, v40"); g(f"v_add_u32 v40, {LRF}, v40")
        g("v_xor_b32 v46, 16, v40")
        g("s_lshl_b32 s62, s3, 2"); g("v_add_u32 v41, s62, v40")
        g(f"v_add_u32 v42, {LP}, v4")
        g("s_lshl_b32 s62, s3, 11"); g("v_add_u32 v43, s62, v42")
        g("s_lshl_b32 s78, s74, 15"); g("s_add_u32 s78, s78, s77"); g("s_add_u32 s67, s78, 0x1000")
        g("v_mov_b32 v12, 0"); g("v_mov_b32 v13, 1")
        for r in range(8): g(f"v_xor_b32 v{168+r}, {fswz(r)<<4}, v15")
    for k in range(4): g(f"v_mov_b32 v{48+k}, -1")
    g("s_waitcnt lgkmcnt(0)")
    g.srd(4, 40, WS)
    g("s_cmp_ge_u32 s42, 16"); g("s_cbranch_scc1 L_A_ni")
    g("s_lshl_b32 s62, s42, 13"); g("s_lshl_b32 s63, s3, 11"); g("s_add_u32 s62, s62, s63")
    for k in range(2):
        g(f"buffer_store_dwordx4 v[48:51], v4, s[4:7], s62 offen offset:{k*1024} sc1")
    g("L_A_ni:")
    if g.o["cu"]:
        if g.o["cu"] != 2: g("s_cmp_lg_u32 s74, 1"); g("s_cbranch_scc1 L_A_nu")
        g.srd(44, 22, 4 << 20)
        g("v_lshrrev_b32 v8, 1, v1"); g("v_lshlrev_b32 v8, 13, v8"); g("v_and_b32 v9, 1, v1"); g("v_lshl_add_u32 v8, v9, 7, v8")
        g("s_lshl_b32 s62, s73, 20"); g("s_lshl_b32 s63, s3, 18"); g("s_add_u32 s62, s62, s63"); g("s_lshl_b32 s63, s72, 8"); g("s_add_u32 s62, s62, s63")
        g("buffer_load_dword v47, v8, s[44:47], s62 offen")
        g("L_A_nu:")
    g.srd(12, 18, 32 << 20); g.srd(8, 38, 256)
    setup()
    o0 = dma_ops(0)
    for x in o0[0]: g(x)
    for x in ea: g(x)
    if g.o["skew"]:
        g("v_and_b32 v9, 3, v8"); g("v_lshl_add_u32 v9, v9, 3, v8"); g("v_xor_b32 v9, s75, v9")
        g("v_lshl_add_u32 v213, v9, 10, v213"); g("v_lshl_add_u32 v214, v9, 7, v214")
        g("s_lshl_b32 s63, s75, 10"); g("s_sub_u32 s65, s65, s63"); g("s_lshl_b32 s63, s75, 7"); g("s_sub_u32 s79, s79, s63")
    g.srd(44, 30, 512*2752); g.srd(48, 32, 512*2752); g.srd(52, 34, 1376*1024)
    if g.o["co"]:
        g("v_lshrrev_b32 v218, 2, v1"); g("v_mul_u32_u24 v218, 2752, v218"); g("v_and_b32 v9, 3, v1"); g("v_lshlrev_b32 v9, 7, v9"); g("v_min_u32 v9, 380, v9"); g("v_add_u32 v218, v218, v9")
        g("v_lshlrev_b32 v219, 7, v1"); g(f"v_mov_b32 v9, {OOB}")
        g("v_cmp_gt_u32 vcc, 32, v1"); g("s_lshr_b32 s62, s42, 3"); g("s_lshl_b32 s62, s62, 2"); g("v_cndmask_b32 v218, v9, v218, vcc")
        g("v_cmp_gt_u32 vcc, 24, v1"); g("s_add_u32 s62, s62, s3"); g("s_and_b32 s64, s42, 7"); g("v_cndmask_b32 v219, v9, v219, vcc")
        g(f"s_mul_i32 s70, s62, {8*2752}"); g("s_mul_i32 s63, s64, 384"); g("s_add_u32 s70, s70, s63")
        g("s_mul_i32 s71, s62, 3072"); g("s_mul_i32 s63, s64, 196608"); g("s_add_u32 s71, s71, s63")
    else:
        g("v_mul_u32_u24 v218, 2752, v5"); g("v_mul_u32_u24 v9, 92, v6"); g("v_add_u32 v218, v218, v9")
        g("s_lshl_b32 s62, s73, 2"); g("s_add_u32 s62, s62, s3"); g(f"s_mul_i32 s70, s62, {32*2752}"); g("s_mul_i32 s64, s72, 96"); g("s_add_u32 s70, s70, s64")
        g("v_lshlrev_b32 v219, 6, v1"); g("s_mul_i32 s71, s62, 3072"); g("s_mul_i32 s64, s72, 49152"); g("s_add_u32 s71, s71, s64")
    g("s_cmp_ge_u32 s42, 16"); g("s_cbranch_scc1 L_A_ni2")
    g(f"s_waitcnt vmcnt({2 if g.o['cu'] == 2 else 1})")
    g("s_barrier")
    g("s_cmp_lg_u32 s3, 0"); g("s_cbranch_scc1 L_A_ni2")
    g("s_mov_b64 exec, 1")
    g("buffer_atomic_add v13, v12, s[8:11], 0 offen sc1")
    g("s_mov_b64 exec, -1")
    g("s_branch L_A_ni3")
    g("L_A_ni2:")
    if g.o["sw"] == 1:
        g("s_cmp_eq_u32 s74, 1"); g("s_cbranch_scc1 L_A_ni3")
    if g.o["sw"] != 2: g("s_waitcnt vmcnt(0)")
    g("L_A_ni3:")
    for o in o0[1:]:
        for x in o: g(x)
    dma_tile(1)
    aw = g.o["aw"]
    for t in range(2, aw): dma_tile(t)
    def pvreg(kk, ct): return 16*kk + 4*ct
    def rdp_txt(kk, ct):
        r = pvreg(kk, ct); row = 16*kk; ab = 24 if row < 64 else 32
        return [f"ds_read_b64_tr_b16 a[{r+2*hv}:{r+2*hv+1}], v{ab+2*ct+hv} offset:{((row % 64) + 8*hv)*1024}" for hv in range(2)]
    def gather():
        for r in range(8):
            g(f"buffer_load_dwordx4 v[{176+4*r}:{179+4*r}], v4, s[4:7], s{78 if r < 4 else 67} offen offset:{(r&3)*1024} sc1")
    mix = g.o["mix"]
    def c0chk():
        g("v_cmp_ne_u32 vcc, 16, v47")
        g("s_cbranch_vccz L_A_c0")
        cnt_wait(g, 47, 12)
        g("L_A_c0:")
    for tl in range(4):
        if not mix:
            if aw == 2:
                g(f"s_waitcnt vmcnt({8 if tl < 3 else 0})")
                if tl == 1: g("buffer_load_dword v47, v12, s[8:11], 0 offen sc1")
                if tl < 2: dma_tile(tl+2)
            else:
                if tl == 0:
                    g(f"s_waitcnt vmcnt({8*(aw-1)})")
                    if aw == 3: dma_tile(3)
                    g("buffer_load_dword v47, v12, s[8:11], 0 offen sc1")
                else: g(f"s_waitcnt vmcnt({8*(3-tl)+1 if tl < 3 else 0})")
            if tl == 3:
                c0chk()
                if g.o["eg"]: gather()
        else:
            if tl == 0:
                g("s_waitcnt vmcnt(8)"); g("buffer_load_dword v47, v12, s[8:11], 0 offen sc1"); dma_tile(2)
            if tl == 1: g("s_waitcnt vmcnt(9)")
            if tl == 2:
                g(f"s_waitcnt vmcnt({g.o['mw']})")
                for o in dma_ops(3, ""):
                    for x in o: g(x)
                if mix == 2: c0chk(); gather()
                g(f"s_waitcnt vmcnt({16 if mix == 2 else 8})")
            if tl == 3:
                if mix == 1:
                    g("s_waitcnt vmcnt(0)"); c0chk(); gather()
                else: g("s_waitcnt vmcnt(8)")
        if tl == 3 and g.o["nd2"]: g("s_waitcnt lgkmcnt(0)")
        g("s_barrier")
        if tl == 3:
            for t in range(g.o["nd2"]):
                for o in dma_ops(t, ""):
                    for x in o: g(x)
        if tl == 0 and not fine: g.stamp(1)
        if tl == 3 and not fine: g.stamp(2)
        for ks in range(2):
            for ct in range(4):
                for x in rdp_txt(2*tl+ks, ct): g(x)
        sk = g.lab("p1c")
        g(f"s_cmp_lg_u32 s3, {tl}"); g(f"s_cbranch_scc1 {sk}")
        for s in range(32):
            g(f"ds_read_b128 a[{128+4*s}:{131+4*s}], v{16+(s&7)} offset:{(s>>3)*256}")
        g(f"{sk}:")
    nd2 = g.o["nd2"]
    def gproc(extra):
        for r in range(8):
            g(f"s_waitcnt vmcnt({7-r+extra})")
            g(f"ds_write_b128 v{168+r}, v[{176+4*r}:{179+4*r}] offset:{r*1024}")
            if r == 0: g("v_max3_u32 v9, v176, v177, v178"); g("v_max_u32 v9, v9, v179")
            else: g(f"v_max3_u32 v9, v9, v{176+4*r}, v{177+4*r}"); g(f"v_max3_u32 v9, v9, v{178+4*r}, v{179+4*r}")
        g("v_cmp_eq_u32 vcc, -1, v9")
    gproc(8*nd2)
    g("s_cbranch_vccz L_A_gok")
    g(f"s_mov_b32 s64, {SPIN}")
    g("L_A_g0:")
    g("s_waitcnt lgkmcnt(0)")
    gather()
    gproc(0)
    g("s_sub_u32 s64, s64, 1"); g("s_cmp_eq_u32 s64, 0"); g("s_cbranch_scc1 L_A_gok")
    g("s_cbranch_vccnz L_A_g0")
    g("L_A_gok:")
    g("s_waitcnt lgkmcnt(0)")
    g("s_barrier")
    g.stamp(3)
    if g.o["cyc"] == 2: g("s_memtime s[82:83]")
    L = Lds(g)
    dq = []
    for t in range(4 + nd2, 8): dq += dma_ops(t & 3, "nt" if (mix and t == 4 and not g.o["p5"]) else "")
    if g.o["atq"]:
        dq += [["buffer_load_dword v223, v218, s[44:47], s70 offen"], ["buffer_load_dword v223, v218, s[48:51], s70 offen"], ["buffer_load_dword v223, v219, s[52:55], s71 offen"]]
        g.o["ats"] = 100
    ids = {}
    def rdq(s): ids[s] = L.op(f"ds_read_b128 {qreg(s)}, v{128+(s&7)} offset:{(s>>3)*256}")
    for s in range(QD-1): rdq(s)
    def dpop(n=1):
        for _ in range(n):
            if dq:
                for y in dq.pop(0): g(y)
    dpop(g.o["d0"])
    dn = g.o["dn"]
    for s in range(32):
        L.wait(ids[s])
        c = "0" if s == 0 else "v[48:63]"
        g(f"v_mfma_f32_32x32x16_bf16 v[48:63], a[{128+4*s}:{131+4*s}], {qreg(s)}, {c}")
        if s + QD - 1 < 32: rdq(s + QD - 1)
        if (s + 1) * dn // 32 > s * dn // 32: dpop()
    cpre = g.o["cpre"]; fb = g.o["fb"]
    def sma_ops(ch):
        o = ch*10240
        R = 216 if ch == 0 else 222
        T = []
        T += ["v_max3_f32 v8, v48, v49, v50", "v_max3_f32 v9, v51, v52, v53", "v_max3_f32 v10, v54, v55, v56", "v_max3_f32 v11, v57, v58, v59",
              "v_max3_f32 v8, v8, v60, v61", "v_max3_f32 v9, v9, v62, v63", "v_max_f32 v10, v10, v11", "v_max3_f32 v8, v8, v9, v10"]
        if ch == 0: T += ["v_ceil_f32 v216, v8"]
        else: T += ["v_cmp_gt_f32 vcc, v8, v47", "v_ceil_f32 v8, v8", "s_nop 0", "v_cndmask_b32 v222, v44, v8, vcc"]
        for h in range(2):
            T += [f"v_sub_f32 v{48+8*h+k}, v{48+8*h+k}, v{R}" for k in range(8)]
            T += [f"v_exp_f32 v{48+8*h+k}, v{48+8*h+k}" for k in range(8)]
            if h == 0 and ch == 0: T += ["s_barrier"]
            if h == 0: T += [f"@ds_write_b32 v41, v{R} offset:{o}"]
            T += [f"v_cvt_pk_bf16_f32 v{168+4*h+k}, v{48+8*h+2*k}, v{49+8*h+2*k}" for k in range(4)]
            T += [f"@ds_write_b128 v43, v[{168+4*h}:{171+4*h}] offset:{o+1024*h}"]
        return T
    def lsum_ops(ch):
        T = [f"v_add_f32 v{48+k}, v{48+k}, v{56+k}" for k in range(8)]
        T += [f"v_add_f32 v{48+k}, v{48+k}, v{52+k}" for k in range(4)]
        T += ["v_add_f32 v48, v48, v50", "v_add_f32 v49, v49, v51"]
        if ch == 0: T += ["v_add_f32 v217, v48, v49"]
        else: T += ["v_add_f32 v48, v48, v49", "v_add_f32 v217, v217, v48", "@ds_write_b32 v41, v217 offset:1024"]
        return T
    def emit(x):
        if callable(x): return x()
        if x.startswith("@"): return L.op(x[1:])
        g(x)
    def kfix(P, waits=None):
        T = []
        for w in range(4):
            T += [f"v_sub_f32 v{12+w}, v44, v{12+w}", f"v_cvt_u32_f32 v{8+w}, v{12+w}", f"v_min_u32 v{8+w}, 0xff, v{8+w}", f"v_mul_u32_u24 v{8+w}, 0x800080, v{8+w}"]
            for kk in (2*w, 2*w+1):
                if waits is not None: T += [lambda kk=kk: L.wait(waits[kk])]
                T += [f"v_pk_sub_u16 v{P+4*kk+i}, v{P+4*kk+i}, v{8+w} clamp" for i in range(4)]
        return T
    def cost(x):
        if callable(x): return getattr(x, "c", 0)
        if x.startswith("v_exp"): return 2
        return 1
    def fill(q, budget):
        while q and budget > 0:
            x = q.pop(0); budget -= cost(x); emit(x)
        return budget
    def rdop(d, key, txt):
        def f(): d[key] = L.op(txt)
        f.c = 1
        return f
    order = [(kk, ct) for ct in range(4) for kk in range(8)]
    pvid = {}; rq = []
    def refill(cnt):
        n_ = 0
        while rq and n_ < cnt:
            key, x = rq.pop(0); pvid[key] = L.op(x); n_ += 1
        return n_
    def pv0(kk, ct):
        r = pvreg(kk, ct)
        c = "0" if kk == 0 else f"v[{64+16*ct}:{79+16*ct}]"
        g(f"v_mfma_f32_32x32x16_bf16 v[{64+16*ct}:{79+16*ct}], a[{r}:{r+3}], v[{128+4*kk}:{131+4*kk}], {c}")
    def flush_until(q, prefix):
        if any((not callable(x)) and x.startswith(prefix) for x in q):
            while True:
                x = q.pop(0); emit(x)
                if (not callable(x)) and x.startswith(prefix): break
            g("s_nop 1")
    if fine: g.stamp(1)
    if g.o["cyc"] == 2: g("s_memtime s[84:85]")
    n0_ = len(g.L); dpop(g.o["d1"]); g.nop(max(0, 12 - (len(g.L) - n0_)))
    acc_ = 0
    for x in sma_ops(0):
        emit(x); acc_ += cost(x)
        if g.o["dk"] and acc_ >= g.o["dk"]: dpop(); acc_ = 0
    dpop(g.o["d2"] if cpre else 100)
    if cpre == 0:
        for x in lsum_ops(0): emit(x)
    L.all()
    if cpre == 0: g("s_waitcnt vmcnt(0)")
    g("s_barrier")
    if fine: g.stamp(2)
    if g.o["cyc"] == 2: g("s_memtime s[86:87]")
    r0 = {}
    qr = [rdop(r0, "x", "ds_read_b128 v[12:15], v40"), rdop(r0, "ref", "ds_read_b128 v[168:171], v46")]
    qr += [rdop(r0, k, f"ds_read_b128 v[{128+4*k}:{131+4*k}], v42 offset:{1024*k}") for k in range(8)]
    q2 = [lambda: L.wait(r0["ref"]), "v_max3_f32 v9, v12, v13, v14", "v_max3_f32 v10, v169, v170, v171", "v_max3_f32 v9, v9, v15, v168", "v_max_f32 v44, v9, v10"]
    q2 += kfix(128, r0)
    q2 += ["v_sub_f32 v216, v216, v44", "v_exp_f32 v216, v216", f"v_add_f32 v47, 0x{f2u(float(g.o['thr'])):08x}, v44", "v_mul_f32 v217, v217, v216"]
    if cpre:
        for x in qr: emit(x)
        qr = []
        if g.o["dk"]: dpop()
        for x in lsum_ops(0): emit(x)
        if g.o["dk"]: dpop()
        flush_until(q2, "v_pk_sub_u16 v135,")
        for n, (kk, ct) in enumerate(order[:8*cpre]):
            if ct == 0: flush_until(q2, f"v_pk_sub_u16 v{128+4*kk+3},")
            pv0(kk, ct)
            fill(q2, 6 if ct == 0 else 4)
            if n % g.o["d3"] == 0: dpop()
            rq += [((kk, ct), x) for x in rdp_txt(kk, ct)]
        dpop(100)
        if g.o["cyc"] == 2: g("s_memtime s[94:95]")
        g(f"s_waitcnt vmcnt({3 if g.o['atq'] else 0})")
        g("s_barrier")
    if not g.o["cyc"]: g.stamp(4)
    if g.o["cyc"] == 2: g("s_memtime s[88:89]")
    D = 6
    ids = {}
    def rdc(s):
        r = 176 + 4*(s % 8)
        ids[s] = L.op(f"ds_read_b128 v[{r}:{r+3}], v{16+(s&7)} offset:{(s>>3)*256}")
    for s in range(D): rdc(s)
    oi = g.o["oi"]
    if oi:
        for k in range(4): g(f"v_mov_b32 v{172+k}, -1")
    for s in range(32):
        L.wait(ids[s])
        r = 176 + 4*(s % 8)
        c = "0" if s == 0 else "v[48:63]"
        g(f"v_mfma_f32_32x32x16_bf16 v[48:63], v[{r}:{r+3}], {qreg(s)}, {c}")
        if s + D < 32: rdc(s + D)
        at = g.o["ats"]
        if oi and s % 3 == 0 and s < 24:
            n_ = s // 3
            g(f"s_add_u32 s63, s65, {(n_&3)*8*32768}")
            g(f"buffer_store_dwordx4 v[172:175], v213, s[4:7], s63 offen offset:{(n_>>2)*128} sc1")
        elif s == at: g("buffer_load_dword v223, v218, s[44:47], s70 offen")
        elif s == at + 3: g("buffer_load_dword v223, v218, s[48:51], s70 offen")
        elif s == at + 6: g("buffer_load_dword v223, v219, s[52:55], s71 offen")
        elif qr: fill(qr, 2)
        elif q2 and (s >= 7 or cpre): fill(q2, 3)
        else: refill(2)
    fill(q2, 1000)
    if not g.o["cyc"]: g.stamp(5)
    if g.o["cyc"] == 2: g("s_memtime s[90:91]")
    q = sma_ops(1)
    r1 = {}
    qr = [rdop(r1, "x", "ds_read_b128 v[12:15], v40 offset:10240"), rdop(r1, "ref", "ds_read_b128 v[218:221], v46 offset:10240")]
    qr += [rdop(r1, k, f"ds_read_b128 v[{176+4*k}:{179+4*k}], v42 offset:{10240+1024*k}") for k in range(8)]
    state = 0; dist = 0
    for n, (kk, ct) in enumerate(order[8*cpre:]):
        pv0(kk, ct); dist += 1
        if state == 0:
            if dist < 12:
                k_ = refill(3); dist += k_
                if k_ < 3: g.nop(3 - k_); dist += 3 - k_
            else:
                fill(q, fb)
                if not q:
                    last_w = L.n; state = 1
        elif state == 1:
            L.wait(last_w); g("s_barrier"); state = 2
            fill(qr, 3)
        elif state == 2:
            if qr: fill(qr, 3)
            else: refill(3)
        rq += [((kk, ct), x) for x in rdp_txt(kk, ct)]
    if state == 0:
        if dist < 12: g.nop(12 - dist)
        fill(q, 1000); last_w = L.n; state = 1
    if state == 1:
        L.wait(last_w); g("s_barrier")
    fill(qr, 1000)
    L.wait(r1["ref"])
    g("v_max3_f32 v9, v12, v13, v14"); g("v_max3_f32 v10, v219, v220, v221"); g("v_max3_f32 v9, v9, v15, v218"); g("v_max_f32 v9, v9, v10")
    g("v_cmp_neq_f32 vcc, v9, v44")
    g("s_cbranch_vccnz L_A_slow")
    g("L_A_back:")
    slow = ["L_A_slow:", "s_waitcnt lgkmcnt(0)", "v_sub_f32 v47, v44, v9", "v_sub_f32 v222, v222, v9", "v_mov_b32 v44, v9", "v_exp_f32 v47, v47", "v_exp_f32 v222, v222"] + kfix(176) + \
           [f"v_mul_f32 v{64+k}, v47, v{64+k}" for k in range(64)] + ["v_mul_f32 v217, v47, v217"] + \
           [f"v_mul_f32 v{48+k}, v222, v{48+k}" for k in range(16)] + ["s_branch L_A_back"]
    g.slow = slow
    if fine: g.stamp(10)
    if g.o["cyc"] == 2: g("s_memtime s[92:93]")
    def epi_w(ct, qq):
        b = 128+8*(ct&1)+4*qq
        return [f"v_cvt_pk_bf16_f32 v{b+k}, v{64+16*ct+8*qq+2*k}, v{65+16*ct+8*qq+2*k}" for k in range(4)] + \
               [f"@ds_write_b128 v{208+2*(ct&1)+qq}, v[{b}:{b+3}] offset:{(ct>>1)*128}"]
    er = {}
    def epi_r(half):
        return [rdop(er, (half, n_), f"ds_read_b128 v[{224+16*half+4*n_}:{227+16*half+4*n_}], v212 offset:{n_*8192+half*128}") for n_ in range(4)]
    def epi_s(half, n_):
        def f():
            L.wait(er[(half, n_)])
            if g.o["oi"] and half == 0 and n_ == 0: g("s_waitcnt vmcnt(0)")
            g(f"s_add_u32 s63, s65, {n_*8*32768}")
            g(f"buffer_store_dwordx4 v[{224+16*half+4*n_}:{227+16*half+4*n_}], v213, s[4:7], s63 offen offset:{half*128} sc1")
        f.c = g.o['sc']
        return f
    def pad():
        pass
    pad.c = 4
    lw = {}
    def mark(): lw["w"] = L.n
    def lbar(): L.wait(lw["w"]); g("s_barrier")
    lbar.c = 2
    q = lsum_ops(1) + [mark]
    ql = [lbar, rdop(lw, "a", "ds_read_b128 v[52:55], v40 offset:1024"), rdop(lw, "b", "ds_read_b128 v[56:59], v46 offset:1024")]
    ql2 = [lambda: L.wait(lw["b"])] + [f"v_add_f32 v{52+w}, v{52+w}, v{56+w}" for w in range(4)] + \
        ["v_add_f32 v52, v52, v53", "v_add_f32 v54, v54, v55", "v_add_f32 v45, v52, v54"] + \
        [f"@ds_bpermute_b32 v{60+i}, v215, v{44+(i&1)}" for i in range(4)]
    wdone = 0
    ld = g.o["ld"]
    if ld:
        qlate = (q if ld == 2 else []) + ql + ql2
        if ld == 2: q = []
        ql = []; ql2 = []
    def cyc(k):
        if g.o["cyc"] == 1: g(f"s_memtime s[{80+2*k}:{81+2*k}]")
    for n, (kk, ct) in enumerate(order):
        r = pvreg(kk, ct)
        if kk == 0: cyc(1 + ct)
        while (kk, ct) not in pvid or any(k == (kk, ct) for k, _ in rq): refill(1)
        if ct == 0: L.wait(r1[kk])
        L.wait(pvid[(kk, ct)])
        g(f"v_mfma_f32_32x32x16_bf16 v[{64+16*ct}:{79+16*ct}], a[{r}:{r+3}], v[{176+4*kk}:{179+4*kk}], v[{64+16*ct}:{79+16*ct}]")
        nm_ = len(g.L)
        b = 4 - refill(g.o["rf"])
        if kk == 0: since = 0
        if not rq and wdone < ct and since >= 11:
            q += epi_w(wdone, 0) + epi_w(wdone, 1)
            if wdone == 0: q += ql
            if wdone == 1: q += epi_r(0) + ql2 + [pad] * g.o["sp"] + [epi_s(0, n_) for n_ in range(4)]
            wdone += 1
        b = fill(q, b)
        em = len(g.L) - nm_
        if em < 4 and wdone < ct and since + em < 11:
            g.nop(4 - em); em = 4
        since += 1 + em
    while wdone < 3:
        q += epi_w(wdone, 0) + epi_w(wdone, 1)
        if wdone == 0: q += ql
        if wdone == 1: q += epi_r(0) + ql2 + [pad] * g.o["sp"] + [epi_s(0, n_) for n_ in range(4)]
        wdone += 1
    n0_ = len(g.L)
    fill(q, 1000)
    if g.o["fine2"]: g.stamp(1)
    cyc(5)
    g.nop(max(0, 12 - (len(g.L) - n0_)))
    for x in epi_w(3, 0) + epi_w(3, 1) + epi_r(1) + [epi_s(1, n_) for n_ in range(4)]: emit(x)
    g.stamp(9)
    cyc(6)
    if ld:
        for x in qlate: emit(x)
        L.all()
    if g.o["ta"]:
        g("v_mul_u32_u24 v218, 2752, v5"); g("v_mul_u32_u24 v9, 92, v6"); g("v_add_u32 v218, v218, v9"); g("v_lshlrev_b32 v219, 6, v1")
    if g.o["fsb"]: ffn_setup(g)
    if not g.o["oi"]: g("s_waitcnt vmcnt(0)")
    g("s_barrier")
    g("buffer_store_dwordx4 v[60:63], v214, s[4:7], s79 offen sc1")
    if g.o["ta"]:
        g("buffer_load_dword v223, v218, s[44:47], s70 offen"); g("buffer_load_dword v223, v218, s[48:51], s70 offen"); g("buffer_load_dword v223, v219, s[52:55], s71 offen")
    if not fine: g.stamp(10)

def gen(opts):
    g = G(opts)
    g("s_load_dwordx16 s[16:31], s[0:1], 0")
    g("s_load_dwordx8 s[32:39], s[0:1], 64")
    g("s_load_dwordx2 s[40:41], s[0:1], 96")
    g("s_cmp_ge_u32 s2, 256"); g("s_cbranch_scc1 L_end")
    g.stamp(0)
    g("s_getpc_b64 s[4:5]")
    g("s_and_b32 s5, s5, 0xffff"); g("s_mov_b32 s6, L_end - L_pcv"); g("s_mov_b32 s7, 0x20000")
    g("L_pcv:")
    g("s_bfe_u32 s62, s2, 0x40003"); g("s_lshl_b32 s62, s62, 12")
    g("v_lshlrev_b32 v1, 4, v0")
    g("buffer_load_dwordx4 v[252:255], v1, s[4:7], s62 offen")
    g("v_lshrrev_b32 v2, 6, v0"); g("v_and_b32 v1, 63, v0")
    g("v_readfirstlane_b32 s3, v2")
    g("v_and_b32 v2, 15, v0"); g("v_lshrrev_b32 v3, 4, v1")
    g("s_and_b32 s62, s2, 7"); g("s_lshr_b32 s43, s2, 4"); g("s_lshl_b32 s42, s43, 3"); g("s_or_b32 s42, s42, s62")
    g("s_and_b32 s73, s43, 3")
    g("s_lshr_b32 s43, s43, 2")
    g("s_lshl_b32 s72, s62, 2"); g("s_or_b32 s72, s72, s43")
    g("s_lshl_b32 s43, s43, 3"); g("s_or_b32 s43, s43, s62")
    g("s_mov_b32 s60, 0x05040100"); g("s_mov_b32 s61, 0x07060302")
    if opts.get("stamps"):
        for k in range(82, 102): g(f"s_mov_b32 s{k}, 0")
    g("s_bitcmp1_b32 s2, 3")
    g("s_cbranch_scc1 L_A")
    tcu(g)
    g("L_A:")
    acu(g)
    if not g.o["fsb"]: ffn_setup(g)
    g(f"s_cmp_lt_u32 s66, {NSL}"); g("s_cbranch_scc1 L_FW")
    g("s_cmp_lg_u32 s66, 31"); g("s_cbranch_scc1 L_fin")
    x_issue(g); g("s_waitcnt vmcnt(0)"); x_finish(g)
    g("s_branch L_FFN")
    g("L_FW:")
    x_issue(g)
    if g.o["fw"]: g("s_waitcnt vmcnt(0)")
    if g.o["fi"]: ffn_issue2(g)
    else: ffn_issue(g); ffn_finish(g)
    if not g.o["fine"] and not g.o["cyc"]: g.stamp(6)
    if g.o["ec"]:
        g(f"s_mov_b32 s65, {SPIN}")
        for k in range(24): g(f"v_mov_b32 v{192+k}, 0")
        g("s_waitcnt vmcnt(0)")
        g("v_cmp_eq_u32 vcc, -1, v14")
        g("s_cbranch_vccz L_FGO")
    g("L_FFN:")
    ffn_stage(g)
    g("L_fin:")
    if opts["probe"]:
        wg, k = [int(x) for x in opts["probe"].split(",")]
        g("s_waitcnt lgkmcnt(0)")
        g(f"s_cmp_lg_u32 s2, {wg}"); g("s_cbranch_scc1 L_end")
        g("s_cmp_lg_u32 s3, 0"); g("s_cbranch_scc1 L_end")
        g(f"s_sub_u32 s64, s{80+2*k}, s80"); g("s_mul_i32 s64, s64, 20"); g("s_min_u32 s64, s64, 100000")
        g("s_memrealtime s[62:63]"); g("s_waitcnt lgkmcnt(0)"); g("s_add_u32 s64, s64, s62")
        g("L_pr:")
        g("s_sleep 2")
        g("s_memrealtime s[62:63]"); g("s_waitcnt lgkmcnt(0)")
        g("s_sub_u32 s62, s62, s64"); g("s_cmp_lt_i32 s62, 0"); g("s_cbranch_scc1 L_pr")
    elif opts.get("stamps"):
        nst = 11
        g("s_waitcnt lgkmcnt(0)")
        g("s_cmp_lg_u32 s3, 0"); g("s_cbranch_scc1 L_end")
        g("s_mov_b64 exec, 1")
        g(f"s_mul_i32 s62, s2, {nst*8}"); g(f"s_add_u32 s62, s62, {WS - 256*nst*8}")
        g("v_mov_b32 v3, 0")
        for k in range(nst):
            g(f"v_mov_b32 v4, s{80+2*k}"); g(f"v_mov_b32 v5, s{81+2*k}")
            g(f"buffer_store_dwordx2 v[4:5], v3, s[4:7], s62 offen offset:{8*k}")
            g("s_nop 1")
    g("L_end:")
    g("s_endpgm")
    for x in g.slow + getattr(g, "slow0", []): g(x)
    hdr = open("hdr.txt").read()
    return hdr + "; @launch grid=(256,1,1) block=(256,1,1) lds=163840\n" + '.amdgcn_target "amdgcn-amd-amdhsa--gfx950"\n.text\n' + kstart(KN) + "\n".join(g.L) + "\n" + kdesc(KN, vgpr=512, accum=256).replace(".text\n", "")

if __name__ == "__main__":
    import argparse
    ap = argparse.ArgumentParser()
    ap.add_argument("out"); ap.add_argument("--stamps", action="store_true")
    ap.add_argument("--thr", type=float, default=30); ap.add_argument("--probe", default=""); ap.add_argument("--pflag", default=""); ap.add_argument("--cf0", default="nt")
    for k, v in (("fine", 0), ("fine2", 0), ("tsleep", 1), ("fsleep", 1), ("fb", 7), ("cpre", 2), ("d0", 8), ("dn", 12), ("d1", 4), ("d2", 4), ("d3", 1), ("sc", 4),
                 ("ats", 1), ("nb", 3), ("rep", 0), ("eg", 1), ("fsb", 0), ("xnp", 0), ("osc", 0), ("tord", 0), ("oi", 0), ("cls", 0), ("cu", 1), ("pb", 1), ("sw", 1), ("atq", 0), ("fi", 0), ("mix", 0), ("mw", 0), ("p5", 1), ("pp", 6), ("rot", 11), ("skew", 0), ("fw", 1), ("ec", 0), ("pf1", 0), ("pf2", 0), ("aw", 3), ("ld", 2), ("sp", 0), ("dk", 0), ("nd2", 0), ("tf", -1), ("ta", 0), ("co", 1), ("cyc", 0), ("rf", 3)): ap.add_argument("--" + k, type=int, default=v)
    a = ap.parse_args()
    open(a.out, "w").write(gen(vars(a)))
```

```python
import sys, math, struct
from gen_common import *
def f2u(x): return struct.unpack("<I", struct.pack("<f", x))[0]
QABS = 0x000000
STAT = 0x040000
OPART = 0x100000
APART = 0x500000
FPART = 0x600000
OOB = 0x40000000
SCALE = (128 ** -0.5) * math.log2(math.e)
class G:
    def __init__(s, opts):
        s.L = []; s.o = opts; s.uid = 0
    def a(s, x): s.L.append(x)
    def __call__(s, x): s.L.append(x)
    def lab(s, p="L"):
        s.uid += 1; return f"{p}_{s.uid}"
    def nop(s, n):
        while n > 0:
            k = min(n, 16); s.a(f"s_nop {k-1}"); n -= k
    def stamp(s, k):
        if s.o.get("stamps"):
            s.a(f"s_memrealtime s[{80+2*k}:{81+2*k}]")
    def srd(s, d, p, size):
        s.a(f"s_mov_b32 s{d}, s{p}"); s.a(f"s_and_b32 s{d+1}, s{p+1}, 0xffff")
        s.a(f"s_mov_b32 s{d+2}, {size}"); s.a(f"s_mov_b32 s{d+3}, 0x20000")
    def dpp(s, op, v, ctrl):
        s.a("s_nop 1"); s.a(f"{op}_dpp v{v}, v{v}, v{v} {ctrl} row_mask:0xf bank_mask:0xf")
    def allred(s, op, v, t, width=64):
        for c in ("quad_perm:[1,0,3,2]", "quad_perm:[2,3,0,1]", "row_half_mirror", "row_mirror"):
            s.dpp(op, v, c)
        if width >= 32:
            s.a(f"v_mov_b32 v{t}, v{v}"); s.a("s_nop 1"); s.a(f"v_permlane16_swap_b32 v{v}, v{t}"); s.a(f"{op} v{v}, v{v}, v{t}")
        if width >= 64:
            s.a(f"v_mov_b32 v{t}, v{v}"); s.a("s_nop 1"); s.a(f"v_permlane32_swap_b32 v{v}, v{t}"); s.a(f"{op} v{v}, v{v}, v{t}")
    def bf16r(s, d, v):
        s.a(f"v_cvt_pk_bf16_f32 v{d}, v{v}, v{v}"); s.a(f"v_lshlrev_b32 v{d}, 16, v{d}")
    def maxtree(s, d, regs):
        regs = list(regs)
        s.a(f"v_max3_u32 v{d}, v{regs[0]}, v{regs[1]}, v{regs[2]}")
        i = 3
        while i + 1 < len(regs):
            s.a(f"v_max3_u32 v{d}, v{d}, v{regs[i]}, v{regs[i+1]}"); i += 2
        if i < len(regs):
            s.a(f"v_max_u32 v{d}, v{d}, v{regs[i]}")
    def perm8x8(s, R, T, acc=None):
        for t in range(8):
            for p in range(4):
                s.a(f"v_perm_b32 v{T+4*t+p}, v{R+4*(2*p+1)+(t>>1)}, v{R+4*(2*p)+(t>>1)}, s{60+(t&1)}")
        if acc is not None:
            for k in range(32):
                s.a(f"v_accvgpr_write_b32 a{acc+k}, v{T+k}")

def fswz(k):
    return ((k & 3) << 2) | ((k >> 2) & 3)

SPIN = 100000
LDS_XN = 0
LDS_QX = 8192
LDS_OT = 16384
LDS_FX = 49152
LDS_CX = 49664
LDS_CS = 51200
LDS_GX = 53248
LDS_FW = 57344
NSL = 29
LQ = 131072
LRF = LQ
LP = LQ + 2048
TS = 0x100000
SMF = "v_smfmac_f32_16x16x64_bf16"
M16 = "v_mfma_f32_16x16x32_bf16"

def poll_loop(g, body, cond, spin=SPIN, sleep=1):
    l = g.lab("pl"); e = g.lab("ple"); f = g.lab("plf")
    g(f"s_mov_b32 s64, {spin}")
    if sleep: g(f"s_branch {f}")
    g(f"{l}:")
    if sleep:
        g(f"s_sleep {sleep}")
        g(f"{f}:")
    body()
    g("s_sub_u32 s64, s64, 1"); g("s_cmp_eq_u32 s64, 0")
    g("s_waitcnt vmcnt(0)")
    g(f"s_cbranch_scc1 {e}")
    cond()
    g(f"s_cbranch_vccnz {l}")
    g(f"{e}:")

def cnt_wait(g, vt, vo, sleep=4):
    poll_loop(g, lambda: g(f"buffer_load_dword v{vt}, v{vo}, s[8:11], 0 offen sc1"),
              lambda: g(f"v_cmp_ne_u32 vcc, 16, v{vt}"), sleep=sleep)

def tile_setup(g, rot):
    g("v_lshlrev_b32 v8, 1, v3"); g("v_xor_b32 v8, v8, v2"); g("v_lshlrev_b32 v8, 4, v8"); g("v_lshl_add_u32 v8, v3, 10, v8")
    g("v_xor_b32 v9, 0x80, v8")
    g("s_lshl_b32 s68, s3, 13"); g(f"s_add_u32 s68, s68, {LDS_OT}")
    g("v_bfe_u32 v11, v1, 2, 2")
    g("v_lshl_add_u32 v10, v3, 3, v11"); g("v_lshlrev_b32 v10, 8, v10")
    g("v_and_b32 v12, 1, v3"); g("v_lshl_add_u32 v12, v12, 2, v11"); g("v_lshlrev_b32 v12, 1, v12")
    g("v_bfe_u32 v13, v1, 1, 1"); g("v_xor_b32 v12, v12, v13")
    g("v_lshl_add_u32 v10, v12, 4, v10")
    g("v_and_b32 v13, 1, v1"); g("v_lshl_add_u32 v10, v13, 3, v10")
    g("v_add_u32 v10, s68, v10")
    if rot:
        g("s_lshr_b32 s63, s73, 1"); g("s_lshl_b32 s63, s63, 7"); g("s_and_b32 s62, s73, 1"); g("s_lshl_b32 s62, s62, 4"); g("s_or_b32 s63, s63, s62")
        g("v_xor_b32 v10, s63, v10")
    for t in range(8): g(f"v_xor_b32 v{112+t}, {t<<5}, v10")
    g("s_mov_b32 s70, 0xaaaaaaaa"); g("s_mov_b32 s71, 0xaaaaaaaa")
    g("v_mov_b32 v29, 0x4444"); g("v_mov_b32 v28, 0xeeee"); g("v_cndmask_b32 v29, v29, v28, s[70:71]")

def tile_dma(g, sbase):
    g("s_mov_b32 m0, s68"); g(f"s_mov_b32 s63, s{sbase}")
    for n in range(8):
        g(f"buffer_load_dwordx4 v{8+((n>>1)&1)}, s[4:7], s63 offen sc1 lds")
        if n < 7:
            g("s_addk_i32 m0, 0x400"); g("s_addk_i32 s63, 0x1000")

def tile_read(g, A):
    for t in range(8):
        if t == 6: g("s_waitcnt lgkmcnt(8)")
        g(f"ds_read_b64_tr_b16 v[{A+4*t}:{A+4*t+1}], v{112+t}")
        g(f"ds_read_b64_tr_b16 v[{A+4*t+2}:{A+4*t+3}], v{112+t} offset:1024")

def ffn_setup(g):
    g("s_mov_b32 s66, s72"); g("s_mov_b32 s67, s73")
    g.srd(56, 16, 4096)
    for m in range(3):
        g(f"v_add_u32 v7, {64*m}, v1"); g("v_mul_u32_u24 v8, 43691, v7"); g("v_lshrrev_b32 v8, 18, v8")
        g(f"v_mul_u32_u24 v{4+m}, {2752-96}, v8"); g(f"v_lshl_add_u32 v{4+m}, v7, 4, v{4+m}")
    g("v_lshlrev_b32 v121, 11, v3"); g("v_lshl_add_u32 v121, v2, 4, v121")
    g("v_lshlrev_b32 v122, 3, v3")
    for k in range(4): g(f"v_mov_b32 v{24+k}, 0x3f803f80")
    tile_setup(g, False)
    g("v_and_b32 v10, 1, v3"); g("v_lshlrev_b32 v10, 5, v10"); g("v_lshrrev_b32 v12, 1, v3"); g("v_lshl_add_u32 v10, v12, 2, v10"); g("v_add_u32 v10, v10, v11")
    g("v_mul_u32_u24 v125, 96, v10"); g("v_and_b32 v28, 3, v1"); g("v_lshl_add_u32 v125, v28, 3, v125")
    g("s_mul_i32 s76, s3, 24576"); g(f"s_add_u32 s76, s76, {LDS_FW}"); g("v_add_u32 v125, s76, v125")
    for p in range(4):
        g(f"v_cmp_eq_u32 vcc, {p}, v28"); g("s_nop 1"); g(f"v_cndmask_b32 v{16+p}, 0, -1, vcc")
    for p in range(4): g(f"v_and_b32 v{20+p}, 0xffff, v{16+(p^1)}")
    g("v_xor_b32 v10, 1, v28"); g("v_lshlrev_b32 v10, 2, v10"); g("v_lshlrev_b32 v30, v10, 10"); g("v_or_b32 v30, 0x4444, v30")
    g("v_lshlrev_b32 v120, 5, v2"); g("s_lshl_b32 s62, s3, 9"); g(f"s_add_u32 s62, s62, {LDS_CS}"); g("v_add_u32 v120, s62, v120")
    g("v_lshl_add_u32 v7, v3, 2, v28"); g("v_lshlrev_b32 v7, 5, v7")
    rep = g.o["rep"]
    g("s_lshl_b32 s69, s67, 15"); g("s_lshl_b32 s63, s3, 8"); g("s_add_u32 s69, s69, s63"); g(f"s_add_u32 s69, s69, {APART}")
    if rep:
        g("s_and_b32 s63, s42, 7"); g("s_lshl_b32 s63, s63, 17"); g("s_add_u32 s69, s69, s63")
    g("v_lshrrev_b32 v13, 1, v1"); g("v_lshlrev_b32 v13, 10, v13"); g("v_and_b32 v14, 1, v1"); g("v_lshl_add_u32 v13, v14, 7, v13")
    g("v_lshlrev_b32 v123, 5, v2"); g("v_lshl_add_u32 v123, v3, 4, v123")
    g("s_lshl_b32 s74, s67, 5"); g("s_add_u32 s74, s74, s66"); g("s_lshl_b32 s74, s74, 11")
    g("s_lshl_b32 s63, s3, 9"); g("s_add_u32 s74, s74, s63"); g(f"s_add_u32 s74, s74, {FPART}")
    c1 = -2 * math.sqrt(2 / math.pi) * math.log2(math.e)
    g(f"s_mov_b32 s75, 0x{f2u(c1*0.044715):08x}"); g(f"v_mov_b32 v124, 0x{f2u(c1):08x}")
    for k in range(32): g(f"v_mov_b32 v{160+k}, 0")

def x_issue(g):
    g("s_lshl_b32 s62, s67, 10"); g("s_lshl_b32 s63, s3, 8"); g("s_add_u32 s62, s62, s63")
    for t in range(8):
        g(f"buffer_load_dwordx2 v[{96+2*t}:{97+2*t}], v122, s[56:59], s62 offen offset:{32*t}")

def x_finish(g):
    for t in range(8):
        for q in range(2):
            g(f"v_lshlrev_b32 v{128+4*t+2*q}, 16, v{96+2*t+q}")
            g(f"v_and_b32 v{128+4*t+2*q+1}, 0xffff0000, v{96+2*t+q}")

def ffn_issue(g):
    g(f"s_mul_i32 s62, s3, {128*2752}"); g("s_mul_i32 s63, s66, 96"); g("s_mov_b32 m0, s76"); g("s_add_u32 s62, s62, s63")
    for n in range(12):
        g(f"buffer_load_dwordx4 v{4+n%3}, s[44:47], s62 offen lds")
        g("s_addk_i32 m0, 0x3000"); g("s_nop 0")
        g(f"buffer_load_dwordx4 v{4+n%3}, s[48:51], s62 offen lds")
        if n < 11:
            g("s_addk_i32 m0, 0xd400")
            g(f"s_add_u32 s62, s62, {32*2752}" if n % 3 == 2 else "s_nop 0")
    g("s_mul_i32 s62, s66, 49152"); g("s_lshl_b32 s63, s3, 8"); g("s_add_u32 s62, s62, s63")
    for hb in range(2):
        for pos in range(3):
            g(f"s_add_u32 s63, s62, {(16*pos + 8*hb)*1024}")
            for q in range(2):
                r = 192 + 24*hb + 8*pos + 4*q
                g(f"buffer_load_dwordx4 v[{r}:{r+3}], v121, s[52:55], s63 offen offset:{(q if pos < 2 else q ^ 1)*1024}")

def ffn_finish(g):
    g("s_waitcnt vmcnt(36)")
    if g.o["fine2"]: g.stamp(3)
    x_finish(g)
    for s2 in range(2):
        g(f"s_waitcnt vmcnt({12 + 12*(1-s2)})")
        for t in range(6):
            for hb in range(2):
                for hv in range(2):
                    r = 48*s2+8*t+4*hb+2*hv
                    g(f"ds_read_b64_tr_b16 a[{r}:{r+1}], v125 offset:{(64*s2+8*hb+16*hv)*96+(t%3)*32+(t//3)*12288}")
    g("s_waitcnt lgkmcnt(0)")
    if g.o["fine2"]: g.stamp(4)
    for ks in range(4):
        for t in range(6):
            c = "0" if ks == 0 else f"v[{32+4*t}:{35+4*t}]"
            r = 48*(ks>>1)+8*t+4*(ks&1)
            g(f"{M16} v[{32+4*t}:{35+4*t}], v[24:27], a[{r}:{r+3}], {c}")
    g("s_waitcnt vmcnt(0)")
    if g.o["ec"]: g("buffer_load_dword v14, v13, s[4:7], s69 offen sc1")
    for hb in range(2):
        for t in range(8):
            R = lambda pos, q: 192 + 24*hb + 8*pos + 4*q + (t>>1)
            for q in range(2):
                g(f"v_perm_b32 v{64+2*q}, v{R(1,q)}, v{R(0,q)}, s{60+(t&1)}")
                g(f"v_perm_b32 v{65+2*q}, v{R(2,q)}, v{R(2,q)}, s{60+(t&1)}")
            for p in range(4): g(f"v_accvgpr_write_b32 a{96+8*t+4*hb+p}, v{64+p}")
        if hb == 0:
            g("ds_write2_b32 v120, v32, v36 offset0:0 offset1:1"); g("ds_write2_b32 v120, v40, v44 offset0:2 offset1:4"); g("ds_write2_b32 v120, v48, v52 offset0:5 offset1:6")
    if g.o["fine2"]: g.stamp(5)
    g("s_waitcnt lgkmcnt(0)")
    g("s_barrier")
    for w in range(4):
        g(f"ds_read_b128 v[{32+8*w}:{35+8*w}], v7 offset:{LDS_CS+512*w}"); g(f"ds_read_b128 v[{36+8*w}:{39+8*w}], v7 offset:{LDS_CS+512*w+16}")
    g(f"v_add_u32 v120, {LDS_GX-LDS_CS}, v120")
    g("s_waitcnt lgkmcnt(0)")
    for k in (0, 1, 2, 4, 5, 6):
        g(f"v_add_f32 v{32+k}, v{32+k}, v{40+k}"); g(f"v_add_f32 v{48+k}, v{48+k}, v{56+k}")
        g(f"v_add_f32 v{224+k}, v{32+k}, v{48+k}")

def ffn_issue2(g):
    g("s_mul_i32 s62, s66, 49152"); g("s_lshl_b32 s63, s3, 8"); g("s_add_u32 s62, s62, s63")
    for hb in range(2):
        for pos in range(3):
            g(f"s_add_u32 s63, s62, {(16*pos + 8*hb)*1024}")
            for q in range(2):
                r = 192 + 24*hb + 8*pos + 4*q
                g(f"buffer_load_dwordx4 v[{r}:{r+3}], v121, s[52:55], s63 offen offset:{(q if pos < 2 else q ^ 1)*1024}")
    g(f"s_mul_i32 s62, s3, {128*2752}"); g("s_mul_i32 s63, s66, 96"); g("s_mov_b32 m0, s76"); g("s_add_u32 s62, s62, s63")
    def dperm(hb, ts):
        for t in ts:
            R = lambda pos, q: 192 + 24*hb + 8*pos + 4*q + (t>>1)
            for q in range(2):
                g(f"v_perm_b32 v{64+2*q}, v{R(1,q)}, v{R(0,q)}, s{60+(t&1)}")
                g(f"v_perm_b32 v{65+2*q}, v{R(2,q)}, v{R(2,q)}, s{60+(t&1)}")
            for p in range(4): g(f"v_accvgpr_write_b32 a{96+8*t+4*hb+p}, v{64+p}")
    def trs(s2):
        for t in range(6):
            for hb in range(2):
                for hv in range(2):
                    r = 48*s2+8*t+4*hb+2*hv
                    g(f"ds_read_b64_tr_b16 a[{r}:{r+1}], v125 offset:{(64*s2+8*hb+16*hv)*96+(t%3)*32+(t//3)*12288}")
    def cs(s2):
        for hb in range(2):
            for t in range(6):
                c = "0" if s2 + hb == 0 else f"v[{32+4*t}:{35+4*t}]"
                r = 48*s2+8*t+4*hb
                g(f"{M16} v[{32+4*t}:{35+4*t}], v[24:27], a[{r}:{r+3}], {c}")
    for n in range(12):
        g(f"buffer_load_dwordx4 v{4+n%3}, s[44:47], s62 offen lds")
        g("s_addk_i32 m0, 0x3000"); g("s_nop 0")
        g(f"buffer_load_dwordx4 v{4+n%3}, s[48:51], s62 offen lds")
        if n < 11:
            g("s_addk_i32 m0, 0xd400")
            g(f"s_add_u32 s62, s62, {32*2752}" if n % 3 == 2 else "s_nop 0")
        k = 2*(n+1)
        if n == 2: g(f"s_waitcnt vmcnt({12+k})"); x_finish(g)
        if n == 4: g(f"s_waitcnt vmcnt({6+k})"); dperm(0, range(4))
        if n == 5: dperm(0, range(4, 8))
        if n == 6: g(f"s_waitcnt vmcnt({k})"); dperm(1, range(4))
        if n == 7: dperm(1, range(4, 8))
        if n == 10:
            g(f"s_waitcnt vmcnt({k-12})"); trs(0)
    g("s_waitcnt lgkmcnt(0)")
    cs(0)
    g("s_waitcnt vmcnt(0)")
    if g.o["ec"]: g("buffer_load_dword v14, v13, s[4:7], s69 offen sc1")
    trs(1)
    g("s_waitcnt lgkmcnt(0)")
    cs(1)
    g.nop(4)
    g("ds_write2_b32 v120, v32, v36 offset0:0 offset1:1"); g("s_nop 0"); g("ds_write2_b32 v120, v40, v44 offset0:2 offset1:4"); g("s_nop 0"); g("ds_write2_b32 v120, v48, v52 offset0:5 offset1:6")
    g("s_waitcnt lgkmcnt(0)")
    g("s_barrier")
    for w in range(4):
        g(f"ds_read_b128 v[{32+8*w}:{35+8*w}], v7 offset:{LDS_CS+512*w}"); g(f"ds_read_b128 v[{36+8*w}:{39+8*w}], v7 offset:{LDS_CS+512*w+16}")
    g(f"v_add_u32 v120, {LDS_GX-LDS_CS}, v120")
    g("s_waitcnt lgkmcnt(0)")
    for k in (0, 1, 2, 4, 5, 6):
        g(f"v_add_f32 v{32+k}, v{32+k}, v{40+k}"); g(f"v_add_f32 v{48+k}, v{48+k}, v{56+k}")
        g(f"v_add_f32 v{224+k}, v{32+k}, v{48+k}")

def ffn_stage(g):
    g(f"s_mov_b32 s65, {SPIN}")
    l = g.lab("fp"); e = g.lab("fpe")
    g(f"{l}:")
    for k in range(24): g(f"v_mov_b32 v{192+k}, 0")
    poll_loop(g, lambda: g("buffer_load_dword v14, v13, s[4:7], s69 offen sc1"), lambda: g("v_cmp_eq_u32 vcc, -1, v14"), spin=4*SPIN, sleep=g.o["fsleep"])
    g("L_FGO:")
    tile_dma(g, 69)
    if not g.o["cyc"]: g.stamp(7)
    g("s_waitcnt vmcnt(0)")
    tile_read(g, 32)
    for t in range(8):
        g(f"s_waitcnt lgkmcnt({14-2*t})")
        g(f"{M16} v[{64+4*t}:{67+4*t}], v[{32+4*t}:{35+4*t}], v[24:27], v[{128+4*t}:{131+4*t}]")
    def cv(t):
        g(f"v_cvt_pk_bf16_f32 v{96+2*t}, v{64+4*t}, v{65+4*t}")
        g(f"v_cvt_pk_bf16_f32 v{97+2*t}, v{66+4*t}, v{67+4*t}")
        g(f"v_cndmask_b32 v{216+t}, v{96+2*t}, v{97+2*t}, s[70:71]")
    def st(ks, which):
        A = f"v[{96+4*ks}:{99+4*ks}]"; d = 56 + 4*which
        c = "0" if ks == 0 else f"v[{d}:{d+3}]"
        g(f"{M16} v[{d}:{d+3}], {A}, {'v[24:27]' if which == 0 else A}, {c}")
    def sm(s2, t):
        g(f"{SMF} v[{192+4*t}:{195+4*t}], v[{216+4*s2}:{219+4*s2}], a[{48*s2+8*t}:{48*s2+8*t+7}], v29")
    for t in range(4): cv(t)
    st(0, 0); st(0, 1)
    cv(4); sm(0, 0); sm(0, 1); cv(5); sm(0, 2); sm(0, 3); cv(6); sm(0, 4); sm(0, 5); cv(7)
    st(1, 0); st(1, 1); st(2, 0); st(3, 0); st(2, 1); st(3, 1)
    g(f"s_cmp_ge_u32 s66, {NSL}"); g("s_cbranch_scc1 L_HPUB")
    for t in range(6): sm(1, t)
    g("s_sub_u32 s65, s65, 1"); g("s_cmp_eq_u32 s65, 0"); g(f"s_cbranch_scc1 {e}")
    g("v_cmp_u_f32 vcc, v56, v56")
    g(f"s_cbranch_vccnz {l}")
    g(f"{e}:")
    hp = ["L_HPUB:", "s_sub_u32 s65, s65, 1", "s_cmp_eq_u32 s65, 0", "s_cbranch_scc1 L_HPUB2", "s_nop 3", "v_cmp_u_f32 vcc, v56, v56", f"s_cbranch_vccnz {l}", "L_HPUB2:",
          "v_lshlrev_b32 v13, 4, v3", "s_mov_b32 s70, 0x00010001", "s_mov_b32 s71, 0x00010001", "s_mov_b64 exec, s[70:71]"] + \
         [f"buffer_store_dwordx4 v[{64+4*t}:{67+4*t}], v13, s[4:7], s74 offen offset:{64*t} sc1" for t in range(8)] + ["s_mov_b64 exec, -1", "s_branch L_fin"]
    g.slow += hp
    g("s_mov_b64 exec, 0xffff")
    g("ds_write2_b32 v120, v56, v60 offset0:3 offset1:7")
    for t in range(6):
        g(f"v_add_f32 v{192+4*t}, v{192+4*t}, v{193+4*t}")
        if t == 1: g("ds_write2_b32 v120, v192, v196 offset0:0 offset1:1")
        if t == 3: g("ds_write2_b32 v120, v200, v204 offset0:2 offset1:4")
    g("ds_write2_b32 v120, v208, v212 offset0:5 offset1:6")
    g("s_mov_b64 exec, -1")
    g("s_waitcnt lgkmcnt(0)")
    g("s_barrier")
    for w in range(4):
        g(f"ds_read_b128 v[{32+8*w}:{35+8*w}], v7 offset:{LDS_GX+512*w}"); g(f"ds_read_b128 v[{36+8*w}:{39+8*w}], v7 offset:{LDS_GX+512*w+16}")
    g("s_waitcnt lgkmcnt(4)")
    for k in (3, 7, 0, 1, 2, 4, 5, 6): g(f"v_add_f32 v{32+k}, v{32+k}, v{40+k}")
    g("s_waitcnt lgkmcnt(0)")
    for k in (3, 7): g(f"v_add_f32 v{48+k}, v{48+k}, v{56+k}")
    for k in (3, 7): g(f"v_add_f32 v{32+k}, v{32+k}, v{48+k}")
    rest = [f"v_add_f32 v{48+k}, v{48+k}, v{56+k}" for k in (0, 1, 2, 4, 5, 6)] + [f"v_add_f32 v{32+k}, v{32+k}, v{48+k}" for k in (0, 1, 2, 4, 5, 6)]
    chain = [f"v_mul_f32 v35, 0x{f2u(1/512):08x}, v35", f"v_mul_f32 v39, 0x{f2u(1/512):08x}, v39", "v_fma_f32 v39, -v35, v35, v39", "v_max_f32 v39, 0, v39",
             "v_cvt_pk_bf16_f32 v39, v35, v39", "v_lshlrev_b32 v35, 16, v39", "v_and_b32 v39, 0xffff0000, v39", f"v_add_f32 v39, 0x{f2u(1e-5):08x}, v39",
             "v_cvt_pk_bf16_f32 v39, v39, v39", "v_lshlrev_b32 v39, 16, v39", "v_sqrt_f32 v39, v39", None, "v_cvt_pk_bf16_f32 v39, v39, v39", "v_lshlrev_b32 v39, 16, v39", "v_rcp_f32 v39, v39"]
    for x in chain:
        if x: g(x)
        if rest: g(rest.pop(0))
    K6 = (0, 1, 2, 4, 5, 6)
    for k in K6: g(f"v_fma_f32 v{32+k}, -v35, v{224+k}, v{32+k}")
    for k in K6: g(f"v_mul_f32 v{32+k}, v39, v{32+k}")
    g("v_cvt_pk_bf16_f32 v40, v32, v33"); g("v_cvt_pk_bf16_f32 v41, v34, v38"); g("v_cvt_pk_bf16_f32 v42, v36, v37")
    g("v_lshlrev_b32 v32, 16, v40"); g("v_and_b32 v33, 0xffff0000, v40"); g("v_lshlrev_b32 v34, 16, v41")
    for k in range(3): g(f"v_mul_f32 v{44+k}, v{32+k}, v{32+k}")
    for k in range(3): g(f"v_fma_f32 v{44+k}, v{44+k}, s75, v124")
    for k in range(3): g(f"v_mul_f32 v{44+k}, v{44+k}, v{32+k}")
    for k in range(3): g(f"v_exp_f32 v{44+k}, v{44+k}")
    g("v_lshlrev_b32 v36, 16, v42")
    for k in range(3): g(f"v_add_f32 v{44+k}, 1.0, v{44+k}")
    for k in range(3): g(f"v_rcp_f32 v{44+k}, v{44+k}")
    g("v_and_b32 v37, 0xffff0000, v42"); g("v_and_b32 v38, 0xffff0000, v41")
    for k in range(3): g(f"v_mul_f32 v{44+k}, v{44+k}, v{32+k}")
    g("v_cvt_pk_bf16_f32 v40, v44, v45"); g("v_cvt_pk_bf16_f32 v41, v46, v46")
    g("v_lshlrev_b32 v44, 16, v40"); g("v_and_b32 v45, 0xffff0000, v40"); g("v_and_b32 v46, 0xffff0000, v41")
    for k in range(3): g(f"v_mul_f32 v{44+k}, v{44+k}, v{36+k}")
    g("v_cvt_pk_bf16_f32 v40, v44, v45"); g("v_cvt_pk_bf16_f32 v41, v46, v46")
    for p in range(4): g(f"v_and_b32 v{48+p}, v40, v{16+p}")
    for p in range(4): g(f"v_and_or_b32 v{48+p}, v41, v{20+p}, v{48+p}")
    g("v_cmp_ne_u32 vcc, 0, v3"); g("s_nop 0")
    for t in range(8):
        g(f"{SMF} v[{160+4*t}:{163+4*t}], v[48:51], a[{96+8*t}:{103+8*t}], v30")
    g.nop(1)
    for t in range(8):
        g(f"v_add_f32 v{160+4*t}, v{160+4*t}, v{161+4*t}"); g(f"v_add_f32 v{162+4*t}, v{162+4*t}, v{163+4*t}")
    for t in range(8):
        g(f"v_add_f32 v{160+4*t}, v{160+4*t}, v{162+4*t}")
    for q in range(4):
        g(f"v_cndmask_b32 v{32+q}, v{160+4*q}, v{176+4*q}, vcc")
    g("s_mov_b32 exec_hi, 0")
    g("buffer_store_dwordx4 v[32:35], v123, s[4:7], s74 offen sc1")
    g("s_mov_b64 exec, -1")
    g.stamp(8)

def tcu(g):
    opts = g.o; rep = opts["rep"]
    g("s_lshl_b32 s74, s72, 10"); g("s_lshl_b32 s62, s73, 8"); g("s_add_u32 s74, s74, s62"); g("s_lshl_b32 s62, s3, 6"); g("s_add_u32 s74, s74, s62")
    g("v_lshlrev_b32 v28, 15, v3"); g("v_lshl_add_u32 v28, v2, 2, v28")
    g("s_lshl_b32 s75, s73, 5"); g("s_add_u32 s75, s75, s72")
    g("v_lshlrev_b32 v29, 4, v0")
    g("s_lshl_b32 s76, s75, 12"); g(f"s_add_u32 s76, s76, {STAT}")
    g("v_lshlrev_b32 v4, 16, v3"); g("v_lshl_add_u32 v4, v2, 4, v4")
    g("s_lshl_b32 s66, s3, 20"); g("s_lshl_b32 s63, s72, 8"); g("s_add_u32 s66, s66, s63")
    for ks in range(4):
        g(f"s_xor_b32 s63, s73, {ks}"); g(f"s_lshl_b32 s63, s63, 18"); g(f"s_add_u32 s{52+ks}, s66, s63")
    g("v_lshlrev_b32 v5, 14, v2"); g("v_lshl_add_u32 v5, v3, 4, v5")
    g("s_lshl_b32 s78, s73, 20"); g("s_lshl_b32 s63, s3, 18"); g("s_add_u32 s78, s78, s63"); g("s_lshl_b32 s63, s72, 8"); g("s_add_u32 s78, s78, s63")
    g("s_add_u32 s79, s78, 8192")
    g("s_lshr_b32 s67, s42, 5" if opts["cu"] != 2 else "s_mov_b32 s67, 1")
    g("s_mov_b32 s14, 0x400000"); g("s_mov_b32 s15, 0x20000"); g("s_mov_b32 s58, 4096"); g("s_mov_b32 s59, 0x20000")
    g("s_mov_b32 s46, 0x400000"); g("s_mov_b32 s47, 0x20000")
    g("s_waitcnt lgkmcnt(0)")
    g("s_mov_b32 s56, s16"); g("s_and_b32 s57, s17, 0xffff"); g("s_mov_b32 s12, s20"); g("s_and_b32 s13, s21, 0xffff")
    def wq(ks):
        for e in range(8):
            g(f"s_add_u32 s63, s{52+ks}, {e*8192}")
            r = 32 + 32*ks + 4*e
            g(f"buffer_load_dwordx4 v[{r}:{r+3}], v4, s[12:15], s63 offen")
    g("buffer_load_dwordx4 v[8:11], v29, s[56:59], 0 offen")
    wq(0)
    g("s_mov_b32 s44, s22"); g("s_and_b32 s45, s23, 0xffff")
    cu = opts["cu"]
    def wuk():
        for tt in range(2):
            for ks in range(4):
                r = 160 + 16*tt + 4*ks
                g(f"buffer_load_dwordx4 v[{r}:{r+3}], v5, s[44:47], s{78+tt} offen offset:{64*ks}")
    def ifcls(cls, fn):
        if not cu:
            if not cls: fn()
            return
        l = g.lab("ic")
        g("s_cmp_eq_u32 s67, 1"); g(f"s_cbranch_scc{0 if cls else 1} {l}")
        fn()
        g(f"{l}:")
    def wait2(n_norm, n_cls, extra=""):
        lo, hi = min(n_norm, n_cls), max(n_norm, n_cls)
        if not cu: g(f"s_waitcnt vmcnt({n_norm}){extra}"); return
        g(f"s_waitcnt vmcnt({hi}){extra}")
        if lo != hi: ifcls(n_cls == lo, lambda: g(f"s_waitcnt vmcnt({lo})"))
    g("s_barrier")
    ifcls(False, wuk)
    g.srd(4, 40, WS); g.srd(8, 38, 256)
    for k in range(4): g(f"v_mov_b32 v{24+k}, -1")
    g("buffer_store_dwordx4 v[24:27], v29, s[4:7], s76 offen sc1")
    g("v_lshlrev_b32 v30, 3, v0"); g(f"s_lshl_b32 s62, s42, 11"); g(f"s_add_u32 s62, s62, {FPART}")
    g("buffer_store_dwordx2 v[24:25], v30, s[4:7], s62 offen sc1")
    if rep:
        g(f"s_lshl_b32 s62, s42, 13"); g(f"s_add_u32 s62, s62, {APART}"); g("s_add_u32 s63, s62, 4096")
        g("buffer_store_dwordx4 v[24:27], v29, s[4:7], s62 offen sc1"); g("buffer_store_dwordx4 v[24:27], v29, s[4:7], s63 offen sc1")
        nst = 4
    else:
        g("v_lshlrev_b32 v30, 2, v0"); g(f"s_lshl_b32 s62, s42, 10"); g(f"s_add_u32 s62, s62, {APART}")
        g("buffer_store_dword v24, v30, s[4:7], s62 offen sc1")
        nst = 3
    g("s_mul_i32 s62, s3, 1040"); g("v_lshlrev_b32 v6, 4, v1"); g("v_add_u32 v6, s62, v6")
    g("v_and_b32 v7, 3, v2"); g("v_mul_u32_u24 v7, 1040, v7"); g("v_lshl_add_u32 v7, v3, 4, v7")
    g("s_lshl_b32 s62, s3, 8"); g("v_add_u32 v7, s62, v7")
    wait2(16+nst, 8+nst)
    for q in range(4):
        g(f"v_lshlrev_b32 v{12+2*q}, 16, v{8+q}"); g(f"v_and_b32 v{13+2*q}, 0xffff0000, v{8+q}")
    g("v_add_f32 v20, v12, v13"); g("v_add_f32 v21, v14, v15"); g("v_add_f32 v22, v16, v17"); g("v_add_f32 v23, v18, v19")
    g("v_add_f32 v20, v20, v21"); g("v_add_f32 v22, v22, v23"); g("v_add_f32 v20, v20, v22")
    g.allred("v_add_f32", 20, 21)
    g(f"v_mul_f32 v20, 0x{f2u(1/512):08x}, v20")
    g("v_sub_f32 v22, v12, v20"); g("v_mul_f32 v21, v22, v22")
    for k in range(1, 8):
        g(f"v_sub_f32 v22, v{12+k}, v20"); g("v_fmac_f32 v21, v22, v22")
    g.allred("v_add_f32", 21, 22)
    g(f"v_mul_f32 v21, 0x{f2u(1/512):08x}, v21")
    g.bf16r(20, 20); g.bf16r(21, 21)
    g(f"v_add_f32 v21, 0x{f2u(1e-5):08x}, v21"); g.bf16r(21, 21)
    g("v_sqrt_f32 v21, v21"); g("s_nop 0"); g.bf16r(21, 21)
    g("v_rcp_f32 v21, v21")
    for k in range(8): g(f"v_sub_f32 v{12+k}, v{12+k}, v20")
    for q in range(4): g(f"v_cvt_pk_bf16_f32 v{8+q}, v{12+2*q}, v{13+2*q}")
    for q in range(4):
        g(f"v_lshlrev_b32 v{12+2*q}, 16, v{8+q}"); g(f"v_and_b32 v{13+2*q}, 0xffff0000, v{8+q}")
    for k in range(8): g(f"v_mul_f32 v{12+k}, v{12+k}, v21")
    for q in range(4): g(f"v_cvt_pk_bf16_f32 v{8+q}, v{12+2*q}, v{13+2*q}")
    g(f"ds_write_b128 v6, v[8:11] offset:{LDS_XN}")
    g("v_mov_b32 v30, 0")
    wait2(8+nst, nst, " lgkmcnt(0)")
    g.stamp(1)
    wq(1)
    g("s_barrier")
    for ks in range(4):
        g(f"s_xor_b32 s63, s73, {ks}"); g("s_lshl_b32 s63, s63, 6"); g("v_add_u32 v6, s63, v7")
        g(f"ds_read_b128 v[{8+4*ks}:{11+4*ks}], v6 offset:{LDS_XN}")
    wq(2)
    g("s_mul_i32 s62, s3, 272"); g("v_lshlrev_b32 v6, 4, v2"); g("v_add_u32 v6, s62, v6")
    g("v_mul_u32_u24 v7, 272, v2"); g("v_lshl_add_u32 v7, v3, 4, v7")
    for ks in range(4):
        if ks == 1: wq(3)
        if ks == 2: ifcls(True, wuk)
        if ks: wait2(8*(3-ks) + (1 if ks == 3 else 0), 8*(3-ks) + (1 if ks == 3 else 0) + (8 if ks >= 2 else 0))
        if ks == 2: g("buffer_load_dword v31, v30, s[8:11], 0 offen sc1")
        if ks == 3: g.stamp(7)
        R = 32+32*ks
        if ks == 0: g("s_waitcnt lgkmcnt(0)")
        def pm(t):
            for p in range(4):
                g(f"v_perm_b32 v{192+4*t+p}, v{R+4*(2*p+1)+(t>>1)}, v{R+4*(2*p)+(t>>1)}, s{60+(t&1)}")
        pm(0)
        for t in range(8):
            if t < 7: pm(t+1)
            else: g("s_nop 0")
            c = "0" if ks == 0 else f"v[{224+4*t}:{227+4*t}]"
            g(f"{M16} v[{224+4*t}:{227+4*t}], v[{8+4*ks}:{11+4*ks}], v[{192+4*t}:{195+4*t}], {c}")
    for p in range(4):
        for b in range(4):
            g(f"v_cvt_pk_bf16_f32 v{8+4*b+p}, v{224+8*p+b}, v{228+8*p+b}")
    g("s_mov_b64 exec, 0xffff")
    for b in range(4):
        g(f"ds_write_b128 v6, v[{8+4*b}:{11+4*b}] offset:{LDS_QX+4*272*b}")
    g("s_mov_b64 exec, -1")
    g("s_waitcnt lgkmcnt(0)")
    g("s_barrier")
    for ks in range(4):
        g(f"ds_read_b128 v[{8+4*ks}:{11+4*ks}], v7 offset:{LDS_QX+64*ks}")
    if cu: g("s_waitcnt vmcnt(1)")
    for ks in range(4):
        g(f"s_waitcnt lgkmcnt({3-ks})")
        for tt in range(2):
            c = "0" if ks == 0 else f"v[{224+4*tt}:{227+4*tt}]"
            g(f"{M16} v[{224+4*tt}:{227+4*tt}], v[{8+4*ks}:{11+4*ks}], v[{160+16*tt+4*ks}:{163+16*tt+4*ks}], {c}")
    g("s_waitcnt vmcnt(0)")
    g("v_cmp_ne_u32 vcc, 16, v31")
    g.srd(12, 18, 32 << 20)
    g("v_lshlrev_b32 v4, 7, v1"); g("s_lshr_b32 s62, s42, 5")
    for tt in range(2):
        r = 224 + 4*tt
        g(f"v_add_f32 v{r}, v{r}, v{r+1}"); g(f"v_add_f32 v{r+2}, v{r+2}, v{r+3}")
    for tt in range(2):
        r = 224 + 4*tt
        g(f"v_add_f32 v{r}, v{r}, v{r+2}")
    for tt in range(2):
        r = 224 + 4*tt
        g(f"v_mul_f32 v{r}, 0x{f2u(SCALE):08x}, v{r}")
    g("v_cvt_pk_bf16_f32 v8, v224, v228")
    g("s_cbranch_vccz L_T_c0ok")
    cnt_wait(g, 31, 30)
    g("L_T_c0ok:")
    g("buffer_store_dword v8, v28, s[4:7], s74 offen sc1")
    if opts["pb"] == 2: g("s_waitcnt vmcnt(0)")
    if opts["pb"]: g("s_barrier")
    g.stamp(2)
    g("s_lshl_b32 s62, s62, 23"); g("s_and_b32 s63, s42, 31"); g("s_lshl_b32 s63, s63, 15"); g("s_add_u32 s62, s62, s63")
    g("s_lshl_b32 s63, s3, 13"); g("s_add_u32 s62, s62, s63")
    nc = opts["cls"]
    if nc:
        g("s_lshr_b32 s64, s42, 5")
        g("s_cmp_eq_u32 s64, 1"); g("s_cbranch_scc1 L_T_pfc")
        g("s_and_b32 s65, s42, 31"); g("s_lshl_b32 s65, s65, 15"); g(f"s_add_u32 s65, s65, {0x800000}")
        g("s_sub_u32 s67, s64, 1"); g("s_max_i32 s67, s67, 0"); g("s_lshl_b32 s67, s67, 2"); g("s_add_u32 s67, s67, s3")
        g(f"s_mul_i32 s67, s67, {22*128}"); g(f"s_min_u32 s67, s67, {(256-22)*128}"); g("s_add_u32 s65, s65, s67")
    plist = ([3, 4, 5, 6, 7] if opts["p5"] else [3, 5, 6, 7]) if opts["mix"] else [4, 5, 6, 7]
    def taddr(base, i):
        if opts["rot"]:
            g(f"s_add_u32 s63, s{base}, {(opts['rot']*i*32768) & 0xfffff}"); g("s_and_b32 s63, s63, 0xfffff")
            g(f"s_andn2_b32 s64, s{base}, 0xfffff"); g("s_or_b32 s63, s63, s64"); g(f"s_add_u32 s63, s63, {i*TS}")
        else: g(f"s_add_u32 s63, s{base}, {i*TS}")
    for n_, i in enumerate(plist):
        if nc and n_ == nc: g("L_T_pfc:")
        taddr(62, i)
        if opts["po"] and n_ == len(plist) - 1:
            g("s_mov_b32 s77, s63"); g("v_mov_b32 v109, v4"); g.srd(56, 18, 32 << 20)
            continue
        g(f"buffer_load_dword v31, v4, s[12:15], s63 offen {opts['pflag']}")
        if n_ < opts["pf1"]: g("s_waitcnt vmcnt(0)")
        if n_ >= 1 and n_ <= opts["pf2"]: g("s_waitcnt vmcnt(1)")
        if n_ < nc:
            taddr(65, i)
            g("s_mov_b64 exec, 0x3fffff")
            g(f"buffer_load_dword v31, v4, s[12:15], s63 offen {opts['pflag']}")
            g("s_mov_b64 exec, -1")
    g.srd(12, 24, 4 << 20); g.srd(44, 26, 4 << 20)
    for ks in range(4):
        g(f"s_xor_b32 s63, s73, {ks}"); g("s_lshr_b32 s62, s63, 1"); g("s_lshl_b32 s62, s62, 19"); g("s_and_b32 s63, s63, 1"); g("s_lshl_b32 s63, s63, 16")
        g(f"s_add_u32 s{52+ks}, s66, s62"); g(f"s_add_u32 s{52+ks}, s{52+ks}, s63")
    g("v_and_b32 v6, 1, v3"); g("v_lshrrev_b32 v7, 1, v3")
    g("v_lshlrev_b32 v4, 18, v6"); g("v_lshl_add_u32 v4, v7, 15, v4"); g("v_lshl_add_u32 v4, v2, 4, v4")
    g("v_lshlrev_b32 v5, 14, v7"); g("v_lshl_add_u32 v5, v6, 12, v5"); g("v_lshl_add_u32 v5, v2, 4, v5")
    g("s_lshl_b32 s79, s72, 17"); g("s_lshl_b32 s63, s3, 8"); g("s_add_u32 s79, s79, s63")
    order = [[0, 4, 5, 6, 7, 1, 2, 3], [0, 4, 1, 5, 2, 6, 3, 7], [0, 4, 1, 2, 3, 5, 6, 7]][opts["tord"]]
    bufs = [192, 224, 64, 32][:opts["nb"]]
    NB = len(bufs)
    def tw_issue(i):
        n = order[i]; ks = n & 3
        if n >= 4:
            g(f"s_xor_b32 s62, s73, {ks}"); g("s_lshl_b32 s62, s62, 15"); g("s_add_u32 s62, s62, s79"); g("s_add_u32 s63, s62, 0x2000")
        for e in range(8):
            r = bufs[i % NB] + 4*e
            if n < 4:
                g(f"s_add_u32 s63, s{52+ks}, {(16*(e>>2)+(e&3))*8192}")
                g(f"buffer_load_dwordx4 v[{r}:{r+3}], v4, s[12:15], s63 offen")
            else:
                g(f"buffer_load_dwordx4 v[{r}:{r+3}], v5, s[44:47], s{62+((e>>1)&1)} offen offset:{(2*(e>>2)+(e&1))*1024}")
    issued = 2
    tw_issue(0)
    if opts["po"] == 1: g("buffer_load_dword v31, v109, s[56:59], s77 offen")
    tw_issue(1)
    if opts["po"] == 2: g("buffer_load_dword v31, v109, s[56:59], s77 offen")
    tf = opts["tf"]
    def ftouch():
        g.srd(48, 30, 512*2752); g.srd(56, 32, 512*2752); g.srd(8, 34, 1376*1024)
        g("v_lshrrev_b32 v109, 2, v1"); g("v_mul_u32_u24 v109, 2752, v109"); g("v_and_b32 v110, 3, v1"); g("v_lshlrev_b32 v110, 7, v110"); g("v_min_u32 v110, 380, v110"); g("v_add_u32 v109, v109, v110")
        g("v_lshlrev_b32 v110, 7, v1")
        g("s_lshr_b32 s62, s42, 3"); g("s_lshl_b32 s62, s62, 2"); g("s_add_u32 s62, s62, s3"); g("s_and_b32 s64, s42, 7")
        g(f"s_mul_i32 s63, s62, {8*2752}"); g("s_mul_i32 s65, s64, 384"); g("s_add_u32 s63, s63, s65")
        g("s_mov_b32 exec_hi, 0")
        if opts["tm"] & 1: g("buffer_load_dword v111, v109, s[48:51], s63 offen")
        if opts["tm"] & 2: g("buffer_load_dword v111, v109, s[56:59], s63 offen")
        g("s_mul_i32 s63, s62, 3072"); g("s_mul_i32 s65, s64, 196608"); g("s_add_u32 s63, s63, s65")
        g("s_mov_b32 exec_lo, 0xffffff")
        if opts["tm"] & 4: g("buffer_load_dword v111, v110, s[8:11], s63 offen")
        g("s_mov_b64 exec, -1")
    tf_after = None
    if tf == 0: ftouch(); tf_after = issued
    g.stamp(1)
    tile_setup(g, True)
    g("s_lshl_b32 s69, s75, 15"); g("s_lshl_b32 s63, s3, 8"); g("s_add_u32 s69, s69, s63"); g(f"s_add_u32 s69, s69, {OPART}")
    g("v_and_b32 v13, 31, v1"); g("v_lshlrev_b32 v14, 7, v13")
    g("s_lshl_b32 s62, s3, 6"); g("v_lshlrev_b32 v13, 1, v13"); g("v_add_u32 v13, s62, v13")
    g("v_lshlrev_b32 v15, 4, v3"); g("v_add_u32 v15, s62, v15")
    g("s_mul_i32 s62, s3, 272"); g("v_lshlrev_b32 v120, 4, v2"); g("v_add_u32 v121, s62, v120")
    g("v_bfe_u32 v10, v2, 2, 1"); g("v_lshlrev_b32 v11, 5, v3"); g("v_lshl_add_u32 v11, v10, 4, v11")
    g("s_lshl_b32 s62, s73, 6"); g("v_xor_b32 v11, s62, v11"); g("v_xor_b32 v12, 0x80, v11")
    g("v_and_b32 v122, 3, v2"); g("v_mul_u32_u24 v122, 272, v122"); g("v_add_u32 v123, v122, v12"); g("v_add_u32 v122, v122, v11")
    g("v_mul_u32_u24 v30, 0xaaaa, v10"); g("v_or_b32 v30, 0x4444, v30")
    g("v_lshl_add_u32 v120, v6, 3, v120")
    if rep: g("v_lshl_add_u32 v120, v7, 17, v120")
    g("s_lshl_b32 s78, s75, 10"); g("s_lshl_b32 s63, s3, 8"); g("s_add_u32 s78, s78, s63"); g(f"s_add_u32 s78, s78, {APART}")
    for k in range(64): g(f"v_mov_b32 v{128+k}, 0")
    def pbody():
        g("buffer_load_dwordx2 v[106:107], v14, s[4:7], s76 offen sc1")
    def cond():
        g("v_max_u32 v108, v106, v107"); g("v_cmp_eq_u32 vcc, -1, v108")
    pp = opts["pp"]
    for i in range(8):
        extra = (1 if (i > pp and i < 7) else 0) + (bin(opts["tm"]).count("1") if (tf_after is not None and i < tf_after) else 0)
        if opts["po"] and i < opts["po"]: extra += 1
        g(f"s_waitcnt vmcnt({8*(issued-1-i) + extra})")
        if i == 0: g.stamp(7)
        if i == 1: g.stamp(9)
        lim = min(8, i + NB) if i >= 1 else issued
        while issued < lim:
            tw_issue(issued); issued += 1
        if tf > 0 and i == tf - 1: ftouch(); tf_after = issued
        if i == pp:
            assert issued == 8
            pbody()
        if i == 7:
            g.stamp(3)
            cond()
            g("s_cbranch_vccnz L_T_nd")
            tile_dma(g, 69)
            g("L_T_nd:")
        R = bufs[i % NB]; n = order[i]; ks = n & 3
        acc = 128*(n>>2) + 64*(ks>>1) + 4*(ks&1)
        for t in range(8):
            for p in range(4):
                g(f"v_perm_b32 v{16+p+4*(t&1)}, v{R+4*(2*p+1)+(t>>1)}, v{R+4*(2*p)+(t>>1)}, s{60+(t&1)}")
            for p in range(4):
                g(f"v_accvgpr_write_b32 a{acc+8*t+p}, v{16+p+4*(t&1)}")
    g("s_cbranch_vccz L_T_go")
    poll_loop(g, pbody, cond, spin=4*SPIN, sleep=opts["tsleep"])
    tile_dma(g, 69)
    g("L_T_go:")
    g.stamp(4)
    g("v_mov_b32 v34, v106")
    g.allred("v_max_f32", 34, 35, 32)
    g("v_sub_f32 v34, v106, v34"); g("v_cvt_i32_f32 v34, v34"); g("v_ldexp_f32 v34, 1.0, v34")
    g(f"ds_write_b16_d16_hi v13, v34 offset:{LDS_FX}")
    g("v_mul_f32 v31, v34, v107")
    g(f"ds_read_b128 v[24:27], v15 offset:{LDS_FX}")
    g.allred("v_add_f32", 31, 35, 32)
    g("v_rcp_f32 v31, v31")
    g(f"s_mov_b32 s64, {SPIN}")
    g("L_T_pay:")
    g("s_waitcnt vmcnt(0) lgkmcnt(0)")
    g.stamp(5)
    tile_read(g, 32)
    for t in range(8):
        g(f"s_waitcnt lgkmcnt({14-2*t})" if not opts.get("stamps") else "s_waitcnt lgkmcnt(0)")
        g(f"{M16} v[{64+4*t}:{67+4*t}], v[{32+4*t}:{35+4*t}], v[24:27], 0")
    def cv(t):
        g(f"v_cvt_pk_bf16_f32 v{96+t}, v{64+4*t}, v{65+4*t}")
        g(f"v_cvt_pk_bf16_f32 v{104+(t&1)}, v{66+4*t}, v{67+4*t}")
        g(f"v_cndmask_b32 v{96+t}, v{96+t}, v{104+(t&1)}, s[70:71]")
    for t in range(5): cv(t)
    for t in range(8):
        g(f"{SMF} v[{128+4*t}:{131+4*t}], v[96:99], a[{8*t}:{8*t+7}], v29")
        if t in (0, 2, 4): cv(5 + t//2)
    for t in range(8):
        g(f"{SMF} v[{128+4*t}:{131+4*t}], v[100:103], a[{64+8*t}:{64+8*t+7}], v29")
    g.nop(1)
    for t in range(8):
        g(f"v_add_f32 v{128+4*t}, v{128+4*t}, v{129+4*t}")
        if t == 1 and opts["oi"]: g("v_cmp_u_f32 vcc, v128, v128")
    if opts["oi"]:
        g("s_cbranch_vccnz L_T_retry")
        g("L_T_ok:")
        gl = g.L; g.L = []
        g("L_T_retry:")
        g("s_sub_u32 s64, s64, 1"); g("s_cmp_eq_u32 s64, 0"); g("s_cbranch_scc1 L_T_ok")
        tile_dma(g, 69)
        for k in range(32): g(f"v_mov_b32 v{128+k}, 0")
        g("s_branch L_T_pay")
        g.slow0 = g.L; g.L = gl
    for t in range(8):
        g(f"v_mul_f32 v{128+4*t}, v31, v{128+4*t}")
    for p in range(4):
        g(f"v_cvt_pk_bf16_f32 v{64+p}, v{128+8*p}, v{132+8*p}")
    g("s_mov_b64 exec, 0xffff")
    g(f"ds_write_b128 v121, v[64:67] offset:{LDS_CX}")
    g("s_mov_b64 exec, -1")
    g("s_waitcnt lgkmcnt(0)")
    g("s_barrier")
    for s2 in range(2):
        g(f"ds_read_b128 v[{96+4*s2}:{99+4*s2}], v{122+s2} offset:{LDS_CX}")
    for s2 in range(2):
        g(f"s_waitcnt lgkmcnt({1-s2})")
        for t in (0, 4, 1, 5, 2, 6, 3, 7):
            g(f"{SMF} v[{160+4*t}:{163+4*t}], v[{96+4*s2}:{99+4*s2}], a[{128+64*s2+8*t}:{128+64*s2+8*t+7}], v30")
    g.nop(1)
    for t in (0, 4, 1, 5, 2, 6, 3, 7):
        g(f"v_add_f32 v{160+4*t}, v{160+4*t}, v{161+4*t}"); g(f"v_add_f32 v{162+4*t}, v{162+4*t}, v{163+4*t}")
    for t in (0, 4, 1, 5, 2, 6, 3, 7):
        g(f"v_add_f32 v{160+4*t}, v{160+4*t}, v{162+4*t}")
    for t in range(4): g(f"v_permlane16_swap_b32 v{160+4*t}, v{176+4*t}")
    for t in range(4): g(f"v_add_f32 v{160+4*t}, v{160+4*t}, v{176+4*t}")
    g("v_cvt_pk_bf16_f32 v64, v160, v164"); g("v_cvt_pk_bf16_f32 v65, v168, v172")
    if rep:
        for c in range(4):
            g("buffer_store_dwordx2 v[64:65], v120, s[4:7], s78 offen sc1")
            if c < 3: g("s_add_u32 s78, s78, 0x40000")
    else:
        g("s_mov_b32 exec_hi, 0")
        g("buffer_store_dwordx2 v[64:65], v120, s[4:7], s78 offen sc1")
        g("s_mov_b64 exec, -1")
    g.stamp(6)
    g("s_cmp_lt_u32 s43, 16"); g("s_cbranch_scc1 L_fin")
    g("s_cmp_lg_u32 s3, 0"); g("s_cbranch_scc1 L_fin")
    g.srd(12, 36, 4096)
    g("v_lshrrev_b32 v4, 3, v1"); g("v_and_b32 v5, 7, v1")
    g("v_lshlrev_b32 v6, 11, v4"); g("v_lshl_add_u32 v6, v5, 4, v6")
    g(f"v_mov_b32 v7, {OOB}")
    g("v_cmp_gt_u32 vcc, 5, v4"); g("s_nop 1"); g("v_cndmask_b32 v7, v7, v6, vcc")
    g("v_lshlrev_b32 v8, 4, v5"); g("v_lshlrev_b32 v10, 3, v5")
    g(f"s_lshl_b32 s62, s73, 16"); g("s_sub_u32 s65, s43, 16"); g("s_lshl_b32 s63, s65, 7"); g("s_add_u32 s62, s62, s63"); g(f"s_add_u32 s62, s62, {FPART}")
    g("s_lshl_b32 s74, s73, 10"); g("s_lshl_b32 s63, s65, 6"); g("s_add_u32 s74, s74, s63")
    for n in range(1, 4): g(f"s_add_u32 s{75+n}, s62, {n*16384}")
    g(f"s_add_u32 s79, s62, {31*2048}")
    def body():
        for n in range(4):
            g(f"buffer_load_dwordx4 v[{32+4*n}:{35+4*n}], v{6 if n < 3 else 7}, s[4:7], s{62 if n == 0 else 75+n} offen sc1")
        g("buffer_load_dwordx4 v[56:59], v8, s[4:7], s79 offen sc1")
    def cond2():
        for k in range(4):
            g(f"v_add_f32 v{32+k}, v{32+k}, v{36+k}"); g(f"v_add_f32 v{40+k}, v{40+k}, v{44+k}")
        for k in range(4): g(f"v_add_f32 v{32+k}, v{32+k}, v{40+k}")
        g("v_add_f32 v40, v56, v57"); g("v_add_f32 v41, v58, v59"); g("v_add_f32 v42, v32, v33"); g("v_add_f32 v43, v34, v35")
        g("v_add_f32 v40, v40, v41"); g("v_add_f32 v42, v42, v43")
        g("v_cmp_u_f32 vcc, v40, v42")
    poll_loop(g, body, cond2, spin=4*SPIN, sleep=0)
    g.stamp(8)
    for k in range(4):
        g(f"v_add_f32_dpp v{32+k}, v{32+k}, v{32+k} row_ror:8 row_mask:0xf bank_mask:0xf")
    g("v_cvt_pk_bf16_f32 v44, v56, v57"); g("v_cvt_pk_bf16_f32 v45, v58, v59")
    for sw in ("v_permlane16_swap_b32", "v_permlane32_swap_b32"):
        for k in range(4): g(f"v_mov_b32 v{36+k}, v{32+k}")
        g("s_nop 0")
        for k in range(4): g(f"{sw} v{32+k}, v{36+k}")
        for k in range(4): g(f"v_add_f32 v{32+k}, v{32+k}, v{36+k}")
    g("v_cvt_pk_bf16_f32 v36, v32, v33"); g("v_cvt_pk_bf16_f32 v37, v34, v35")
    for q in range(2):
        g(f"v_lshlrev_b32 v{32+2*q}, 16, v{36+q}"); g(f"v_and_b32 v{33+2*q}, 0xffff0000, v{36+q}")
        g(f"v_lshlrev_b32 v{40+2*q}, 16, v{44+q}"); g(f"v_and_b32 v{41+2*q}, 0xffff0000, v{44+q}")
    for k in range(4): g(f"v_add_f32 v{32+k}, v{32+k}, v{40+k}")
    g("v_cvt_pk_bf16_f32 v36, v32, v33"); g("v_cvt_pk_bf16_f32 v37, v34, v35")
    g("s_mov_b64 exec, 0xff")
    g("buffer_store_dwordx2 v[36:37], v10, s[12:15], s74 offen" + (" sc0 sc1" if opts["osc"] else ""))
    g("s_mov_b64 exec, -1")
    g.stamp(10)
    g("s_branch L_fin")

QD = 8
def qreg(s):
    return f"v[{224+4*s}:{227+4*s}]" if s < QD else f"a[{128+4*(s-QD)}:{131+4*(s-QD)}]"

class Lds:
    def __init__(s, g): s.g = g; s.n = 0; s.done = 0
    def op(s, txt): s.g(txt); s.n += 1; return s.n
    def wait(s, i):
        if i <= s.done: return
        k = min(14, s.n - i); s.g(f"s_waitcnt lgkmcnt({k})"); s.done = s.n - k
    def all(s): s.wait(s.n)

def acu(g):
    fine = g.o["fine"]
    ea = ["v_and_b32 v8, 7, v5", "v_lshlrev_b32 v9, 1, v6", "v_xor_b32 v8, v8, v9", "v_lshlrev_b32 v208, 10, v5", "v_lshl_add_u32 v208, v8, 4, v208",
          "s_lshl_b32 s62, s3, 8", "v_add_u32 v208, s62, v208"] + [f"v_xor_b32 v{208+k}, {((4*(k>>1))|(k&1))<<4}, v208" for k in range(1, 4)] + \
         ["v_lshrrev_b32 v8, 3, v1", "v_and_b32 v9, 7, v1", "v_lshlrev_b32 v212, 10, v8", "v_lshl_add_u32 v212, v9, 4, v212", "v_add_u32 v212, s62, v212",
          "v_lshlrev_b32 v214, 12, v8", "v_lshl_add_u32 v214, v9, 4, v214", "v_xor_b32 v9, v9, v8", "v_lshlrev_b32 v213, 15, v8", "v_lshl_add_u32 v213, v9, 4, v213",
          "s_lshl_b32 s63, s3, 5", "v_lshl_add_u32 v215, v8, 2, s63",
          "s_lshl_b32 s65, s74, 20", "s_lshl_b32 s63, s75, 10", "s_add_u32 s65, s65, s63", "s_add_u32 s65, s65, s62", f"s_add_u32 s65, s65, {OPART}",
          "s_lshl_b32 s79, s74, 17", "s_lshl_b32 s63, s75, 7", "s_add_u32 s79, s79, s63", f"s_add_u32 s79, s79, {STAT}", "s_lshl_b32 s63, s3, 15", "s_add_u32 s79, s79, s63"]
    g("v_lshlrev_b32 v4, 4, v1")
    g("s_lshr_b32 s74, s42, 5"); g("s_and_b32 s75, s42, 31")
    g("s_lshl_b32 s76, s74, 23"); g("s_lshl_b32 s77, s75, 15"); g("s_add_u32 s76, s76, s77")
    g("s_lshl_b32 s77, s3, 13"); g("s_add_u32 s76, s76, s77")
    g("s_and_b32 s62, s3, 1"); g("s_lshl_b32 s62, s62, 5"); g("v_xor_b32 v7, s62, v4")
    for r in range(8):
        g(f"v_xor_b32 v{160+r}, {(fswz(r)<<4) | ((r>>2)<<12)}, v7")
    g(f"s_add_u32 s62, s77, {LQ}"); g("v_add_u32 v15, s62, v7")
    def dma_ops(slot, cf=g.o["cf0"]):
        ops = []
        for r in range(8):
            pre = []
            if r == 0: pre = [f"s_add_u32 m0, s77, {slot*32768}", "s_nop 0"]
            if r == 4: pre = ["s_addk_i32 m0, 0x1000", "s_nop 0"]
            post = ([f"s_add_u32 s69, s76, {g.o['rot']*32768}", "s_and_b32 s69, s69, 0xfffff", "s_andn2_b32 s76, s76, 0xfffff", "s_or_b32 s76, s76, s69"] if g.o["rot"] else []) + [f"s_add_u32 s76, s76, {TS}"] if r == 7 else []
            ops.append(pre + [f"buffer_load_dwordx4 v{160+r}, s[12:15], s76 offen offset:{(r&3)*1024} {cf} lds"] + post)
        return ops
    def dma_tile(slot):
        for o in dma_ops(slot):
            for x in o: g(x)
    def setup():
        g("v_and_b32 v5, 31, v1"); g("v_lshrrev_b32 v6, 5, v1")
        g("v_and_b32 v8, 3, v5"); g("v_lshlrev_b32 v8, 2, v8"); g("v_bfe_u32 v9, v5, 2, 2"); g("v_or_b32 v8, v8, v9"); g("v_xor_b32 v8, v8, v6")
        g("v_lshlrev_b32 v10, 10, v5"); g("v_lshl_add_u32 v10, v8, 4, v10")
        g(f"v_add_u32 v11, {LQ}, v10")
        g("s_lshl_b32 s62, s3, 15"); g("v_add_u32 v10, s62, v10")
        for k in range(8): g(f"v_xor_b32 v{16+k}, {k<<5}, v10")
        for k in range(8): g(f"v_xor_b32 v{128+k}, {k<<5}, v11")
        g("v_bfe_u32 v8, v1, 2, 2")
        g("v_lshl_add_u32 v9, v6, 2, v8"); g("v_lshlrev_b32 v12, 10, v9")
        g("v_and_b32 v9, 1, v1"); g("v_lshlrev_b32 v9, 1, v9"); g("v_bfe_u32 v13, v1, 4, 1"); g("v_or_b32 v9, v9, v13")
        g("v_lshl_add_u32 v13, v8, 2, v6"); g("v_xor_b32 v9, v9, v13")
        g("v_lshl_add_u32 v12, v9, 4, v12")
        g("v_bfe_u32 v9, v1, 1, 1"); g("v_lshl_add_u32 v12, v9, 3, v12")
        g("s_lshl_b32 s62, s3, 8"); g("v_add_u32 v12, s62, v12")
        for ct in range(4):
            for hv in range(2):
                g(f"v_xor_b32 v{24+2*ct+hv}, {(ct<<6)|(hv<<5)}, v12")
                g(f"v_add_u32 v{32+2*ct+hv}, 0x10000, v{24+2*ct+hv}")
        g("v_lshlrev_b32 v40, 5, v5"); g("v_lshl_add_u32 v40, v6, 4, v40"); g(f"v_add_u32 v40, {LRF}, v40")
        g("v_xor_b32 v46, 16, v40")
        g("s_lshl_b32 s62, s3, 2"); g("v_add_u32 v41, s62, v40")
        g(f"v_add_u32 v42, {LP}, v4")
        g("s_lshl_b32 s62, s3, 11"); g("v_add_u32 v43, s62, v42")
        g("s_lshl_b32 s78, s74, 15"); g("s_add_u32 s78, s78, s77"); g("s_add_u32 s67, s78, 0x1000")
        g("v_mov_b32 v12, 0"); g("v_mov_b32 v13, 1")
        for r in range(8): g(f"v_xor_b32 v{168+r}, {fswz(r)<<4}, v15")
    for k in range(4): g(f"v_mov_b32 v{48+k}, -1")
    g("s_waitcnt lgkmcnt(0)")
    g.srd(4, 40, WS)
    g("s_cmp_ge_u32 s42, 16"); g("s_cbranch_scc1 L_A_ni")
    g("s_lshl_b32 s62, s42, 13"); g("s_lshl_b32 s63, s3, 11"); g("s_add_u32 s62, s62, s63")
    for k in range(2):
        g(f"buffer_store_dwordx4 v[48:51], v4, s[4:7], s62 offen offset:{k*1024} sc1")
    g("L_A_ni:")
    if g.o["cu"]:
        if g.o["cu"] != 2: g("s_cmp_lg_u32 s74, 1"); g("s_cbranch_scc1 L_A_nu")
        g.srd(44, 22, 4 << 20)
        g("v_lshrrev_b32 v8, 1, v1"); g("v_lshlrev_b32 v8, 13, v8"); g("v_and_b32 v9, 1, v1"); g("v_lshl_add_u32 v8, v9, 7, v8")
        g("s_lshl_b32 s62, s73, 20"); g("s_lshl_b32 s63, s3, 18"); g("s_add_u32 s62, s62, s63"); g("s_lshl_b32 s63, s72, 8"); g("s_add_u32 s62, s62, s63")
        g("buffer_load_dword v47, v8, s[44:47], s62 offen")
        g("L_A_nu:")
    g.srd(12, 18, 32 << 20); g.srd(8, 38, 256)
    setup()
    o0 = dma_ops(0)
    for x in o0[0]: g(x)
    for x in ea: g(x)
    if g.o["skew"]:
        g("v_and_b32 v9, 3, v8"); g("v_lshl_add_u32 v9, v9, 3, v8"); g("v_xor_b32 v9, s75, v9")
        g("v_lshl_add_u32 v213, v9, 10, v213"); g("v_lshl_add_u32 v214, v9, 7, v214")
        g("s_lshl_b32 s63, s75, 10"); g("s_sub_u32 s65, s65, s63"); g("s_lshl_b32 s63, s75, 7"); g("s_sub_u32 s79, s79, s63")
    g.srd(44, 30, 512*2752); g.srd(48, 32, 512*2752); g.srd(52, 34, 1376*1024)
    if g.o["co"] == 2:
        g("v_lshrrev_b32 v218, 2, v1"); g("v_mul_u32_u24 v218, 2752, v218"); g("v_and_b32 v9, 3, v1"); g("v_lshlrev_b32 v9, 7, v9"); g("v_min_u32 v9, 380, v9"); g("v_add_u32 v218, v218, v9")
        g("v_lshlrev_b32 v219, 7, v1"); g(f"v_mov_b32 v9, {OOB}")
        g("s_bfe_u32 s62, s42, 0x30003"); g("s_lshl_b32 s62, s62, 2")
        g("v_cmp_gt_u32 vcc, 48, v1"); g("s_add_u32 s62, s62, s3"); g("s_and_b32 s64, s42, 7"); g("v_cndmask_b32 v219, v9, v219, vcc")
        g(f"s_mul_i32 s70, s62, {16*2752}"); g("s_mul_i32 s63, s64, 384"); g("s_add_u32 s70, s70, s63")
        g("s_mul_i32 s71, s62, 6144"); g("s_mul_i32 s63, s64, 196608"); g("s_add_u32 s71, s71, s63")
    elif g.o["co"]:
        g("v_lshrrev_b32 v218, 2, v1"); g("v_mul_u32_u24 v218, 2752, v218"); g("v_and_b32 v9, 3, v1"); g("v_lshlrev_b32 v9, 7, v9"); g("v_min_u32 v9, 380, v9"); g("v_add_u32 v218, v218, v9")
        g("v_lshlrev_b32 v219, 7, v1"); g(f"v_mov_b32 v9, {OOB}")
        g("v_cmp_gt_u32 vcc, 32, v1"); g("s_lshr_b32 s62, s42, 3"); g("s_lshl_b32 s62, s62, 2"); g("v_cndmask_b32 v218, v9, v218, vcc")
        g("v_cmp_gt_u32 vcc, 24, v1"); g("s_add_u32 s62, s62, s3"); g("s_and_b32 s64, s42, 7"); g("v_cndmask_b32 v219, v9, v219, vcc")
        g(f"s_mul_i32 s70, s62, {8*2752}"); g("s_mul_i32 s63, s64, 384"); g("s_add_u32 s70, s70, s63")
        g("s_mul_i32 s71, s62, 3072"); g("s_mul_i32 s63, s64, 196608"); g("s_add_u32 s71, s71, s63")
    else:
        g("v_mul_u32_u24 v218, 2752, v5"); g("v_mul_u32_u24 v9, 92, v6"); g("v_add_u32 v218, v218, v9")
        g("s_lshl_b32 s62, s73, 2"); g("s_add_u32 s62, s62, s3"); g(f"s_mul_i32 s70, s62, {32*2752}"); g("s_mul_i32 s64, s72, 96"); g("s_add_u32 s70, s70, s64")
        g("v_lshlrev_b32 v219, 6, v1"); g("s_mul_i32 s71, s62, 3072"); g("s_mul_i32 s64, s72, 49152"); g("s_add_u32 s71, s71, s64")
    g("s_cmp_ge_u32 s42, 16"); g("s_cbranch_scc1 L_A_ni2")
    g(f"s_waitcnt vmcnt({2 if g.o['cu'] == 2 else 1})")
    g("s_barrier")
    g("s_cmp_lg_u32 s3, 0"); g("s_cbranch_scc1 L_A_ni2")
    g("s_mov_b64 exec, 1")
    g("buffer_atomic_add v13, v12, s[8:11], 0 offen sc1")
    g("s_mov_b64 exec, -1")
    g("s_branch L_A_ni3")
    g("L_A_ni2:")
    if g.o["sw"] == 1:
        g("s_cmp_eq_u32 s74, 1"); g("s_cbranch_scc1 L_A_ni3")
    if g.o["sw"] != 2: g("s_waitcnt vmcnt(0)")
    g("L_A_ni3:")
    for o in o0[1:]:
        for x in o: g(x)
    dma_tile(1)
    aw = g.o["aw"]
    for t in range(2, aw): dma_tile(t)
    def pvreg(kk, ct): return 16*kk + 4*ct
    def rdp_txt(kk, ct):
        r = pvreg(kk, ct); row = 16*kk; ab = 24 if row < 64 else 32
        return [f"ds_read_b64_tr_b16 a[{r+2*hv}:{r+2*hv+1}], v{ab+2*ct+hv} offset:{((row % 64) + 8*hv)*1024}" for hv in range(2)]
    def gather():
        for r in range(8):
            g(f"buffer_load_dwordx4 v[{176+4*r}:{179+4*r}], v4, s[4:7], s{78 if r < 4 else 67} offen offset:{(r&3)*1024} sc1")
    mix = g.o["mix"]
    def c0chk():
        g("v_cmp_ne_u32 vcc, 16, v47")
        g("s_cbranch_vccz L_A_c0")
        cnt_wait(g, 47, 12)
        g("L_A_c0:")
    for tl in range(4):
        if not mix:
            if aw == 2:
                g(f"s_waitcnt vmcnt({8 if tl < 3 else 0})")
                if tl == 1: g("buffer_load_dword v47, v12, s[8:11], 0 offen sc1")
                if tl < 2: dma_tile(tl+2)
            else:
                if tl == 0:
                    g(f"s_waitcnt vmcnt({8*(aw-1)})")
                    if aw == 3: dma_tile(3)
                    g("buffer_load_dword v47, v12, s[8:11], 0 offen sc1")
                else: g(f"s_waitcnt vmcnt({8*(3-tl)+1 if tl < 3 else 0})")
            if tl == 3:
                c0chk()
                if g.o["eg"]: gather()
        else:
            if tl == 0:
                g("s_waitcnt vmcnt(8)"); g("buffer_load_dword v47, v12, s[8:11], 0 offen sc1"); dma_tile(2)
            if tl == 1: g("s_waitcnt vmcnt(9)")
            if tl == 2:
                g(f"s_waitcnt vmcnt({g.o['mw']})")
                for o in dma_ops(3, ""):
                    for x in o: g(x)
                if mix == 2: c0chk(); gather()
                g(f"s_waitcnt vmcnt({16 if mix == 2 else 8})")
            if tl == 3:
                if mix == 1:
                    g("s_waitcnt vmcnt(0)"); c0chk(); gather()
                else: g("s_waitcnt vmcnt(8)")
        if tl == 3 and g.o["nd2"]: g("s_waitcnt lgkmcnt(0)")
        g("s_barrier")
        if tl == 3:
            for t in range(g.o["nd2"]):
                for o in dma_ops(t, ""):
                    for x in o: g(x)
        if tl == 0 and not fine: g.stamp(1)
        if tl == 3 and not fine: g.stamp(2)
        for ks in range(2):
            for ct in range(4):
                for x in rdp_txt(2*tl+ks, ct): g(x)
        sk = g.lab("p1c")
        g(f"s_cmp_lg_u32 s3, {tl}"); g(f"s_cbranch_scc1 {sk}")
        for s in range(32):
            g(f"ds_read_b128 a[{128+4*s}:{131+4*s}], v{16+(s&7)} offset:{(s>>3)*256}")
        g(f"{sk}:")
    nd2 = g.o["nd2"]
    def gproc(extra):
        for r in range(8):
            g(f"s_waitcnt vmcnt({7-r+extra})")
            g(f"ds_write_b128 v{168+r}, v[{176+4*r}:{179+4*r}] offset:{r*1024}")
            if r == 0: g("v_max3_u32 v9, v176, v177, v178"); g("v_max_u32 v9, v9, v179")
            else: g(f"v_max3_u32 v9, v9, v{176+4*r}, v{177+4*r}"); g(f"v_max3_u32 v9, v9, v{178+4*r}, v{179+4*r}")
        g("v_cmp_eq_u32 vcc, -1, v9")
    gproc(8*nd2)
    g("s_cbranch_vccz L_A_gok")
    g(f"s_mov_b32 s64, {SPIN}")
    g("L_A_g0:")
    g("s_waitcnt lgkmcnt(0)")
    gather()
    gproc(0)
    g("s_sub_u32 s64, s64, 1"); g("s_cmp_eq_u32 s64, 0"); g("s_cbranch_scc1 L_A_gok")
    g("s_cbranch_vccnz L_A_g0")
    g("L_A_gok:")
    g("s_waitcnt lgkmcnt(0)")
    g("s_barrier")
    g.stamp(3)
    if g.o["cyc"] == 2: g("s_memtime s[82:83]")
    L = Lds(g)
    dq = []
    for t in range(4 + nd2, 8): dq += dma_ops(t & 3, "nt" if (mix and t == 4 and not g.o["p5"]) else "")
    if g.o["atq"]:
        dq += [["buffer_load_dword v223, v218, s[44:47], s70 offen"], ["buffer_load_dword v223, v218, s[48:51], s70 offen"], ["buffer_load_dword v223, v219, s[52:55], s71 offen"]]
        g.o["ats"] = 100
    ids = {}
    def rdq(s): ids[s] = L.op(f"ds_read_b128 {qreg(s)}, v{128+(s&7)} offset:{(s>>3)*256}")
    for s in range(QD-1): rdq(s)
    def dpop(n=1):
        for _ in range(n):
            if dq:
                for y in dq.pop(0): g(y)
    dpop(g.o["d0"])
    dn = g.o["dn"]
    for s in range(32):
        L.wait(ids[s])
        c = "0" if s == 0 else "v[48:63]"
        g(f"v_mfma_f32_32x32x16_bf16 v[48:63], a[{128+4*s}:{131+4*s}], {qreg(s)}, {c}")
        if s + QD - 1 < 32: rdq(s + QD - 1)
        if (s + 1) * dn // 32 > s * dn // 32: dpop()
    cpre = g.o["cpre"]; fb = g.o["fb"]
    def sma_ops(ch):
        o = ch*10240
        R = 216 if ch == 0 else 222
        T = []
        T += ["v_max3_f32 v8, v48, v49, v50", "v_max3_f32 v9, v51, v52, v53", "v_max3_f32 v10, v54, v55, v56", "v_max3_f32 v11, v57, v58, v59",
              "v_max3_f32 v8, v8, v60, v61", "v_max3_f32 v9, v9, v62, v63", "v_max_f32 v10, v10, v11", "v_max3_f32 v8, v8, v9, v10"]
        if ch == 0: T += ["v_ceil_f32 v216, v8"]
        else: T += ["v_cmp_gt_f32 vcc, v8, v47", "v_ceil_f32 v8, v8", "s_nop 0", "v_cndmask_b32 v222, v44, v8, vcc"]
        for h in range(2):
            T += [f"v_sub_f32 v{48+8*h+k}, v{48+8*h+k}, v{R}" for k in range(8)]
            T += [f"v_exp_f32 v{48+8*h+k}, v{48+8*h+k}" for k in range(8)]
            if h == 0 and ch == 0: T += ["s_barrier"]
            if h == 0: T += [f"@ds_write_b32 v41, v{R} offset:{o}"]
            T += [f"v_cvt_pk_bf16_f32 v{168+4*h+k}, v{48+8*h+2*k}, v{49+8*h+2*k}" for k in range(4)]
            T += [f"@ds_write_b128 v43, v[{168+4*h}:{171+4*h}] offset:{o+1024*h}"]
        return T
    def lsum_ops(ch):
        T = [f"v_add_f32 v{48+k}, v{48+k}, v{56+k}" for k in range(8)]
        T += [f"v_add_f32 v{48+k}, v{48+k}, v{52+k}" for k in range(4)]
        T += ["v_add_f32 v48, v48, v50", "v_add_f32 v49, v49, v51"]
        if ch == 0: T += ["v_add_f32 v217, v48, v49"]
        else: T += ["v_add_f32 v48, v48, v49", "v_add_f32 v217, v217, v48", "@ds_write_b32 v41, v217 offset:1024"]
        return T
    def emit(x):
        if callable(x): return x()
        if x.startswith("@"): return L.op(x[1:])
        g(x)
    def kfix(P, waits=None):
        T = []
        for w in range(4):
            T += [f"v_sub_f32 v{12+w}, v44, v{12+w}", f"v_cvt_u32_f32 v{8+w}, v{12+w}", f"v_min_u32 v{8+w}, 0xff, v{8+w}", f"v_mul_u32_u24 v{8+w}, 0x800080, v{8+w}"]
            for kk in (2*w, 2*w+1):
                if waits is not None: T += [lambda kk=kk: L.wait(waits[kk])]
                T += [f"v_pk_sub_u16 v{P+4*kk+i}, v{P+4*kk+i}, v{8+w} clamp" for i in range(4)]
        return T
    def cost(x):
        if callable(x): return getattr(x, "c", 0)
        if x.startswith("v_exp"): return 2
        return 1
    def fill(q, budget):
        while q and budget > 0:
            x = q.pop(0); budget -= cost(x); emit(x)
        return budget
    def rdop(d, key, txt):
        def f(): d[key] = L.op(txt)
        f.c = 1
        return f
    order = [(kk, ct) for ct in range(4) for kk in range(8)]
    pvid = {}; rq = []
    def refill(cnt):
        n_ = 0
        while rq and n_ < cnt:
            key, x = rq.pop(0); pvid[key] = L.op(x); n_ += 1
        return n_
    def pv0(kk, ct):
        r = pvreg(kk, ct)
        c = "0" if kk == 0 else f"v[{64+16*ct}:{79+16*ct}]"
        g(f"v_mfma_f32_32x32x16_bf16 v[{64+16*ct}:{79+16*ct}], a[{r}:{r+3}], v[{128+4*kk}:{131+4*kk}], {c}")
    def flush_until(q, prefix):
        if any((not callable(x)) and x.startswith(prefix) for x in q):
            while True:
                x = q.pop(0); emit(x)
                if (not callable(x)) and x.startswith(prefix): break
            g("s_nop 1")
    if fine: g.stamp(1)
    if g.o["cyc"] == 2: g("s_memtime s[84:85]")
    n0_ = len(g.L); dpop(g.o["d1"]); g.nop(max(0, 12 - (len(g.L) - n0_)))
    acc_ = 0
    for x in sma_ops(0):
        emit(x); acc_ += cost(x)
        if g.o["dk"] and acc_ >= g.o["dk"]: dpop(); acc_ = 0
    dpop(g.o["d2"] if cpre else 100)
    if cpre == 0:
        for x in lsum_ops(0): emit(x)
    L.all()
    if cpre == 0: g("s_waitcnt vmcnt(0)")
    g("s_barrier")
    if fine: g.stamp(2)
    if g.o["cyc"] == 2: g("s_memtime s[86:87]")
    r0 = {}
    qr = [rdop(r0, "x", "ds_read_b128 v[12:15], v40"), rdop(r0, "ref", "ds_read_b128 v[168:171], v46")]
    qr += [rdop(r0, k, f"ds_read_b128 v[{128+4*k}:{131+4*k}], v42 offset:{1024*k}") for k in range(8)]
    q2 = [lambda: L.wait(r0["ref"]), "v_max3_f32 v9, v12, v13, v14", "v_max3_f32 v10, v169, v170, v171", "v_max3_f32 v9, v9, v15, v168", "v_max_f32 v44, v9, v10"]
    q2 += kfix(128, r0)
    q2 += ["v_sub_f32 v216, v216, v44", "v_exp_f32 v216, v216", f"v_add_f32 v47, 0x{f2u(float(g.o['thr'])):08x}, v44", "v_mul_f32 v217, v217, v216"]
    if cpre:
        for x in qr: emit(x)
        qr = []
        if g.o["dk"]: dpop()
        for x in lsum_ops(0): emit(x)
        if g.o["dk"]: dpop()
        flush_until(q2, "v_pk_sub_u16 v135,")
        for n, (kk, ct) in enumerate(order[:8*cpre]):
            if ct == 0: flush_until(q2, f"v_pk_sub_u16 v{128+4*kk+3},")
            pv0(kk, ct)
            fill(q2, 6 if ct == 0 else 4)
            if n % g.o["d3"] == 0: dpop()
            rq += [((kk, ct), x) for x in rdp_txt(kk, ct)]
        dpop(100)
        if g.o["cyc"] == 2: g("s_memtime s[94:95]")
        g(f"s_waitcnt vmcnt({3 if g.o['atq'] else 0})")
        g("s_barrier")
    if not g.o["cyc"]: g.stamp(4)
    if g.o["cyc"] == 2: g("s_memtime s[88:89]")
    D = 6
    ids = {}
    def rdc(s):
        r = 176 + 4*(s % 8)
        ids[s] = L.op(f"ds_read_b128 v[{r}:{r+3}], v{16+(s&7)} offset:{(s>>3)*256}")
    for s in range(D): rdc(s)
    oi = g.o["oi"]
    if oi:
        for k in range(4): g(f"v_mov_b32 v{172+k}, -1")
    for s in range(32):
        L.wait(ids[s])
        r = 176 + 4*(s % 8)
        c = "0" if s == 0 else "v[48:63]"
        g(f"v_mfma_f32_32x32x16_bf16 v[48:63], v[{r}:{r+3}], {qreg(s)}, {c}")
        if s + D < 32: rdc(s + D)
        at = g.o["ats"]
        if oi and s % 3 == 0 and s < 24:
            n_ = s // 3
            g(f"s_add_u32 s63, s65, {(n_&3)*8*32768}")
            g(f"buffer_store_dwordx4 v[172:175], v213, s[4:7], s63 offen offset:{(n_>>2)*128} sc1")
        elif s == at and not (g.o["tf"] >= 0 and g.o["tm"] & 1): g("buffer_load_dword v223, v218, s[44:47], s70 offen")
        elif s == at + 3 and not (g.o["tf"] >= 0 and g.o["tm"] & 2): g("buffer_load_dword v223, v218, s[48:51], s70 offen")
        elif s == at + 6 and not (g.o["tf"] >= 0 and g.o["tm"] & 4): g("buffer_load_dword v223, v219, s[52:55], s71 offen")
        elif qr: fill(qr, 2)
        elif q2 and (s >= 7 or cpre): fill(q2, 3)
        else: refill(2)
    fill(q2, 1000)
    if not g.o["cyc"]: g.stamp(5)
    if g.o["cyc"] == 2: g("s_memtime s[90:91]")
    q = sma_ops(1)
    r1 = {}
    qr = [rdop(r1, "x", "ds_read_b128 v[12:15], v40 offset:10240"), rdop(r1, "ref", "ds_read_b128 v[218:221], v46 offset:10240")]
    qr += [rdop(r1, k, f"ds_read_b128 v[{176+4*k}:{179+4*k}], v42 offset:{10240+1024*k}") for k in range(8)]
    state = 0; dist = 0
    for n, (kk, ct) in enumerate(order[8*cpre:]):
        pv0(kk, ct); dist += 1
        if state == 0:
            if dist < 12:
                k_ = refill(3); dist += k_
                if k_ < 3: g.nop(3 - k_); dist += 3 - k_
            else:
                fill(q, fb)
                if not q:
                    last_w = L.n; state = 1
        elif state == 1:
            L.wait(last_w); g("s_barrier"); state = 2
            fill(qr, 3)
        elif state == 2:
            if qr: fill(qr, 3)
            else: refill(3)
        rq += [((kk, ct), x) for x in rdp_txt(kk, ct)]
    if state == 0:
        if dist < 12: g.nop(12 - dist)
        fill(q, 1000); last_w = L.n; state = 1
    if state == 1:
        L.wait(last_w); g("s_barrier")
    fill(qr, 1000)
    L.wait(r1["ref"])
    g("v_max3_f32 v9, v12, v13, v14"); g("v_max3_f32 v10, v219, v220, v221"); g("v_max3_f32 v9, v9, v15, v218"); g("v_max_f32 v9, v9, v10")
    g("v_cmp_neq_f32 vcc, v9, v44")
    g("s_cbranch_vccnz L_A_slow")
    g("L_A_back:")
    slow = ["L_A_slow:", "s_waitcnt lgkmcnt(0)", "v_sub_f32 v47, v44, v9", "v_sub_f32 v222, v222, v9", "v_mov_b32 v44, v9", "v_exp_f32 v47, v47", "v_exp_f32 v222, v222"] + kfix(176) + \
           [f"v_mul_f32 v{64+k}, v47, v{64+k}" for k in range(64)] + ["v_mul_f32 v217, v47, v217"] + \
           [f"v_mul_f32 v{48+k}, v222, v{48+k}" for k in range(16)] + ["s_branch L_A_back"]
    g.slow = slow
    if fine: g.stamp(10)
    if g.o["cyc"] == 2: g("s_memtime s[92:93]")
    def epi_w(ct, qq):
        b = 128+8*(ct&1)+4*qq
        return [f"v_cvt_pk_bf16_f32 v{b+k}, v{64+16*ct+8*qq+2*k}, v{65+16*ct+8*qq+2*k}" for k in range(4)] + \
               [f"@ds_write_b128 v{208+2*(ct&1)+qq}, v[{b}:{b+3}] offset:{(ct>>1)*128}"]
    er = {}
    def epi_r(half):
        return [rdop(er, (half, n_), f"ds_read_b128 v[{224+16*half+4*n_}:{227+16*half+4*n_}], v212 offset:{n_*8192+half*128}") for n_ in range(4)]
    def epi_s(half, n_):
        def f():
            L.wait(er[(half, n_)])
            if g.o["oi"] and half == 0 and n_ == 0: g("s_waitcnt vmcnt(0)")
            g(f"s_add_u32 s63, s65, {n_*8*32768}")
            g(f"buffer_store_dwordx4 v[{224+16*half+4*n_}:{227+16*half+4*n_}], v213, s[4:7], s63 offen offset:{half*128} sc1")
        f.c = g.o['sc']
        return f
    def pad():
        pass
    pad.c = 4
    lw = {}
    def mark(): lw["w"] = L.n
    def lbar(): L.wait(lw["w"]); g("s_barrier")
    lbar.c = 2
    q = lsum_ops(1) + [mark]
    ql = [lbar, rdop(lw, "a", "ds_read_b128 v[52:55], v40 offset:1024"), rdop(lw, "b", "ds_read_b128 v[56:59], v46 offset:1024")]
    ql2 = [lambda: L.wait(lw["b"])] + [f"v_add_f32 v{52+w}, v{52+w}, v{56+w}" for w in range(4)] + \
        ["v_add_f32 v52, v52, v53", "v_add_f32 v54, v54, v55", "v_add_f32 v45, v52, v54"] + \
        [f"@ds_bpermute_b32 v{60+i}, v215, v{44+(i&1)}" for i in range(4)]
    wdone = 0
    ld = g.o["ld"]
    if ld:
        qlate = (q if ld == 2 else []) + ql + ql2
        if ld == 2: q = []
        ql = []; ql2 = []
    def cyc(k):
        if g.o["cyc"] == 1: g(f"s_memtime s[{80+2*k}:{81+2*k}]")
    for n, (kk, ct) in enumerate(order):
        r = pvreg(kk, ct)
        if kk == 0: cyc(1 + ct)
        while (kk, ct) not in pvid or any(k == (kk, ct) for k, _ in rq): refill(1)
        if ct == 0: L.wait(r1[kk])
        L.wait(pvid[(kk, ct)])
        g(f"v_mfma_f32_32x32x16_bf16 v[{64+16*ct}:{79+16*ct}], a[{r}:{r+3}], v[{176+4*kk}:{179+4*kk}], v[{64+16*ct}:{79+16*ct}]")
        nm_ = len(g.L)
        b = 4 - refill(g.o["rf"])
        if kk == 0: since = 0
        if not rq and wdone < ct and since >= 11:
            q += epi_w(wdone, 0) + epi_w(wdone, 1)
            if wdone == 0: q += ql
            if wdone == 1: q += epi_r(0) + ql2 + [pad] * g.o["sp"] + [epi_s(0, n_) for n_ in range(4)]
            wdone += 1
        b = fill(q, b)
        em = len(g.L) - nm_
        if em < 4 and wdone < ct and since + em < 11:
            g.nop(4 - em); em = 4
        since += 1 + em
    while wdone < 3:
        q += epi_w(wdone, 0) + epi_w(wdone, 1)
        if wdone == 0: q += ql
        if wdone == 1: q += epi_r(0) + ql2 + [pad] * g.o["sp"] + [epi_s(0, n_) for n_ in range(4)]
        wdone += 1
    n0_ = len(g.L)
    fill(q, 1000)
    if g.o["fine2"]: g.stamp(1)
    cyc(5)
    g.nop(max(0, 12 - (len(g.L) - n0_)))
    for x in epi_w(3, 0) + epi_w(3, 1) + epi_r(1) + [epi_s(1, n_) for n_ in range(4)]: emit(x)
    g.stamp(9)
    cyc(6)
    if ld:
        for x in qlate: emit(x)
        L.all()
    if g.o["ta"]:
        g("v_mul_u32_u24 v218, 2752, v5"); g("v_mul_u32_u24 v9, 92, v6"); g("v_add_u32 v218, v218, v9"); g("v_lshlrev_b32 v219, 6, v1")
    if g.o["fsb"]: ffn_setup(g)
    if not g.o["oi"]: g("s_waitcnt vmcnt(0)")
    g("s_barrier")
    g("buffer_store_dwordx4 v[60:63], v214, s[4:7], s79 offen sc1")
    if g.o["ta"]:
        g("buffer_load_dword v223, v218, s[44:47], s70 offen"); g("buffer_load_dword v223, v218, s[48:51], s70 offen"); g("buffer_load_dword v223, v219, s[52:55], s71 offen")
    if not fine: g.stamp(10)

def gen(opts):
    g = G(opts)
    g("s_load_dwordx16 s[16:31], s[0:1], 0")
    g("s_load_dwordx8 s[32:39], s[0:1], 64")
    g("s_load_dwordx2 s[40:41], s[0:1], 96")
    g("s_cmp_ge_u32 s2, 256"); g("s_cbranch_scc1 L_end")
    g.stamp(0)
    g("s_getpc_b64 s[4:5]")
    g("s_and_b32 s5, s5, 0xffff"); g("s_mov_b32 s6, L_end - L_pcv"); g("s_mov_b32 s7, 0x20000")
    g("L_pcv:")
    g("s_bfe_u32 s62, s2, 0x40003"); g("s_lshl_b32 s62, s62, 12")
    g("v_lshlrev_b32 v1, 4, v0")
    g("buffer_load_dwordx4 v[252:255], v1, s[4:7], s62 offen")
    g("v_lshrrev_b32 v2, 6, v0"); g("v_and_b32 v1, 63, v0")
    g("v_readfirstlane_b32 s3, v2")
    g("v_and_b32 v2, 15, v0"); g("v_lshrrev_b32 v3, 4, v1")
    g("s_and_b32 s62, s2, 7"); g("s_lshr_b32 s43, s2, 4"); g("s_lshl_b32 s42, s43, 3"); g("s_or_b32 s42, s42, s62")
    g("s_and_b32 s73, s43, 3")
    g("s_lshr_b32 s43, s43, 2")
    g("s_lshl_b32 s72, s62, 2"); g("s_or_b32 s72, s72, s43")
    g("s_lshl_b32 s43, s43, 3"); g("s_or_b32 s43, s43, s62")
    g("s_mov_b32 s60, 0x05040100"); g("s_mov_b32 s61, 0x07060302")
    if opts.get("stamps"):
        for k in range(82, 102): g(f"s_mov_b32 s{k}, 0")
    g("s_bitcmp1_b32 s2, 3")
    g("s_cbranch_scc1 L_A")
    tcu(g)
    g("L_A:")
    acu(g)
    if not g.o["fsb"]: ffn_setup(g)
    g(f"s_cmp_lt_u32 s66, {NSL}"); g("s_cbranch_scc1 L_FW")
    g("s_cmp_lg_u32 s66, 31"); g("s_cbranch_scc1 L_fin")
    x_issue(g); g("s_waitcnt vmcnt(0)"); x_finish(g)
    g("s_branch L_FFN")
    g("L_FW:")
    x_issue(g)
    if g.o["fw"]: g("s_waitcnt vmcnt(0)")
    if g.o["fi"]: ffn_issue2(g)
    else: ffn_issue(g); ffn_finish(g)
    if not g.o["fine"] and not g.o["cyc"]: g.stamp(6)
    if g.o["ec"]:
        g(f"s_mov_b32 s65, {SPIN}")
        for k in range(24): g(f"v_mov_b32 v{192+k}, 0")
        g("s_waitcnt vmcnt(0)")
        g("v_cmp_eq_u32 vcc, -1, v14")
        g("s_cbranch_vccz L_FGO")
    g("L_FFN:")
    ffn_stage(g)
    g("L_fin:")
    if opts["probe"]:
        wg, k = [int(x) for x in opts["probe"].split(",")]
        g("s_waitcnt lgkmcnt(0)")
        g(f"s_cmp_lg_u32 s2, {wg}"); g("s_cbranch_scc1 L_end")
        g("s_cmp_lg_u32 s3, 0"); g("s_cbranch_scc1 L_end")
        g(f"s_sub_u32 s64, s{80+2*k}, s80"); g("s_mul_i32 s64, s64, 20"); g("s_min_u32 s64, s64, 100000")
        g("s_memrealtime s[62:63]"); g("s_waitcnt lgkmcnt(0)"); g("s_add_u32 s64, s64, s62")
        g("L_pr:")
        g("s_sleep 2")
        g("s_memrealtime s[62:63]"); g("s_waitcnt lgkmcnt(0)")
        g("s_sub_u32 s62, s62, s64"); g("s_cmp_lt_i32 s62, 0"); g("s_cbranch_scc1 L_pr")
    elif opts.get("stamps"):
        nst = 11
        g("s_waitcnt lgkmcnt(0)")
        g("s_cmp_lg_u32 s3, 0"); g("s_cbranch_scc1 L_end")
        g("s_mov_b64 exec, 1")
        g(f"s_mul_i32 s62, s2, {nst*8}"); g(f"s_add_u32 s62, s62, {WS - 256*nst*8}")
        g("v_mov_b32 v3, 0")
        for k in range(nst):
            g(f"v_mov_b32 v4, s{80+2*k}"); g(f"v_mov_b32 v5, s{81+2*k}")
            g(f"buffer_store_dwordx2 v[4:5], v3, s[4:7], s62 offen offset:{8*k}")
            g("s_nop 1")
    g("L_end:")
    g("s_endpgm")
    for x in g.slow + getattr(g, "slow0", []): g(x)
    hdr = open("hdr.txt").read()
    return hdr + "; @launch grid=(256,1,1) block=(256,1,1) lds=163840\n" + '.amdgcn_target "amdgcn-amd-amdhsa--gfx950"\n.text\n' + kstart(KN) + "\n".join(g.L) + "\n" + kdesc(KN, vgpr=512, accum=256).replace(".text\n", "")

if __name__ == "__main__":
    import argparse
    ap = argparse.ArgumentParser()
    ap.add_argument("out"); ap.add_argument("--stamps", action="store_true")
    ap.add_argument("--thr", type=float, default=30); ap.add_argument("--probe", default=""); ap.add_argument("--pflag", default=""); ap.add_argument("--cf0", default="nt")
    for k, v in (("fine", 0), ("fine2", 0), ("tsleep", 1), ("fsleep", 1), ("fb", 7), ("cpre", 2), ("d0", 8), ("dn", 12), ("d1", 4), ("d2", 4), ("d3", 1), ("sc", 4),
                 ("ats", 1), ("nb", 3), ("rep", 0), ("eg", 1), ("fsb", 0), ("xnp", 0), ("osc", 0), ("tord", 0), ("oi", 0), ("cls", 0), ("cu", 1), ("pb", 1), ("sw", 1), ("atq", 0), ("fi", 0), ("mix", 0), ("mw", 0), ("p5", 1), ("pp", 6), ("rot", 11), ("skew", 0), ("fw", 1), ("ec", 0), ("pf1", 0), ("pf2", 0), ("aw", 3), ("ld", 2), ("sp", 0), ("dk", 0), ("nd2", 0), ("tf", -1), ("ta", 0), ("co", 1), ("tm", 7), ("po", 0), ("cyc", 0), ("rf", 3)): ap.add_argument("--" + k, type=int, default=v)
    a = ap.parse_args()
    open(a.out, "w").write(gen(vars(a)))
```

```python
import sys, math, struct
from gen_common import *
def f2u(x): return struct.unpack("<I", struct.pack("<f", x))[0]
QABS = 0x000000
STAT = 0x040000
OPART = 0x100000
APART = 0x500000
FPART = 0x600000
OOB = 0x40000000
SCALE = (128 ** -0.5) * math.log2(math.e)
class G:
    def __init__(s, opts):
        s.L = []; s.o = opts; s.uid = 0
    def a(s, x): s.L.append(x)
    def __call__(s, x): s.L.append(x)
    def lab(s, p="L"):
        s.uid += 1; return f"{p}_{s.uid}"
    def nop(s, n):
        while n > 0:
            k = min(n, 16); s.a(f"s_nop {k-1}"); n -= k
    def stamp(s, k):
        if s.o.get("stamps"):
            s.a(f"s_memrealtime s[{80+2*k}:{81+2*k}]")
    def srd(s, d, p, size):
        s.a(f"s_mov_b32 s{d}, s{p}"); s.a(f"s_and_b32 s{d+1}, s{p+1}, 0xffff")
        s.a(f"s_mov_b32 s{d+2}, {size}"); s.a(f"s_mov_b32 s{d+3}, 0x20000")
    def dpp(s, op, v, ctrl):
        s.a("s_nop 1"); s.a(f"{op}_dpp v{v}, v{v}, v{v} {ctrl} row_mask:0xf bank_mask:0xf")
    def allred(s, op, v, t, width=64):
        for c in ("quad_perm:[1,0,3,2]", "quad_perm:[2,3,0,1]", "row_half_mirror", "row_mirror"):
            s.dpp(op, v, c)
        if width >= 32:
            s.a(f"v_mov_b32 v{t}, v{v}"); s.a("s_nop 1"); s.a(f"v_permlane16_swap_b32 v{v}, v{t}"); s.a(f"{op} v{v}, v{v}, v{t}")
        if width >= 64:
            s.a(f"v_mov_b32 v{t}, v{v}"); s.a("s_nop 1"); s.a(f"v_permlane32_swap_b32 v{v}, v{t}"); s.a(f"{op} v{v}, v{v}, v{t}")
    def bf16r(s, d, v):
        s.a(f"v_cvt_pk_bf16_f32 v{d}, v{v}, v{v}"); s.a(f"v_lshlrev_b32 v{d}, 16, v{d}")
    def maxtree(s, d, regs):
        regs = list(regs)
        s.a(f"v_max3_u32 v{d}, v{regs[0]}, v{regs[1]}, v{regs[2]}")
        i = 3
        while i + 1 < len(regs):
            s.a(f"v_max3_u32 v{d}, v{d}, v{regs[i]}, v{regs[i+1]}"); i += 2
        if i < len(regs):
            s.a(f"v_max_u32 v{d}, v{d}, v{regs[i]}")
    def perm8x8(s, R, T, acc=None):
        for t in range(8):
            for p in range(4):
                s.a(f"v_perm_b32 v{T+4*t+p}, v{R+4*(2*p+1)+(t>>1)}, v{R+4*(2*p)+(t>>1)}, s{60+(t&1)}")
        if acc is not None:
            for k in range(32):
                s.a(f"v_accvgpr_write_b32 a{acc+k}, v{T+k}")

def fswz(k):
    return ((k & 3) << 2) | ((k >> 2) & 3)

SPIN = 100000
LDS_XN = 0
LDS_QX = 8192
LDS_OT = 16384
LDS_FX = 49152
LDS_CX = 49664
LDS_CS = 51200
LDS_GX = 53248
LDS_FW = 57344
NSL = 29
LQ = 131072
LRF = LQ
LP = LQ + 2048
TS = 0x100000
SMF = "v_smfmac_f32_16x16x64_bf16"
M16 = "v_mfma_f32_16x16x32_bf16"

def poll_loop(g, body, cond, spin=SPIN, sleep=1):
    l = g.lab("pl"); e = g.lab("ple"); f = g.lab("plf")
    g(f"s_mov_b32 s64, {spin}")
    if sleep: g(f"s_branch {f}")
    g(f"{l}:")
    if sleep:
        g(f"s_sleep {sleep}")
        g(f"{f}:")
    body()
    g("s_sub_u32 s64, s64, 1"); g("s_cmp_eq_u32 s64, 0")
    g("s_waitcnt vmcnt(0)")
    g(f"s_cbranch_scc1 {e}")
    cond()
    g(f"s_cbranch_vccnz {l}")
    g(f"{e}:")

def cnt_wait(g, vt, vo, sleep=4):
    poll_loop(g, lambda: g(f"buffer_load_dword v{vt}, v{vo}, s[8:11], 0 offen sc1"),
              lambda: g(f"v_cmp_ne_u32 vcc, 16, v{vt}"), sleep=sleep)

def tile_setup(g, rot):
    g("v_lshlrev_b32 v8, 1, v3"); g("v_xor_b32 v8, v8, v2"); g("v_lshlrev_b32 v8, 4, v8"); g("v_lshl_add_u32 v8, v3, 10, v8")
    g("v_xor_b32 v9, 0x80, v8")
    g("s_lshl_b32 s68, s3, 13"); g(f"s_add_u32 s68, s68, {LDS_OT}")
    g("v_bfe_u32 v11, v1, 2, 2")
    g("v_lshl_add_u32 v10, v3, 3, v11"); g("v_lshlrev_b32 v10, 8, v10")
    g("v_and_b32 v12, 1, v3"); g("v_lshl_add_u32 v12, v12, 2, v11"); g("v_lshlrev_b32 v12, 1, v12")
    g("v_bfe_u32 v13, v1, 1, 1"); g("v_xor_b32 v12, v12, v13")
    g("v_lshl_add_u32 v10, v12, 4, v10")
    g("v_and_b32 v13, 1, v1"); g("v_lshl_add_u32 v10, v13, 3, v10")
    g("v_add_u32 v10, s68, v10")
    if rot:
        g("s_lshr_b32 s63, s73, 1"); g("s_lshl_b32 s63, s63, 7"); g("s_and_b32 s62, s73, 1"); g("s_lshl_b32 s62, s62, 4"); g("s_or_b32 s63, s63, s62")
        g("v_xor_b32 v10, s63, v10")
    for t in range(8): g(f"v_xor_b32 v{112+t}, {t<<5}, v10")
    g("s_mov_b32 s70, 0xaaaaaaaa"); g("s_mov_b32 s71, 0xaaaaaaaa")
    g("v_mov_b32 v29, 0x4444"); g("v_mov_b32 v28, 0xeeee"); g("v_cndmask_b32 v29, v29, v28, s[70:71]")

def tile_dma(g, sbase):
    g("s_mov_b32 m0, s68"); g(f"s_mov_b32 s63, s{sbase}")
    for n in range(8):
        g(f"buffer_load_dwordx4 v{8+((n>>1)&1)}, s[4:7], s63 offen sc1 lds")
        if n < 7:
            g("s_addk_i32 m0, 0x400"); g("s_addk_i32 s63, 0x1000")

def tile_read(g, A):
    for t in range(8):
        if t == 6: g("s_waitcnt lgkmcnt(8)")
        g(f"ds_read_b64_tr_b16 v[{A+4*t}:{A+4*t+1}], v{112+t}")
        g(f"ds_read_b64_tr_b16 v[{A+4*t+2}:{A+4*t+3}], v{112+t} offset:1024")

def ffn_setup(g):
    g("s_mov_b32 s66, s72"); g("s_mov_b32 s67, s73")
    g.srd(56, 16, 4096)
    for m in range(3):
        g(f"v_add_u32 v7, {64*m}, v1"); g("v_mul_u32_u24 v8, 43691, v7"); g("v_lshrrev_b32 v8, 18, v8")
        g(f"v_mul_u32_u24 v{4+m}, {2752-96}, v8"); g(f"v_lshl_add_u32 v{4+m}, v7, 4, v{4+m}")
    g("v_lshlrev_b32 v121, 11, v3"); g("v_lshl_add_u32 v121, v2, 4, v121")
    g("v_lshlrev_b32 v122, 3, v3")
    for k in range(4): g(f"v_mov_b32 v{24+k}, 0x3f803f80")
    tile_setup(g, False)
    g("v_and_b32 v10, 1, v3"); g("v_lshlrev_b32 v10, 5, v10"); g("v_lshrrev_b32 v12, 1, v3"); g("v_lshl_add_u32 v10, v12, 2, v10"); g("v_add_u32 v10, v10, v11")
    g("v_mul_u32_u24 v125, 96, v10"); g("v_and_b32 v28, 3, v1"); g("v_lshl_add_u32 v125, v28, 3, v125")
    g("s_mul_i32 s76, s3, 24576"); g(f"s_add_u32 s76, s76, {LDS_FW}"); g("v_add_u32 v125, s76, v125")
    g("v_lshrrev_b32 v10, 2, v2"); g("v_mov_b32 v12, 0xffff")
    g("v_cmp_gt_u32 vcc, 3, v10"); g("v_min_u32 v10, 2, v10"); g("s_nop 0"); g("v_cndmask_b32 v12, 0, v12, vcc")
    for p in range(4):
        g(f"v_cmp_eq_u32 vcc, {p}, v28"); g("s_nop 1"); g(f"v_cndmask_b32 v{16+p}, 0, v12, vcc")
    g("v_or_b32 v12, 8, v10"); g("v_lshlrev_b32 v30, 2, v28"); g("v_lshlrev_b32 v30, v30, v12"); g("v_or_b32 v30, 0x4444, v30")
    g("v_lshlrev_b32 v120, 3, v2"); g("s_lshl_b32 s62, s3, 9"); g(f"s_add_u32 s62, s62, {LDS_CS}"); g("v_add_u32 v120, s62, v120")
    g("v_lshlrev_b32 v126, 4, v2"); g("s_lshl_b32 s62, s3, 10"); g(f"s_add_u32 s62, s62, {LDS_GX}"); g("v_add_u32 v126, s62, v126")
    g("v_lshl_add_u32 v7, v3, 2, v28"); g("v_lshl_add_u32 v7, v10, 4, v7"); g("v_lshlrev_b32 v127, 3, v7"); g("v_lshlrev_b32 v7, 4, v7")
    rep = g.o["rep"]
    g("s_lshl_b32 s69, s67, 15"); g("s_lshl_b32 s63, s3, 8"); g("s_add_u32 s69, s69, s63"); g(f"s_add_u32 s69, s69, {APART}")
    if rep:
        g("s_and_b32 s63, s42, 7"); g("s_lshl_b32 s63, s63, 17"); g("s_add_u32 s69, s69, s63")
    g("v_lshrrev_b32 v13, 1, v1"); g("v_lshlrev_b32 v13, 10, v13"); g("v_and_b32 v14, 1, v1"); g("v_lshl_add_u32 v13, v14, 7, v13")
    g("v_lshlrev_b32 v123, 5, v2"); g("v_and_b32 v10, 1, v3"); g("v_lshl_add_u32 v123, v10, 4, v123"); g("v_lshrrev_b32 v10, 1, v3"); g("v_lshl_add_u32 v123, v10, 3, v123")
    g("s_lshl_b32 s74, s67, 5"); g("s_add_u32 s74, s74, s66"); g("s_lshl_b32 s74, s74, 11")
    g("s_lshl_b32 s63, s3, 9"); g("s_add_u32 s74, s74, s63"); g(f"s_add_u32 s74, s74, {FPART}")
    c1 = -2 * math.sqrt(2 / math.pi) * math.log2(math.e)
    g(f"s_mov_b32 s75, 0x{f2u(c1*0.044715):08x}"); g(f"v_mov_b32 v124, 0x{f2u(c1):08x}")
    for k in range(32): g(f"v_mov_b32 v{160+k}, 0")

def x_issue(g):
    g("s_lshl_b32 s62, s67, 10"); g("s_lshl_b32 s63, s3, 8"); g("s_add_u32 s62, s62, s63")
    for t in range(8):
        g(f"buffer_load_dwordx2 v[{96+2*t}:{97+2*t}], v122, s[56:59], s62 offen offset:{32*t}")

def x_finish(g):
    for t in range(8):
        for q in range(2):
            g(f"v_lshlrev_b32 v{128+4*t+2*q}, 16, v{96+2*t+q}")
            g(f"v_and_b32 v{128+4*t+2*q+1}, 0xffff0000, v{96+2*t+q}")

def ffn_issue(g):
    g(f"s_mul_i32 s62, s3, {128*2752}"); g("s_mul_i32 s63, s66, 96"); g("s_mov_b32 m0, s76"); g("s_add_u32 s62, s62, s63")
    for n in range(12):
        g(f"buffer_load_dwordx4 v{4+n%3}, s[44:47], s62 offen lds")
        g("s_addk_i32 m0, 0x3000"); g("s_nop 0")
        g(f"buffer_load_dwordx4 v{4+n%3}, s[48:51], s62 offen lds")
        if n < 11:
            g("s_addk_i32 m0, 0xd400")
            g(f"s_add_u32 s62, s62, {32*2752}" if n % 3 == 2 else "s_nop 0")
    g("s_mul_i32 s62, s66, 49152"); g("s_lshl_b32 s63, s3, 8"); g("s_add_u32 s62, s62, s63")
    for hb in range(2):
        for pos in range(3):
            g(f"s_add_u32 s63, s62, {(16*pos + 8*hb)*1024}")
            for q in range(2):
                r = 192 + 24*hb + 8*pos + 4*q
                g(f"buffer_load_dwordx4 v[{r}:{r+3}], v121, s[52:55], s63 offen offset:{q*1024}")

def ffn_finish(g):
    g("s_waitcnt vmcnt(36)")
    if g.o["fine2"]: g.stamp(3)
    x_finish(g)
    for s2 in range(2):
        g(f"s_waitcnt vmcnt({12 + 12*(1-s2)})")
        for t in range(6):
            for hb in range(2):
                for hv in range(2):
                    r = 48*s2+8*t+4*hb+2*hv
                    g(f"ds_read_b64_tr_b16 a[{r}:{r+1}], v125 offset:{(64*s2+8*hb+16*hv)*96+(t%3)*32+(t//3)*12288}")
    g("s_waitcnt lgkmcnt(0)")
    if g.o["fine2"]: g.stamp(4)
    for ks in range(4):
        for t in range(6):
            c = "0" if ks == 0 else f"v[{32+4*t}:{35+4*t}]"
            r = 48*(ks>>1)+8*t+4*(ks&1)
            g(f"{M16} v[{32+4*t}:{35+4*t}], v[24:27], a[{r}:{r+3}], {c}")
    g("s_waitcnt vmcnt(0)")
    if g.o["ec"]: g("buffer_load_dword v14, v13, s[4:7], s69 offen sc1")
    for hb in range(2):
        for t in range(8):
            R = lambda pos, q: 192 + 24*hb + 8*pos + 4*q + (t>>1)
            for q in range(2):
                g(f"v_perm_b32 v{64+2*q}, v{R(1,q)}, v{R(0,q)}, s{60+(t&1)}")
                g(f"v_perm_b32 v{65+2*q}, v{R(2,q)}, v{R(2,q)}, s{60+(t&1)}")
            for p in range(4): g(f"v_accvgpr_write_b32 a{96+8*t+4*hb+p}, v{64+p}")
        if hb == 0:
            [g(f"ds_write2_b32 v120, v{32+4*e}, v{44+4*e} offset0:{32*e} offset1:{32*e+1}") for e in range(3)]
    if g.o["fine2"]: g.stamp(5)
    g("s_waitcnt lgkmcnt(0)")
    g("s_barrier")
    for w in range(4):
        g(f"ds_read_b64 v[{32+2*w}:{33+2*w}], v127 offset:{LDS_CS+512*w}")
    g("s_waitcnt lgkmcnt(0)")
    for k in range(2):
        g(f"v_add_f32 v{32+k}, v{32+k}, v{34+k}"); g(f"v_add_f32 v{36+k}, v{36+k}, v{38+k}")
        g(f"v_add_f32 v{224+k}, v{32+k}, v{36+k}")

def ffn_stage(g):
    g(f"s_mov_b32 s65, {SPIN}")
    l = g.lab("fp"); e = g.lab("fpe")
    g(f"{l}:")
    for k in range(24): g(f"v_mov_b32 v{192+k}, 0")
    poll_loop(g, lambda: g("buffer_load_dword v14, v13, s[4:7], s69 offen sc1"), lambda: g("v_cmp_eq_u32 vcc, -1, v14"), spin=4*SPIN, sleep=g.o["fsleep"])
    g("L_FGO:")
    tile_dma(g, 69)
    if not g.o["cyc"]: g.stamp(7)
    g("s_waitcnt vmcnt(0)")
    tile_read(g, 32)
    for t in range(8):
        g(f"s_waitcnt lgkmcnt({14-2*t})")
        g(f"{M16} v[{64+4*t}:{67+4*t}], v[{32+4*t}:{35+4*t}], v[24:27], v[{128+4*t}:{131+4*t}]")
    def cv(t):
        g(f"v_cvt_pk_bf16_f32 v{96+2*t}, v{64+4*t}, v{65+4*t}")
        g(f"v_cvt_pk_bf16_f32 v{97+2*t}, v{66+4*t}, v{67+4*t}")
        g(f"v_cndmask_b32 v{216+t}, v{96+2*t}, v{97+2*t}, s[70:71]")
    def st(ks, which):
        A = f"v[{96+4*ks}:{99+4*ks}]"; d = 56 + 4*which
        c = "0" if ks == 0 else f"v[{d}:{d+3}]"
        g(f"{M16} v[{d}:{d+3}], {A}, {'v[24:27]' if which == 0 else A}, {c}")
    def sm(s2, t):
        g(f"{SMF} v[{192+4*t}:{195+4*t}], v[{216+4*s2}:{219+4*s2}], a[{48*s2+8*t}:{48*s2+8*t+7}], v29")
    for t in range(4): cv(t)
    st(0, 0); st(0, 1)
    cv(4); sm(0, 0); sm(0, 1); cv(5); sm(0, 2); sm(0, 3); cv(6); sm(0, 4); sm(0, 5); cv(7)
    st(1, 0); st(1, 1); st(2, 0); st(3, 0); st(2, 1); st(3, 1)
    g(f"s_cmp_ge_u32 s66, {NSL}"); g("s_cbranch_scc1 L_HPUB")
    for t in (0, 3, 1, 4, 2, 5): sm(1, t)
    g("s_sub_u32 s65, s65, 1"); g("s_cmp_eq_u32 s65, 0"); g(f"s_cbranch_scc1 {e}")
    g("v_cmp_u_f32 vcc, v56, v56")
    g(f"s_cbranch_vccnz {l}")
    g(f"{e}:")
    hp = ["L_HPUB:", "s_sub_u32 s65, s65, 1", "s_cmp_eq_u32 s65, 0", "s_cbranch_scc1 L_HPUB2", "s_nop 3", "v_cmp_u_f32 vcc, v56, v56", f"s_cbranch_vccnz {l}", "L_HPUB2:",
          "v_lshlrev_b32 v13, 4, v3", "s_mov_b32 s70, 0x00010001", "s_mov_b32 s71, 0x00010001", "s_mov_b64 exec, s[70:71]"] + \
         [f"buffer_store_dwordx4 v[{64+4*t}:{67+4*t}], v13, s[4:7], s74 offen offset:{64*t} sc1" for t in range(8)] + ["s_mov_b64 exec, -1", "s_branch L_fin"]
    g.slow += hp
    g("s_mov_b64 exec, 0xffff")
    for e in range(3): g(f"ds_write2_b32 v126, v56, v60 offset0:{64*e+2} offset1:{64*e+3}")
    for e in range(3):
        g(f"v_add_f32 v{192+4*e}, v{192+4*e}, v{193+4*e}"); g(f"v_add_f32 v{204+4*e}, v{204+4*e}, v{205+4*e}")
        g(f"ds_write2_b32 v126, v{192+4*e}, v{204+4*e} offset0:{64*e} offset1:{64*e+1}")
    g("s_mov_b64 exec, -1")
    g("s_waitcnt lgkmcnt(0)")
    g("s_barrier")
    for w in range(4):
        g(f"ds_read_b128 v[{32+4*w}:{35+4*w}], v7 offset:{LDS_GX+1024*w}")
    g("s_waitcnt lgkmcnt(2)")
    for k in (2, 3, 0, 1): g(f"v_add_f32 v{32+k}, v{32+k}, v{36+k}")
    g("s_waitcnt lgkmcnt(0)")
    for k in (2, 3): g(f"v_add_f32 v{40+k}, v{40+k}, v{44+k}")
    for k in (2, 3): g(f"v_add_f32 v{32+k}, v{32+k}, v{40+k}")
    for x in [f"v_mul_f32 v34, 0x{f2u(1/512):08x}, v34", f"v_mul_f32 v35, 0x{f2u(1/512):08x}, v35", "v_add_f32 v40, v40, v44", "v_fma_f32 v35, -v34, v34, v35", "v_add_f32 v41, v41, v45", "v_max_f32 v35, 0, v35",
              "v_add_f32 v32, v32, v40", "v_cvt_pk_bf16_f32 v35, v34, v35", "v_add_f32 v33, v33, v41", "v_lshlrev_b32 v34, 16, v35", "v_and_b32 v35, 0xffff0000, v35", f"v_add_f32 v35, 0x{f2u(1e-5):08x}, v35",
              "v_fma_f32 v32, -v34, v224, v32", "v_cvt_pk_bf16_f32 v35, v35, v35", "v_fma_f32 v33, -v34, v225, v33", "v_lshlrev_b32 v35, 16, v35", "v_sqrt_f32 v35, v35", "s_nop 0",
              "v_cvt_pk_bf16_f32 v35, v35, v35", "v_lshlrev_b32 v35, 16, v35", "v_rcp_f32 v35, v35", "s_nop 0",
              "v_mul_f32 v32, v35, v32", "v_mul_f32 v33, v35, v33", "v_cvt_pk_bf16_f32 v36, v32, v33", "v_lshlrev_b32 v32, 16, v36", "v_and_b32 v33, 0xffff0000, v36",
              "v_mul_f32 v37, v32, v32", "v_fma_f32 v37, v37, s75, v124", "v_mul_f32 v37, v37, v32", "v_exp_f32 v37, v37", "s_nop 0", "v_add_f32 v37, 1.0, v37", "v_rcp_f32 v37, v37", "s_nop 0",
              "v_mul_f32 v37, v37, v32", "v_cvt_pk_bf16_f32 v37, v37, v37", "v_lshlrev_b32 v37, 16, v37", "v_mul_f32 v37, v37, v33", "v_cvt_pk_bf16_f32 v37, v37, v37"]:
        g(x)
    for p in range(4): g(f"v_and_b32 v{48+p}, v37, v{16+p}")
    g("s_nop 1")
    TO = (0, 4, 2, 6, 1, 5, 3, 7)
    for t in TO:
        g(f"{SMF} v[{160+4*t}:{163+4*t}], v[48:51], a[{96+8*t}:{103+8*t}], v30")
    g.nop(1)
    for t in TO:
        g(f"v_add_f32 v{160+4*t}, v{160+4*t}, v{161+4*t}"); g(f"v_add_f32 v{162+4*t}, v{162+4*t}, v{163+4*t}")
    for t in TO:
        g(f"v_add_f32 v{160+4*t}, v{160+4*t}, v{162+4*t}")
    for t in (0, 2, 1, 3): g(f"v_permlane16_swap_b32 v{160+4*t}, v{176+4*t}")
    for t in (0, 2, 1, 3): g(f"v_add_f32 v{160+4*t}, v{160+4*t}, v{176+4*t}")
    g("v_permlane32_swap_b32 v160, v168"); g("s_nop 0"); g("v_permlane32_swap_b32 v164, v172")
    g("v_add_f32 v32, v160, v168"); g("v_add_f32 v33, v164, v172")
    g("buffer_store_dwordx2 v[32:33], v123, s[4:7], s74 offen sc1")
    g.stamp(8)

def tcu(g):
    opts = g.o; rep = opts["rep"]
    g("s_lshl_b32 s74, s72, 10"); g("s_lshl_b32 s62, s73, 8"); g("s_add_u32 s74, s74, s62"); g("s_lshl_b32 s62, s3, 6"); g("s_add_u32 s74, s74, s62")
    g("v_lshlrev_b32 v28, 15, v3"); g("v_lshl_add_u32 v28, v2, 2, v28")
    g("s_lshl_b32 s75, s73, 5"); g("s_add_u32 s75, s75, s72")
    g("v_lshlrev_b32 v29, 4, v0")
    g("s_lshl_b32 s76, s75, 12"); g(f"s_add_u32 s76, s76, {STAT}")
    g("v_lshlrev_b32 v4, 16, v3"); g("v_lshl_add_u32 v4, v2, 4, v4")
    g("s_lshl_b32 s66, s3, 20"); g("s_lshl_b32 s63, s72, 8"); g("s_add_u32 s66, s66, s63")
    for ks in range(4):
        g(f"s_xor_b32 s63, s73, {ks}"); g(f"s_lshl_b32 s63, s63, 18"); g(f"s_add_u32 s{52+ks}, s66, s63")
    g("v_lshlrev_b32 v5, 14, v2"); g("v_lshl_add_u32 v5, v3, 4, v5")
    g("s_lshl_b32 s78, s73, 20"); g("s_lshl_b32 s63, s3, 18"); g("s_add_u32 s78, s78, s63"); g("s_lshl_b32 s63, s72, 8"); g("s_add_u32 s78, s78, s63")
    g("s_add_u32 s79, s78, 8192")
    g("s_lshr_b32 s67, s42, 5" if opts["cu"] != 2 else "s_mov_b32 s67, 1")
    g("s_mov_b32 s14, 0x400000"); g("s_mov_b32 s15, 0x20000"); g("s_mov_b32 s58, 4096"); g("s_mov_b32 s59, 0x20000")
    g("s_mov_b32 s46, 0x400000"); g("s_mov_b32 s47, 0x20000")
    g("s_waitcnt lgkmcnt(0)")
    g("s_mov_b32 s56, s16"); g("s_and_b32 s57, s17, 0xffff"); g("s_mov_b32 s12, s20"); g("s_and_b32 s13, s21, 0xffff")
    def wq(ks):
        for e in range(8):
            g(f"s_add_u32 s63, s{52+ks}, {e*8192}")
            r = 32 + 32*ks + 4*e
            g(f"buffer_load_dwordx4 v[{r}:{r+3}], v4, s[12:15], s63 offen")
    g("buffer_load_dwordx4 v[8:11], v29, s[56:59], 0 offen")
    wq(0)
    g("s_mov_b32 s44, s22"); g("s_and_b32 s45, s23, 0xffff")
    cu = opts["cu"]
    def wuk():
        for tt in range(2):
            for ks in range(4):
                r = 160 + 16*tt + 4*ks
                g(f"buffer_load_dwordx4 v[{r}:{r+3}], v5, s[44:47], s{78+tt} offen offset:{64*ks}")
    def ifcls(cls, fn):
        if not cu:
            if not cls: fn()
            return
        l = g.lab("ic")
        g("s_cmp_eq_u32 s67, 1"); g(f"s_cbranch_scc{0 if cls else 1} {l}")
        fn()
        g(f"{l}:")
    def wait2(n_norm, n_cls, extra=""):
        lo, hi = min(n_norm, n_cls), max(n_norm, n_cls)
        if not cu: g(f"s_waitcnt vmcnt({n_norm}){extra}"); return
        g(f"s_waitcnt vmcnt({hi}){extra}")
        if lo != hi: ifcls(n_cls == lo, lambda: g(f"s_waitcnt vmcnt({lo})"))
    g("s_barrier")
    ifcls(False, wuk)
    g.srd(4, 40, WS); g.srd(8, 38, 256)
    for k in range(4): g(f"v_mov_b32 v{24+k}, -1")
    g("buffer_store_dwordx4 v[24:27], v29, s[4:7], s76 offen sc1")
    g("v_lshlrev_b32 v30, 3, v0"); g(f"s_lshl_b32 s62, s42, 11"); g(f"s_add_u32 s62, s62, {FPART}")
    g("buffer_store_dwordx2 v[24:25], v30, s[4:7], s62 offen sc1")
    if rep:
        g(f"s_lshl_b32 s62, s42, 13"); g(f"s_add_u32 s62, s62, {APART}"); g("s_add_u32 s63, s62, 4096")
        g("buffer_store_dwordx4 v[24:27], v29, s[4:7], s62 offen sc1"); g("buffer_store_dwordx4 v[24:27], v29, s[4:7], s63 offen sc1")
        nst = 4
    else:
        g("v_lshlrev_b32 v30, 2, v0"); g(f"s_lshl_b32 s62, s42, 10"); g(f"s_add_u32 s62, s62, {APART}")
        g("buffer_store_dword v24, v30, s[4:7], s62 offen sc1")
        nst = 3
    g("s_mul_i32 s62, s3, 1040"); g("v_lshlrev_b32 v6, 4, v1"); g("v_add_u32 v6, s62, v6")
    g("v_and_b32 v7, 3, v2"); g("v_mul_u32_u24 v7, 1040, v7"); g("v_lshl_add_u32 v7, v3, 4, v7")
    g("s_lshl_b32 s62, s3, 8"); g("v_add_u32 v7, s62, v7")
    wait2(16+nst, 8+nst)
    for q in range(4):
        g(f"v_lshlrev_b32 v{12+2*q}, 16, v{8+q}"); g(f"v_and_b32 v{13+2*q}, 0xffff0000, v{8+q}")
    g("v_add_f32 v20, v12, v13"); g("v_add_f32 v21, v14, v15"); g("v_add_f32 v22, v16, v17"); g("v_add_f32 v23, v18, v19")
    g("v_add_f32 v20, v20, v21"); g("v_add_f32 v22, v22, v23"); g("v_add_f32 v20, v20, v22")
    g.allred("v_add_f32", 20, 21)
    g(f"v_mul_f32 v20, 0x{f2u(1/512):08x}, v20")
    g("v_sub_f32 v22, v12, v20"); g("v_mul_f32 v21, v22, v22")
    for k in range(1, 8):
        g(f"v_sub_f32 v22, v{12+k}, v20"); g("v_fmac_f32 v21, v22, v22")
    g.allred("v_add_f32", 21, 22)
    g(f"v_mul_f32 v21, 0x{f2u(1/512):08x}, v21")
    g.bf16r(20, 20); g.bf16r(21, 21)
    g(f"v_add_f32 v21, 0x{f2u(1e-5):08x}, v21"); g.bf16r(21, 21)
    g("v_sqrt_f32 v21, v21"); g("s_nop 0"); g.bf16r(21, 21)
    g("v_rcp_f32 v21, v21")
    for k in range(8): g(f"v_sub_f32 v{12+k}, v{12+k}, v20")
    for q in range(4): g(f"v_cvt_pk_bf16_f32 v{8+q}, v{12+2*q}, v{13+2*q}")
    for q in range(4):
        g(f"v_lshlrev_b32 v{12+2*q}, 16, v{8+q}"); g(f"v_and_b32 v{13+2*q}, 0xffff0000, v{8+q}")
    for k in range(8): g(f"v_mul_f32 v{12+k}, v{12+k}, v21")
    for q in range(4): g(f"v_cvt_pk_bf16_f32 v{8+q}, v{12+2*q}, v{13+2*q}")
    g(f"ds_write_b128 v6, v[8:11] offset:{LDS_XN}")
    g("v_mov_b32 v30, 0")
    wait2(8+nst, nst, " lgkmcnt(0)")
    g.stamp(1)
    wq(1)
    g("s_barrier")
    for ks in range(4):
        g(f"s_xor_b32 s63, s73, {ks}"); g("s_lshl_b32 s63, s63, 6"); g("v_add_u32 v6, s63, v7")
        g(f"ds_read_b128 v[{8+4*ks}:{11+4*ks}], v6 offset:{LDS_XN}")
    wq(2)
    g("s_mul_i32 s62, s3, 272"); g("v_lshlrev_b32 v6, 4, v2"); g("v_add_u32 v6, s62, v6")
    g("v_mul_u32_u24 v7, 272, v2"); g("v_lshl_add_u32 v7, v3, 4, v7")
    for ks in range(4):
        if ks == 1: wq(3)
        if ks == 2: ifcls(True, wuk)
        if ks: wait2(8*(3-ks) + (1 if ks == 3 else 0), 8*(3-ks) + (1 if ks == 3 else 0) + (8 if ks >= 2 else 0))
        if ks == 2: g("buffer_load_dword v31, v30, s[8:11], 0 offen sc1")
        if ks == 3: g.stamp(7)
        R = 32+32*ks
        if ks == 0: g("s_waitcnt lgkmcnt(0)")
        def pm(t):
            for p in range(4):
                g(f"v_perm_b32 v{192+4*t+p}, v{R+4*(2*p+1)+(t>>1)}, v{R+4*(2*p)+(t>>1)}, s{60+(t&1)}")
        pm(0)
        for t in range(8):
            if t < 7: pm(t+1)
            else: g("s_nop 0")
            c = "0" if ks == 0 else f"v[{224+4*t}:{227+4*t}]"
            g(f"{M16} v[{224+4*t}:{227+4*t}], v[{8+4*ks}:{11+4*ks}], v[{192+4*t}:{195+4*t}], {c}")
    for p in range(4):
        for b in range(4):
            g(f"v_cvt_pk_bf16_f32 v{8+4*b+p}, v{224+8*p+b}, v{228+8*p+b}")
    g("s_mov_b64 exec, 0xffff")
    for b in range(4):
        g(f"ds_write_b128 v6, v[{8+4*b}:{11+4*b}] offset:{LDS_QX+4*272*b}")
    g("s_mov_b64 exec, -1")
    g("s_waitcnt lgkmcnt(0)")
    g("s_barrier")
    for ks in range(4):
        g(f"ds_read_b128 v[{8+4*ks}:{11+4*ks}], v7 offset:{LDS_QX+64*ks}")
    if cu: g("s_waitcnt vmcnt(1)")
    for ks in range(4):
        g(f"s_waitcnt lgkmcnt({3-ks})")
        for tt in range(2):
            c = "0" if ks == 0 else f"v[{224+4*tt}:{227+4*tt}]"
            g(f"{M16} v[{224+4*tt}:{227+4*tt}], v[{8+4*ks}:{11+4*ks}], v[{160+16*tt+4*ks}:{163+16*tt+4*ks}], {c}")
    g("s_waitcnt vmcnt(0)")
    g("v_cmp_ne_u32 vcc, 16, v31")
    g.srd(12, 18, 32 << 20)
    g("v_lshlrev_b32 v4, 7, v1"); g("s_lshr_b32 s62, s42, 5")
    for tt in range(2):
        r = 224 + 4*tt
        g(f"v_add_f32 v{r}, v{r}, v{r+1}"); g(f"v_add_f32 v{r+2}, v{r+2}, v{r+3}")
    for tt in range(2):
        r = 224 + 4*tt
        g(f"v_add_f32 v{r}, v{r}, v{r+2}")
    for tt in range(2):
        r = 224 + 4*tt
        g(f"v_mul_f32 v{r}, 0x{f2u(SCALE):08x}, v{r}")
    g("v_cvt_pk_bf16_f32 v8, v224, v228")
    g("s_cbranch_vccz L_T_c0ok")
    cnt_wait(g, 31, 30)
    g("L_T_c0ok:")
    g("buffer_store_dword v8, v28, s[4:7], s74 offen sc1")
    if opts["pb"] == 2: g("s_waitcnt vmcnt(0)")
    if opts["pb"]: g("s_barrier")
    g.stamp(2)
    g("s_lshl_b32 s62, s62, 23"); g("s_and_b32 s63, s42, 31"); g("s_lshl_b32 s63, s63, 15"); g("s_add_u32 s62, s62, s63")
    g("s_lshl_b32 s63, s3, 13"); g("s_add_u32 s62, s62, s63")
    nc = opts["cls"]
    if nc:
        g("s_lshr_b32 s64, s42, 5")
        g("s_cmp_eq_u32 s64, 1"); g("s_cbranch_scc1 L_T_pfc")
        g("s_and_b32 s65, s42, 31"); g("s_lshl_b32 s65, s65, 15"); g(f"s_add_u32 s65, s65, {0x800000}")
        g("s_sub_u32 s67, s64, 1"); g("s_max_i32 s67, s67, 0"); g("s_lshl_b32 s67, s67, 2"); g("s_add_u32 s67, s67, s3")
        g(f"s_mul_i32 s67, s67, {22*128}"); g(f"s_min_u32 s67, s67, {(256-22)*128}"); g("s_add_u32 s65, s65, s67")
    plist = ([3, 4, 5, 6, 7] if opts["p5"] else [3, 5, 6, 7]) if opts["mix"] else [4, 5, 6, 7]
    def taddr(base, i):
        if opts["rot"]:
            g(f"s_add_u32 s63, s{base}, {(opts['rot']*i*32768) & 0xfffff}"); g("s_and_b32 s63, s63, 0xfffff")
            g(f"s_andn2_b32 s64, s{base}, 0xfffff"); g("s_or_b32 s63, s63, s64"); g(f"s_add_u32 s63, s63, {i*TS}")
        else: g(f"s_add_u32 s63, s{base}, {i*TS}")
    for n_, i in enumerate(plist):
        if nc and n_ == nc: g("L_T_pfc:")
        taddr(62, i)
        if opts["po"] and n_ == len(plist) - 1:
            g("s_mov_b32 s77, s63"); g("v_mov_b32 v109, v4"); g.srd(56, 18, 32 << 20)
            continue
        g(f"buffer_load_dword v31, v4, s[12:15], s63 offen {opts['pflag']}")
        if n_ < opts["pf1"]: g("s_waitcnt vmcnt(0)")
        if n_ >= 1 and n_ <= opts["pf2"]: g("s_waitcnt vmcnt(1)")
        if n_ < nc:
            taddr(65, i)
            g("s_mov_b64 exec, 0x3fffff")
            g(f"buffer_load_dword v31, v4, s[12:15], s63 offen {opts['pflag']}")
            g("s_mov_b64 exec, -1")
    g.srd(12, 24, 4 << 20); g.srd(44, 26, 4 << 20)
    for ks in range(4):
        g(f"s_xor_b32 s63, s73, {ks}"); g("s_lshr_b32 s62, s63, 1"); g("s_lshl_b32 s62, s62, 19"); g("s_and_b32 s63, s63, 1"); g("s_lshl_b32 s63, s63, 16")
        g(f"s_add_u32 s{52+ks}, s66, s62"); g(f"s_add_u32 s{52+ks}, s{52+ks}, s63")
    g("v_and_b32 v6, 1, v3"); g("v_lshrrev_b32 v7, 1, v3")
    g("v_lshlrev_b32 v4, 18, v6"); g("v_lshl_add_u32 v4, v7, 15, v4"); g("v_lshl_add_u32 v4, v2, 4, v4")
    g("v_lshlrev_b32 v5, 14, v7"); g("v_lshl_add_u32 v5, v6, 12, v5"); g("v_lshl_add_u32 v5, v2, 4, v5")
    g("s_lshl_b32 s79, s72, 17"); g("s_lshl_b32 s63, s3, 8"); g("s_add_u32 s79, s79, s63")
    order = [[0, 4, 5, 6, 7, 1, 2, 3], [0, 4, 1, 5, 2, 6, 3, 7], [0, 4, 1, 2, 3, 5, 6, 7]][opts["tord"]]
    bufs = [192, 224, 64, 32][:opts["nb"]]
    NB = len(bufs)
    def tw_issue(i):
        n = order[i]; ks = n & 3
        if n >= 4:
            g(f"s_xor_b32 s62, s73, {ks}"); g("s_lshl_b32 s62, s62, 15"); g("s_add_u32 s62, s62, s79"); g("s_add_u32 s63, s62, 0x2000")
        for e in range(8):
            r = bufs[i % NB] + 4*e
            if n < 4:
                g(f"s_add_u32 s63, s{52+ks}, {(16*(e>>2)+(e&3))*8192}")
                g(f"buffer_load_dwordx4 v[{r}:{r+3}], v4, s[12:15], s63 offen")
            else:
                g(f"buffer_load_dwordx4 v[{r}:{r+3}], v5, s[44:47], s{62+((e>>1)&1)} offen offset:{(2*(e>>2)+(e&1))*1024}")
    issued = 2
    tw_issue(0)
    if opts["po"] == 1: g("buffer_load_dword v31, v109, s[56:59], s77 offen")
    tw_issue(1)
    if opts["po"] == 2: g("buffer_load_dword v31, v109, s[56:59], s77 offen")
    tf = opts["tf"]
    def ftouch():
        g.srd(48, 30, 512*2752); g.srd(56, 32, 512*2752); g.srd(8, 34, 1376*1024)
        g("v_lshrrev_b32 v109, 2, v1"); g("v_mul_u32_u24 v109, 2752, v109"); g("v_and_b32 v110, 3, v1"); g("v_lshlrev_b32 v110, 7, v110"); g("v_min_u32 v110, 380, v110"); g("v_add_u32 v109, v109, v110")
        g("v_lshlrev_b32 v110, 7, v1")
        g("s_lshr_b32 s62, s42, 3"); g("s_lshl_b32 s62, s62, 2"); g("s_add_u32 s62, s62, s3"); g("s_and_b32 s64, s42, 7")
        g(f"s_mul_i32 s63, s62, {8*2752}"); g("s_mul_i32 s65, s64, 384"); g("s_add_u32 s63, s63, s65")
        g("s_mov_b32 exec_hi, 0")
        if opts["tm"] & 1: g("buffer_load_dword v111, v109, s[48:51], s63 offen")
        if opts["tm"] & 2: g("buffer_load_dword v111, v109, s[56:59], s63 offen")
        g("s_mul_i32 s63, s62, 3072"); g("s_mul_i32 s65, s64, 196608"); g("s_add_u32 s63, s63, s65")
        g("s_mov_b32 exec_lo, 0xffffff")
        if opts["tm"] & 4: g("buffer_load_dword v111, v110, s[8:11], s63 offen")
        g("s_mov_b64 exec, -1")
    tf_after = None
    if tf == 0: ftouch(); tf_after = issued
    g.stamp(1)
    tile_setup(g, True)
    g("s_lshl_b32 s69, s75, 15"); g("s_lshl_b32 s63, s3, 8"); g("s_add_u32 s69, s69, s63"); g(f"s_add_u32 s69, s69, {OPART}")
    g("v_and_b32 v13, 31, v1"); g("v_lshlrev_b32 v14, 7, v13")
    g("s_lshl_b32 s62, s3, 6"); g("v_lshlrev_b32 v13, 1, v13"); g("v_add_u32 v13, s62, v13")
    g("v_lshlrev_b32 v15, 4, v3"); g("v_add_u32 v15, s62, v15")
    g("s_mul_i32 s62, s3, 272"); g("v_lshlrev_b32 v120, 4, v2"); g("v_add_u32 v121, s62, v120")
    g("v_bfe_u32 v10, v2, 2, 1"); g("v_lshlrev_b32 v11, 5, v3"); g("v_lshl_add_u32 v11, v10, 4, v11")
    g("s_lshl_b32 s62, s73, 6"); g("v_xor_b32 v11, s62, v11"); g("v_xor_b32 v12, 0x80, v11")
    g("v_and_b32 v122, 3, v2"); g("v_mul_u32_u24 v122, 272, v122"); g("v_add_u32 v123, v122, v12"); g("v_add_u32 v122, v122, v11")
    g("v_mul_u32_u24 v30, 0xaaaa, v10"); g("v_or_b32 v30, 0x4444, v30")
    g("v_lshl_add_u32 v120, v6, 3, v120")
    if rep: g("v_lshl_add_u32 v120, v7, 17, v120")
    g("s_lshl_b32 s78, s75, 10"); g("s_lshl_b32 s63, s3, 8"); g("s_add_u32 s78, s78, s63"); g(f"s_add_u32 s78, s78, {APART}")
    for k in range(64): g(f"v_mov_b32 v{128+k}, 0")
    def pbody():
        g("buffer_load_dwordx2 v[106:107], v14, s[4:7], s76 offen sc1")
    def cond():
        g("v_max_u32 v108, v106, v107"); g("v_cmp_eq_u32 vcc, -1, v108")
    pp = opts["pp"]
    for i in range(8):
        extra = (1 if (i > pp and i < 7) else 0) + (bin(opts["tm"]).count("1") if (tf_after is not None and i < tf_after) else 0)
        if opts["po"] and i < opts["po"]: extra += 1
        g(f"s_waitcnt vmcnt({8*(issued-1-i) + extra})")
        if i == 0: g.stamp(7)
        if i == 1: g.stamp(9)
        lim = min(8, i + NB) if i >= 1 else issued
        while issued < lim:
            tw_issue(issued); issued += 1
        if tf > 0 and i == tf - 1: ftouch(); tf_after = issued
        if i == pp:
            assert issued == 8
            pbody()
        if i == 7:
            g.stamp(3)
            cond()
            g("s_cbranch_vccnz L_T_nd")
            tile_dma(g, 69)
            g("L_T_nd:")
        R = bufs[i % NB]; n = order[i]; ks = n & 3
        acc = 128*(n>>2) + 64*(ks>>1) + 4*(ks&1)
        for t in range(8):
            for p in range(4):
                g(f"v_perm_b32 v{16+p+4*(t&1)}, v{R+4*(2*p+1)+(t>>1)}, v{R+4*(2*p)+(t>>1)}, s{60+(t&1)}")
            for p in range(4):
                g(f"v_accvgpr_write_b32 a{acc+8*t+p}, v{16+p+4*(t&1)}")
    g("s_cbranch_vccz L_T_go")
    poll_loop(g, pbody, cond, spin=4*SPIN, sleep=opts["tsleep"])
    tile_dma(g, 69)
    g("L_T_go:")
    g.stamp(4)
    g("v_mov_b32 v34, v106")
    g.allred("v_max_f32", 34, 35, 32)
    g("v_sub_f32 v34, v106, v34"); g("v_cvt_i32_f32 v34, v34"); g("v_ldexp_f32 v34, 1.0, v34")
    g(f"ds_write_b16_d16_hi v13, v34 offset:{LDS_FX}")
    g("v_mul_f32 v31, v34, v107")
    g(f"ds_read_b128 v[24:27], v15 offset:{LDS_FX}")
    g.allred("v_add_f32", 31, 35, 32)
    g("v_rcp_f32 v31, v31")
    g(f"s_mov_b32 s64, {SPIN}")
    g("L_T_pay:")
    g("s_waitcnt vmcnt(0) lgkmcnt(0)")
    g.stamp(5)
    tile_read(g, 32)
    for t in range(8):
        g(f"s_waitcnt lgkmcnt({14-2*t})" if not opts.get("stamps") else "s_waitcnt lgkmcnt(0)")
        g(f"{M16} v[{64+4*t}:{67+4*t}], v[{32+4*t}:{35+4*t}], v[24:27], 0")
    def cv(t):
        g(f"v_cvt_pk_bf16_f32 v{96+t}, v{64+4*t}, v{65+4*t}")
        g(f"v_cvt_pk_bf16_f32 v{104+(t&1)}, v{66+4*t}, v{67+4*t}")
        g(f"v_cndmask_b32 v{96+t}, v{96+t}, v{104+(t&1)}, s[70:71]")
    for t in range(5): cv(t)
    for t in range(8):
        g(f"{SMF} v[{128+4*t}:{131+4*t}], v[96:99], a[{8*t}:{8*t+7}], v29")
        if t in (0, 2, 4): cv(5 + t//2)
    for t in range(8):
        g(f"{SMF} v[{128+4*t}:{131+4*t}], v[100:103], a[{64+8*t}:{64+8*t+7}], v29")
    g.nop(1)
    for t in range(8):
        g(f"v_add_f32 v{128+4*t}, v{128+4*t}, v{129+4*t}")
        if t == 1 and opts["oi"]: g("v_cmp_u_f32 vcc, v128, v128")
    if opts["oi"]:
        g("s_cbranch_vccnz L_T_retry")
        g("L_T_ok:")
        gl = g.L; g.L = []
        g("L_T_retry:")
        g("s_sub_u32 s64, s64, 1"); g("s_cmp_eq_u32 s64, 0"); g("s_cbranch_scc1 L_T_ok")
        tile_dma(g, 69)
        for k in range(32): g(f"v_mov_b32 v{128+k}, 0")
        g("s_branch L_T_pay")
        g.slow0 = g.L; g.L = gl
    for p in range(4):
        g(f"v_cvt_pk_bf16_f32 v{64+p}, v{128+8*p}, v{132+8*p}")
    g("s_mov_b64 exec, 0xffff")
    g(f"ds_write_b128 v121, v[64:67] offset:{LDS_CX}")
    g("s_mov_b64 exec, -1")
    g("s_waitcnt lgkmcnt(0)")
    g("s_barrier")
    for s2 in range(2):
        g(f"ds_read_b128 v[{96+4*s2}:{99+4*s2}], v{122+s2} offset:{LDS_CX}")
    for s2 in range(2):
        g(f"s_waitcnt lgkmcnt({1-s2})")
        for t in (0, 4, 1, 5, 2, 6, 3, 7):
            g(f"{SMF} v[{160+4*t}:{163+4*t}], v[{96+4*s2}:{99+4*s2}], a[{128+64*s2+8*t}:{128+64*s2+8*t+7}], v30")
    g.nop(1)
    for t in (0, 4, 1, 5, 2, 6, 3, 7):
        g(f"v_add_f32 v{160+4*t}, v{160+4*t}, v{161+4*t}"); g(f"v_add_f32 v{162+4*t}, v{162+4*t}, v{163+4*t}")
    for t in (0, 4, 1, 5, 2, 6, 3, 7):
        g(f"v_add_f32 v{160+4*t}, v{160+4*t}, v{162+4*t}")
    for t in range(4): g(f"v_permlane16_swap_b32 v{160+4*t}, v{176+4*t}")
    for t in range(4): g(f"v_add_f32 v{160+4*t}, v{160+4*t}, v{176+4*t}")
    for t in range(4): g(f"v_mul_f32 v{160+4*t}, v31, v{160+4*t}")
    g("v_cvt_pk_bf16_f32 v64, v160, v164"); g("v_cvt_pk_bf16_f32 v65, v168, v172")
    if rep:
        for c in range(4):
            g("buffer_store_dwordx2 v[64:65], v120, s[4:7], s78 offen sc1")
            if c < 3: g("s_add_u32 s78, s78, 0x40000")
    else:
        g("s_mov_b32 exec_hi, 0")
        g("buffer_store_dwordx2 v[64:65], v120, s[4:7], s78 offen sc1")
        g("s_mov_b64 exec, -1")
    g.stamp(6)
    g("s_cmp_lt_u32 s43, 16"); g("s_cbranch_scc1 L_fin")
    g("s_cmp_lg_u32 s3, 0"); g("s_cbranch_scc1 L_fin")
    g.srd(12, 36, 4096)
    g("v_lshrrev_b32 v4, 3, v1"); g("v_and_b32 v5, 7, v1")
    g("v_lshlrev_b32 v6, 11, v4"); g("v_lshl_add_u32 v6, v5, 4, v6")
    g(f"v_mov_b32 v7, {OOB}")
    g("v_cmp_gt_u32 vcc, 5, v4"); g("s_nop 1"); g("v_cndmask_b32 v7, v7, v6, vcc")
    g("v_and_b32 v9, 1, v3"); g("v_lshrrev_b32 v10, 1, v3"); g("v_lshl_add_u32 v9, v9, 1, v10"); g("v_lshl_add_u32 v9, v5, 2, v9")
    g("v_lshlrev_b32 v8, 2, v9"); g("v_lshlrev_b32 v10, 1, v9")
    g("s_mov_b32 s70, 0x00ff00ff"); g("s_mov_b32 s71, 0x00ff00ff")
    g(f"s_lshl_b32 s62, s73, 16"); g("s_sub_u32 s65, s43, 16"); g("s_lshl_b32 s63, s65, 7"); g("s_add_u32 s62, s62, s63"); g(f"s_add_u32 s62, s62, {FPART}")
    g("s_lshl_b32 s74, s73, 10"); g("s_lshl_b32 s63, s65, 6"); g("s_add_u32 s74, s74, s63")
    for n in range(1, 4): g(f"s_add_u32 s{75+n}, s62, {n*16384}")
    g(f"s_add_u32 s79, s62, {31*2048}")
    def body():
        for n in range(4):
            g(f"buffer_load_dwordx4 v[{32+4*n}:{35+4*n}], v{6 if n < 3 else 7}, s[4:7], s{62 if n == 0 else 75+n} offen sc1")
        g("buffer_load_dword v56, v8, s[4:7], s79 offen sc1")
    def cond2():
        for k in range(4):
            g(f"v_add_f32 v{32+k}, v{32+k}, v{36+k}"); g(f"v_add_f32 v{40+k}, v{40+k}, v{44+k}")
        for k in range(4): g(f"v_add_f32 v{32+k}, v{32+k}, v{40+k}")
        g("v_cvt_pk_bf16_f32 v44, v56, v56")
        for k in range(4):
            g(f"v_add_f32_dpp v{32+k}, v{32+k}, v{32+k} row_ror:8 row_mask:0xf bank_mask:0xf")
        g("v_lshlrev_b32 v44, 16, v44")
        g("v_permlane16_swap_b32 v32, v34"); g("v_permlane16_swap_b32 v33, v35")
        g("v_add_f32 v32, v32, v34"); g("v_add_f32 v33, v33, v35")
        g("s_nop 1")
        g("v_permlane32_swap_b32 v32, v33")
        g("v_add_f32 v32, v32, v33")
        g("v_cmp_u_f32 vcc, v32, v56")
        g("v_cvt_pk_bf16_f32 v32, v32, v32")
    poll_loop(g, body, cond2, spin=4*SPIN, sleep=0)
    g.stamp(8)
    g("v_lshlrev_b32 v32, 16, v32"); g("v_add_f32 v32, v32, v44"); g("v_cvt_pk_bf16_f32 v32, v32, v32")
    g("s_mov_b64 exec, s[70:71]")
    g("buffer_store_short v32, v10, s[12:15], s74 offen")
    g("s_mov_b64 exec, -1")
    g.stamp(10)
    g("s_branch L_fin")

QD = 8
def qreg(s):
    return f"v[{224+4*s}:{227+4*s}]" if s < QD else f"a[{128+4*(s-QD)}:{131+4*(s-QD)}]"

class Lds:
    def __init__(s, g): s.g = g; s.n = 0; s.done = 0
    def op(s, txt): s.g(txt); s.n += 1; return s.n
    def wait(s, i):
        if i <= s.done: return
        k = min(14, s.n - i); s.g(f"s_waitcnt lgkmcnt({k})"); s.done = s.n - k
    def all(s): s.wait(s.n)

def acu(g):
    fine = g.o["fine"]
    ea = ["v_and_b32 v8, 7, v5", "v_lshlrev_b32 v9, 1, v6", "v_xor_b32 v8, v8, v9", "v_lshlrev_b32 v208, 10, v5", "v_lshl_add_u32 v208, v8, 4, v208",
          "s_lshl_b32 s62, s3, 8", "v_add_u32 v208, s62, v208"] + [f"v_xor_b32 v{208+k}, {((4*(k>>1))|(k&1))<<4}, v208" for k in range(1, 4)] + \
         ["v_lshrrev_b32 v8, 3, v1", "v_and_b32 v9, 7, v1", "v_lshlrev_b32 v212, 10, v8", "v_lshl_add_u32 v212, v9, 4, v212", "v_add_u32 v212, s62, v212",
          "v_lshlrev_b32 v214, 12, v8", "v_lshl_add_u32 v214, v9, 4, v214", "v_xor_b32 v9, v9, v8", "v_lshlrev_b32 v213, 15, v8", "v_lshl_add_u32 v213, v9, 4, v213",
          "s_lshl_b32 s63, s3, 5", "v_lshl_add_u32 v215, v8, 2, s63",
          "s_lshl_b32 s65, s74, 20", "s_lshl_b32 s63, s75, 10", "s_add_u32 s65, s65, s63", "s_add_u32 s65, s65, s62", f"s_add_u32 s65, s65, {OPART}",
          "s_lshl_b32 s79, s74, 17", "s_lshl_b32 s63, s75, 7", "s_add_u32 s79, s79, s63", f"s_add_u32 s79, s79, {STAT}", "s_lshl_b32 s63, s3, 15", "s_add_u32 s79, s79, s63"]
    g("v_lshlrev_b32 v4, 4, v1")
    g("s_lshr_b32 s74, s42, 5"); g("s_and_b32 s75, s42, 31")
    g("s_lshl_b32 s76, s74, 23"); g("s_lshl_b32 s77, s75, 15"); g("s_add_u32 s76, s76, s77")
    g("s_lshl_b32 s77, s3, 13"); g("s_add_u32 s76, s76, s77")
    g("s_and_b32 s62, s3, 1"); g("s_lshl_b32 s62, s62, 5"); g("v_xor_b32 v7, s62, v4")
    for r in range(8):
        g(f"v_xor_b32 v{160+r}, {(fswz(r)<<4) | ((r>>2)<<12)}, v7")
    g(f"s_add_u32 s62, s77, {LQ}"); g("v_add_u32 v15, s62, v7")
    def dma_ops(slot, cf=g.o["cf0"]):
        ops = []
        for r in range(8):
            pre = []
            if r == 0: pre = [f"s_add_u32 m0, s77, {slot*32768}", "s_nop 0"]
            if r == 4: pre = ["s_addk_i32 m0, 0x1000", "s_nop 0"]
            post = ([f"s_add_u32 s69, s76, {g.o['rot']*32768}", "s_and_b32 s69, s69, 0xfffff", "s_andn2_b32 s76, s76, 0xfffff", "s_or_b32 s76, s76, s69"] if g.o["rot"] else []) + [f"s_add_u32 s76, s76, {TS}"] if r == 7 else []
            ops.append(pre + [f"buffer_load_dwordx4 v{160+r}, s[12:15], s76 offen offset:{(r&3)*1024} {cf} lds"] + post)
        return ops
    def dma_tile(slot):
        for o in dma_ops(slot):
            for x in o: g(x)
    def setup():
        g("v_and_b32 v5, 31, v1"); g("v_lshrrev_b32 v6, 5, v1")
        g("v_and_b32 v8, 3, v5"); g("v_lshlrev_b32 v8, 2, v8"); g("v_bfe_u32 v9, v5, 2, 2"); g("v_or_b32 v8, v8, v9"); g("v_xor_b32 v8, v8, v6")
        g("v_lshlrev_b32 v10, 10, v5"); g("v_lshl_add_u32 v10, v8, 4, v10")
        g(f"v_add_u32 v11, {LQ}, v10")
        g("s_lshl_b32 s62, s3, 15"); g("v_add_u32 v10, s62, v10")
        for k in range(8): g(f"v_xor_b32 v{16+k}, {k<<5}, v10")
        for k in range(8): g(f"v_xor_b32 v{128+k}, {k<<5}, v11")
        g("v_bfe_u32 v8, v1, 2, 2")
        g("v_lshl_add_u32 v9, v6, 2, v8"); g("v_lshlrev_b32 v12, 10, v9")
        g("v_and_b32 v9, 1, v1"); g("v_lshlrev_b32 v9, 1, v9"); g("v_bfe_u32 v13, v1, 4, 1"); g("v_or_b32 v9, v9, v13")
        g("v_lshl_add_u32 v13, v8, 2, v6"); g("v_xor_b32 v9, v9, v13")
        g("v_lshl_add_u32 v12, v9, 4, v12")
        g("v_bfe_u32 v9, v1, 1, 1"); g("v_lshl_add_u32 v12, v9, 3, v12")
        g("s_lshl_b32 s62, s3, 8"); g("v_add_u32 v12, s62, v12")
        for ct in range(4):
            for hv in range(2):
                g(f"v_xor_b32 v{24+2*ct+hv}, {(ct<<6)|(hv<<5)}, v12")
                g(f"v_add_u32 v{32+2*ct+hv}, 0x10000, v{24+2*ct+hv}")
        g("v_lshlrev_b32 v40, 5, v5"); g("v_lshl_add_u32 v40, v6, 4, v40"); g(f"v_add_u32 v40, {LRF}, v40")
        g("v_xor_b32 v46, 16, v40")
        g("s_lshl_b32 s62, s3, 2"); g("v_add_u32 v41, s62, v40")
        g(f"v_add_u32 v42, {LP}, v4")
        g("s_lshl_b32 s62, s3, 11"); g("v_add_u32 v43, s62, v42")
        g("s_lshl_b32 s78, s74, 15"); g("s_add_u32 s78, s78, s77"); g("s_add_u32 s67, s78, 0x1000")
        g("v_mov_b32 v12, 0"); g("v_mov_b32 v13, 1")
        for r in range(8): g(f"v_xor_b32 v{168+r}, {fswz(r)<<4}, v15")
    for k in range(4): g(f"v_mov_b32 v{48+k}, -1")
    g("s_waitcnt lgkmcnt(0)")
    g.srd(4, 40, WS)
    g("s_cmp_ge_u32 s42, 16"); g("s_cbranch_scc1 L_A_ni")
    g("s_lshl_b32 s62, s42, 13"); g("s_lshl_b32 s63, s3, 11"); g("s_add_u32 s62, s62, s63")
    for k in range(2):
        g(f"buffer_store_dwordx4 v[48:51], v4, s[4:7], s62 offen offset:{k*1024} sc1")
    g("L_A_ni:")
    if g.o["cu"]:
        if g.o["cu"] != 2: g("s_cmp_lg_u32 s74, 1"); g("s_cbranch_scc1 L_A_nu")
        g.srd(44, 22, 4 << 20)
        g("v_lshrrev_b32 v8, 1, v1"); g("v_lshlrev_b32 v8, 13, v8"); g("v_and_b32 v9, 1, v1"); g("v_lshl_add_u32 v8, v9, 7, v8")
        g("s_lshl_b32 s62, s73, 20"); g("s_lshl_b32 s63, s3, 18"); g("s_add_u32 s62, s62, s63"); g("s_lshl_b32 s63, s72, 8"); g("s_add_u32 s62, s62, s63")
        g("buffer_load_dword v47, v8, s[44:47], s62 offen")
        g("L_A_nu:")
    g.srd(12, 18, 32 << 20); g.srd(8, 38, 256)
    setup()
    o0 = dma_ops(0)
    for x in o0[0]: g(x)
    for x in ea: g(x)
    if g.o["skew"]:
        g("v_and_b32 v9, 3, v8"); g("v_lshl_add_u32 v9, v9, 3, v8"); g("v_xor_b32 v9, s75, v9")
        g("v_lshl_add_u32 v213, v9, 10, v213"); g("v_lshl_add_u32 v214, v9, 7, v214")
        g("s_lshl_b32 s63, s75, 10"); g("s_sub_u32 s65, s65, s63"); g("s_lshl_b32 s63, s75, 7"); g("s_sub_u32 s79, s79, s63")
    g.srd(44, 30, 512*2752); g.srd(48, 32, 512*2752); g.srd(52, 34, 1376*1024)
    if g.o["co"] == 2:
        g("v_lshrrev_b32 v218, 2, v1"); g("v_mul_u32_u24 v218, 2752, v218"); g("v_and_b32 v9, 3, v1"); g("v_lshlrev_b32 v9, 7, v9"); g("v_min_u32 v9, 380, v9"); g("v_add_u32 v218, v218, v9")
        g("v_lshlrev_b32 v219, 7, v1"); g(f"v_mov_b32 v9, {OOB}")
        g("s_bfe_u32 s62, s42, 0x30003"); g("s_lshl_b32 s62, s62, 2")
        g("v_cmp_gt_u32 vcc, 48, v1"); g("s_add_u32 s62, s62, s3"); g("s_and_b32 s64, s42, 7"); g("v_cndmask_b32 v219, v9, v219, vcc")
        g(f"s_mul_i32 s70, s62, {16*2752}"); g("s_mul_i32 s63, s64, 384"); g("s_add_u32 s70, s70, s63")
        g("s_mul_i32 s71, s62, 6144"); g("s_mul_i32 s63, s64, 196608"); g("s_add_u32 s71, s71, s63")
    elif g.o["co"]:
        g("v_lshrrev_b32 v218, 2, v1"); g("v_mul_u32_u24 v218, 2752, v218"); g("v_and_b32 v9, 3, v1"); g("v_lshlrev_b32 v9, 7, v9"); g("v_min_u32 v9, 380, v9"); g("v_add_u32 v218, v218, v9")
        g("v_lshlrev_b32 v219, 7, v1"); g(f"v_mov_b32 v9, {OOB}")
        g("v_cmp_gt_u32 vcc, 32, v1"); g("s_lshr_b32 s62, s42, 3"); g("s_lshl_b32 s62, s62, 2"); g("v_cndmask_b32 v218, v9, v218, vcc")
        g("v_cmp_gt_u32 vcc, 24, v1"); g("s_add_u32 s62, s62, s3"); g("s_and_b32 s64, s42, 7"); g("v_cndmask_b32 v219, v9, v219, vcc")
        g(f"s_mul_i32 s70, s62, {8*2752}"); g("s_mul_i32 s63, s64, 384"); g("s_add_u32 s70, s70, s63")
        g("s_mul_i32 s71, s62, 3072"); g("s_mul_i32 s63, s64, 196608"); g("s_add_u32 s71, s71, s63")
    else:
        g("v_mul_u32_u24 v218, 2752, v5"); g("v_mul_u32_u24 v9, 92, v6"); g("v_add_u32 v218, v218, v9")
        g("s_lshl_b32 s62, s73, 2"); g("s_add_u32 s62, s62, s3"); g(f"s_mul_i32 s70, s62, {32*2752}"); g("s_mul_i32 s64, s72, 96"); g("s_add_u32 s70, s70, s64")
        g("v_lshlrev_b32 v219, 6, v1"); g("s_mul_i32 s71, s62, 3072"); g("s_mul_i32 s64, s72, 49152"); g("s_add_u32 s71, s71, s64")
    g("s_cmp_ge_u32 s42, 16"); g("s_cbranch_scc1 L_A_ni2")
    g(f"s_waitcnt vmcnt({2 if g.o['cu'] == 2 else 1})")
    g("s_barrier")
    g("s_cmp_lg_u32 s3, 0"); g("s_cbranch_scc1 L_A_ni2")
    g("s_mov_b64 exec, 1")
    g("buffer_atomic_add v13, v12, s[8:11], 0 offen sc1")
    g("s_mov_b64 exec, -1")
    g("s_branch L_A_ni3")
    g("L_A_ni2:")
    if g.o["sw"] == 1:
        g("s_cmp_eq_u32 s74, 1"); g("s_cbranch_scc1 L_A_ni3")
    if g.o["sw"] != 2: g("s_waitcnt vmcnt(0)")
    g("L_A_ni3:")
    for o in o0[1:]:
        for x in o: g(x)
    dma_tile(1)
    aw = g.o["aw"]
    for t in range(2, aw): dma_tile(t)
    def pvreg(kk, ct): return 16*kk + 4*ct
    def rdp_txt(kk, ct):
        r = pvreg(kk, ct); row = 16*kk; ab = 24 if row < 64 else 32
        return [f"ds_read_b64_tr_b16 a[{r+2*hv}:{r+2*hv+1}], v{ab+2*ct+hv} offset:{((row % 64) + 8*hv)*1024}" for hv in range(2)]
    def gather():
        for r in range(8):
            g(f"buffer_load_dwordx4 v[{176+4*r}:{179+4*r}], v4, s[4:7], s{78 if r < 4 else 67} offen offset:{(r&3)*1024} sc1")
    mix = g.o["mix"]
    def c0chk():
        g("v_cmp_ne_u32 vcc, 16, v47")
        g("s_cbranch_vccz L_A_c0")
        cnt_wait(g, 47, 12)
        g("L_A_c0:")
    for tl in range(4):
        if not mix:
            if aw == 2:
                g(f"s_waitcnt vmcnt({8 if tl < 3 else 0})")
                if tl == 1: g("buffer_load_dword v47, v12, s[8:11], 0 offen sc1")
                if tl < 2: dma_tile(tl+2)
            else:
                if tl == 0:
                    g(f"s_waitcnt vmcnt({8*(aw-1)})")
                    if aw == 3: dma_tile(3)
                    g("buffer_load_dword v47, v12, s[8:11], 0 offen sc1")
                else: g(f"s_waitcnt vmcnt({8*(3-tl)+1 if tl < 3 else 0})")
            if tl == 3:
                c0chk()
                if g.o["eg"]: gather()
        else:
            if tl == 0:
                g("s_waitcnt vmcnt(8)"); g("buffer_load_dword v47, v12, s[8:11], 0 offen sc1"); dma_tile(2)
            if tl == 1: g("s_waitcnt vmcnt(9)")
            if tl == 2:
                g(f"s_waitcnt vmcnt({g.o['mw']})")
                for o in dma_ops(3, ""):
                    for x in o: g(x)
                if mix == 2: c0chk(); gather()
                g(f"s_waitcnt vmcnt({16 if mix == 2 else 8})")
            if tl == 3:
                if mix == 1:
                    g("s_waitcnt vmcnt(0)"); c0chk(); gather()
                else: g("s_waitcnt vmcnt(8)")
        if tl == 3 and g.o["nd2"]: g("s_waitcnt lgkmcnt(0)")
        g("s_barrier")
        if tl == 3:
            for t in range(g.o["nd2"]):
                for o in dma_ops(t, ""):
                    for x in o: g(x)
        if tl == 0 and not fine: g.stamp(1)
        if tl == 3 and not fine: g.stamp(2)
        for ks in range(2):
            for ct in range(4):
                for x in rdp_txt(2*tl+ks, ct): g(x)
        sk = g.lab("p1c")
        g(f"s_cmp_lg_u32 s3, {tl}"); g(f"s_cbranch_scc1 {sk}")
        for s in range(32):
            g(f"ds_read_b128 a[{128+4*s}:{131+4*s}], v{16+(s&7)} offset:{(s>>3)*256}")
        g(f"{sk}:")
    nd2 = g.o["nd2"]
    def gproc(extra):
        for r in range(8):
            g(f"s_waitcnt vmcnt({7-r+extra})")
            g(f"ds_write_b128 v{168+r}, v[{176+4*r}:{179+4*r}] offset:{r*1024}")
            if r == 0: g("v_max3_u32 v9, v176, v177, v178"); g("v_max_u32 v9, v9, v179")
            else: g(f"v_max3_u32 v9, v9, v{176+4*r}, v{177+4*r}"); g(f"v_max3_u32 v9, v9, v{178+4*r}, v{179+4*r}")
        g("v_cmp_eq_u32 vcc, -1, v9")
    gproc(8*nd2)
    g("s_cbranch_vccz L_A_gok")
    g(f"s_mov_b32 s64, {SPIN}")
    g("L_A_g0:")
    g("s_waitcnt lgkmcnt(0)")
    gather()
    gproc(0)
    g("s_sub_u32 s64, s64, 1"); g("s_cmp_eq_u32 s64, 0"); g("s_cbranch_scc1 L_A_gok")
    g("s_cbranch_vccnz L_A_g0")
    g("L_A_gok:")
    g("s_waitcnt lgkmcnt(0)")
    g("s_barrier")
    g.stamp(3)
    if g.o["cyc"] == 2: g("s_memtime s[82:83]")
    L = Lds(g)
    dq = []
    for t in range(4 + nd2, 8): dq += dma_ops(t & 3, "nt" if (mix and t == 4 and not g.o["p5"]) else "")
    if g.o["atq"]:
        dq += [["buffer_load_dword v223, v218, s[44:47], s70 offen"], ["buffer_load_dword v223, v218, s[48:51], s70 offen"], ["buffer_load_dword v223, v219, s[52:55], s71 offen"]]
        g.o["ats"] = 100
    ids = {}
    def rdq(s): ids[s] = L.op(f"ds_read_b128 {qreg(s)}, v{128+(s&7)} offset:{(s>>3)*256}")
    for s in range(QD-1): rdq(s)
    def dpop(n=1):
        for _ in range(n):
            if dq:
                for y in dq.pop(0): g(y)
    dpop(g.o["d0"])
    dn = g.o["dn"]
    for s in range(32):
        L.wait(ids[s])
        c = "0" if s == 0 else "v[48:63]"
        g(f"v_mfma_f32_32x32x16_bf16 v[48:63], a[{128+4*s}:{131+4*s}], {qreg(s)}, {c}")
        if s + QD - 1 < 32: rdq(s + QD - 1)
        if (s + 1) * dn // 32 > s * dn // 32: dpop()
    cpre = g.o["cpre"]; fb = g.o["fb"]
    def sma_ops(ch):
        o = ch*10240
        R = 216 if ch == 0 else 222
        T = []
        T += ["v_max3_f32 v8, v48, v49, v50", "v_max3_f32 v9, v51, v52, v53", "v_max3_f32 v10, v54, v55, v56", "v_max3_f32 v11, v57, v58, v59",
              "v_max3_f32 v8, v8, v60, v61", "v_max3_f32 v9, v9, v62, v63", "v_max_f32 v10, v10, v11", "v_max3_f32 v8, v8, v9, v10"]
        if ch == 0: T += ["v_ceil_f32 v216, v8"]
        else: T += ["v_cmp_gt_f32 vcc, v8, v47", "v_ceil_f32 v8, v8", "s_nop 0", "v_cndmask_b32 v222, v44, v8, vcc"]
        for h in range(2):
            T += [f"v_sub_f32 v{48+8*h+k}, v{48+8*h+k}, v{R}" for k in range(8)]
            T += [f"v_exp_f32 v{48+8*h+k}, v{48+8*h+k}" for k in range(8)]
            if h == 0 and ch == 0: T += ["s_barrier"]
            if h == 0: T += [f"@ds_write_b32 v41, v{R} offset:{o}"]
            T += [f"v_cvt_pk_bf16_f32 v{168+4*h+k}, v{48+8*h+2*k}, v{49+8*h+2*k}" for k in range(4)]
            T += [f"@ds_write_b128 v43, v[{168+4*h}:{171+4*h}] offset:{o+1024*h}"]
        return T
    def lsum_ops(ch):
        T = [f"v_add_f32 v{48+k}, v{48+k}, v{56+k}" for k in range(8)]
        T += [f"v_add_f32 v{48+k}, v{48+k}, v{52+k}" for k in range(4)]
        T += ["v_add_f32 v48, v48, v50", "v_add_f32 v49, v49, v51"]
        if ch == 0: T += ["v_add_f32 v217, v48, v49"]
        else: T += ["v_add_f32 v48, v48, v49", "v_add_f32 v217, v217, v48", "@ds_write_b32 v41, v217 offset:1024"]
        return T
    def emit(x):
        if callable(x): return x()
        if x.startswith("@"): return L.op(x[1:])
        g(x)
    def kfix(P, waits=None):
        T = []
        for w in range(4):
            T += [f"v_sub_f32 v{12+w}, v44, v{12+w}", f"v_cvt_u32_f32 v{8+w}, v{12+w}", f"v_min_u32 v{8+w}, 0xff, v{8+w}", f"v_mul_u32_u24 v{8+w}, 0x800080, v{8+w}"]
            for kk in (2*w, 2*w+1):
                if waits is not None: T += [lambda kk=kk: L.wait(waits[kk])]
                T += [f"v_pk_sub_u16 v{P+4*kk+i}, v{P+4*kk+i}, v{8+w} clamp" for i in range(4)]
        return T
    def cost(x):
        if callable(x): return getattr(x, "c", 0)
        if x.startswith("v_exp"): return 2
        return 1
    def fill(q, budget):
        while q and budget > 0:
            x = q.pop(0); budget -= cost(x); emit(x)
        return budget
    def rdop(d, key, txt):
        def f(): d[key] = L.op(txt)
        f.c = 1
        return f
    order = [(kk, ct) for ct in range(4) for kk in range(8)]
    pvid = {}; rq = []
    def refill(cnt):
        n_ = 0
        while rq and n_ < cnt:
            key, x = rq.pop(0); pvid[key] = L.op(x); n_ += 1
        return n_
    def pv0(kk, ct):
        r = pvreg(kk, ct)
        c = "0" if kk == 0 else f"v[{64+16*ct}:{79+16*ct}]"
        g(f"v_mfma_f32_32x32x16_bf16 v[{64+16*ct}:{79+16*ct}], a[{r}:{r+3}], v[{128+4*kk}:{131+4*kk}], {c}")
    def flush_until(q, prefix):
        if any((not callable(x)) and x.startswith(prefix) for x in q):
            while True:
                x = q.pop(0); emit(x)
                if (not callable(x)) and x.startswith(prefix): break
            g("s_nop 1")
    if fine: g.stamp(1)
    if g.o["cyc"] == 2: g("s_memtime s[84:85]")
    n0_ = len(g.L); dpop(g.o["d1"]); g.nop(max(0, 12 - (len(g.L) - n0_)))
    acc_ = 0
    for x in sma_ops(0):
        emit(x); acc_ += cost(x)
        if g.o["dk"] and acc_ >= g.o["dk"]: dpop(); acc_ = 0
    dpop(g.o["d2"] if cpre else 100)
    if cpre == 0:
        for x in lsum_ops(0): emit(x)
    L.all()
    if cpre == 0: g("s_waitcnt vmcnt(0)")
    g("s_barrier")
    if fine: g.stamp(2)
    if g.o["cyc"] == 2: g("s_memtime s[86:87]")
    r0 = {}
    qr = [rdop(r0, "x", "ds_read_b128 v[12:15], v40"), rdop(r0, "ref", "ds_read_b128 v[168:171], v46")]
    qr += [rdop(r0, k, f"ds_read_b128 v[{128+4*k}:{131+4*k}], v42 offset:{1024*k}") for k in range(8)]
    q2 = [lambda: L.wait(r0["ref"]), "v_max3_f32 v9, v12, v13, v14", "v_max3_f32 v10, v169, v170, v171", "v_max3_f32 v9, v9, v15, v168", "v_max_f32 v44, v9, v10"]
    q2 += kfix(128, r0)
    q2 += ["v_sub_f32 v216, v216, v44", "v_exp_f32 v216, v216", f"v_add_f32 v47, 0x{f2u(float(g.o['thr'])):08x}, v44", "v_mul_f32 v217, v217, v216"]
    if cpre:
        for x in qr: emit(x)
        qr = []
        if g.o["dk"]: dpop()
        for x in lsum_ops(0): emit(x)
        if g.o["dk"]: dpop()
        flush_until(q2, "v_pk_sub_u16 v135,")
        for n, (kk, ct) in enumerate(order[:8*cpre]):
            if ct == 0: flush_until(q2, f"v_pk_sub_u16 v{128+4*kk+3},")
            pv0(kk, ct)
            fill(q2, 6 if ct == 0 else 4)
            if n % g.o["d3"] == 0: dpop()
            rq += [((kk, ct), x) for x in rdp_txt(kk, ct)]
        dpop(100)
        if g.o["cyc"] == 2: g("s_memtime s[94:95]")
        g(f"s_waitcnt vmcnt({3 if g.o['atq'] else 0})")
        g("s_barrier")
    if not g.o["cyc"]: g.stamp(4)
    if g.o["cyc"] == 2: g("s_memtime s[88:89]")
    D = 6
    ids = {}
    def rdc(s):
        r = 176 + 4*(s % 8)
        ids[s] = L.op(f"ds_read_b128 v[{r}:{r+3}], v{16+(s&7)} offset:{(s>>3)*256}")
    for s in range(D): rdc(s)
    oi = g.o["oi"]
    if oi:
        for k in range(4): g(f"v_mov_b32 v{172+k}, -1")
    for s in range(32):
        L.wait(ids[s])
        r = 176 + 4*(s % 8)
        c = "0" if s == 0 else "v[48:63]"
        g(f"v_mfma_f32_32x32x16_bf16 v[48:63], v[{r}:{r+3}], {qreg(s)}, {c}")
        if s + D < 32: rdc(s + D)
        at = g.o["ats"]
        if oi and s % 3 == 0 and s < 24:
            n_ = s // 3
            g(f"s_add_u32 s63, s65, {(n_&3)*8*32768}")
            g(f"buffer_store_dwordx4 v[172:175], v213, s[4:7], s63 offen offset:{(n_>>2)*128} sc1")
        elif s == at and not (g.o["tf"] >= 0 and g.o["tm"] & 1): g("buffer_load_dword v223, v218, s[44:47], s70 offen")
        elif s == at + 3 and not (g.o["tf"] >= 0 and g.o["tm"] & 2): g("buffer_load_dword v223, v218, s[48:51], s70 offen")
        elif s == at + 6 and not (g.o["tf"] >= 0 and g.o["tm"] & 4): g("buffer_load_dword v223, v219, s[52:55], s71 offen")
        elif qr: fill(qr, 2)
        elif q2 and (s >= 7 or cpre): fill(q2, 3)
        else: refill(2)
    fill(q2, 1000)
    if not g.o["cyc"]: g.stamp(5)
    if g.o["cyc"] == 2: g("s_memtime s[90:91]")
    q = sma_ops(1)
    r1 = {}
    qr = [rdop(r1, "x", "ds_read_b128 v[12:15], v40 offset:10240"), rdop(r1, "ref", "ds_read_b128 v[218:221], v46 offset:10240")]
    qr += [rdop(r1, k, f"ds_read_b128 v[{176+4*k}:{179+4*k}], v42 offset:{10240+1024*k}") for k in range(8)]
    state = 0; dist = 0
    for n, (kk, ct) in enumerate(order[8*cpre:]):
        pv0(kk, ct); dist += 1
        if state == 0:
            if dist < 12:
                k_ = refill(3); dist += k_
                if k_ < 3: g.nop(3 - k_); dist += 3 - k_
            else:
                fill(q, fb)
                if not q:
                    last_w = L.n; state = 1
        elif state == 1:
            L.wait(last_w); g("s_barrier"); state = 2
            fill(qr, 3)
        elif state == 2:
            if qr: fill(qr, 3)
            else: refill(3)
        rq += [((kk, ct), x) for x in rdp_txt(kk, ct)]
    if state == 0:
        if dist < 12: g.nop(12 - dist)
        fill(q, 1000); last_w = L.n; state = 1
    if state == 1:
        L.wait(last_w); g("s_barrier")
    fill(qr, 1000)
    L.wait(r1["ref"])
    g("v_max3_f32 v9, v12, v13, v14"); g("v_max3_f32 v10, v219, v220, v221"); g("v_max3_f32 v9, v9, v15, v218"); g("v_max_f32 v9, v9, v10")
    g("v_cmp_neq_f32 vcc, v9, v44")
    g("s_cbranch_vccnz L_A_slow")
    g("L_A_back:")
    slow = ["L_A_slow:", "s_waitcnt lgkmcnt(0)", "v_sub_f32 v47, v44, v9", "v_sub_f32 v222, v222, v9", "v_mov_b32 v44, v9", "v_exp_f32 v47, v47", "v_exp_f32 v222, v222"] + kfix(176) + \
           [f"v_mul_f32 v{64+k}, v47, v{64+k}" for k in range(64)] + ["v_mul_f32 v217, v47, v217"] + \
           [f"v_mul_f32 v{48+k}, v222, v{48+k}" for k in range(16)] + ["s_branch L_A_back"]
    g.slow = slow
    if fine: g.stamp(10)
    if g.o["cyc"] == 2: g("s_memtime s[92:93]")
    def epi_w(ct, qq):
        b = 128+8*(ct&1)+4*qq
        return [f"v_cvt_pk_bf16_f32 v{b+k}, v{64+16*ct+8*qq+2*k}, v{65+16*ct+8*qq+2*k}" for k in range(4)] + \
               [f"@ds_write_b128 v{208+2*(ct&1)+qq}, v[{b}:{b+3}] offset:{(ct>>1)*128}"]
    er = {}
    def epi_r(half):
        return [rdop(er, (half, n_), f"ds_read_b128 v[{224+16*half+4*n_}:{227+16*half+4*n_}], v212 offset:{n_*8192+half*128}") for n_ in range(4)]
    def epi_s(half, n_):
        def f():
            L.wait(er[(half, n_)])
            if g.o["oi"] and half == 0 and n_ == 0: g("s_waitcnt vmcnt(0)")
            g(f"s_add_u32 s63, s65, {n_*8*32768}")
            g(f"buffer_store_dwordx4 v[{224+16*half+4*n_}:{227+16*half+4*n_}], v213, s[4:7], s63 offen offset:{half*128} sc1")
        f.c = g.o['sc']
        return f
    def pad():
        pass
    pad.c = 4
    lw = {}
    def mark(): lw["w"] = L.n
    def lbar(): L.wait(lw["w"]); g("s_barrier")
    lbar.c = 2
    q = lsum_ops(1) + [mark]
    ql = [lbar, rdop(lw, "a", "ds_read_b128 v[52:55], v40 offset:1024"), rdop(lw, "b", "ds_read_b128 v[56:59], v46 offset:1024")]
    ql2 = [lambda: L.wait(lw["b"])] + [f"v_add_f32 v{52+w}, v{52+w}, v{56+w}" for w in range(4)] + \
        ["v_add_f32 v52, v52, v53", "v_add_f32 v54, v54, v55", "v_add_f32 v45, v52, v54"] + \
        [f"@ds_bpermute_b32 v{60+i}, v215, v{44+(i&1)}" for i in range(4)]
    wdone = 0
    ld = g.o["ld"]
    if ld:
        qlate = (q if ld == 2 else []) + ql + ql2
        if ld == 2: q = []
        ql = []; ql2 = []
    def cyc(k):
        if g.o["cyc"] == 1: g(f"s_memtime s[{80+2*k}:{81+2*k}]")
    for n, (kk, ct) in enumerate(order):
        r = pvreg(kk, ct)
        if kk == 0: cyc(1 + ct)
        while (kk, ct) not in pvid or any(k == (kk, ct) for k, _ in rq): refill(1)
        if ct == 0: L.wait(r1[kk])
        L.wait(pvid[(kk, ct)])
        g(f"v_mfma_f32_32x32x16_bf16 v[{64+16*ct}:{79+16*ct}], a[{r}:{r+3}], v[{176+4*kk}:{179+4*kk}], v[{64+16*ct}:{79+16*ct}]")
        nm_ = len(g.L)
        b = 4 - refill(g.o["rf"])
        if kk == 0: since = 0
        if not rq and wdone < ct and since >= 11:
            q += epi_w(wdone, 0) + epi_w(wdone, 1)
            if wdone == 0: q += ql
            if wdone == 1: q += epi_r(0) + ql2 + [pad] * g.o["sp"] + [epi_s(0, n_) for n_ in range(4)]
            wdone += 1
        b = fill(q, b)
        em = len(g.L) - nm_
        if em < 4 and wdone < ct and since + em < 11:
            g.nop(4 - em); em = 4
        since += 1 + em
    while wdone < 3:
        q += epi_w(wdone, 0) + epi_w(wdone, 1)
        if wdone == 0: q += ql
        if wdone == 1: q += epi_r(0) + ql2 + [pad] * g.o["sp"] + [epi_s(0, n_) for n_ in range(4)]
        wdone += 1
    n0_ = len(g.L)
    fill(q, 1000)
    if g.o["fine2"]: g.stamp(1)
    cyc(5)
    g.nop(max(0, 12 - (len(g.L) - n0_)))
    for x in epi_w(3, 0) + epi_w(3, 1) + epi_r(1) + [epi_s(1, n_) for n_ in range(4)]: emit(x)
    g.stamp(9)
    cyc(6)
    if ld:
        for x in qlate: emit(x)
        L.all()
    if g.o["ta"]:
        g("v_mul_u32_u24 v218, 2752, v5"); g("v_mul_u32_u24 v9, 92, v6"); g("v_add_u32 v218, v218, v9"); g("v_lshlrev_b32 v219, 6, v1")
    if g.o["fsb"]: ffn_setup(g)
    if not g.o["oi"]: g("s_waitcnt vmcnt(0)")
    g("s_barrier")
    g("buffer_store_dwordx4 v[60:63], v214, s[4:7], s79 offen sc1")
    if g.o["ta"]:
        g("buffer_load_dword v223, v218, s[44:47], s70 offen"); g("buffer_load_dword v223, v218, s[48:51], s70 offen"); g("buffer_load_dword v223, v219, s[52:55], s71 offen")
    if not fine: g.stamp(10)

def gen(opts):
    g = G(opts)
    g("s_load_dwordx16 s[16:31], s[0:1], 0")
    g("s_load_dwordx8 s[32:39], s[0:1], 64")
    g("s_load_dwordx2 s[40:41], s[0:1], 96")
    g("s_cmp_ge_u32 s2, 256"); g("s_cbranch_scc1 L_end")
    g.stamp(0)
    g("s_getpc_b64 s[4:5]")
    g("s_and_b32 s5, s5, 0xffff"); g("s_mov_b32 s6, L_end - L_pcv"); g("s_mov_b32 s7, 0x20000")
    g("L_pcv:")
    g("s_bfe_u32 s62, s2, 0x40003"); g("s_lshl_b32 s62, s62, 12")
    g("v_lshlrev_b32 v1, 4, v0")
    g("buffer_load_dwordx4 v[252:255], v1, s[4:7], s62 offen")
    g("v_lshrrev_b32 v2, 6, v0"); g("v_and_b32 v1, 63, v0")
    g("v_readfirstlane_b32 s3, v2")
    g("v_and_b32 v2, 15, v0"); g("v_lshrrev_b32 v3, 4, v1")
    g("s_and_b32 s62, s2, 7"); g("s_lshr_b32 s43, s2, 4"); g("s_lshl_b32 s42, s43, 3"); g("s_or_b32 s42, s42, s62")
    g("s_and_b32 s73, s43, 3")
    g("s_lshr_b32 s43, s43, 2")
    g("s_lshl_b32 s72, s62, 2"); g("s_or_b32 s72, s72, s43")
    g("s_lshl_b32 s43, s43, 3"); g("s_or_b32 s43, s43, s62")
    g("s_mov_b32 s60, 0x05040100"); g("s_mov_b32 s61, 0x07060302")
    if opts.get("stamps"):
        for k in range(82, 102): g(f"s_mov_b32 s{k}, 0")
    g("s_bitcmp1_b32 s2, 3")
    g("s_cbranch_scc1 L_A")
    tcu(g)
    g("L_A:")
    acu(g)
    if not g.o["fsb"]: ffn_setup(g)
    g(f"s_cmp_lt_u32 s66, {NSL}"); g("s_cbranch_scc1 L_FW")
    g("s_cmp_lg_u32 s66, 31"); g("s_cbranch_scc1 L_fin")
    x_issue(g); g("s_waitcnt vmcnt(0)"); x_finish(g)
    g("s_branch L_FFN")
    g("L_FW:")
    x_issue(g)
    if g.o["fw"]: g("s_waitcnt vmcnt(0)")
    ffn_issue(g); ffn_finish(g)
    if not g.o["fine"] and not g.o["cyc"]: g.stamp(6)
    if g.o["ec"]:
        g(f"s_mov_b32 s65, {SPIN}")
        for k in range(24): g(f"v_mov_b32 v{192+k}, 0")
        g("s_waitcnt vmcnt(0)")
        g("v_cmp_eq_u32 vcc, -1, v14")
        g("s_cbranch_vccz L_FGO")
    g("L_FFN:")
    ffn_stage(g)
    g("L_fin:")
    if opts["probe"]:
        wg, k = [int(x) for x in opts["probe"].split(",")]
        g("s_waitcnt lgkmcnt(0)")
        g(f"s_cmp_lg_u32 s2, {wg}"); g("s_cbranch_scc1 L_end")
        g("s_cmp_lg_u32 s3, 0"); g("s_cbranch_scc1 L_end")
        g(f"s_sub_u32 s64, s{80+2*k}, s80"); g("s_mul_i32 s64, s64, 20"); g("s_min_u32 s64, s64, 100000")
        g("s_memrealtime s[62:63]"); g("s_waitcnt lgkmcnt(0)"); g("s_add_u32 s64, s64, s62")
        g("L_pr:")
        g("s_sleep 2")
        g("s_memrealtime s[62:63]"); g("s_waitcnt lgkmcnt(0)")
        g("s_sub_u32 s62, s62, s64"); g("s_cmp_lt_i32 s62, 0"); g("s_cbranch_scc1 L_pr")
    elif opts.get("stamps"):
        nst = 11
        g("s_waitcnt lgkmcnt(0)")
        g("s_cmp_lg_u32 s3, 0"); g("s_cbranch_scc1 L_end")
        g("s_mov_b64 exec, 1")
        g(f"s_mul_i32 s62, s2, {nst*8}"); g(f"s_add_u32 s62, s62, {WS - 256*nst*8}")
        g("v_mov_b32 v3, 0")
        for k in range(nst):
            g(f"v_mov_b32 v4, s{80+2*k}"); g(f"v_mov_b32 v5, s{81+2*k}")
            g(f"buffer_store_dwordx2 v[4:5], v3, s[4:7], s62 offen offset:{8*k}")
            g("s_nop 1")
    g("L_end:")
    g("s_endpgm")
    for x in g.slow + getattr(g, "slow0", []): g(x)
    hdr = open("hdr.txt").read()
    return hdr + "; @launch grid=(256,1,1) block=(256,1,1) lds=163840\n" + '.amdgcn_target "amdgcn-amd-amdhsa--gfx950"\n.text\n' + kstart(KN) + "\n".join(g.L) + "\n" + kdesc(KN, vgpr=512, accum=256).replace(".text\n", "")

if __name__ == "__main__":
    import argparse
    ap = argparse.ArgumentParser()
    ap.add_argument("out"); ap.add_argument("--stamps", action="store_true")
    ap.add_argument("--thr", type=float, default=30); ap.add_argument("--probe", default=""); ap.add_argument("--pflag", default=""); ap.add_argument("--cf0", default="nt")
    for k, v in (("fine", 0), ("fine2", 0), ("tsleep", 1), ("fsleep", 1), ("fb", 7), ("cpre", 2), ("d0", 8), ("dn", 12), ("d1", 4), ("d2", 4), ("d3", 1), ("sc", 4),
                 ("ats", 1), ("nb", 3), ("rep", 0), ("eg", 1), ("fsb", 0), ("xnp", 0), ("osc", 0), ("tord", 0), ("oi", 0), ("cls", 0), ("cu", 1), ("pb", 1), ("sw", 1), ("atq", 0), ("fi", 0), ("mix", 0), ("mw", 0), ("p5", 1), ("pp", 6), ("rot", 11), ("skew", 0), ("fw", 1), ("ec", 0), ("pf1", 0), ("pf2", 0), ("aw", 3), ("ld", 2), ("sp", 0), ("dk", 0), ("nd2", 0), ("tf", -1), ("ta", 0), ("co", 1), ("tm", 7), ("po", 0), ("cyc", 0), ("rf", 3)): ap.add_argument("--" + k, type=int, default=v)
    a = ap.parse_args()
    open(a.out, "w").write(gen(vars(a)))
```
